```python
import torch

def _softmax(x, axis=-1):
    return torch.softmax(x, dim=axis)
def _gelu(x):
    return torch.nn.functional.gelu(x, approximate="tanh")
def _silu(x):
    return torch.nn.functional.silu(x)
def _sigmoid(x):
    return torch.sigmoid(x)
def _layernorm(x, axis=-1, eps=1e-5):
    m = x.mean(dim=axis, keepdim=True)
    v = x.var(dim=axis, keepdim=True, unbiased=False)
    return (x - m) / torch.sqrt(v + eps)
def _scatter_add(tgt, idx, src, axis=0):
    return tgt.clone().index_add_(axis, idx, src)
def _segment_sum(src, seg, n):
    out = torch.zeros((n,) + src.shape[1:], dtype=src.dtype)
    return out.index_add_(0, seg, src)
def _pad(x, pw):
    flat = tuple(v for pair in reversed(pw) for v in pair)
    return torch.nn.functional.pad(x, flat)

kernel_name = 'recurrent_scan__ssm_conv_s5__dense_activation_mish__prompt'

def setup_inputs():

    _w = (lambda a: (lambda t: t.to(torch.bfloat16) if t.is_floating_point() else t)(torch.as_tensor(a)))
    def _A_setup():
        B, S, D = 1, 2048, 512
        P = D
        Lambda_re = -0.5 * (lambda _x: torch.exp(torch.as_tensor(_x)))((lambda *s: torch.randn(*s, dtype=torch.bfloat16) * 0.8)(P))
        Lambda_im = (lambda *s: torch.randn(*s, dtype=torch.bfloat16) * 0.8)(P) * 1.0
        B_re = (lambda *s: torch.randn(*s, dtype=torch.bfloat16) * 0.8)(P, D) * (D ** -0.5)
        B_im = (lambda *s: torch.randn(*s, dtype=torch.bfloat16) * 0.8)(P, D) * (D ** -0.5)
        C_re = (lambda *s: torch.randn(*s, dtype=torch.bfloat16) * 0.8)(D, P) * (P ** -0.5)
        C_im = (lambda *s: torch.randn(*s, dtype=torch.bfloat16) * 0.8)(D, P) * (P ** -0.5)
        log_dt = (lambda *s: torch.randn(*s, dtype=torch.bfloat16) * 0.8)(P) * 0.3 - 2.0
        Dskip = (lambda *s: torch.randn(*s, dtype=torch.bfloat16) * 0.4)(D)
        return {
            "x": _w((lambda *s: torch.randn(*s, dtype=torch.bfloat16) * 0.05)(B, S, D)),
            "Lambda_re": _w(Lambda_re),
            "Lambda_im": _w(Lambda_im),
            "B_re": _w(B_re),
            "B_im": _w(B_im),
            "C_re": _w(C_re),
            "C_im": _w(C_im),
            "log_dt": _w(log_dt),
            "Dskip": _w(Dskip),
        }
    _A_in = _A_setup()

    def _B_setup():
        B, S, D, F = 1, 2048, 512, 1792
        return {
            "x": _w((lambda *s: torch.randn(*s, dtype=torch.bfloat16) * 0.05)(B, S, D)),
            "w1": _w((lambda *s: torch.randn(*s, dtype=torch.bfloat16) * 0.8)(D, F) * (D ** -0.5)),
            "b1": _w((lambda *s: torch.randn(*s, dtype=torch.bfloat16) * 0.8)(F)),
            "w2": _w((lambda *s: torch.randn(*s, dtype=torch.bfloat16) * 0.1)(F, D) * (F ** -0.5)),
        }
    _B_in = _B_setup()

    return {
        "A_x": _A_in["x"],
        "A_Lambda_re": _A_in["Lambda_re"],
        "A_Lambda_im": _A_in["Lambda_im"],
        "A_B_re": _A_in["B_re"],
        "A_B_im": _A_in["B_im"],
        "A_C_re": _A_in["C_re"],
        "A_C_im": _A_in["C_im"],
        "A_log_dt": _A_in["log_dt"],
        "A_Dskip": _A_in["Dskip"],
        "B_x": _B_in["x"],
        "B_w1": _B_in["w1"],
        "B_b1": _B_in["b1"],
        "B_w2": _B_in["w2"],
    }

def reference(A_x, A_Lambda_re, A_Lambda_im, A_B_re, A_B_im, A_C_re, A_C_im, A_log_dt, A_Dskip, B_x, B_w1, B_b1, B_w2):
    def _A_ref(x, Lambda_re, Lambda_im, B_re, B_im, C_re, C_im, log_dt, Dskip):
        Bsz, L, H = x.shape
        Lam = Lambda_re + 1j * Lambda_im
        Bmat = B_re + 1j * B_im
        Cmat = C_re + 1j * C_im
        dt = torch.exp(log_dt)
        Lam_bar = torch.exp(dt * Lam)
        B_bar = ((Lam_bar - 1.0) / Lam)[:, None] * Bmat
        Bu = torch.einsum("bld,pd->blp", x + 0j, B_bar)
        h = torch.zeros_like(Bu[:, 0, :])
        hs = []
        for t in range(L):
            h = Lam_bar[None, :] * h + Bu[:, t, :]
            hs.append(h)
        hseq = torch.stack(hs, 1)
        y = 2.0 * torch.einsum("blp,dp->bld", hseq, Cmat).real + x * Dskip[None, None, :]
        return y

    def _B_ref(x, w1, b1, w2):
        h = torch.einsum("bsd,df->bsf", x, w1) + b1
        sp = torch.log1p(torch.exp(-torch.abs(h))) + torch.where(h > 0, h, torch.zeros_like(h))
        act = h * torch.tanh(sp)
        return torch.einsum("bsf,fd->bsd", act, w2)

    x = A_x
    xn = _layernorm(x, axis=-1)
    s = _A_ref(xn, A_Lambda_re, A_Lambda_im, A_B_re, A_B_im, A_C_re, A_C_im, A_log_dt, A_Dskip)
    g = _silu(_B_ref(xn, B_w1, B_b1, B_w2))
    return x + s * g
```

```python
KN = "recurrent_scan__ssm_conv_s5__dense_activation_mish__prompt"
HEAD = open("cdna_kernels/%s.s.ref" % KN).read().split("; Override launch")[0]
class Asm:
    def __init__(self):
        self.l = []
    def __call__(self, s):
        for x in s.strip("\n").split("\n"):
            self.l.append(x if x.strip().endswith(":") else "    " + x.strip())
    def text(self):
        return "\n".join(self.l) + "\n"
def kernel_text(name, body, vgpr=256, sgpr=102, accum=256, extra=""):
    return f""".text
.globl {name}
.p2align 8
.type {name},@function
{name}:
{body}
.section .rodata,"a"
.p2align 6
.amdhsa_kernel {name}
  .amdhsa_next_free_vgpr {vgpr}
  .amdhsa_next_free_sgpr {sgpr}
  .amdhsa_accum_offset {accum}
  .amdhsa_group_segment_fixed_size 0
  .amdhsa_kernarg_size 128
  .amdhsa_user_sgpr_count 2
  .amdhsa_user_sgpr_kernarg_segment_ptr 1
  .amdhsa_system_sgpr_workgroup_id_x 1
{extra}.end_amdhsa_kernel
"""
def write_single(path, body, grid, block, lds, **kw):
    t = HEAD + f"; @launch grid=({grid},1,1) block=({block},1,1) lds={lds}\n" + '.amdgcn_target "amdgcn-amd-amdhsa--gfx950"\n' + kernel_text(KN + "_kernel", body, **kw)
    open(path, "w").write(t)
def write_list(path, kernels, launches):
    t = HEAD + "".join(f"; @launch kernel={n} grid=({g},1,1) block=({b},1,1) lds={l}\n" for n, g, b, l in launches)
    t += '.amdgcn_target "amdgcn-amd-amdhsa--gfx950"\n'
    for n, body, kw in kernels:
        t += kernel_text(n, body, **kw)
    open(path, "w").write(t)
```

```python
import sys
from gen import HEAD, KN, kernel_text

WS_EPOCH = 0
WS_STATS = 4096
WS_CARRY = 64 << 10
WS_FLAGS = 1 << 20
WS_HID = 2 << 20
WS_STAMP = 200 << 20
WS_BYTES = 0x10000000
XR, WR, BR, SP, MISC = 0, 49152, 98304, 122880, 155648
L_MS, L_RR, L_EXTW, L_EXTB = MISC, MISC + 512, MISC + 1024, MISC + 2048
LDS_BYTES = 163840
LOG2E = 0x3fb8aa3b
LN2 = 0x3f317218


def ring_buf(slot, i):
    return (XR + slot * 16384 + 8192 * i) if i < 2 else (WR + slot * 16384 + 8192 * (i - 2))


def wave_buf(w, p):
    if w >= 4:
        return SP + 8192 * (w - 4) if p == 0 else ring_buf(2, w - 4)
    return ring_buf(0, w) if p == 0 else ring_buf(1, w)


U0 = [0, 5, 34, 39, 16, 22, 10, 28]
IS_Y = [1, 1, 0, 0, 0, 0, 1, 0]

S_X, S_B, S_W, S_WS = 4, 8, 12, 16
sW, sXCD, sJ, sMT, sNT, sL0, sC0, sM2, sN2 = 24, 25, 26, 27, 28, 29, 30, 31, 32
pX, pLRE, pLIM, pBRE, pBIM, pCRE, pCIM, pDT, pD, pW1, pB1, pW2, pOUT, pWS = 36, 38, 40, 42, 44, 46, 48, 50, 52, 56, 58, 60, 62, 66
sT0, sT1, sT2, sT3 = 20, 21, 22, 23
sKX, sKB, sKW, sBX, sBB, sBW, sMX, sMB, sMASK, sSPIN = 68, 69, 70, 71, 72, 73, 74, 75, 76, 77
sUN = 78
sBUF0, sBUF1, sHID, sFLG, sCI, sMH, sHW = 84, 85, 86, 87, 88, 89, 90
sSTAMP = 92
SPIN_MAX = 400000


class P:
    def __init__(self, opt):
        self.l = []
        self.vm = []
        self.opt = opt
        self.nlab = 0

    def __call__(self, s):
        for x in s.strip("\n").split("\n"):
            x = x.strip()
            if not x:
                continue
            self.l.append(x if x.endswith(":") else "    " + x)

    def vmem(self, s, tag=None):
        self(s)
        self.vm.append(tag)

    def wait_vm(self, tag):
        idx = max(i for i, t in enumerate(self.vm) if t == tag)
        n = len(self.vm) - 1 - idx
        assert n <= 63, n
        self(f"s_waitcnt vmcnt({n})")

    def label(self, base):
        self.nlab += 1
        return f"L_{base}_{self.nlab}"

    def stamp(self, i):
        if self.opt.get("stamps"):
            self(f"s_memrealtime s[{sT2}:{sT3}]\ns_waitcnt lgkmcnt(0)\ns_mov_b32 s{sSTAMP + i}, s{sT2}")

    def text(self):
        return "\n".join(self.l) + "\n"


def vr(a, n=1):
    return f"v{a}" if n == 1 else f"v[{a}:{a + n - 1}]"


def srd(p, d, ptr, nbytes):
    p(f"""
    s_mov_b32 s{d}, s{ptr}
    s_mov_b32 s{d + 1}, s{ptr + 1}
    s_mov_b32 s{d + 2}, {nbytes}
    s_mov_b32 s{d + 3}, 0x00020000
    """)


def interleave(p, a, b):
    def em(x):
        x() if callable(x) else p(x)
    na, nb = len(a), len(b)
    ib = 0
    for i, x in enumerate(a):
        em(x)
        tgt = (i + 1) * nb // na
        while ib < tgt:
            em(b[ib]); ib += 1
    while ib < nb:
        em(b[ib]); ib += 1


vL, vTAG, vT0, vT1, vT2, vT3, vFA, vL16 = 0, 1, 2, 3, 4, 5, 6, 7


def rowfrag_addr(p, dst, base_const=0, sbase=None):
    p(f"""
    v_and_b32 v{vT0}, 31, v{vL}
    v_bfe_u32 v{vT1}, v{vL}, 1, 3
    v_lshrrev_b32 v{vT2}, 5, v{vL}
    v_xor_b32 v{vT1}, v{vT1}, v{vT2}
    v_lshlrev_b32 v{vT1}, 4, v{vT1}
    v_lshl_add_u32 v{dst}, v{vT0}, 7, v{vT1}
    """)
    if base_const:
        p(f"v_add_u32 v{dst}, {base_const}, v{dst}")
    if sbase is not None:
        p(f"v_add_u32 v{dst}, s{sbase}, v{dst}")


def w1_tr_addr0(p, dst):
    p(f"""
    v_lshrrev_b32 v{vT0}, 5, v{vL}
    v_bfe_u32 v{vT1}, v{vL}, 2, 2
    v_lshl_add_u32 v{vT0}, v{vT0}, 3, v{vT1}
    v_lshlrev_b32 v{vT0}, 8, v{vT0}
    v_lshl_add_u32 v{vT0}, v{vT1}, 6, v{vT0}
    v_bfe_u32 v{vT1}, v{vL}, 4, 1
    v_lshl_add_u32 v{vT0}, v{vT1}, 5, v{vT0}
    v_and_b32 v{vT1}, 3, v{vL}
    v_lshl_add_u32 v{vT0}, v{vT1}, 3, v{vT0}
    v_add_u32 v{dst}, {WR}, v{vT0}
    """)


def make_tag(p):
    p(f"""
    s_mov_b32 s{sT0}, 0x9E3779B1
    v_mul_lo_u32 v{vTAG}, v{vTAG}, s{sT0}
    v_add_u32 v{vTAG}, 0x7F4A7C15, v{vTAG}
    """)


def spin_tail(p, back):
    done = p.label("done")
    p(f"""
    s_cbranch_vccz {done}
    s_sub_u32 s{sSPIN}, s{sSPIN}, 1
    s_cmp_gt_i32 s{sSPIN}, 0
    s_cbranch_scc1 {back}
    {done}:
    """)


def entry(p):
    o = p.opt
    p(f"""
    s_load_dwordx16 s[36:51], s[0:1], 0
    s_load_dwordx16 s[52:67], s[0:1], 64
    s_getpc_b64 s[34:35]
    L_pc:
    s_cmp_ge_u32 s2, 256
    s_cbranch_scc1 L_end
    v_lshrrev_b32 v{vT0}, 6, v0
    s_lshr_b32 s{sJ}, s2, 3
    v_and_b32 v{vL}, 63, v0
    v_readfirstlane_b32 s{sW}, v{vT0}
    v_lshl_add_u32 v{vT0}, s{sJ}, 3, v{vT0}
    v_lshlrev_b32 v{vT0}, 7, v{vT0}
    v_min_u32 v{vT0}, L_end-L_pc, v{vT0}
    """)
    p.vmem(f"global_load_dword v255, v{vT0}, s[34:35]", "pf")
    if o.get("stamps"):
        p(f"s_memrealtime s[{sSTAMP}:{sSTAMP + 1}]")
    p(f"""
    s_and_b32 s{sXCD}, s2, 7
    s_and_b32 s{sT0}, s{sJ}, 7
    s_lshr_b32 s{sT1}, s{sJ}, 3
    s_lshr_b32 s{sMT}, s{sXCD}, 2
    s_lshl_b32 s{sMT}, s{sMT}, 3
    s_add_u32 s{sMT}, s{sMT}, s{sT0}
    s_and_b32 s{sT2}, s{sXCD}, 3
    s_lshl_b32 s{sNT}, s{sT2}, 2
    s_add_u32 s{sNT}, s{sNT}, s{sT1}
    s_mul_i32 s{sL0}, s{sT2}, 7
    s_lshl_b32 s{sT3}, s{sT1}, 1
    s_add_u32 s{sL0}, s{sL0}, s{sT3}
    """)
    rot = o.get("rot", "full")
    if rot == "full":
        p(f"""
        s_add_u32 s{sC0}, s{sT0}, s{sT3}
        s_and_b32 s{sT2}, s{sXCD}, 1
        s_add_u32 s{sC0}, s{sC0}, s{sT2}
        """)
    elif rot == "none":
        p(f"s_mov_b32 s{sC0}, 0")
    elif rot == "xcd":
        p(f"s_mov_b32 s{sC0}, s{sXCD}")
    elif rot == "half":
        p(f"""
        s_add_u32 s{sC0}, s{sT0}, s{sT1}
        s_and_b32 s{sC0}, s{sC0}, 1
        s_lshl_b32 s{sC0}, s{sC0}, 2
        s_add_u32 s{sC0}, s{sC0}, s{sXCD}
        """)
    elif rot == "quad":
        p(f"""
        s_add_u32 s{sC0}, s{sT0}, s{sT1}
        s_and_b32 s{sC0}, s{sC0}, 3
        s_lshl_b32 s{sC0}, s{sC0}, 1
        s_lshr_b32 s{sT2}, s{sXCD}, 2
        s_add_u32 s{sT2}, s{sT2}, s{sXCD}
        s_add_u32 s{sC0}, s{sC0}, s{sT2}
        """)
    p(f"""
    s_cmp_lt_u32 s{sW}, 4
    s_cbranch_scc1 L_A
    """)


def ph2_ids(p):
    p(f"""
    s_and_b32 s{sT0}, s{sJ}, 3
    s_lshl_b32 s{sM2}, s{sXCD}, 2
    s_add_u32 s{sM2}, s{sM2}, s{sT0}
    s_lshr_b32 s{sN2}, s{sJ}, 2
    s_mov_b32 s{sSPIN}, {SPIN_MAX}
    """)


vOX, vOB, vOW, vCW, vCB = 8, 12, 14, 18, 19
vCA = 21
vST = 26
vSA = 25
vCD = 32
vCT = 56


def helper_ph1(p):
    o = p.opt
    p(f"""
    s_sub_u32 s{sHW}, s{sW}, 4
    v_lshrrev_b32 v{vT0}, 4, v{vL}
    v_and_b32 v{vT1}, 7, v{vL}
    v_xor_b32 v{vT1}, v{vT1}, v{vT0}
    v_lshlrev_b32 v{vT1}, 4, v{vT1}
    v_bfe_u32 v{vT2}, v{vL}, 3, 2
    v_lshl_add_u32 v{vT1}, v{vT2}, 10, v{vT1}
    v_lshrrev_b32 v{vT2}, 5, v{vL}
    v_lshl_add_u32 v{vOX}, v{vT2}, 15, v{vT1}
    v_lshl_add_u32 v{vOB}, v{vT2}, 13, v{vT1}
    v_xor_b32 v{vOX + 1}, 64, v{vOX}
    v_xor_b32 v{vOB + 1}, 64, v{vOB}
    v_add_u32 v{vOX + 1}, 3072, v{vOX + 1}
    v_add_u32 v{vOB + 1}, 3072, v{vOB + 1}
    v_add_u32 v{vOX + 2}, 6144, v{vOX}
    v_add_u32 v{vOX + 3}, 6144, v{vOX + 1}
    v_bfe_u32 v{vT1}, v{vL}, 2, 2
    v_xor_b32 v{vT1}, v{vT1}, v{vT0}
    v_mul_u32_u24 v{vOW}, 3584, v{vT0}
    v_lshl_add_u32 v{vOW}, v{vT1}, 6, v{vOW}
    v_and_b32 v{vT2}, 3, v{vL}
    v_lshl_add_u32 v{vOW}, v{vT2}, 4, v{vOW}
    s_lshr_b32 s{sT1}, s{sJ}, 3
    s_cmp_eq_u32 s{sT1}, 3
    s_cselect_b32 s{sT1}, 0x40000000, 0
    v_lshrrev_b32 v{vT1}, 1, v{vT1}
    v_mul_lo_u32 v{vT1}, v{vT1}, s{sT1}
    v_add_u32 v{vOW}, v{vOW}, v{vT1}
    v_add_u32 v{vOW + 1}, 13312, v{vOW}
    v_add_u32 v{vOW + 2}, 26624, v{vOW}
    v_add_u32 v{vOW + 3}, 39936, v{vOW}
    s_lshr_b32 s{sT0}, s{sHW}, 1
    s_and_b32 s{sT1}, s{sHW}, 1
    s_lshl_b32 s{sBX}, s{sMT}, 17
    s_lshl_b32 s{sT2}, s{sT0}, 16
    s_add_u32 s{sBX}, s{sBX}, s{sT2}
    s_lshl_b32 s{sT2}, s{sT1}, 14
    s_add_u32 s{sBX}, s{sBX}, s{sT2}
    s_lshl_b32 s{sBB}, s{sNT}, 15
    s_lshl_b32 s{sT2}, s{sT0}, 14
    s_add_u32 s{sBB}, s{sBB}, s{sT2}
    s_lshl_b32 s{sBW}, s{sL0}, 7
    s_mul_i32 s{sT2}, s{sHW}, {16 * 3584}
    s_add_u32 s{sBW}, s{sBW}, s{sT2}
    s_lshl_b32 s{sMX}, s{sHW}, 12
    s_lshl_b32 s{sMB}, s{sT1}, 12
    s_lshl_b32 s{sT2}, s{sT0}, 11
    s_add_u32 s{sMB}, s{sMB}, s{sT2}
    s_cmp_eq_u32 s{sT1}, 0
    s_waitcnt lgkmcnt(0)
    s_cselect_b32 s{S_B}, s{pBRE}, s{pBIM}
    s_cselect_b32 s{S_B + 1}, s{pBRE + 1}, s{pBIM + 1}
    s_mov_b32 s{S_B + 2}, {512 * 1024}
    s_mov_b32 s{S_B + 3}, 0x00020000
    """)
    srd(p, S_X, pX, 2048 * 1024)
    srd(p, S_W, pW1, 512 * 3584)

    def dma_list(c):
        slot = c % 3
        L = []

        def head():
            p(f"""
            s_add_u32 s{sT0}, s{sC0}, {c}
            s_and_b32 s{sT0}, s{sT0}, 7
            s_lshl_b32 s{sT1}, s{sT0}, 7
            s_add_u32 s{sKX}, s{sBX}, s{sT1}
            s_add_u32 m0, s{sMX}, {XR + slot * 16384}
            s_add_u32 s{sKB}, s{sBB}, s{sT1}
            """)
            p.vmem(f"buffer_load_dwordx4 v{vOX}, s[{S_X}:{S_X + 3}], s{sKX} offen lds", ("c", c))
            p(f"""
            s_mul_i32 s{sT0}, s{sT0}, {64 * 3584}
            s_add_u32 s{sKW}, s{sBW}, s{sT0}
            """)
        L.append(head)
        for i in range(1, 4):
            L.append(lambda i=i: p.vmem(f"buffer_load_dwordx4 v{vOX + i}, s[{S_X}:{S_X + 3}], s{sKX} offen offset:{1024 * i} lds", ("c", c)))

        def b0():
            p(f"s_add_u32 m0, s{sMB}, {BR + slot * 8192}\ns_nop 0")
            p.vmem(f"buffer_load_dwordx4 v{vOB}, s[{S_B}:{S_B + 3}], s{sKB} offen lds", ("c", c))
        L.append(b0)
        L.append(lambda: p.vmem(f"buffer_load_dwordx4 v{vOB + 1}, s[{S_B}:{S_B + 3}], s{sKB} offen offset:1024 lds", ("c", c)))

        def w0():
            p(f"s_add_u32 m0, s{sMX}, {WR + slot * 16384}\ns_nop 0")
            p.vmem(f"buffer_load_dwordx4 v{vOW}, s[{S_W}:{S_W + 3}], s{sKW} offen lds", ("c", c))
        L.append(w0)
        for i in range(1, 4):
            L.append(lambda i=i: p.vmem(f"buffer_load_dwordx4 v{vOW + i}, s[{S_W}:{S_W + 3}], s{sKW} offen offset:{1024 * i} lds", ("c", c)))
        return L

    for f in dma_list(0):
        f()
    p.stamp(1)
    srd(p, S_WS, pWS, WS_BYTES)
    p.vmem(f"buffer_load_dword v{vTAG}, off, s[{S_WS}:{S_WS + 3}], 0 sc1", "epoch")
    w1_tr_addr0(p, vCW)
    p(f"""
    s_lshl_b32 s{sT0}, s{sHW}, 6
    v_xor_b32 v{vCW}, s{sT0}, v{vCW}
    """)
    rowfrag_addr(p, vCB, BR)
    p(f"""
    s_and_b32 s{sT0}, s{sHW}, 1
    s_lshl_b32 s{sT0}, s{sT0}, 12
    v_add_u32 v{vCB}, s{sT0}, v{vCB}
    s_lshr_b32 s{sT0}, s{sHW}, 1
    s_lshl_b32 s{sT0}, s{sT0}, 6
    v_xor_b32 v{vCB}, s{sT0}, v{vCB}
    v_xor_b32 v{vCB + 1}, 32, v{vCB}
    v_mov_b32 v{vCA}, 0
    v_mov_b32 v{vCA + 1}, 0
    v_mov_b32 v{vCA + 2}, 0
    v_mov_b32 v{vCA + 3}, 0
    s_mov_b32 s{sMASK}, 0xffff0000
    v_and_b32 v{vSA}, 31, v{vL}
    v_lshlrev_b32 v{vSA}, 3, v{vSA}
    """)
    ph2_ids(p)
    for f in dma_list(1):
        f()

    def colsum_reads(c):
        slot = c % 3
        for s in range(4):
            for e in range(2):
                p(f"ds_read_b64_tr_b16 {vr(vCD + 4 * s + 2 * e, 2)}, v{vCW} offset:{slot * 16384 + s * 4096 + e * 1024}")
        for i in range(2):
            p(f"ds_read_b128 {vr(vCD + 16 + 4 * i, 4)}, v{vCB + i} offset:{slot * 8192}")

    def colsum_valu():
        L = []
        for d in range(24):
            a = vCA if d < 16 else vCA + 2
            t = vCT + 2 * (d & 1)
            if d in (0, 8, 16):
                L.append(f"s_waitcnt lgkmcnt({ {0: 6, 8: 2, 16: 0}[d] })")
            L.append(f"v_lshlrev_b32 v{t}, 16, v{vCD + d}")
            L.append(f"v_and_b32 v{t + 1}, s{sMASK}, v{vCD + d}")
            L.append(f"v_add_f32 v{a}, v{a}, v{t}")
            L.append(f"v_add_f32 v{a + 1}, v{a + 1}, v{t + 1}")
        return L

    def stats_load():
        p.vmem(f"buffer_load_dwordx2 {vr(vST, 2)}, v{vSA}, s[{S_WS}:{S_WS + 3}], s{sT3} offen sc1", "st")

    for c in range(8):
        p.wait_vm(("c", c))
        if c == 1:
            make_tag(p)
        if c == 6:
            back = p.label("stspin")
            chk = p.label("stchk")
            p(f"s_branch {chk}\n{back}:")
            p(f"buffer_load_dwordx2 {vr(vST, 2)}, v{vSA}, s[{S_WS}:{S_WS + 3}], s{sT3} offen sc1\ns_waitcnt vmcnt(0)")
            p(f"{chk}:\nv_cmp_ne_u32 vcc, v{vST + 1}, v{vTAG}")
            p("s_nop 4")
            spin_tail(p, back)
            p(f"""
            v_and_b32 v{vCT}, s{sMASK}, v{vST}
            v_rcp_f32 v{vCT}, v{vCT}
            v_lshrrev_b32 v{vCT + 1}, 1, v{vSA}
            s_lshl_b32 s{sT0}, s{sHW}, 7
            s_add_u32 s{sT0}, s{sT0}, {L_MS}
            v_add_u32 v{vCT + 1}, s{sT0}, v{vCT + 1}
            ds_write_b32 v{vCT + 1}, v{vST}
            ds_write_b32 v{vCT + 1}, v{vCT} offset:512
            s_waitcnt lgkmcnt(0)
            """)
        p("s_barrier")
        if c == 0:
            p.stamp(2)
        colsum_reads(c)
        dm = []
        if c == 4:
            p(f"""
            s_lshl_b32 s{sT3}, s{sMT}, 2
            s_add_u32 s{sT3}, s{sT3}, s{sHW}
            s_lshl_b32 s{sT3}, s{sT3}, 8
            s_add_u32 s{sT3}, s{sT3}, {WS_STATS}
            """)
            dm.append(stats_load)
        if c + 2 < 8:
            dm += dma_list(c + 2)
        elif c == 6:
            stage_setup(p, None, 6)
            dm += stage_dma(p, 0)
        if dm:
            interleave(p, dm, colsum_valu())
        else:
            for x in colsum_valu():
                p(x)
    p(f"""
    v_add_f32 v{vCA}, v{vCA}, v{vCA + 1}
    v_add_f32 v{vCA + 2}, v{vCA + 2}, v{vCA + 3}
    v_and_b32 v{vCA + 1}, s{sMASK}, v{vCA}
    v_and_b32 v{vCA + 3}, s{sMASK}, v{vCA + 2}
    v_sub_f32 v{vCA}, v{vCA}, v{vCA + 1}
    v_sub_f32 v{vCA + 2}, v{vCA + 2}, v{vCA + 3}
    v_cvt_pk_bf16_f32 v{vCA}, v{vCA + 1}, v{vCA}
    v_cvt_pk_bf16_f32 v{vCA + 2}, v{vCA + 3}, v{vCA + 2}
    s_lshl_b32 s{sT0}, s{sHW}, 8
    s_add_u32 s{sT0}, s{sT0}, {L_EXTW}
    v_lshl_add_u32 v{vCT}, v{vL}, 2, s{sT0}
    ds_write_b32 v{vCT}, v{vCA}
    ds_write_b32 v{vCT}, v{vCA + 2} offset:1024
    s_waitcnt lgkmcnt(0)
    s_barrier
    """)
    p.stamp(3)


vSO = 28
vSR = 60
vB2 = 64
sISY = 91


def stage_setup(p, isy, n):
    if n == 6:
        p(f"""
        s_mul_i32 s{sT0}, s{sW}, 6
        s_sub_u32 s{sT0}, s{sT0}, 8
        s_cmp_eq_u32 s{sW}, 7
        s_cselect_b32 s{sT0}, 28, s{sT0}
        s_cmp_eq_u32 s{sW}, 6
        s_cselect_b32 s{sT0}, 10, s{sT0}
        s_cselect_b32 s{sISY}, 1, 0
        s_lshl_b32 s{sBUF0}, s{sHW}, 13
        s_add_u32 s{sBUF0}, s{sBUF0}, {SP}
        s_and_b32 s{sT1}, s{sHW}, 1
        s_lshl_b32 s{sT1}, s{sT1}, 13
        s_cmp_lt_u32 s{sHW}, 2
        s_cselect_b32 s{sBUF1}, 0, {WR - XR}
        s_add_u32 s{sBUF1}, s{sBUF1}, s{sT1}
        s_add_u32 s{sBUF1}, s{sBUF1}, {XR + 32768}
        """)
    else:
        p(f"""
        s_mul_i32 s{sT0}, s{sMH}, 5
        s_add_u32 s{sT0}, s{sT0}, {0 if isy else 34}
        s_mov_b32 s{sISY}, {1 if isy else 0}
        s_lshl_b32 s{sBUF0}, s{sMH}, 13
        s_add_u32 s{sBUF0}, s{sBUF0}, {XR if isy else WR}
        s_add_u32 s{sBUF1}, s{sBUF0}, 16384
        """)
    fs = p.opt.get("fs", 128)
    p(f"""
    v_lshrrev_b32 v{vT0}, 1, v{vL}
    v_min_u32 v{vT0}, {n - 1}, v{vT0}
    v_add_u32 v{vT0}, s{sT0}, v{vT0}
    v_and_b32 v{vT1}, 1, v{vL}
    v_and_b32 v{vT2}, 14, v{vT0}
    v_add_u32 v{vT2}, v{vT2}, v{vT1}
    v_subrev_u32 v{vT0}, 16, v{vT0}
    v_mul_u32_u24 v{vT3}, 37, v{vT0}
    v_bfe_u32 v{vT3}, v{vT3}, 8, 2
    v_mul_u32_u24 v{vFA}, 7, v{vT3}
    v_sub_u32 v{vT0}, v{vT0}, v{vFA}
    v_or_b32 v{vT1}, v{vT1}, v{vT0}
    v_and_b32 v{vT1}, 1, v{vT1}
    v_add_u32 v{vT1}, 1, v{vT1}
    v_lshrrev_b32 v{vT0}, 1, v{vT0}
    v_lshl_add_u32 v{vT0}, v{vT3}, 2, v{vT0}
    v_lshl_add_u32 v{vT0}, v{vT1}, 4, v{vT0}
    s_cmp_eq_u32 s{sISY}, 1
    s_cselect_b64 vcc, -1, 0
    v_cndmask_b32 v{vFA}, v{vT0}, v{vT2}, vcc
    v_mul_u32_u24 v{vFA}, {fs}, v{vFA}
    s_mul_i32 s{sFLG}, s{sM2}, {96 * fs}
    s_add_u32 s{sFLG}, s{sFLG}, {WS_FLAGS}
    s_mul_i32 s{sHID}, s{sM2}, {352 * 1024}
    s_add_u32 s{sHID}, s{sHID}, {WS_HID}
    """)
    r2 = p.opt.get("rot2", 1)
    if r2:
        p(f"""
        s_and_b32 s{sT1}, s{sN2}, 1
        s_mul_i32 s{sT1}, s{sT1}, {n // 2 if r2 & 2 else 0}
        s_add_u32 s{sT1}, s{sT1}, {('s%d' % sXCD) if r2 & 1 else 0}
        s_cmp_ge_u32 s{sT1}, {n}
        s_cselect_b32 s{sT2}, {n}, 0
        s_sub_u32 s{sT1}, s{sT1}, s{sT2}
        """)
    else:
        p(f"s_mov_b32 s{sT1}, 0")
    for i in range(n):
        p(f"""
        s_add_u32 s{sUN + i}, s{sT0}, s{sT1}
        s_add_u32 s{sT1}, s{sT1}, 1
        s_cmp_eq_u32 s{sT1}, {n}
        s_cselect_b32 s{sT1}, 0, s{sT1}
        """)
    p(f"""
    v_lshrrev_b32 v{vT0}, 4, v{vL}
    v_and_b32 v{vT1}, 1, v{vT0}
    v_lshlrev_b32 v{vT1}, 2, v{vT1}
    v_cndmask_b32 v{vT0}, v{vT1}, v{vT0}, vcc
    v_and_b32 v{vT1}, 7, v{vL}
    v_xor_b32 v{vT0}, v{vT0}, v{vT1}
    v_lshlrev_b32 v{vT0}, 4, v{vT0}
    v_lshrrev_b32 v{vT1}, 3, v{vL}
    v_lshl_add_u32 v{vSO}, v{vT1}, 10, v{vT0}
    s_lshl_b32 s{sT1}, s{sISY}, 6
    v_xor_b32 v{vSO + 1}, s{sT1}, v{vSO}
    v_add_u32 v{vSO + 1}, 7168, v{vSO + 1}
    v_add_u32 v{vSO + 2}, 14336, v{vSO}
    v_add_u32 v{vSO + 3}, 14336, v{vSO + 1}
    v_lshlrev_b32 v{vL16}, 4, v{vL}
    """)


def stage_dma(p, i):
    L = []
    buf = sBUF0 + (i & 1)

    def head():
        p(f"""
        s_and_b32 s{sT0}, s{sUN + i}, 1
        s_cmp_eq_u32 s{sT0}, 0
        s_cselect_b32 s{S_B}, s{pCRE}, s{pCIM}
        s_cselect_b32 s{S_B + 1}, s{pCRE + 1}, s{pCIM + 1}
        s_lshr_b32 s{sT0}, s{sUN + i}, 1
        s_lshl_b32 s{sT0}, s{sT0}, 7
        s_lshl_b32 s{sT1}, s{sN2}, 16
        s_add_u32 s{sT0}, s{sT0}, s{sT1}
        s_sub_u32 s{sT1}, s{sUN + i}, 16
        s_lshl_b32 s{sT1}, s{sT1}, 16
        s_lshl_b32 s{sT2}, s{sN2}, 7
        s_add_u32 s{sT1}, s{sT1}, s{sT2}
        s_cmp_eq_u32 s{sISY}, 1
        s_cselect_b32 s{S_B}, s{S_B}, s{pW2}
        s_cselect_b32 s{S_B + 1}, s{S_B + 1}, s{pW2 + 1}
        s_cselect_b32 s{S_B + 2}, {512 * 1024}, s{sKW}
        s_mov_b32 s{S_B + 3}, 0x00020000
        s_mov_b32 m0, s{buf}
        s_cselect_b32 s{sKB}, s{sT0}, s{sT1}
        """)
        p.vmem(f"buffer_load_dwordx4 v{vSO}, s[{S_B}:{S_B + 3}], s{sKB} offen lds", ("u", i))

    def pre():
        p(f"s_mov_b32 s{sKW}, {1792 * 1024}")
        head()
    L.append(pre)
    for k in range(1, 4):
        L.append(lambda k=k: p.vmem(f"buffer_load_dwordx4 v{vSO + k}, s[{S_B}:{S_B + 3}], s{sKB} offen offset:{1024 * k} lds", ("u", i)))

    def half():
        p(f"s_add_u32 m0, s{buf}, 4096\ns_add_u32 s{sKB}, s{sKB}, 32768")
        p.vmem(f"buffer_load_dwordx4 v{vSO}, s[{S_B}:{S_B + 3}], s{sKB} offen lds", ("u", i))
    L.append(half)
    for k in range(1, 4):
        L.append(lambda k=k: p.vmem(f"buffer_load_dwordx4 v{vSO + k}, s[{S_B}:{S_B + 3}], s{sKB} offen offset:{1024 * k} lds", ("u", i)))
    return L


def stage_read_addr(p, isy):
    if isy:
        rowfrag_addr(p, vSR, 0, sBUF0)
        for s in range(1, 4):
            p(f"v_xor_b32 v{vSR + s}, {32 * s}, v{vSR}")
    else:
        p(f"""
        v_lshrrev_b32 v{vT0}, 5, v{vL}
        v_bfe_u32 v{vT1}, v{vL}, 2, 2
        v_lshl_add_u32 v{vT0}, v{vT0}, 2, v{vT1}
        v_lshlrev_b32 v{vT0}, 7, v{vT0}
        v_lshrrev_b32 v{vT1}, 1, v{vT1}
        v_lshl_add_u32 v{vT0}, v{vT1}, 6, v{vT0}
        v_bfe_u32 v{vT1}, v{vL}, 4, 1
        v_lshl_add_u32 v{vT0}, v{vT1}, 5, v{vT0}
        v_and_b32 v{vT1}, 3, v{vL}
        v_lshl_add_u32 v{vT0}, v{vT1}, 3, v{vT0}
        v_add_u32 v{vSR}, s{sBUF0}, v{vT0}
        v_xor_b32 v{vSR + 1}, 64, v{vSR}
        v_add_u32 v{vSR + 2}, s{sBUF1}, v{vT0}
        v_xor_b32 v{vSR + 3}, 64, v{vSR + 2}
        """)
    p(f"s_sub_u32 s{sKX}, s{sBUF1}, s{sBUF0}")


def stage_read(p, i, isy):
    base = vB2 + 32 * i
    if isy:
        for t in range(4):
            for db in range(2):
                p(f"ds_read_b128 {vr(base + 8 * t + 4 * db, 4)}, v{vSR + t} offset:{4096 * db}")
        op = "v_add_u32" if (i & 1) == 0 else "v_subrev_u32"
        for t in range(4):
            p(f"{op} v{vSR + t}, s{sKX}, v{vSR + t}")
    else:
        for t in range(4):
            for db in range(2):
                for e in range(2):
                    p(f"ds_read_b64_tr_b16 {vr(base + 8 * t + 4 * db + 2 * e, 2)}, v{vSR + 2 * (i & 1) + db} offset:{2048 * t + 1024 * e}")
    p("s_waitcnt lgkmcnt(0)")


def stage_rest(p, n, isy, issued, hooks=None):
    hooks = hooks or {}
    stage_read_addr(p, isy)
    nxt = issued
    while nxt < 2:
        for f in stage_dma(p, nxt):
            f()
        nxt += 1
        if nxt in hooks:
            hooks[nxt]()
    for i in range(n):
        p.wait_vm(("u", i))
        stage_read(p, i, isy)
        if nxt < n:
            for f in stage_dma(p, nxt):
                f()
            nxt += 1
            if nxt in hooks:
                hooks[nxt]()


vRING, NRING = 8, 6
vACC2 = 32


def ph2_main(p, n):
    fs = p.opt.get("fs", 128)
    p.vm = []
    p.stamp(5)
    for i in range(n):
        p(f"s_lshl_b32 s{sUN + i}, s{sUN + i}, 12\ns_add_u32 s{sUN + i}, s{sUN + i}, s{sHID}")
    p(f"""
    v_lshrrev_b32 v{vT0}, 5, v{vL}
    v_and_b32 v{vT1}, 31, v{vL}
    v_xor_b32 v{vT1}, v{vT1}, v{vT0}
    v_lshlrev_b32 v{vT1}, 4, v{vT1}
    v_lshl_add_u32 v{vT2}, v{vT0}, 9, v{vT1}
    s_add_u32 s{sKX}, s{sFLG}, {48 * fs}
    """)
    back = p.label("f0spin")
    p(f"""
    {back}:
    buffer_load_dword v{vT0}, v{vFA}, s[{S_WS}:{S_WS + 3}], s{sFLG} offen sc1
    s_waitcnt vmcnt(0)
    v_cmp_ne_u32 vcc, v{vT0}, v{vTAG}
    s_nop 4
    """)
    spin_tail(p, back)
    p.stamp(6)
    ns = 4 * n
    tot = 2 * ns

    def load(g):
        ps, k = divmod(g, ns)
        slot, t = divmod(k, 4)
        if ps == 1 and t == 0:
            p(f"s_add_u32 s{sUN + slot}, s{sUN + slot}, {176 * 1024}")
        r = vRING + 4 * (g % NRING)
        off = f" offset:{1024 * t}" if t else ""
        p.vmem(f"buffer_load_dwordx4 {vr(r, 4)}, v{vL16}, s[{S_WS}:{S_WS + 3}], s{sUN + slot} offen{off} sc1", ("a", g))

    def partial_write(ps):
        p(f"v_add_u32 v{vT1}, s{sBUF0 + ps}, v{vT2}\ns_nop 7\ns_nop 2")
        for ii in range(8):
            db, j = divmod(ii, 4)
            if ii:
                p(f"v_xor_b32 v{vT3}, {ii << 5}, v{vT1}")
            a = vT3 if ii else vT1
            p(f"ds_write_b128 v{a}, {vr(vACC2 + 16 * db + 4 * j, 4)} offset:{1024 * ii}")

    for g in range(NRING):
        load(g)
    poll_at = ns - 2 * NRING - 2
    for g in range(tot):
        ps, k = divmod(g, ns)
        p.wait_vm(("a", g))
        r = vRING + 4 * (g % NRING)
        for db in range(2):
            acc = vr(vACC2 + 16 * db, 16)
            c = "0" if k == 0 else acc
            p(f"v_mfma_f32_32x32x16_bf16 {acc}, {vr(vB2 + 8 * k + 4 * db, 4)}, {vr(r, 4)}, {c}")
        if g == poll_at:
            p.vmem(f"buffer_load_dword v{vT0}, v{vFA}, s[{S_WS}:{S_WS + 3}], s{sKX} offen sc1", "f1")
        nx = g + NRING
        if nx == ns:
            back = p.label("f1spin")
            chk = p.label("f1chk")
            p.wait_vm("f1")
            p(f"""
            s_branch {chk}
            {back}:
            buffer_load_dword v{vT0}, v{vFA}, s[{S_WS}:{S_WS + 3}], s{sKX} offen sc1
            s_waitcnt vmcnt(0)
            {chk}:
            v_cmp_ne_u32 vcc, v{vT0}, v{vTAG}
            s_nop 4
            """)
            spin_tail(p, back)
        if nx < tot:
            load(nx)
        if k == ns - 1:
            if ps == 1:
                final_loads(p)
            partial_write(ps)
            if ps == 0:
                p("s_waitcnt lgkmcnt(0)")


vFX, vFS, vFD = 64, 68, 70


def final_loads(p):
    srd(p, S_X, pX, 2048 * 1024)
    srd(p, S_W, pOUT, 2048 * 2048)
    p(f"""
    s_and_b32 s{sT0}, s{sW}, 1
    s_lshl_b32 s{sT0}, s{sT0}, 5
    s_lshr_b32 s{sT1}, s{sW}, 1
    s_lshl_b32 s{sT1}, s{sT1}, 2
    s_add_u32 s{sT0}, s{sT0}, s{sT1}
    s_lshl_b32 s{sT1}, s{sM2}, 6
    s_add_u32 s{sT0}, s{sT0}, s{sT1}
    s_lshl_b32 s{sKX}, s{sT0}, 10
    s_lshl_b32 s{sT1}, s{sN2}, 7
    s_add_u32 s{sKX}, s{sKX}, s{sT1}
    s_add_u32 s{sKB}, s{sKX}, 16384
    s_lshl_b32 s{sT0}, s{sT0}, 3
    s_add_u32 s{sT0}, s{sT0}, {WS_STATS}
    v_lshrrev_b32 v72, 4, v{vL}
    v_and_b32 v73, 15, v{vL}
    v_lshlrev_b32 v74, 3, v73
    v_lshl_add_u32 v75, v72, 10, v74
    v_lshlrev_b32 v76, 3, v72
    v_add_u32 v74, s{sT1}, v74
    """)
    p.vmem(f"buffer_load_dwordx2 {vr(vFX, 2)}, v75, s[{S_X}:{S_X + 3}], s{sKX} offen", "fin")
    p.vmem(f"buffer_load_dwordx2 {vr(vFX + 2, 2)}, v75, s[{S_X}:{S_X + 3}], s{sKB} offen", "fin")
    p.vmem(f"buffer_load_dword v{vFS}, v76, s[{S_WS}:{S_WS + 3}], s{sT0} offen sc1", "fin")
    p.vmem(f"buffer_load_dword v{vFS + 1}, v76, s[{S_WS}:{S_WS + 3}], s{sT0} offen offset:128 sc1", "fin")
    p.vmem(f"global_load_dwordx2 {vr(vFD, 2)}, v74, s[{pD}:{pD + 1}]", "fin")


def final(p):
    p("L_final:")
    p.stamp(7)
    p(f"""
    s_lshl_b32 s{sT0}, s{sW}, 2
    v_add_u32 v77, s{sT0}, v72
    v_xor_b32 v77, v77, v73
    v_lshlrev_b32 v77, 4, v77
    v_lshl_add_u32 v77, v73, 9, v77
    v_add_u32 v78, 65536, v77
    v_add_u32 v79, 131072, v77
    v_lshlrev_b32 v75, 1, v75
    s_lshl_b32 s{sKX}, s{sKX}, 1
    s_lshl_b32 s{sKB}, s{sKB}, 1
    s_mov_b32 s{sMASK}, 0xffff0000
    s_waitcnt lgkmcnt(0)
    s_barrier
    """)
    order = [0, 1, 6, 2, 3, 4, 5, 7]
    D = 96
    for ps in range(2):
        for i, w in enumerate(order):
            b = wave_buf(w, ps)
            p(f"ds_read_b128 {vr(D + 32 * ps + 4 * i, 4)}, v{77 + b // 65536} offset:{b % 65536}")
    p(f"""
    s_waitcnt vmcnt(0)
    v_lshlrev_b32 v80, 16, v{vFD}
    v_and_b32 v81, s{sMASK}, v{vFD}
    v_lshlrev_b32 v82, 16, v{vFD + 1}
    v_and_b32 v83, s{sMASK}, v{vFD + 1}
    s_mov_b32 s{sT2}, {LN2}
    """)
    for ps in range(2):
        d = D + 32 * ps
        X = 84 + 0
        p(f"""
        v_and_b32 v93, s{sMASK}, v{vFS + ps}
        v_rcp_f32 v93, v93
        v_lshlrev_b32 v92, 16, v{vFS + ps}
        v_lshlrev_b32 v84, 16, v{vFX + 2 * ps}
        v_and_b32 v85, s{sMASK}, v{vFX + 2 * ps}
        v_lshlrev_b32 v86, 16, v{vFX + 2 * ps + 1}
        v_and_b32 v87, s{sMASK}, v{vFX + 2 * ps + 1}
        v_pk_add_f32 v[88:89], v[84:85], v[92:93] op_sel_hi:[1,0] neg_lo:[0,1] neg_hi:[0,1]
        v_pk_add_f32 v[90:91], v[86:87], v[92:93] op_sel_hi:[1,0] neg_lo:[0,1] neg_hi:[0,1]
        v_pk_mul_f32 v[88:89], v[88:89], v[92:93] op_sel:[0,1] op_sel_hi:[1,1]
        v_pk_mul_f32 v[90:91], v[90:91], v[92:93] op_sel:[0,1] op_sel_hi:[1,1]
        s_waitcnt lgkmcnt({8 if ps == 0 else 0})
        """)
        for h in range(2):
            y = d + 2 * h
            f = d + 12 + 2 * h
            p(f"""
            v_pk_fma_f32 {vr(88 + 2 * h, 2)}, {vr(88 + 2 * h, 2)}, {vr(80 + 2 * h, 2)}, {vr(y, 2)}
            v_pk_add_f32 {vr(f, 2)}, {vr(f, 2)}, {vr(f + 4, 2)}
            v_pk_add_f32 {vr(f + 8, 2)}, {vr(f + 8, 2)}, {vr(f + 12, 2)}
            v_pk_add_f32 {vr(y + 4, 2)}, {vr(y + 4, 2)}, {vr(y + 8, 2)}
            v_pk_add_f32 {vr(f, 2)}, {vr(f, 2)}, {vr(f + 16, 2)}
            v_pk_add_f32 {vr(88 + 2 * h, 2)}, {vr(88 + 2 * h, 2)}, {vr(y + 4, 2)}
            v_pk_add_f32 {vr(f, 2)}, {vr(f, 2)}, {vr(f + 8, 2)}
            """)
        f = d + 12
        e = d + 16
        for k in range(4):
            p(f"v_exp_f32_e64 v{e + k}, -v{f + k}")
        p(f"""
        v_pk_mul_f32 {vr(88, 2)}, {vr(88, 2)}, {vr(f, 2)}
        v_pk_mul_f32 {vr(90, 2)}, {vr(90, 2)}, {vr(f + 2, 2)}
        v_pk_add_f32 {vr(e, 2)}, {vr(e, 2)}, 1.0 op_sel_hi:[1,0]
        v_pk_add_f32 {vr(e + 2, 2)}, {vr(e + 2, 2)}, 1.0 op_sel_hi:[1,0]
        """)
        for k in range(4):
            p(f"v_rcp_f32 v{e + k}, v{e + k}")
        for k in range(4):
            p(f"v_mul_f32 v{88 + k}, s{sT2}, v{88 + k}")
        p(f"""
        v_pk_fma_f32 {vr(d, 2)}, {vr(88, 2)}, {vr(e, 2)}, {vr(84, 2)}
        v_pk_fma_f32 {vr(d + 2, 2)}, {vr(90, 2)}, {vr(e + 2, 2)}, {vr(86, 2)}
        buffer_store_dwordx4 {vr(d, 4)}, v75, s[{S_W}:{S_W + 3}], s{sKX if ps == 0 else sKB} offen sc1
        """)
    p(f"""
    s_lshl_b32 s{sT0}, s{sN2}, 3
    s_add_u32 s{sT0}, s{sT0}, s{sW}
    s_lshl_b32 s{sT0}, s{sT0}, 5
    s_add_u32 s{sT0}, s{sT0}, s{sM2}
    s_cmp_lg_u32 s{sT0}, 31
    s_cbranch_scc1 L_noep
    s_mov_b64 exec, 1
    buffer_store_dword v{vTAG}, off, s[{S_WS}:{S_WS + 3}], 0 sc1
    L_noep:
    """)
    if p.opt.get("stamps"):
        p.stamp(8)
        p(f"""
        s_waitcnt vmcnt(0)
        """)
        p.stamp(9)
        p(f"""
        s_mov_b64 exec, 1
        s_lshl_b32 s{sT0}, s2, 3
        s_add_u32 s{sT0}, s{sT0}, s{sW}
        s_lshl_b32 s{sT0}, s{sT0}, 6
        s_add_u32 s{sT0}, s{sT0}, {WS_STAMP}
        """)
        for i in range(10):
            p(f"v_mov_b32 v8, s{sSTAMP + i}\nbuffer_store_dword v8, off, s[{S_WS}:{S_WS + 3}], s{sT0} offset:{4 * i}")
    p("L_end:\ns_endpgm")


vAX, vAB, vAW = 8, 12, 16
vMS, vRL = 20, 22
vC, vLp, vL32, vL64, vL128 = 24, 26, 112, 114, 116
vFR = 64
vEX, vEW = 32, 40
vACC = 128
vR = 224
vID = 104


def cmul(p, d, a, b, add=None):
    if add is None:
        p(f"v_pk_mul_f32 {vr(d, 2)}, {vr(a, 2)}, {vr(b, 2)} op_sel_hi:[0,1]")
    else:
        p(f"v_pk_fma_f32 {vr(d, 2)}, {vr(a, 2)}, {vr(b, 2)}, {vr(add, 2)} op_sel_hi:[0,1,1]")
    p(f"v_pk_fma_f32 {vr(d, 2)}, {vr(a, 2)}, {vr(b, 2)}, {vr(d, 2)} op_sel:[1,1,0] op_sel_hi:[1,0,1] neg_lo:[0,1,0]")


def half_reduce(p, a, t):
    for r in (8, 4, 2, 1):
        p(f"s_nop 1\nv_add_f32_dpp v{a}, v{a}, v{a} row_ror:{r} row_mask:0xf bank_mask:0xf")
    p(f"""
    v_mov_b32 v{t}, v{a}
    s_nop 1
    v_permlane16_swap_b32 v{a}, v{t}
    s_nop 1
    v_add_f32 v{a}, v{a}, v{t}
    """)


def a_prologue(p):
    p("L_A:")
    D = 128
    p(f"""
    s_and_b32 s{sMH}, s{sW}, 1
    v_and_b32 v{vT0}, 31, v{vL}
    v_lshrrev_b32 v{vT1}, 5, v{vL}
    v_lshlrev_b32 v{vT2}, 4, v{vT0}
    v_lshl_add_u32 v{vT2}, v{vT1}, 10, v{vT2}
    s_lshl_b32 s{sT0}, s{sMT}, 4
    s_add_u32 s{sT0}, s{sT0}, s{sNT}
    s_lshl_b32 s{sT0}, s{sT0}, 2
    s_add_u32 s{sT0}, s{sT0}, s{sW}
    s_lshl_b32 s{sKX}, s{sT0}, 11
    s_lshl_b32 s{sKB}, s{sT0}, 4
    s_add_u32 s{sKB}, s{sKB}, {WS_STATS}
    s_waitcnt lgkmcnt(0)
    """)
    srd(p, S_X, pX, 2048 * 1024)
    p.vmem(f"buffer_load_dwordx4 {vr(D, 4)}, v{vT2}, s[{S_X}:{S_X + 3}], s{sKX} offen", "xr")
    p.vmem(f"buffer_load_dwordx4 {vr(D + 4, 4)}, v{vT2}, s[{S_X}:{S_X + 3}], s{sKX} offen offset:512", "xr")
    srd(p, S_WS, pWS, WS_BYTES)
    p.vmem(f"buffer_load_dword v{vTAG}, off, s[{S_WS}:{S_WS + 3}], 0 sc1", "xr")
    p(f"""
    s_lshr_b32 s{sT0}, s{sW}, 1
    s_lshl_b32 s{sT1}, s{sL0}, 1
    s_add_u32 s{sT0}, s{sT0}, s{sT1}
    s_lshl_b32 s{sT0}, s{sT0}, 5
    v_add_u32 v{vT2}, s{sT0}, v{vT0}
    """)
    for b in range(3):
        p(f"v_min_u32 v{vT3}, 1791, v{vT2}\nv_lshlrev_b32 v{vT3}, 1, v{vT3}")
        p.vmem(f"global_load_ushort v{vEW + 4 * b + 2}, v{vT3}, s[{pB1}:{pB1 + 1}]", "par")
        if b < 2:
            p(f"v_add_u32 v{vT2}, 32, v{vT2}")
    p(f"""
    v_and_b32 v{vT2}, 19, v{vT0}
    v_bfe_u32 v{vT3}, v{vT0}, 2, 1
    v_lshl_add_u32 v{vT2}, v{vT3}, 3, v{vT2}
    v_bfe_u32 v{vT3}, v{vT0}, 3, 1
    v_lshl_add_u32 v{vT2}, v{vT3}, 2, v{vT2}
    s_lshl_b32 s{sT0}, s{sNT}, 5
    v_add_lshl_u32 v{vT2}, v{vT2}, s{sT0}, 1
    """)
    p.vmem(f"global_load_ushort v{vR}, v{vT2}, s[{pLRE}:{pLRE + 1}]", "par")
    p.vmem(f"global_load_ushort v{vR + 1}, v{vT2}, s[{pLIM}:{pLIM + 1}]", "par")
    p.vmem(f"global_load_ushort v{vR + 2}, v{vT2}, s[{pDT}:{pDT + 1}]", "par")
    p(f"s_lshl_b32 s{sT0}, s{sMH}, 13")
    rowfrag_addr(p, vAB, BR)
    p(f"""
    v_subrev_u32 v{vAX}, {BR - XR}, v{vAB}
    v_add_u32 v{vAX}, s{sT0}, v{vAX}
    """)
    for s in range(1, 4):
        p(f"v_xor_b32 v{vAX + s}, {32 * s}, v{vAX}\nv_xor_b32 v{vAB + s}, {32 * s}, v{vAB}")
    w1_tr_addr0(p, vAW)
    ph2_ids(p)
    p(f"""
    s_lshl_b32 s{sCI}, s{sMT}, 1
    s_add_u32 s{sCI}, s{sCI}, s{sMH}
    s_mov_b32 s{sMASK}, 0xffff0000
    """)
    p.wait_vm("xr")
    make_tag(p)
    F = D + 8
    for k in range(8):
        p(f"v_lshlrev_b32 v{F + 2 * k}, 16, v{D + k}\nv_and_b32 v{F + 2 * k + 1}, s{sMASK}, v{D + k}")
    A = D + 24
    p(f"v_pk_add_f32 {vr(A, 2)}, {vr(F, 2)}, {vr(F + 2, 2)}")
    for k in range(2, 8):
        p(f"v_pk_add_f32 {vr(A, 2)}, {vr(A, 2)}, {vr(F + 2 * k, 2)}")
    p(f"v_add_f32 v{A}, v{A}, v{A + 1}")
    half_reduce(p, A, A + 1)
    p(f"v_mul_f32 v{A}, 0x3b000000, v{A}")
    for k in range(8):
        p(f"v_pk_add_f32 {vr(F + 2 * k, 2)}, {vr(F + 2 * k, 2)}, {vr(A, 2)} op_sel_hi:[1,0] neg_lo:[0,1] neg_hi:[0,1]")
    p(f"v_pk_mul_f32 {vr(A + 2, 2)}, {vr(F, 2)}, {vr(F, 2)}")
    for k in range(1, 8):
        p(f"v_pk_fma_f32 {vr(A + 2, 2)}, {vr(F + 2 * k, 2)}, {vr(F + 2 * k, 2)}, {vr(A + 2, 2)}")
    p(f"v_add_f32 v{A + 2}, v{A + 2}, v{A + 3}")
    half_reduce(p, A + 2, A + 3)
    p(f"""
    v_mul_f32 v{A + 2}, 0x3b000000, v{A + 2}
    v_cvt_pk_bf16_f32 v{A + 2}, v{A + 2}, v{A + 2}
    v_and_b32 v{A + 2}, s{sMASK}, v{A + 2}
    v_add_f32 v{A + 2}, 0x3727c5ac, v{A + 2}
    v_cvt_pk_bf16_f32 v{A + 2}, v{A + 2}, v{A + 2}
    v_and_b32 v{A + 2}, s{sMASK}, v{A + 2}
    v_sqrt_f32 v{A + 2}, v{A + 2}
    v_lshrrev_b32 v{vT1}, 5, v{vL}
    v_cvt_pk_bf16_f32 v{A}, v{A}, v{A + 2}
    v_mov_b32 v{A + 1}, v{vTAG}
    v_lshlrev_b32 v{vT1}, 3, v{vT1}
    s_mov_b32 exec_lo, 1
    s_mov_b32 exec_hi, 1
    """)
    p.vmem(f"buffer_store_dwordx2 {vr(A, 2)}, v{vT1}, s[{S_WS}:{S_WS + 3}], s{sKB} offen sc1", "stst")
    p("s_mov_b64 exec, -1")
    p.stamp(1)
    p.wait_vm("par")
    p(f"""
    s_cmp_ge_u32 s{sW}, 2
    s_cbranch_scc1 L_A1
    """)


def scan_consts(p):
    t = vR + 4
    p(f"""
    v_lshlrev_b32 v{vR}, 16, v{vR}
    v_lshlrev_b32 v{vR + 1}, 16, v{vR + 1}
    v_lshlrev_b32 v{vR + 2}, 16, v{vR + 2}
    v_mul_f32 v{vR + 2}, {LOG2E}, v{vR + 2}
    v_exp_f32 v{vR + 2}, v{vR + 2}
    s_nop 0
    v_cvt_pk_bf16_f32 v{vR + 2}, v{vR + 2}, v{vR + 2}
    v_and_b32 v{vR + 2}, s{sMASK}, v{vR + 2}
    v_mul_f32 v{t}, v{vR + 2}, v{vR}
    v_mul_f32 v{t + 1}, v{vR + 2}, v{vR + 1}
    v_mul_f32 v{t}, {LOG2E}, v{t}
    v_mul_f32 v{t + 1}, 0.15915494, v{t + 1}
    v_exp_f32 v{t}, v{t}
    v_rndne_f32 v{t + 2}, v{t + 1}
    v_sub_f32 v{t + 1}, v{t + 1}, v{t + 2}
    v_cos_f32 v{t + 2}, v{t + 1}
    v_sin_f32 v{t + 3}, v{t + 1}
    v_mul_f32 v{t + 4}, v{vR}, v{vR}
    v_fmac_f32 v{t + 4}, v{vR + 1}, v{vR + 1}
    v_rcp_f32 v{t + 4}, v{t + 4}
    v_mul_f32 v{vLp}, v{t}, v{t + 2}
    v_mul_f32 v{t + 3}, v{t}, v{t + 3}
    v_sub_f32 v{vLp + 1}, 0, v{t + 3}
    v_add_f32 v{t + 2}, -1.0, v{vLp}
    v_add_f32 v{t + 4}, v{t + 4}, v{t + 4}
    v_mul_f32 v{vC}, v{t + 2}, v{vR}
    v_fmac_f32 v{vC}, v{t + 3}, v{vR + 1}
    v_mul_f32 v{vC + 1}, v{t + 3}, v{vR}
    v_fma_f32 v{vC + 1}, -v{t + 2}, v{vR + 1}, v{vC + 1}
    v_mul_f32 v{vC}, v{vC}, v{t + 4}
    v_mul_f32 v{vC + 1}, v{vC + 1}, v{t + 4}
    """)
    a, b = t + 6, t + 8
    cmul(p, a, vLp, vLp)
    cmul(p, b, a, a)
    cmul(p, a, b, b)
    cmul(p, b, a, a)
    cmul(p, vL32, b, b)
    cmul(p, vL64, vL32, vL32)
    cmul(p, vL128, vL64, vL64)
    p(f"""
    v_and_b32 v{vT0}, 31, v{vL}
    v_lshrrev_b32 v{vT1}, 5, v{vL}
    v_lshlrev_b32 v{vT1}, 2, v{vT1}
    v_sub_u32 v{vT0}, v{vT0}, v{vT1}
    v_mov_b32 v{vT1}, 0x3f80
    v_mov_b32 v{vT2}, 0x3f800000
    """)
    for e in range(2):
        for dw in range(4):
            i0 = 2 * dw
            n0 = 16 * e + 8 * (i0 >> 2) + (i0 & 3)
            p(f"""
            v_cmp_eq_u32 vcc, {n0}, v{vT0}
            v_cmp_eq_u32 s[{sT0}:{sT1}], {n0 + 1}, v{vT0}
            s_nop 0
            v_cndmask_b32 v{vID + 4 * e + dw}, 0, v{vT1}, vcc
            v_cndmask_b32 v{vID + 4 * e + dw}, v{vID + 4 * e + dw}, v{vT2}, s[{sT0}:{sT1}]
            """)


def a_main(p, ty):
    def reads(c, s, st):
        slot = c % 3
        base = vFR + 20 * st
        L = []
        for rbl in range(2):
            L.append(f"ds_read_b128 {vr(base + 4 * rbl, 4)}, v{vAX + s} offset:{slot * 16384 + rbl * 4096}")
        for b in range(3):
            r = base + 8 + 4 * b
            if ty == 0 and b < 2:
                L.append(f"ds_read_b128 {vr(r, 4)}, v{vAB + s} offset:{slot * 8192 + b * 4096}")
            else:
                a = vAW + (0 if ty == 0 else b)
                for e in range(2):
                    L.append(f"ds_read_b64_tr_b16 {vr(r + 2 * e, 2)}, v{a} offset:{slot * 16384 + s * 4096 + e * 1024}")
        return L

    def mfmas(xb, wb, first):
        L = []
        for rbl in range(2):
            for b in range(3):
                acc = vr(vACC + 16 * (3 * rbl + b), 16)
                x, w = vr(xb + 4 * rbl, 4), vr(wb + 4 * b, 4)
                c = "0" if first else acc
                if ty == 0 and b < 2:
                    L.append(f"v_mfma_f32_32x32x16_bf16 {acc}, {x}, {w}, {c}")
                else:
                    L.append(f"v_mfma_f32_32x32x16_bf16 {acc}, {w}, {x}, {c}")
        return L

    for b in range(3):
        if ty == 0 and b < 2:
            p(f"v_mov_b32 v{vEW + 4 * b + 3}, 0")
        else:
            p(f"v_mov_b32 v{vEW + 4 * b + 1}, 0\nv_mov_b32 v{vEW + 4 * b + 3}, 0")
    if ty == 0:
        p(f"v_mov_b32 v{vEW + 10}, v{vEW + 2}\nv_mov_b32 v{vEW + 2}, 0\nv_mov_b32 v{vEW + 6}, 0")
    else:
        p(f"v_xor_b32 v{vAW + 2}, {3 << 6}, v{vAW}\nv_xor_b32 v{vAW + 1}, {2 << 6}, v{vAW}\nv_xor_b32 v{vAW}, {1 << 6}, v{vAW}")
    p(f"""
    v_mov_b32 v{vEX + 3}, 0
    v_mov_b32 v{vEX + 7}, 0
    v_and_b32 v{vT0}, 3, v{vL}
    v_bfe_u32 v{vT1}, v{vL}, 2, 1
    v_lshl_add_u32 v{vT0}, v{vT1}, 5, v{vT0}
    v_bfe_u32 v{vT1}, v{vL}, 3, 2
    v_lshl_add_u32 v{vT0}, v{vT1}, 2, v{vT0}
    s_lshl_b32 s{sT0}, s{sMH}, 8
    s_add_u32 s{sT0}, s{sT0}, {L_MS}
    v_lshl_add_u32 v52, v{vT0}, 2, s{sT0}
    v_lshrrev_b32 v{vT1}, 5, v{vL}
    v_lshl_add_u32 v53, v{vT1}, 7, s{sT0}
    v_lshlrev_b32 v54, 2, v{vL}
    v_add_u32 v54, {L_EXTW}, v54
    v_cmp_gt_u32 s[34:35], 32, v{vL}
    s_mov_b32 s33, 0x01000100
    """)
    p("s_barrier")
    p.stamp(2)
    for x in reads(0, 0, 0):
        p(x)
    p("s_waitcnt lgkmcnt(0)")
    bpos = p.opt.get("bpos", 2)
    step = 0
    for c in range(8):
        for s in range(4):
            st = step & 1
            M = mfmas(vFR + 20 * st, vFR + 20 * st + 8, step == 0)
            extra = []
            if s < 3:
                R = reads(c, s + 1, st ^ 1)
            elif c < 7:
                R = reads(c + 1, 0, st ^ 1)
            else:
                if ty == 0:
                    R = [f"ds_read_b32 v{vEW}, v54 offset:1024", f"ds_read_b32 v{vEW + 1}, v54 offset:{1024 + 512}",
                         f"ds_read_b32 v{vEW + 4}, v54 offset:{1024 + 256}", f"ds_read_b32 v{vEW + 5}, v54 offset:{1024 + 768}",
                         f"ds_read_b32 v{vEW + 8}, v54"]
                else:
                    R = [f"ds_read_b32 v{vEW + 4 * b}, v54 offset:{256 * (b + 1)}" for b in range(3)]
            if c == 6 and s == 0:
                R += [f"ds_read_b32 v{vMS}, v52", f"ds_read_b32 v{vMS + 1}, v52 offset:64",
                      f"ds_read_b32 v{vRL}, v52 offset:512", f"ds_read_b32 v{vRL + 1}, v52 offset:{512 + 64}"]
            if ty == 0 and c == 6 and s in (1, 2):
                R += [f"ds_read_b128 {vr(vR + 4 * q, 4)}, v53 offset:{512 + 16 * q}" for q in range(4 * (s - 1), 4 * s)]
            if c == 7 and s == 0:
                for rbl in range(2):
                    e = vEX + 4 * rbl
                    extra += [f"v_perm_b32 v{e}, v{vMS + rbl}, v{vMS + rbl}, s33",
                              f"v_xor_b32 v{e}, 0x80008000, v{e}",
                              f"v_mov_b32 v{e + 1}, v{e}",
                              f"v_lshrrev_b32 v{e + 2}, 16, v{vMS + rbl}",
                              f"v_cndmask_b32 v{e + 2}, 0, v{e + 2}, s[34:35]",
                              f"v_mul_f32 v{vRL + rbl}, {LOG2E}, v{vRL + rbl}"]
            R = R + extra
            first = bpos if s == 3 else 1
            for m in M[:first]:
                p(m)
            if s == 3:
                p("s_barrier")
            rest = M[first:]
            per = max(2, -(-len(R) // len(rest)))
            ir = 0
            for m in rest:
                for x in R[ir:ir + per]:
                    p(x)
                ir += per
                p(m)
            assert ir >= len(R)
            p("s_waitcnt lgkmcnt(0)")
            step += 1
    for m in mfmas(vEX, vEW, False):
        p(m)
    p("s_nop 7")
    p.stamp(3)


def mish_block(p, acc, rbl, pk, tmp):
    sel = "op_sel_hi:[1,0]" if rbl == 0 else "op_sel:[0,1] op_sel_hi:[1,1]"
    for q in range(4):
        a = acc + 4 * q
        e, u = tmp, tmp + 4
        p(f"""
        v_pk_mul_f32 {vr(a, 2)}, {vr(a, 2)}, {vr(vRL, 2)} {sel}
        v_pk_mul_f32 {vr(a + 2, 2)}, {vr(a + 2, 2)}, {vr(vRL, 2)} {sel}
        v_exp_f32 v{e}, v{a}
        v_exp_f32 v{e + 1}, v{a + 1}
        v_exp_f32 v{e + 2}, v{a + 2}
        v_exp_f32 v{e + 3}, v{a + 3}
        v_pk_fma_f32 {vr(u, 2)}, {vr(e, 2)}, 0.5, 1.0 op_sel_hi:[1,0,0]
        v_pk_fma_f32 {vr(u + 2, 2)}, {vr(e + 2, 2)}, 0.5, 1.0 op_sel_hi:[1,0,0]
        v_pk_fma_f32 {vr(u, 2)}, {vr(e, 2)}, {vr(u, 2)}, 1.0 op_sel_hi:[1,1,0]
        v_pk_fma_f32 {vr(u + 2, 2)}, {vr(e + 2, 2)}, {vr(u + 2, 2)}, 1.0 op_sel_hi:[1,1,0]
        v_rcp_f32 v{u}, v{u}
        v_rcp_f32 v{u + 1}, v{u + 1}
        v_rcp_f32 v{u + 2}, v{u + 2}
        v_rcp_f32 v{u + 3}, v{u + 3}
        v_pk_fma_f32 {vr(a, 2)}, {vr(a, 2)}, {vr(u, 2)}, {vr(a, 2)} neg_lo:[1,0,0] neg_hi:[1,0,0]
        v_pk_fma_f32 {vr(a + 2, 2)}, {vr(a + 2, 2)}, {vr(u + 2, 2)}, {vr(a + 2, 2)} neg_lo:[1,0,0] neg_hi:[1,0,0]
        v_cvt_pk_bf16_f32 v{pk + 2 * q}, v{a}, v{a + 1}
        v_cvt_pk_bf16_f32 v{pk + 2 * q + 1}, v{a + 2}, v{a + 3}
        """)


def hid_store(p, reg, soff, off, tag):
    o = f" offset:{off}" if off else ""
    p.vmem(f"buffer_store_dwordx4 {vr(reg, 4)}, v{vL16}, s[{S_WS}:{S_WS + 3}], s{soff} offen{o} sc1", tag)


def flag_store(p, kind, rbl):
    fs = p.opt.get("fs", 128)
    p(f"""
    s_add_u32 s{sT0}, s{sBW}, {(rbl * 3 + kind) * 16 * fs}
    s_mov_b64 exec, 1
    """)
    p.vmem(f"buffer_store_dword v{vTAG}, off, s[{S_WS}:{S_WS + 3}], s{sT0} sc1", "flag")
    p("s_mov_b64 exec, -1")


def a_epi_setup(p):
    fs = p.opt.get("fs", 128)
    p(f"""
    s_mul_i32 s{sT0}, s{sCI}, {352 * 1024}
    s_add_u32 s{sT0}, s{sT0}, {WS_HID}
    s_add_u32 s{sT1}, s{sL0}, 16
    s_lshl_b32 s{sT1}, s{sT1}, 12
    s_add_u32 s{sBX}, s{sT0}, s{sT1}
    s_lshr_b32 s{sT1}, s{sNT}, 1
    s_lshl_b32 s{sT1}, s{sT1}, 13
    s_and_b32 s{sT2}, s{sNT}, 1
    s_lshl_b32 s{sT2}, s{sT2}, 11
    s_add_u32 s{sT1}, s{sT1}, s{sT2}
    s_add_u32 s{sBB}, s{sT0}, s{sT1}
    s_mul_i32 s{sBW}, s{sCI}, 96
    s_add_u32 s{sBW}, s{sBW}, s{sNT}
    s_mul_i32 s{sBW}, s{sBW}, {fs}
    s_add_u32 s{sBW}, s{sBW}, {WS_FLAGS}
    """)


def a1_epilogue(p):
    PK, TMP = 64, 96
    light = p.label("light")
    join = p.label("join")
    p(f"""
    s_lshr_b32 s{sT0}, s{sJ}, 3
    s_cmp_eq_u32 s{sT0}, 3
    s_cbranch_scc1 {light}
    """)
    vm0 = list(p.vm)
    n = 0
    for rbl in range(2):
        p(f"s_add_u32 s{sMX}, s{sBX}, {rbl * 176 * 1024}\ns_add_u32 s{sMB}, s{sMX}, 4096")
        for b in range(3):
            pk = PK + 8 * (n & 3)
            n += 1
            mish_block(p, vACC + 16 * (3 * rbl + b), rbl, pk, TMP)
            so, off = (sMX, 2048) if b == 0 else (sMB, 2048 * (b - 1))
            hid_store(p, pk, so, off, ("h", rbl))
            hid_store(p, pk + 4, so, off + 1024, ("h", rbl))
    p.wait_vm(("h", 0))
    flag_store(p, 2, 0)
    p(f"s_branch {join}\n{light}:")
    vm1 = list(p.vm)
    p.vm = list(vm0)
    for rbl in range(2):
        p(f"s_add_u32 s{sMX}, s{sBX}, {rbl * 176 * 1024}")
        mish_block(p, vACC + 16 * (3 * rbl), rbl, PK + 8 * rbl, TMP)
        hid_store(p, PK + 8 * rbl, sMX, 2048, ("h", rbl))
        hid_store(p, PK + 8 * rbl + 4, sMX, 3072, ("h", rbl))
    p.wait_vm(("h", 0))
    flag_store(p, 2, 0)
    p(f"{join}:")
    p.vm = vm1
    p.stamp(4)

    def fl1():
        p.wait_vm(("h", 1))
        flag_store(p, 2, 1)
    stage_rest(p, 5, False, 0, {1: fl1})


def a0_epilogue(p):
    RE = [vACC, vACC + 48]
    IM = [vACC + 16, vACC + 64]
    ML = [vACC + 32, vACC + 80]
    TA, TB, G0, G1 = 56, 58, 118, 120
    E0, GR = 122, 124

    def U(tau):
        rbl, r = divmod(tau, 16)
        return (RE if r % 2 == 0 else IM)[rbl] + (r & ~1)
    g, gn = G0, G1
    for tau in range(0, 32, 2):
        rbl, r = divmod(tau, 16)
        a, b = RE[rbl] + r, IM[rbl] + r
        p(f"""
        v_pk_mul_f32 {vr(TA, 2)}, {vr(a, 2)}, {vr(vR + tau, 2)}
        v_pk_mul_f32 {vr(TB, 2)}, {vr(b, 2)}, {vr(vR + tau, 2)}
        v_pk_mul_f32 {vr(a, 2)}, {vr(TA, 2)}, {vr(vC, 2)} op_sel_hi:[0,1] neg_hi:[0,1]
        v_pk_mul_f32 {vr(b, 2)}, {vr(TA, 2)}, {vr(vC, 2)} op_sel:[1,0] op_sel_hi:[1,1] neg_hi:[0,1]
        v_pk_fma_f32 {vr(a, 2)}, {vr(TB, 2)}, {vr(vC, 2)}, {vr(a, 2)} op_sel:[0,1,0] op_sel_hi:[0,0,1] neg_lo:[0,1,0] neg_hi:[0,1,0]
        v_pk_fma_f32 {vr(b, 2)}, {vr(TB, 2)}, {vr(vC, 2)}, {vr(b, 2)} op_sel:[1,1,0] op_sel_hi:[1,0,1] neg_lo:[0,1,0] neg_hi:[0,1,0]
        """)
        if tau == 0:
            cmul(p, g, U(0), vLp, U(1))
        else:
            cmul(p, gn, g, vLp, U(tau))
            cmul(p, g, gn, vLp, U(tau + 1))
    p(f"""
    v_mov_b32 v{E0}, v{g}
    v_mov_b32 v{E0 + 1}, v{g + 1}
    v_and_b32 v{vT0}, 31, v{vL}
    v_lshlrev_b32 v{vT0}, 4, v{vT0}
    v_permlane32_swap_b32 v{E0}, v{g}
    v_permlane32_swap_b32 v{E0 + 1}, v{g + 1}
    s_lshl_b32 s{sMX}, s{sNT}, 15
    s_add_u32 s{sMX}, s{sMX}, {WS_CARRY}
    """)
    cmul(p, GR, E0, vL32, g)
    p(f"""
    v_mov_b32 v{GR + 2}, v{vTAG}
    v_mov_b32 v{GR + 3}, v{vTAG}
    v_cndmask_b32 v{GR}, 0, v{GR}, s[34:35]
    v_cndmask_b32 v{GR + 1}, 0, v{GR + 1}, s[34:35]
    v_add_u32 v{vT1}, 512, v{vT0}
    v_cndmask_b32 v{vT1}, v{vT0}, v{vT1}, s[34:35]
    s_lshl_b32 s{sT0}, s{sCI}, 9
    s_add_u32 s{sT0}, s{sT0}, s{sMX}
    s_cmp_eq_u32 s{sCI}, 0
    s_cselect_b32 exec_hi, -1, 0
    """)
    p.vmem(f"buffer_store_dwordx4 {vr(GR, 4)}, v{vT1}, s[{S_WS}:{S_WS + 3}], s{sT0} offen sc1", "S")
    p("s_mov_b64 exec, -1")
    PK, TMP = 64, 96
    for rbl in range(2):
        p(f"s_add_u32 s{sMB}, s{sBX}, {rbl * 176 * 1024}")
        mish_block(p, ML[rbl], rbl, PK + 8 * rbl, TMP)
        hid_store(p, PK + 8 * rbl, sMB, 0, "m0")
        hid_store(p, PK + 8 * rbl + 4, sMB, 1024, "m0")
    p.stamp(4)
    GD = 32
    p(f"""
    v_lshrrev_b32 v{vT1}, 5, v{vL}
    v_sub_u32 v{vT1}, s{sCI}, v{vT1}
    v_lshl_add_u32 v{vT1}, v{vT1}, 9, v{vT0}
    s_add_u32 s{sMB}, s{sCI}, 1
    s_lshr_b32 s{sMB}, s{sMB}, 1
    s_mov_b32 s{sKX}, 0
    """)
    back = p.label("gspin")
    lab = [p.label("gl") for _ in range(4)]
    p(f"{back}:")
    for gi in range(3):
        p(f"s_cmp_le_u32 s{sMB}, {4 * (gi + 1)}\ns_cbranch_scc1 {lab[gi]}")
    for gi in range(3, -1, -1):
        p(f"{lab[gi]}:")
        for q in range(4 * gi + 3, 4 * gi - 1, -1):
            p(f"v_subrev_u32 v{vT2}, {1024 * q}, v{vT1}\nv_max_i32 v{vT2}, v{vT2}, v{vT0}")
            p(f"buffer_load_dwordx4 {vr(GD + 4 * q, 4)}, v{vT2}, s[{S_WS}:{S_WS + 3}], s{sMX} offen sc1")
    nofl = p.label("nofl")
    p(f"""
    s_waitcnt vmcnt(0)
    s_cmp_lg_u32 s{sKX}, 0
    s_cbranch_scc1 {nofl}
    s_mov_b32 s{sKX}, 1
    """)
    p.vm = []
    flag_store(p, 1, 0)
    flag_store(p, 1, 1)
    p(f"""
    {nofl}:
    v_mov_b32 v{G0}, 0
    v_mov_b32 v{G0 + 1}, 0
    v_mov_b32 v{vT3}, 0
    """)
    lab = [p.label("gh") for _ in range(4)]
    for gi in range(3):
        p(f"s_cmp_le_u32 s{sMB}, {4 * (gi + 1)}\ns_cbranch_scc1 {lab[gi]}")
    for gi in range(3, -1, -1):
        p(f"{lab[gi]}:")
        for q in range(4 * gi + 3, 4 * gi - 1, -2):
            p(f"v_bitop3_b32 v{vT3}, v{GD + 4 * q + 2}, v{vTAG}, v{vT3} bitop3:0xbe")
            cmul(p, G1, G0, vL128, GD + 4 * q)
            p(f"v_bitop3_b32 v{vT3}, v{GD + 4 * (q - 1) + 2}, v{vTAG}, v{vT3} bitop3:0xbe")
            cmul(p, G0, G1, vL128, GD + 4 * (q - 1))
    p(f"v_cmp_ne_u32 vcc, 0, v{vT3}\ns_nop 4")
    spin_tail(p, back)
    p.stamp(5)
    p(f"""
    v_mov_b32 v{G1}, v{G0}
    v_mov_b32 v{G1 + 1}, v{G0 + 1}
    s_nop 1
    v_permlane32_swap_b32 v{G0}, v{G1}
    v_permlane32_swap_b32 v{G0 + 1}, v{G1 + 1}
    s_nop 1
    """)
    cmul(p, TA, G1, vL64, G0)
    cmul(p, TB, TA, vL32, E0)
    p(f"""
    v_cndmask_b32 v{G0}, v{TB}, v{TA}, s[34:35]
    v_cndmask_b32 v{G0 + 1}, v{TB + 1}, v{TA + 1}, s[34:35]
    """)
    prev = G0
    PA, PO = 32, 64
    TD = [ML[0], ML[1], vR, vR + 16]
    for rbl in range(2):
        for r in range(16):
            u = U(16 * rbl + r)
            cmul(p, u, prev, vLp, u)
            prev = u
            if r & 1:
                u0 = U(16 * rbl + r - 1)
                for part in range(2):
                    p(f"v_cvt_pk_bf16_f32 v{PA + 16 * rbl + 8 * part + (r >> 1)}, v{u0 + part}, v{u + part}")
        p("s_nop 1")
        for part in range(2):
            d = vr(TD[2 * rbl + part], 16)
            a = PA + 16 * rbl + 8 * part
            p(f"v_mfma_f32_32x32x16_bf16 {d}, {vr(a, 4)}, {vr(vID, 4)}, 0")
            p(f"v_mfma_f32_32x32x16_bf16 {d}, {vr(a + 4, 4)}, {vr(vID + 4, 4)}, {d}")
        p(f"s_add_u32 s{sMB}, s{sBB}, {rbl * 176 * 1024}\ns_add_u32 s{sKX}, s{sMB}, 4096\ns_nop 7")
        for part in range(2):
            d = TD[2 * rbl + part]
            o = PO + 16 * rbl + 8 * part
            if part == 1:
                p("s_nop 1")
            for k in range(8):
                p(f"v_cvt_pk_bf16_f32 v{o + k}, v{d + 2 * k}, v{d + 2 * k + 1}")
            so = sMB if part == 0 else sKX
            hid_store(p, o, so, 0, ("h", rbl))
            hid_store(p, o + 4, so, 1024, ("h", rbl))

    def fl():
        p.wait_vm(("h", 0))
        flag_store(p, 0, 0)
        p.wait_vm(("h", 1))
        flag_store(p, 0, 1)
    stage_rest(p, 5, True, 0, {1: fl})


def build(opt):
    p = P(opt)
    entry(p)
    vm_entry = list(p.vm)
    helper_ph1(p)
    vm_h = list(p.vm)
    p(f"s_cmp_eq_u32 s{sISY}, 1\ns_cbranch_scc1 L_Hy")
    stage_rest(p, 6, False, 1)
    p("s_branch L_H2\nL_Hy:")
    p.vm = vm_h
    stage_rest(p, 6, True, 1)
    p("L_H2:")
    ph2_main(p, 6)
    p("s_branch L_final")
    p.vm = list(vm_entry)
    a_prologue(p)
    vm_a = list(p.vm)
    scan_consts(p)
    a_epi_setup(p)
    stage_setup(p, True, 5)
    a_main(p, 0)
    a0_epilogue(p)
    p("s_branch L_A2\nL_A1:")
    p.vm = vm_a
    a_epi_setup(p)
    stage_setup(p, False, 5)
    a_main(p, 1)
    a1_epilogue(p)
    p("L_A2:")
    ph2_main(p, 5)
    final(p)
    t = HEAD + f"; @launch grid=(256,1,1) block=(512,1,1) lds={LDS_BYTES}\n" + '.amdgcn_target "amdgcn-amd-amdhsa--gfx950"\n'
    t += kernel_text(KN + "_kernel", p.text(), vgpr=256, sgpr=102, accum=256)
    return t


if __name__ == "__main__":
    out = sys.argv[1]
    opt = {}
    for a in sys.argv[2:]:
        k, v = a.split("=")
        opt[k] = int(v) if v.lstrip("-").isdigit() else v
    open(out, "w").write(build(opt))
```

```python
import sys
from gen import HEAD, KN, kernel_text

WS_EPOCH = 0
WS_STATS = 4096
WS_CARRY = 64 << 10
WS_FLAGS = 1 << 20
WS_HID = 2 << 20
WS_STAMP = 200 << 20
WS_BYTES = 0x10000000
XR, WR, BR, SP, MISC = 0, 49152, 98304, 122880, 155648
L_MS, L_RR, L_EXTW, L_EXTB = MISC, MISC + 512, MISC + 1024, MISC + 2048
LDS_BYTES = 163840
LOG2E = 0x3fb8aa3b
LN2 = 0x3f317218


def ring_buf(slot, i):
    return (XR + slot * 16384 + 8192 * i) if i < 2 else (WR + slot * 16384 + 8192 * (i - 2))


def wave_buf(w, p):
    if w >= 4:
        return SP + 8192 * (w - 4) if p == 0 else ring_buf(2, w - 4)
    return ring_buf(0, w) if p == 0 else ring_buf(1, w)


U0 = [0, 5, 34, 39, 16, 22, 10, 28]
IS_Y = [1, 1, 0, 0, 0, 0, 1, 0]

S_X, S_B, S_W, S_WS = 4, 8, 12, 16
sW, sXCD, sJ, sMT, sNT, sL0, sC0, sM2, sN2 = 24, 25, 26, 27, 28, 29, 30, 31, 32
pX, pLRE, pLIM, pBRE, pBIM, pCRE, pCIM, pDT, pD, pW1, pB1, pW2, pOUT, pWS = 36, 38, 40, 42, 44, 46, 48, 50, 52, 56, 58, 60, 62, 66
sT0, sT1, sT2, sT3 = 20, 21, 22, 23
sKX, sKB, sKW, sBX, sBB, sBW, sMX, sMB, sMASK, sSPIN = 68, 69, 70, 71, 72, 73, 74, 75, 76, 77
sUN = 78
sBUF0, sBUF1, sHID, sFLG, sCI, sMH, sHW = 84, 85, 86, 87, 88, 89, 90
sSTAMP = 92
SPIN_MAX = 400000


class P:
    def __init__(self, opt):
        self.l = []
        self.vm = []
        self.opt = opt
        self.nlab = 0

    def __call__(self, s):
        for x in s.strip("\n").split("\n"):
            x = x.strip()
            if not x:
                continue
            self.l.append(x if x.endswith(":") else "    " + x)

    def vmem(self, s, tag=None):
        self(s)
        self.vm.append(tag)

    def wait_vm(self, tag):
        idx = max(i for i, t in enumerate(self.vm) if t == tag)
        n = len(self.vm) - 1 - idx
        assert n <= 63, n
        self(f"s_waitcnt vmcnt({n})")

    def label(self, base):
        self.nlab += 1
        return f"L_{base}_{self.nlab}"

    def stamp(self, i):
        if self.opt.get("stamps"):
            op = "s_memtime" if self.opt["stamps"] == 2 else "s_memrealtime"
            self(f"{op} s[{sT2}:{sT3}]\ns_waitcnt lgkmcnt(0)\ns_mov_b32 s{sSTAMP + i}, s{sT2}")

    def text(self):
        return "\n".join(self.l) + "\n"


def vr(a, n=1):
    return f"v{a}" if n == 1 else f"v[{a}:{a + n - 1}]"


def srd(p, d, ptr, nbytes):
    p(f"""
    s_mov_b32 s{d}, s{ptr}
    s_mov_b32 s{d + 1}, s{ptr + 1}
    s_mov_b32 s{d + 2}, {nbytes}
    s_mov_b32 s{d + 3}, 0x00020000
    """)


def interleave(p, a, b):
    def em(x):
        x() if callable(x) else p(x)
    na, nb = len(a), len(b)
    ib = 0
    for i, x in enumerate(a):
        em(x)
        tgt = (i + 1) * nb // na
        while ib < tgt:
            em(b[ib]); ib += 1
    while ib < nb:
        em(b[ib]); ib += 1


vL, vTAG, vT0, vT1, vT2, vT3, vFA, vL16 = 0, 1, 2, 3, 4, 5, 6, 7


def rowfrag_addr(p, dst, base_const=0, sbase=None):
    p(f"""
    v_and_b32 v{vT0}, 31, v{vL}
    v_bfe_u32 v{vT1}, v{vL}, 1, 3
    v_lshrrev_b32 v{vT2}, 5, v{vL}
    v_xor_b32 v{vT1}, v{vT1}, v{vT2}
    v_lshlrev_b32 v{vT1}, 4, v{vT1}
    v_lshl_add_u32 v{dst}, v{vT0}, 7, v{vT1}
    """)
    if base_const:
        p(f"v_add_u32 v{dst}, {base_const}, v{dst}")
    if sbase is not None:
        p(f"v_add_u32 v{dst}, s{sbase}, v{dst}")


def w1_tr_addr0(p, dst):
    p(f"""
    v_lshrrev_b32 v{vT0}, 5, v{vL}
    v_bfe_u32 v{vT1}, v{vL}, 2, 2
    v_lshl_add_u32 v{vT0}, v{vT0}, 3, v{vT1}
    v_lshlrev_b32 v{vT0}, 8, v{vT0}
    v_lshl_add_u32 v{vT0}, v{vT1}, 6, v{vT0}
    v_bfe_u32 v{vT1}, v{vL}, 4, 1
    v_lshl_add_u32 v{vT0}, v{vT1}, 5, v{vT0}
    v_and_b32 v{vT1}, 3, v{vL}
    v_lshl_add_u32 v{vT0}, v{vT1}, 3, v{vT0}
    v_add_u32 v{dst}, {WR}, v{vT0}
    """)


def make_tag(p):
    p(f"""
    s_mov_b32 s{sT0}, 0x9E3779B1
    v_mul_lo_u32 v{vTAG}, v{vTAG}, s{sT0}
    v_add_u32 v{vTAG}, 0x7F4A7C15, v{vTAG}
    """)


def spin_tail(p, back):
    done = p.label("done")
    p(f"""
    s_cbranch_vccz {done}
    s_sub_u32 s{sSPIN}, s{sSPIN}, 1
    s_cmp_gt_i32 s{sSPIN}, 0
    s_cbranch_scc1 {back}
    {done}:
    """)


def entry(p):
    o = p.opt
    p(f"""
    s_load_dwordx16 s[36:51], s[0:1], 0
    s_load_dwordx16 s[52:67], s[0:1], 64
    s_getpc_b64 s[34:35]
    L_pc:
    s_cmp_ge_u32 s2, 256
    s_cbranch_scc1 L_end
    v_lshrrev_b32 v{vT0}, 6, v0
    s_lshr_b32 s{sJ}, s2, 3
    v_and_b32 v{vL}, 63, v0
    v_readfirstlane_b32 s{sW}, v{vT0}
    v_lshl_add_u32 v{vT0}, s{sJ}, 3, v{vT0}
    v_lshlrev_b32 v{vT0}, 7, v{vT0}
    v_min_u32 v{vT0}, L_end-L_pc, v{vT0}
    """)
    p.vmem(f"global_load_dword v255, v{vT0}, s[34:35]", "pf")
    if o.get("stamps"):
        p(("s_memtime" if o["stamps"] == 2 else "s_memrealtime") + f" s[{sSTAMP}:{sSTAMP + 1}]")
    p(f"""
    s_and_b32 s{sXCD}, s2, 7
    s_and_b32 s{sT0}, s{sJ}, 7
    s_lshr_b32 s{sT1}, s{sJ}, 3
    s_lshr_b32 s{sMT}, s{sXCD}, 2
    s_lshl_b32 s{sMT}, s{sMT}, 3
    s_add_u32 s{sMT}, s{sMT}, s{sT0}
    s_and_b32 s{sT2}, s{sXCD}, 3
    s_lshl_b32 s{sNT}, s{sT2}, 2
    s_add_u32 s{sNT}, s{sNT}, s{sT1}
    s_mul_i32 s{sL0}, s{sT2}, 7
    s_lshl_b32 s{sT3}, s{sT1}, 1
    s_add_u32 s{sL0}, s{sL0}, s{sT3}
    """)
    rot = o.get("rot", "full")
    if rot == "full":
        p(f"""
        s_add_u32 s{sC0}, s{sT0}, s{sT3}
        s_and_b32 s{sT2}, s{sXCD}, 1
        s_add_u32 s{sC0}, s{sC0}, s{sT2}
        """)
    elif rot == "none":
        p(f"s_mov_b32 s{sC0}, 0")
    elif rot == "xcd":
        p(f"s_mov_b32 s{sC0}, s{sXCD}")
    elif rot == "half":
        p(f"""
        s_add_u32 s{sC0}, s{sT0}, s{sT1}
        s_and_b32 s{sC0}, s{sC0}, 1
        s_lshl_b32 s{sC0}, s{sC0}, 2
        s_add_u32 s{sC0}, s{sC0}, s{sXCD}
        """)
    elif rot == "quad":
        p(f"""
        s_add_u32 s{sC0}, s{sT0}, s{sT1}
        s_and_b32 s{sC0}, s{sC0}, 3
        s_lshl_b32 s{sC0}, s{sC0}, 1
        s_lshr_b32 s{sT2}, s{sXCD}, 2
        s_add_u32 s{sT2}, s{sT2}, s{sXCD}
        s_add_u32 s{sC0}, s{sC0}, s{sT2}
        """)
    p(f"""
    s_cmp_lt_u32 s{sW}, 4
    s_cbranch_scc1 L_A
    """)


def ph2_ids(p):
    p(f"""
    s_and_b32 s{sT0}, s{sJ}, 3
    s_lshl_b32 s{sM2}, s{sXCD}, 2
    s_add_u32 s{sM2}, s{sM2}, s{sT0}
    s_lshr_b32 s{sN2}, s{sJ}, 2
    s_mov_b32 s{sSPIN}, {SPIN_MAX}
    """)


vOX, vOB, vOW, vCW, vCB = 8, 12, 14, 18, 19
vCA = 21
vST = 26
vSA = 25
vCD = 32
vCT = 56


def helper_ph1(p):
    o = p.opt
    p(f"""
    s_setprio {o.get("hprio", 0)}
    s_sub_u32 s{sHW}, s{sW}, 4
    v_lshrrev_b32 v{vT0}, 4, v{vL}
    v_and_b32 v{vT1}, 7, v{vL}
    v_xor_b32 v{vT1}, v{vT1}, v{vT0}
    v_lshlrev_b32 v{vT1}, 4, v{vT1}
    v_bfe_u32 v{vT2}, v{vL}, 3, 2
    v_lshl_add_u32 v{vT1}, v{vT2}, 10, v{vT1}
    v_lshrrev_b32 v{vT2}, 5, v{vL}
    v_lshl_add_u32 v{vOX}, v{vT2}, 15, v{vT1}
    v_lshl_add_u32 v{vOB}, v{vT2}, 13, v{vT1}
    v_xor_b32 v{vOX + 1}, 64, v{vOX}
    v_xor_b32 v{vOB + 1}, 64, v{vOB}
    v_add_u32 v{vOX + 1}, 3072, v{vOX + 1}
    v_add_u32 v{vOB + 1}, 3072, v{vOB + 1}
    v_add_u32 v{vOX + 2}, 6144, v{vOX}
    v_add_u32 v{vOX + 3}, 6144, v{vOX + 1}
    v_bfe_u32 v{vT1}, v{vL}, 2, 2
    v_xor_b32 v{vT1}, v{vT1}, v{vT0}
    v_mul_u32_u24 v{vOW}, 3584, v{vT0}
    v_lshl_add_u32 v{vOW}, v{vT1}, 6, v{vOW}
    v_and_b32 v{vT2}, 3, v{vL}
    v_lshl_add_u32 v{vOW}, v{vT2}, 4, v{vOW}
    s_lshr_b32 s{sT1}, s{sJ}, 3
    s_cmp_eq_u32 s{sT1}, 3
    s_cselect_b32 s{sT1}, 0x40000000, 0
    v_lshrrev_b32 v{vT1}, 1, v{vT1}
    v_mul_lo_u32 v{vT1}, v{vT1}, s{sT1}
    v_add_u32 v{vOW}, v{vOW}, v{vT1}
    v_add_u32 v{vOW + 1}, 13312, v{vOW}
    v_add_u32 v{vOW + 2}, 26624, v{vOW}
    v_add_u32 v{vOW + 3}, 39936, v{vOW}
    s_lshr_b32 s{sT0}, s{sHW}, 1
    s_and_b32 s{sT1}, s{sHW}, 1
    s_lshl_b32 s{sBX}, s{sMT}, 17
    s_lshl_b32 s{sT2}, s{sT0}, 16
    s_add_u32 s{sBX}, s{sBX}, s{sT2}
    s_lshl_b32 s{sT2}, s{sT1}, 14
    s_add_u32 s{sBX}, s{sBX}, s{sT2}
    s_lshl_b32 s{sBB}, s{sNT}, 15
    s_lshl_b32 s{sT2}, s{sT0}, 14
    s_add_u32 s{sBB}, s{sBB}, s{sT2}
    s_lshl_b32 s{sBW}, s{sL0}, 7
    s_mul_i32 s{sT2}, s{sHW}, {16 * 3584}
    s_add_u32 s{sBW}, s{sBW}, s{sT2}
    s_lshl_b32 s{sMX}, s{sHW}, 12
    s_lshl_b32 s{sMB}, s{sT1}, 12
    s_lshl_b32 s{sT2}, s{sT0}, 11
    s_add_u32 s{sMB}, s{sMB}, s{sT2}
    s_cmp_eq_u32 s{sT1}, 0
    s_waitcnt lgkmcnt(0)
    s_cselect_b32 s{S_B}, s{pBRE}, s{pBIM}
    s_cselect_b32 s{S_B + 1}, s{pBRE + 1}, s{pBIM + 1}
    s_mov_b32 s{S_B + 2}, {512 * 1024}
    s_mov_b32 s{S_B + 3}, 0x00020000
    """)
    srd(p, S_X, pX, 2048 * 1024)
    srd(p, S_W, pW1, 512 * 3584)

    def dma_list(c):
        slot = c % 3
        L = []

        def head():
            p(f"""
            s_add_u32 s{sT0}, s{sC0}, {c}
            s_and_b32 s{sT0}, s{sT0}, 7
            s_lshl_b32 s{sT1}, s{sT0}, 7
            s_add_u32 s{sKX}, s{sBX}, s{sT1}
            s_add_u32 m0, s{sMX}, {XR + slot * 16384}
            s_add_u32 s{sKB}, s{sBB}, s{sT1}
            """)
            p.vmem(f"buffer_load_dwordx4 v{vOX}, s[{S_X}:{S_X + 3}], s{sKX} offen lds", ("c", c))
            p(f"""
            s_mul_i32 s{sT0}, s{sT0}, {64 * 3584}
            s_add_u32 s{sKW}, s{sBW}, s{sT0}
            """)
        L.append(head)
        for i in range(1, 4):
            L.append(lambda i=i: p.vmem(f"buffer_load_dwordx4 v{vOX + i}, s[{S_X}:{S_X + 3}], s{sKX} offen offset:{1024 * i} lds", ("c", c)))

        def b0():
            p(f"s_add_u32 m0, s{sMB}, {BR + slot * 8192}\ns_nop 0")
            p.vmem(f"buffer_load_dwordx4 v{vOB}, s[{S_B}:{S_B + 3}], s{sKB} offen lds", ("c", c))
        L.append(b0)
        L.append(lambda: p.vmem(f"buffer_load_dwordx4 v{vOB + 1}, s[{S_B}:{S_B + 3}], s{sKB} offen offset:1024 lds", ("c", c)))

        def w0():
            p(f"s_add_u32 m0, s{sMX}, {WR + slot * 16384}\ns_nop 0")
            p.vmem(f"buffer_load_dwordx4 v{vOW}, s[{S_W}:{S_W + 3}], s{sKW} offen lds", ("c", c))
        L.append(w0)
        for i in range(1, 4):
            L.append(lambda i=i: p.vmem(f"buffer_load_dwordx4 v{vOW + i}, s[{S_W}:{S_W + 3}], s{sKW} offen offset:{1024 * i} lds", ("c", c)))
        return L

    for f in dma_list(0):
        f()
    p.stamp(1)
    srd(p, S_WS, pWS, WS_BYTES)
    p.vmem(f"buffer_load_dword v{vTAG}, off, s[{S_WS}:{S_WS + 3}], 0 sc1", "epoch")
    w1_tr_addr0(p, vCW)
    p(f"""
    s_lshl_b32 s{sT0}, s{sHW}, 6
    v_xor_b32 v{vCW}, s{sT0}, v{vCW}
    """)
    rowfrag_addr(p, vCB, BR)
    p(f"""
    s_and_b32 s{sT0}, s{sHW}, 1
    s_lshl_b32 s{sT0}, s{sT0}, 12
    v_add_u32 v{vCB}, s{sT0}, v{vCB}
    s_lshr_b32 s{sT0}, s{sHW}, 1
    s_lshl_b32 s{sT0}, s{sT0}, 6
    v_xor_b32 v{vCB}, s{sT0}, v{vCB}
    v_xor_b32 v{vCB + 1}, 32, v{vCB}
    v_mov_b32 v{vCA}, 0
    v_mov_b32 v{vCA + 1}, 0
    v_mov_b32 v{vCA + 2}, 0
    v_mov_b32 v{vCA + 3}, 0
    s_mov_b32 s{sMASK}, 0xffff0000
    v_and_b32 v{vSA}, 31, v{vL}
    v_lshlrev_b32 v{vSA}, 3, v{vSA}
    """)
    ph2_ids(p)
    for f in dma_list(1):
        f()

    def colsum_reads(c):
        slot = c % 3
        for s in range(4):
            for e in range(2):
                p(f"ds_read_b64_tr_b16 {vr(vCD + 4 * s + 2 * e, 2)}, v{vCW} offset:{slot * 16384 + s * 4096 + e * 1024}")
        for i in range(2):
            p(f"ds_read_b128 {vr(vCD + 16 + 4 * i, 4)}, v{vCB + i} offset:{slot * 8192}")

    def colsum_valu():
        L = []
        for d in range(24):
            a = vCA if d < 16 else vCA + 2
            t = vCT + 2 * (d & 1)
            if d in (0, 8, 16):
                L.append(f"s_waitcnt lgkmcnt({ {0: 6, 8: 2, 16: 0}[d] })")
            L.append(f"v_lshlrev_b32 v{t}, 16, v{vCD + d}")
            L.append(f"v_and_b32 v{t + 1}, s{sMASK}, v{vCD + d}")
            L.append(f"v_add_f32 v{a}, v{a}, v{t}")
            L.append(f"v_add_f32 v{a + 1}, v{a + 1}, v{t + 1}")
        return L

    def stats_load():
        p.vmem(f"buffer_load_dwordx2 {vr(vST, 2)}, v{vSA}, s[{S_WS}:{S_WS + 3}], s{sT3} offen sc1", "st")

    for c in range(8):
        p.wait_vm(("c", c))
        if c == 1:
            make_tag(p)
        if c == 6:
            back = p.label("stspin")
            chk = p.label("stchk")
            p(f"s_branch {chk}\n{back}:")
            p(f"buffer_load_dwordx2 {vr(vST, 2)}, v{vSA}, s[{S_WS}:{S_WS + 3}], s{sT3} offen sc1\ns_waitcnt vmcnt(0)")
            p(f"{chk}:\nv_cmp_ne_u32 vcc, v{vST + 1}, v{vTAG}")
            p("s_nop 4")
            spin_tail(p, back)
            p(f"""
            v_and_b32 v{vCT}, s{sMASK}, v{vST}
            v_rcp_f32 v{vCT}, v{vCT}
            v_lshrrev_b32 v{vCT + 1}, 1, v{vSA}
            s_lshl_b32 s{sT0}, s{sHW}, 7
            s_add_u32 s{sT0}, s{sT0}, {L_MS}
            v_add_u32 v{vCT + 1}, s{sT0}, v{vCT + 1}
            ds_write_b32 v{vCT + 1}, v{vST}
            ds_write_b32 v{vCT + 1}, v{vCT} offset:512
            s_waitcnt lgkmcnt(0)
            """)
        p("s_barrier")
        if c == 0:
            p.stamp(2)
        colsum_reads(c)
        dm = []
        if c == 4:
            p(f"""
            s_lshl_b32 s{sT3}, s{sMT}, 2
            s_add_u32 s{sT3}, s{sT3}, s{sHW}
            s_lshl_b32 s{sT3}, s{sT3}, 8
            s_add_u32 s{sT3}, s{sT3}, {WS_STATS}
            """)
            dm.append(stats_load)
        if c + 2 < 8:
            dm += dma_list(c + 2)
        elif c == 6:
            stage_setup(p, None, 6)
            dm += stage_dma(p, 0)
        if o.get("nocolsum"):
            for f in dm: f()
        elif dm:
            interleave(p, dm, colsum_valu())
        else:
            for x in colsum_valu():
                p(x)
    p(f"""
    v_add_f32 v{vCA}, v{vCA}, v{vCA + 1}
    v_add_f32 v{vCA + 2}, v{vCA + 2}, v{vCA + 3}
    v_and_b32 v{vCA + 1}, s{sMASK}, v{vCA}
    v_and_b32 v{vCA + 3}, s{sMASK}, v{vCA + 2}
    v_sub_f32 v{vCA}, v{vCA}, v{vCA + 1}
    v_sub_f32 v{vCA + 2}, v{vCA + 2}, v{vCA + 3}
    v_cvt_pk_bf16_f32 v{vCA}, v{vCA + 1}, v{vCA}
    v_cvt_pk_bf16_f32 v{vCA + 2}, v{vCA + 3}, v{vCA + 2}
    s_lshl_b32 s{sT0}, s{sHW}, 8
    s_add_u32 s{sT0}, s{sT0}, {L_EXTW}
    v_lshl_add_u32 v{vCT}, v{vL}, 2, s{sT0}
    ds_write_b32 v{vCT}, v{vCA}
    ds_write_b32 v{vCT}, v{vCA + 2} offset:1024
    s_waitcnt lgkmcnt(0)
    s_barrier
    """)
    p.stamp(3)


vSO = 28
vSR = 60
vB2 = 64
sISY = 91


def stage_setup(p, isy, n):
    if n == 6:
        p(f"""
        s_mul_i32 s{sT0}, s{sW}, 6
        s_sub_u32 s{sT0}, s{sT0}, 8
        s_cmp_eq_u32 s{sW}, 7
        s_cselect_b32 s{sT0}, 28, s{sT0}
        s_cmp_eq_u32 s{sW}, 6
        s_cselect_b32 s{sT0}, 10, s{sT0}
        s_cselect_b32 s{sISY}, 1, 0
        s_lshl_b32 s{sBUF0}, s{sHW}, 13
        s_add_u32 s{sBUF0}, s{sBUF0}, {SP}
        s_and_b32 s{sT1}, s{sHW}, 1
        s_lshl_b32 s{sT1}, s{sT1}, 13
        s_cmp_lt_u32 s{sHW}, 2
        s_cselect_b32 s{sBUF1}, 0, {WR - XR}
        s_add_u32 s{sBUF1}, s{sBUF1}, s{sT1}
        s_add_u32 s{sBUF1}, s{sBUF1}, {XR + 32768}
        """)
    else:
        p(f"""
        s_mul_i32 s{sT0}, s{sMH}, 5
        s_add_u32 s{sT0}, s{sT0}, {0 if isy else 34}
        s_mov_b32 s{sISY}, {1 if isy else 0}
        s_lshl_b32 s{sBUF0}, s{sMH}, 13
        s_add_u32 s{sBUF0}, s{sBUF0}, {XR if isy else WR}
        s_add_u32 s{sBUF1}, s{sBUF0}, 16384
        """)
    fs = p.opt.get("fs", 128)
    p(f"""
    v_lshrrev_b32 v{vT0}, 1, v{vL}
    v_min_u32 v{vT0}, {n - 1}, v{vT0}
    v_add_u32 v{vT0}, s{sT0}, v{vT0}
    v_and_b32 v{vT1}, 1, v{vL}
    v_and_b32 v{vT2}, 14, v{vT0}
    v_add_u32 v{vT2}, v{vT2}, v{vT1}
    v_subrev_u32 v{vT0}, 16, v{vT0}
    v_mul_u32_u24 v{vT3}, 37, v{vT0}
    v_bfe_u32 v{vT3}, v{vT3}, 8, 2
    v_mul_u32_u24 v{vFA}, 7, v{vT3}
    v_sub_u32 v{vT0}, v{vT0}, v{vFA}
    v_or_b32 v{vT1}, v{vT1}, v{vT0}
    v_and_b32 v{vT1}, 1, v{vT1}
    v_add_u32 v{vT1}, 1, v{vT1}
    v_lshrrev_b32 v{vT0}, 1, v{vT0}
    v_lshl_add_u32 v{vT0}, v{vT3}, 2, v{vT0}
    v_lshl_add_u32 v{vT0}, v{vT1}, 4, v{vT0}
    s_cmp_eq_u32 s{sISY}, 1
    s_cselect_b64 vcc, -1, 0
    v_cndmask_b32 v{vFA}, v{vT0}, v{vT2}, vcc
    v_mul_u32_u24 v{vFA}, {fs}, v{vFA}
    s_mul_i32 s{sFLG}, s{sM2}, {96 * fs}
    s_add_u32 s{sFLG}, s{sFLG}, {WS_FLAGS}
    s_mul_i32 s{sHID}, s{sM2}, {352 * 1024}
    s_add_u32 s{sHID}, s{sHID}, {WS_HID}
    """)
    r2 = p.opt.get("rot2", 1)
    if r2:
        p(f"""
        s_and_b32 s{sT1}, s{sN2}, 1
        s_mul_i32 s{sT1}, s{sT1}, {n // 2 if r2 & 2 else 0}
        s_add_u32 s{sT1}, s{sT1}, {('s%d' % sXCD) if r2 & 1 else 0}
        s_cmp_ge_u32 s{sT1}, {n}
        s_cselect_b32 s{sT2}, {n}, 0
        s_sub_u32 s{sT1}, s{sT1}, s{sT2}
        """)
    else:
        p(f"s_mov_b32 s{sT1}, 0")
    for i in range(n):
        p(f"""
        s_add_u32 s{sUN + i}, s{sT0}, s{sT1}
        s_add_u32 s{sT1}, s{sT1}, 1
        s_cmp_eq_u32 s{sT1}, {n}
        s_cselect_b32 s{sT1}, 0, s{sT1}
        """)
    p(f"""
    v_lshrrev_b32 v{vT0}, 4, v{vL}
    v_and_b32 v{vT1}, 1, v{vT0}
    v_lshlrev_b32 v{vT1}, 2, v{vT1}
    v_cndmask_b32 v{vT0}, v{vT1}, v{vT0}, vcc
    v_and_b32 v{vT1}, 7, v{vL}
    v_xor_b32 v{vT0}, v{vT0}, v{vT1}
    v_lshlrev_b32 v{vT0}, 4, v{vT0}
    v_lshrrev_b32 v{vT1}, 3, v{vL}
    v_lshl_add_u32 v{vSO}, v{vT1}, 10, v{vT0}
    s_lshl_b32 s{sT1}, s{sISY}, 6
    v_xor_b32 v{vSO + 1}, s{sT1}, v{vSO}
    v_add_u32 v{vSO + 1}, 7168, v{vSO + 1}
    v_add_u32 v{vSO + 2}, 14336, v{vSO}
    v_add_u32 v{vSO + 3}, 14336, v{vSO + 1}
    v_lshlrev_b32 v{vL16}, 4, v{vL}
    """)


def stage_dma(p, i):
    L = []
    buf = sBUF0 + (i & 1)

    def head():
        p(f"""
        s_and_b32 s{sT0}, s{sUN + i}, 1
        s_cmp_eq_u32 s{sT0}, 0
        s_cselect_b32 s{S_B}, s{pCRE}, s{pCIM}
        s_cselect_b32 s{S_B + 1}, s{pCRE + 1}, s{pCIM + 1}
        s_lshr_b32 s{sT0}, s{sUN + i}, 1
        s_lshl_b32 s{sT0}, s{sT0}, 7
        s_lshl_b32 s{sT1}, s{sN2}, 16
        s_add_u32 s{sT0}, s{sT0}, s{sT1}
        s_sub_u32 s{sT1}, s{sUN + i}, 16
        s_lshl_b32 s{sT1}, s{sT1}, 16
        s_lshl_b32 s{sT2}, s{sN2}, 7
        s_add_u32 s{sT1}, s{sT1}, s{sT2}
        s_cmp_eq_u32 s{sISY}, 1
        s_cselect_b32 s{S_B}, s{S_B}, s{pW2}
        s_cselect_b32 s{S_B + 1}, s{S_B + 1}, s{pW2 + 1}
        s_cselect_b32 s{S_B + 2}, {512 * 1024}, s{sKW}
        s_mov_b32 s{S_B + 3}, 0x00020000
        s_mov_b32 m0, s{buf}
        s_cselect_b32 s{sKB}, s{sT0}, s{sT1}
        """)
        p.vmem(f"buffer_load_dwordx4 v{vSO}, s[{S_B}:{S_B + 3}], s{sKB} offen lds", ("u", i))

    def pre():
        p(f"s_mov_b32 s{sKW}, {1792 * 1024}")
        head()
    L.append(pre)
    for k in range(1, 4):
        L.append(lambda k=k: p.vmem(f"buffer_load_dwordx4 v{vSO + k}, s[{S_B}:{S_B + 3}], s{sKB} offen offset:{1024 * k} lds", ("u", i)))

    def half():
        p(f"s_add_u32 m0, s{buf}, 4096\ns_add_u32 s{sKB}, s{sKB}, 32768")
        p.vmem(f"buffer_load_dwordx4 v{vSO}, s[{S_B}:{S_B + 3}], s{sKB} offen lds", ("u", i))
    L.append(half)
    for k in range(1, 4):
        L.append(lambda k=k: p.vmem(f"buffer_load_dwordx4 v{vSO + k}, s[{S_B}:{S_B + 3}], s{sKB} offen offset:{1024 * k} lds", ("u", i)))
    return L


def stage_read_addr(p, isy):
    if isy:
        rowfrag_addr(p, vSR, 0, sBUF0)
        for s in range(1, 4):
            p(f"v_xor_b32 v{vSR + s}, {32 * s}, v{vSR}")
    else:
        p(f"""
        v_lshrrev_b32 v{vT0}, 5, v{vL}
        v_bfe_u32 v{vT1}, v{vL}, 2, 2
        v_lshl_add_u32 v{vT0}, v{vT0}, 2, v{vT1}
        v_lshlrev_b32 v{vT0}, 7, v{vT0}
        v_lshrrev_b32 v{vT1}, 1, v{vT1}
        v_lshl_add_u32 v{vT0}, v{vT1}, 6, v{vT0}
        v_bfe_u32 v{vT1}, v{vL}, 4, 1
        v_lshl_add_u32 v{vT0}, v{vT1}, 5, v{vT0}
        v_and_b32 v{vT1}, 3, v{vL}
        v_lshl_add_u32 v{vT0}, v{vT1}, 3, v{vT0}
        v_add_u32 v{vSR}, s{sBUF0}, v{vT0}
        v_xor_b32 v{vSR + 1}, 64, v{vSR}
        v_add_u32 v{vSR + 2}, s{sBUF1}, v{vT0}
        v_xor_b32 v{vSR + 3}, 64, v{vSR + 2}
        """)
    p(f"s_sub_u32 s{sKX}, s{sBUF1}, s{sBUF0}")


def stage_read(p, i, isy):
    base = vB2 + 32 * i
    if isy:
        for t in range(4):
            for db in range(2):
                p(f"ds_read_b128 {vr(base + 8 * t + 4 * db, 4)}, v{vSR + t} offset:{4096 * db}")
        op = "v_add_u32" if (i & 1) == 0 else "v_subrev_u32"
        for t in range(4):
            p(f"{op} v{vSR + t}, s{sKX}, v{vSR + t}")
    else:
        for t in range(4):
            for db in range(2):
                for e in range(2):
                    p(f"ds_read_b64_tr_b16 {vr(base + 8 * t + 4 * db + 2 * e, 2)}, v{vSR + 2 * (i & 1) + db} offset:{2048 * t + 1024 * e}")
    p("s_waitcnt lgkmcnt(0)")


def stage_rest(p, n, isy, issued, hooks=None):
    hooks = hooks or {}
    stage_read_addr(p, isy)
    nxt = issued
    while nxt < 2:
        for f in stage_dma(p, nxt):
            f()
        nxt += 1
        if nxt in hooks:
            hooks[nxt]()
    for i in range(n):
        p.wait_vm(("u", i))
        stage_read(p, i, isy)
        if nxt < n:
            for f in stage_dma(p, nxt):
                f()
            nxt += 1
            if nxt in hooks:
                hooks[nxt]()


vRING, NRING = 8, 6
vACC2 = 32


def ph2_main(p, n):
    fs = p.opt.get("fs", 128)
    p.vm = []
    p.stamp(5)
    for i in range(n):
        p(f"s_lshl_b32 s{sUN + i}, s{sUN + i}, 12\ns_add_u32 s{sUN + i}, s{sUN + i}, s{sHID}")
    p(f"""
    v_lshrrev_b32 v{vT0}, 5, v{vL}
    v_and_b32 v{vT1}, 31, v{vL}
    v_xor_b32 v{vT1}, v{vT1}, v{vT0}
    v_lshlrev_b32 v{vT1}, 4, v{vT1}
    v_lshl_add_u32 v{vT2}, v{vT0}, 9, v{vT1}
    s_add_u32 s{sKX}, s{sFLG}, {48 * fs}
    """)
    back = p.label("f0spin")
    p(f"""
    {back}:
    buffer_load_dword v{vT0}, v{vFA}, s[{S_WS}:{S_WS + 3}], s{sFLG} offen sc1
    s_waitcnt vmcnt(0)
    v_cmp_ne_u32 vcc, v{vT0}, v{vTAG}
    s_nop 4
    """)
    spin_tail(p, back)
    p.stamp(6)
    ns = 4 * n
    tot = 2 * ns

    def load(g):
        ps, k = divmod(g, ns)
        slot, t = divmod(k, 4)
        if ps == 1 and t == 0:
            p(f"s_add_u32 s{sUN + slot}, s{sUN + slot}, {176 * 1024}")
        r = vRING + 4 * (g % NRING)
        off = f" offset:{1024 * t}" if t else ""
        p.vmem(f"buffer_load_dwordx4 {vr(r, 4)}, v{vL16}, s[{S_WS}:{S_WS + 3}], s{sUN + slot} offen{off} sc1", ("a", g))

    def partial_write(ps):
        p(f"v_add_u32 v{vT1}, s{sBUF0 + ps}, v{vT2}\ns_nop 7\ns_nop 2")
        for ii in range(8):
            db, j = divmod(ii, 4)
            if ii:
                p(f"v_xor_b32 v{vT3}, {ii << 5}, v{vT1}")
            a = vT3 if ii else vT1
            p(f"ds_write_b128 v{a}, {vr(vACC2 + 16 * db + 4 * j, 4)} offset:{1024 * ii}")

    for g in range(NRING):
        load(g)
    poll_at = ns - 2 * NRING - 2
    for g in range(tot):
        ps, k = divmod(g, ns)
        p.wait_vm(("a", g))
        r = vRING + 4 * (g % NRING)
        for db in range(2):
            acc = vr(vACC2 + 16 * db, 16)
            c = "0" if k == 0 else acc
            p(f"v_mfma_f32_32x32x16_bf16 {acc}, {vr(vB2 + 8 * k + 4 * db, 4)}, {vr(r, 4)}, {c}")
        if g == poll_at:
            p.vmem(f"buffer_load_dword v{vT0}, v{vFA}, s[{S_WS}:{S_WS + 3}], s{sKX} offen sc1", "f1")
        nx = g + NRING
        if nx == ns:
            back = p.label("f1spin")
            chk = p.label("f1chk")
            p.wait_vm("f1")
            p(f"""
            s_branch {chk}
            {back}:
            buffer_load_dword v{vT0}, v{vFA}, s[{S_WS}:{S_WS + 3}], s{sKX} offen sc1
            s_waitcnt vmcnt(0)
            {chk}:
            v_cmp_ne_u32 vcc, v{vT0}, v{vTAG}
            s_nop 4
            """)
            spin_tail(p, back)
        if nx < tot:
            load(nx)
        if k == ns - 1:
            if ps == 1:
                final_loads(p)
            partial_write(ps)
            if ps == 0:
                p("s_waitcnt lgkmcnt(0)")


vFX, vFS, vFD = 64, 68, 70


def final_loads(p):
    srd(p, S_X, pX, 2048 * 1024)
    srd(p, S_W, pOUT, 2048 * 2048)
    p(f"""
    s_and_b32 s{sT0}, s{sW}, 1
    s_lshl_b32 s{sT0}, s{sT0}, 5
    s_lshr_b32 s{sT1}, s{sW}, 1
    s_lshl_b32 s{sT1}, s{sT1}, 2
    s_add_u32 s{sT0}, s{sT0}, s{sT1}
    s_lshl_b32 s{sT1}, s{sM2}, 6
    s_add_u32 s{sT0}, s{sT0}, s{sT1}
    s_lshl_b32 s{sKX}, s{sT0}, 10
    s_lshl_b32 s{sT1}, s{sN2}, 7
    s_add_u32 s{sKX}, s{sKX}, s{sT1}
    s_add_u32 s{sKB}, s{sKX}, 16384
    s_lshl_b32 s{sT0}, s{sT0}, 3
    s_add_u32 s{sT0}, s{sT0}, {WS_STATS}
    v_lshrrev_b32 v72, 4, v{vL}
    v_and_b32 v73, 15, v{vL}
    v_lshlrev_b32 v74, 3, v73
    v_lshl_add_u32 v75, v72, 10, v74
    v_lshlrev_b32 v76, 3, v72
    v_add_u32 v74, s{sT1}, v74
    """)
    p.vmem(f"buffer_load_dwordx2 {vr(vFX, 2)}, v75, s[{S_X}:{S_X + 3}], s{sKX} offen", "fin")
    p.vmem(f"buffer_load_dwordx2 {vr(vFX + 2, 2)}, v75, s[{S_X}:{S_X + 3}], s{sKB} offen", "fin")
    p.vmem(f"buffer_load_dword v{vFS}, v76, s[{S_WS}:{S_WS + 3}], s{sT0} offen sc1", "fin")
    p.vmem(f"buffer_load_dword v{vFS + 1}, v76, s[{S_WS}:{S_WS + 3}], s{sT0} offen offset:128 sc1", "fin")
    p.vmem(f"global_load_dwordx2 {vr(vFD, 2)}, v74, s[{pD}:{pD + 1}]", "fin")


def final(p):
    p("L_final:")
    p.stamp(7)
    p(f"""
    s_lshl_b32 s{sT0}, s{sW}, 2
    v_add_u32 v77, s{sT0}, v72
    v_xor_b32 v77, v77, v73
    v_lshlrev_b32 v77, 4, v77
    v_lshl_add_u32 v77, v73, 9, v77
    v_add_u32 v78, 65536, v77
    v_add_u32 v79, 131072, v77
    v_lshlrev_b32 v75, 1, v75
    s_lshl_b32 s{sKX}, s{sKX}, 1
    s_lshl_b32 s{sKB}, s{sKB}, 1
    s_mov_b32 s{sMASK}, 0xffff0000
    s_waitcnt lgkmcnt(0)
    s_barrier
    """)
    order = [0, 1, 6, 2, 3, 4, 5, 7]
    D = 96
    for ps in range(2):
        for i, w in enumerate(order):
            b = wave_buf(w, ps)
            p(f"ds_read_b128 {vr(D + 32 * ps + 4 * i, 4)}, v{77 + b // 65536} offset:{b % 65536}")
    p(f"""
    s_waitcnt vmcnt(0)
    v_lshlrev_b32 v80, 16, v{vFD}
    v_and_b32 v81, s{sMASK}, v{vFD}
    v_lshlrev_b32 v82, 16, v{vFD + 1}
    v_and_b32 v83, s{sMASK}, v{vFD + 1}
    s_mov_b32 s{sT2}, {LN2}
    """)
    for ps in range(2):
        d = D + 32 * ps
        X = 84 + 0
        p(f"""
        v_and_b32 v93, s{sMASK}, v{vFS + ps}
        v_rcp_f32 v93, v93
        v_lshlrev_b32 v92, 16, v{vFS + ps}
        v_lshlrev_b32 v84, 16, v{vFX + 2 * ps}
        v_and_b32 v85, s{sMASK}, v{vFX + 2 * ps}
        v_lshlrev_b32 v86, 16, v{vFX + 2 * ps + 1}
        v_and_b32 v87, s{sMASK}, v{vFX + 2 * ps + 1}
        v_pk_add_f32 v[88:89], v[84:85], v[92:93] op_sel_hi:[1,0] neg_lo:[0,1] neg_hi:[0,1]
        v_pk_add_f32 v[90:91], v[86:87], v[92:93] op_sel_hi:[1,0] neg_lo:[0,1] neg_hi:[0,1]
        v_pk_mul_f32 v[88:89], v[88:89], v[92:93] op_sel:[0,1] op_sel_hi:[1,1]
        v_pk_mul_f32 v[90:91], v[90:91], v[92:93] op_sel:[0,1] op_sel_hi:[1,1]
        s_waitcnt lgkmcnt({8 if ps == 0 else 0})
        """)
        for h in range(2):
            y = d + 2 * h
            f = d + 12 + 2 * h
            p(f"""
            v_pk_fma_f32 {vr(88 + 2 * h, 2)}, {vr(88 + 2 * h, 2)}, {vr(80 + 2 * h, 2)}, {vr(y, 2)}
            v_pk_add_f32 {vr(f, 2)}, {vr(f, 2)}, {vr(f + 4, 2)}
            v_pk_add_f32 {vr(f + 8, 2)}, {vr(f + 8, 2)}, {vr(f + 12, 2)}
            v_pk_add_f32 {vr(y + 4, 2)}, {vr(y + 4, 2)}, {vr(y + 8, 2)}
            v_pk_add_f32 {vr(f, 2)}, {vr(f, 2)}, {vr(f + 16, 2)}
            v_pk_add_f32 {vr(88 + 2 * h, 2)}, {vr(88 + 2 * h, 2)}, {vr(y + 4, 2)}
            v_pk_add_f32 {vr(f, 2)}, {vr(f, 2)}, {vr(f + 8, 2)}
            """)
        f = d + 12
        e = d + 16
        for k in range(4):
            p(f"v_exp_f32_e64 v{e + k}, -v{f + k}")
        p(f"""
        v_pk_mul_f32 {vr(88, 2)}, {vr(88, 2)}, {vr(f, 2)}
        v_pk_mul_f32 {vr(90, 2)}, {vr(90, 2)}, {vr(f + 2, 2)}
        v_pk_add_f32 {vr(e, 2)}, {vr(e, 2)}, 1.0 op_sel_hi:[1,0]
        v_pk_add_f32 {vr(e + 2, 2)}, {vr(e + 2, 2)}, 1.0 op_sel_hi:[1,0]
        """)
        for k in range(4):
            p(f"v_rcp_f32 v{e + k}, v{e + k}")
        for k in range(4):
            p(f"v_mul_f32 v{88 + k}, s{sT2}, v{88 + k}")
        p(f"""
        v_pk_fma_f32 {vr(d, 2)}, {vr(88, 2)}, {vr(e, 2)}, {vr(84, 2)}
        v_pk_fma_f32 {vr(d + 2, 2)}, {vr(90, 2)}, {vr(e + 2, 2)}, {vr(86, 2)}
        buffer_store_dwordx4 {vr(d, 4)}, v75, s[{S_W}:{S_W + 3}], s{sKX if ps == 0 else sKB} offen sc1
        """)
    p(f"""
    s_lshl_b32 s{sT0}, s{sN2}, 3
    s_add_u32 s{sT0}, s{sT0}, s{sW}
    s_lshl_b32 s{sT0}, s{sT0}, 5
    s_add_u32 s{sT0}, s{sT0}, s{sM2}
    s_cmp_lg_u32 s{sT0}, 31
    s_cbranch_scc1 L_noep
    s_mov_b64 exec, 1
    buffer_store_dword v{vTAG}, off, s[{S_WS}:{S_WS + 3}], 0 sc1
    L_noep:
    """)
    if p.opt.get("stamps"):
        p.stamp(8)
        p(f"""
        s_waitcnt vmcnt(0)
        """)
        p.stamp(9)
        if "probe" in p.opt:
            wm = p.opt.get("pw", 255)
            p(f"""
            s_lshl_b32 s{sT0}, 1, s{sW}
            s_and_b32 s{sT0}, s{sT0}, {wm}
            s_cmp_eq_u32 s{sT0}, 0
            s_cbranch_scc1 L_end
            """)
            if "pwg" in p.opt:
                p(f"s_cmp_lg_u32 s2, {p.opt['pwg']}\ns_cbranch_scc1 L_end")
            p(f"""
            s_add_u32 s{sT0}, s{sSTAMP + p.opt['probe']}, 5000
            L_probe:
            s_memrealtime s[{sT2}:{sT3}]
            s_waitcnt lgkmcnt(0)
            s_sub_u32 s{sT1}, s{sT2}, s{sT0}
            s_cmp_lt_i32 s{sT1}, 0
            s_cbranch_scc1 L_probe
            s_branch L_end
            """)
        p(f"""
        s_mov_b64 exec, 1
        s_lshl_b32 s{sT0}, s2, 3
        s_add_u32 s{sT0}, s{sT0}, s{sW}
        s_lshl_b32 s{sT0}, s{sT0}, 6
        s_add_u32 s{sT0}, s{sT0}, {WS_STAMP}
        """)
        for i in range(10):
            p(f"v_mov_b32 v8, s{sSTAMP + i}\nbuffer_store_dword v8, off, s[{S_WS}:{S_WS + 3}], s{sT0} offset:{4 * i}")
    p("L_end:\ns_endpgm")


vAX, vAB, vAW = 8, 12, 16
vMS, vRL = 20, 22
vC, vLp, vL32, vL64, vL128 = 24, 26, 112, 114, 116
vFR = 64
vEX, vEW = 32, 40
vACC = 128
vR = 224
vID = 104


def cmul(p, d, a, b, add=None):
    if add is None:
        p(f"v_pk_mul_f32 {vr(d, 2)}, {vr(a, 2)}, {vr(b, 2)} op_sel_hi:[0,1]")
    else:
        p(f"v_pk_fma_f32 {vr(d, 2)}, {vr(a, 2)}, {vr(b, 2)}, {vr(add, 2)} op_sel_hi:[0,1,1]")
    p(f"v_pk_fma_f32 {vr(d, 2)}, {vr(a, 2)}, {vr(b, 2)}, {vr(d, 2)} op_sel:[1,1,0] op_sel_hi:[1,0,1] neg_lo:[0,1,0]")


def half_reduce(p, a, t):
    for r in (8, 4, 2, 1):
        p(f"s_nop 1\nv_add_f32_dpp v{a}, v{a}, v{a} row_ror:{r} row_mask:0xf bank_mask:0xf")
    p(f"""
    v_mov_b32 v{t}, v{a}
    s_nop 1
    v_permlane16_swap_b32 v{a}, v{t}
    s_nop 1
    v_add_f32 v{a}, v{a}, v{t}
    """)


def a_prologue(p):
    p("L_A:")
    D = 128
    p(f"""
    s_and_b32 s{sMH}, s{sW}, 1
    v_and_b32 v{vT0}, 31, v{vL}
    v_lshrrev_b32 v{vT1}, 5, v{vL}
    v_lshlrev_b32 v{vT2}, 4, v{vT0}
    v_lshl_add_u32 v{vT2}, v{vT1}, 10, v{vT2}
    s_lshl_b32 s{sT0}, s{sMT}, 4
    s_add_u32 s{sT0}, s{sT0}, s{sNT}
    s_lshl_b32 s{sT0}, s{sT0}, 2
    s_add_u32 s{sT0}, s{sT0}, s{sW}
    s_lshl_b32 s{sKX}, s{sT0}, 11
    s_lshl_b32 s{sKB}, s{sT0}, 4
    s_add_u32 s{sKB}, s{sKB}, {WS_STATS}
    s_waitcnt lgkmcnt(0)
    """)
    srd(p, S_X, pX, 2048 * 1024)
    p.vmem(f"buffer_load_dwordx4 {vr(D, 4)}, v{vT2}, s[{S_X}:{S_X + 3}], s{sKX} offen", "xr")
    p.vmem(f"buffer_load_dwordx4 {vr(D + 4, 4)}, v{vT2}, s[{S_X}:{S_X + 3}], s{sKX} offen offset:512", "xr")
    srd(p, S_WS, pWS, WS_BYTES)
    p.vmem(f"buffer_load_dword v{vTAG}, off, s[{S_WS}:{S_WS + 3}], 0 sc1", "xr")
    p(f"""
    s_lshr_b32 s{sT0}, s{sW}, 1
    s_lshl_b32 s{sT1}, s{sL0}, 1
    s_add_u32 s{sT0}, s{sT0}, s{sT1}
    s_lshl_b32 s{sT0}, s{sT0}, 5
    v_add_u32 v{vT2}, s{sT0}, v{vT0}
    """)
    for b in range(3):
        p(f"v_min_u32 v{vT3}, 1791, v{vT2}\nv_lshlrev_b32 v{vT3}, 1, v{vT3}")
        p.vmem(f"global_load_ushort v{vEW + 4 * b + 2}, v{vT3}, s[{pB1}:{pB1 + 1}]", "par")
        if b < 2:
            p(f"v_add_u32 v{vT2}, 32, v{vT2}")
    p(f"""
    v_and_b32 v{vT2}, 19, v{vT0}
    v_bfe_u32 v{vT3}, v{vT0}, 2, 1
    v_lshl_add_u32 v{vT2}, v{vT3}, 3, v{vT2}
    v_bfe_u32 v{vT3}, v{vT0}, 3, 1
    v_lshl_add_u32 v{vT2}, v{vT3}, 2, v{vT2}
    s_lshl_b32 s{sT0}, s{sNT}, 5
    v_add_lshl_u32 v{vT2}, v{vT2}, s{sT0}, 1
    """)
    p.vmem(f"global_load_ushort v{vR}, v{vT2}, s[{pLRE}:{pLRE + 1}]", "par")
    p.vmem(f"global_load_ushort v{vR + 1}, v{vT2}, s[{pLIM}:{pLIM + 1}]", "par")
    p.vmem(f"global_load_ushort v{vR + 2}, v{vT2}, s[{pDT}:{pDT + 1}]", "par")
    p(f"s_lshl_b32 s{sT0}, s{sMH}, 13")
    rowfrag_addr(p, vAB, BR)
    p(f"""
    v_subrev_u32 v{vAX}, {BR - XR}, v{vAB}
    v_add_u32 v{vAX}, s{sT0}, v{vAX}
    """)
    for s in range(1, 4):
        p(f"v_xor_b32 v{vAX + s}, {32 * s}, v{vAX}\nv_xor_b32 v{vAB + s}, {32 * s}, v{vAB}")
    w1_tr_addr0(p, vAW)
    ph2_ids(p)
    p(f"""
    s_lshl_b32 s{sCI}, s{sMT}, 1
    s_add_u32 s{sCI}, s{sCI}, s{sMH}
    s_mov_b32 s{sMASK}, 0xffff0000
    """)
    p.wait_vm("xr")
    make_tag(p)
    F = D + 8
    for k in range(8):
        p(f"v_lshlrev_b32 v{F + 2 * k}, 16, v{D + k}\nv_and_b32 v{F + 2 * k + 1}, s{sMASK}, v{D + k}")
    A = D + 24
    p(f"v_pk_add_f32 {vr(A, 2)}, {vr(F, 2)}, {vr(F + 2, 2)}")
    for k in range(2, 8):
        p(f"v_pk_add_f32 {vr(A, 2)}, {vr(A, 2)}, {vr(F + 2 * k, 2)}")
    p(f"v_add_f32 v{A}, v{A}, v{A + 1}")
    half_reduce(p, A, A + 1)
    p(f"v_mul_f32 v{A}, 0x3b000000, v{A}")
    for k in range(8):
        p(f"v_pk_add_f32 {vr(F + 2 * k, 2)}, {vr(F + 2 * k, 2)}, {vr(A, 2)} op_sel_hi:[1,0] neg_lo:[0,1] neg_hi:[0,1]")
    p(f"v_pk_mul_f32 {vr(A + 2, 2)}, {vr(F, 2)}, {vr(F, 2)}")
    for k in range(1, 8):
        p(f"v_pk_fma_f32 {vr(A + 2, 2)}, {vr(F + 2 * k, 2)}, {vr(F + 2 * k, 2)}, {vr(A + 2, 2)}")
    p(f"v_add_f32 v{A + 2}, v{A + 2}, v{A + 3}")
    half_reduce(p, A + 2, A + 3)
    p(f"""
    v_mul_f32 v{A + 2}, 0x3b000000, v{A + 2}
    v_cvt_pk_bf16_f32 v{A + 2}, v{A + 2}, v{A + 2}
    v_and_b32 v{A + 2}, s{sMASK}, v{A + 2}
    v_add_f32 v{A + 2}, 0x3727c5ac, v{A + 2}
    v_cvt_pk_bf16_f32 v{A + 2}, v{A + 2}, v{A + 2}
    v_and_b32 v{A + 2}, s{sMASK}, v{A + 2}
    v_sqrt_f32 v{A + 2}, v{A + 2}
    v_lshrrev_b32 v{vT1}, 5, v{vL}
    v_cvt_pk_bf16_f32 v{A}, v{A}, v{A + 2}
    v_mov_b32 v{A + 1}, v{vTAG}
    v_lshlrev_b32 v{vT1}, 3, v{vT1}
    s_mov_b32 exec_lo, 1
    s_mov_b32 exec_hi, 1
    """)
    p.vmem(f"buffer_store_dwordx2 {vr(A, 2)}, v{vT1}, s[{S_WS}:{S_WS + 3}], s{sKB} offen sc1", "stst")
    p("s_mov_b64 exec, -1")
    p.stamp(1)
    p.wait_vm("par")
    p(f"""
    s_cmp_ge_u32 s{sW}, 2
    s_cbranch_scc1 L_A1
    """)


def scan_consts(p):
    t = vR + 4
    p(f"""
    v_lshlrev_b32 v{vR}, 16, v{vR}
    v_lshlrev_b32 v{vR + 1}, 16, v{vR + 1}
    v_lshlrev_b32 v{vR + 2}, 16, v{vR + 2}
    v_mul_f32 v{vR + 2}, {LOG2E}, v{vR + 2}
    v_exp_f32 v{vR + 2}, v{vR + 2}
    s_nop 0
    v_cvt_pk_bf16_f32 v{vR + 2}, v{vR + 2}, v{vR + 2}
    v_and_b32 v{vR + 2}, s{sMASK}, v{vR + 2}
    v_mul_f32 v{t}, v{vR + 2}, v{vR}
    v_mul_f32 v{t + 1}, v{vR + 2}, v{vR + 1}
    v_mul_f32 v{t}, {LOG2E}, v{t}
    v_mul_f32 v{t + 1}, 0.15915494, v{t + 1}
    v_exp_f32 v{t}, v{t}
    v_rndne_f32 v{t + 2}, v{t + 1}
    v_sub_f32 v{t + 1}, v{t + 1}, v{t + 2}
    v_cos_f32 v{t + 2}, v{t + 1}
    v_sin_f32 v{t + 3}, v{t + 1}
    v_mul_f32 v{t + 4}, v{vR}, v{vR}
    v_fmac_f32 v{t + 4}, v{vR + 1}, v{vR + 1}
    v_rcp_f32 v{t + 4}, v{t + 4}
    v_mul_f32 v{vLp}, v{t}, v{t + 2}
    v_mul_f32 v{t + 3}, v{t}, v{t + 3}
    v_sub_f32 v{vLp + 1}, 0, v{t + 3}
    v_add_f32 v{t + 2}, -1.0, v{vLp}
    v_add_f32 v{t + 4}, v{t + 4}, v{t + 4}
    v_mul_f32 v{vC}, v{t + 2}, v{vR}
    v_fmac_f32 v{vC}, v{t + 3}, v{vR + 1}
    v_mul_f32 v{vC + 1}, v{t + 3}, v{vR}
    v_fma_f32 v{vC + 1}, -v{t + 2}, v{vR + 1}, v{vC + 1}
    v_mul_f32 v{vC}, v{vC}, v{t + 4}
    v_mul_f32 v{vC + 1}, v{vC + 1}, v{t + 4}
    """)
    a, b = t + 6, t + 8
    cmul(p, a, vLp, vLp)
    cmul(p, b, a, a)
    cmul(p, a, b, b)
    cmul(p, b, a, a)
    cmul(p, vL32, b, b)
    cmul(p, vL64, vL32, vL32)
    cmul(p, vL128, vL64, vL64)
    p(f"""
    v_and_b32 v{vT0}, 31, v{vL}
    v_lshrrev_b32 v{vT1}, 5, v{vL}
    v_lshlrev_b32 v{vT1}, 2, v{vT1}
    v_sub_u32 v{vT0}, v{vT0}, v{vT1}
    v_mov_b32 v{vT1}, 0x3f80
    v_mov_b32 v{vT2}, 0x3f800000
    """)
    for e in range(2):
        for dw in range(4):
            i0 = 2 * dw
            n0 = 16 * e + 8 * (i0 >> 2) + (i0 & 3)
            p(f"""
            v_cmp_eq_u32 vcc, {n0}, v{vT0}
            v_cmp_eq_u32 s[{sT0}:{sT1}], {n0 + 1}, v{vT0}
            s_nop 0
            v_cndmask_b32 v{vID + 4 * e + dw}, 0, v{vT1}, vcc
            v_cndmask_b32 v{vID + 4 * e + dw}, v{vID + 4 * e + dw}, v{vT2}, s[{sT0}:{sT1}]
            """)


def a_main(p, ty):
    def reads(c, s, st):
        slot = c % 3
        base = vFR + 20 * st
        L = []
        for rbl in range(2):
            L.append(f"ds_read_b128 {vr(base + 4 * rbl, 4)}, v{vAX + s} offset:{slot * 16384 + rbl * 4096}")
        for b in range(3):
            r = base + 8 + 4 * b
            if ty == 0 and b < 2:
                L.append(f"ds_read_b128 {vr(r, 4)}, v{vAB + s} offset:{slot * 8192 + b * 4096}")
            else:
                a = vAW + (0 if ty == 0 else b)
                for e in range(2):
                    L.append(f"ds_read_b64_tr_b16 {vr(r + 2 * e, 2)}, v{a} offset:{slot * 16384 + s * 4096 + e * 1024}")
        return L

    def mfmas(xb, wb, first):
        L = []
        for rbl in range(2):
            for b in range(3):
                acc = vr(vACC + 16 * (3 * rbl + b), 16)
                x, w = vr(xb + 4 * rbl, 4), vr(wb + 4 * b, 4)
                c = "0" if first else acc
                if ty == 0 and b < 2:
                    L.append(f"v_mfma_f32_32x32x16_bf16 {acc}, {x}, {w}, {c}")
                else:
                    L.append(f"v_mfma_f32_32x32x16_bf16 {acc}, {w}, {x}, {c}")
        return L

    for b in range(3):
        if ty == 0 and b < 2:
            p(f"v_mov_b32 v{vEW + 4 * b + 3}, 0")
        else:
            p(f"v_mov_b32 v{vEW + 4 * b + 1}, 0\nv_mov_b32 v{vEW + 4 * b + 3}, 0")
    if ty == 0:
        p(f"v_mov_b32 v{vEW + 10}, v{vEW + 2}\nv_mov_b32 v{vEW + 2}, 0\nv_mov_b32 v{vEW + 6}, 0")
    else:
        p(f"v_xor_b32 v{vAW + 2}, {3 << 6}, v{vAW}\nv_xor_b32 v{vAW + 1}, {2 << 6}, v{vAW}\nv_xor_b32 v{vAW}, {1 << 6}, v{vAW}")
    p(f"""
    v_mov_b32 v{vEX + 3}, 0
    v_mov_b32 v{vEX + 7}, 0
    v_and_b32 v{vT0}, 3, v{vL}
    v_bfe_u32 v{vT1}, v{vL}, 2, 1
    v_lshl_add_u32 v{vT0}, v{vT1}, 5, v{vT0}
    v_bfe_u32 v{vT1}, v{vL}, 3, 2
    v_lshl_add_u32 v{vT0}, v{vT1}, 2, v{vT0}
    s_lshl_b32 s{sT0}, s{sMH}, 8
    s_add_u32 s{sT0}, s{sT0}, {L_MS}
    v_lshl_add_u32 v52, v{vT0}, 2, s{sT0}
    v_lshrrev_b32 v{vT1}, 5, v{vL}
    v_lshl_add_u32 v53, v{vT1}, 7, s{sT0}
    v_lshlrev_b32 v54, 2, v{vL}
    v_add_u32 v54, {L_EXTW}, v54
    v_cmp_gt_u32 s[34:35], 32, v{vL}
    s_mov_b32 s33, 0x01000100
    """)
    p("s_barrier")
    p.stamp(2)
    for x in reads(0, 0, 0):
        p(x)
    p("s_waitcnt lgkmcnt(0)")
    bpos = p.opt.get("bpos", 2)
    step = 0
    for c in range(8):
        for s in range(4):
            st = step & 1
            M = mfmas(vFR + 20 * st, vFR + 20 * st + 8, step == 0)
            extra = []
            if s < 3:
                R = reads(c, s + 1, st ^ 1)
            elif c < 7:
                R = reads(c + 1, 0, st ^ 1)
            else:
                if ty == 0:
                    R = [f"ds_read_b32 v{vEW}, v54 offset:1024", f"ds_read_b32 v{vEW + 1}, v54 offset:{1024 + 512}",
                         f"ds_read_b32 v{vEW + 4}, v54 offset:{1024 + 256}", f"ds_read_b32 v{vEW + 5}, v54 offset:{1024 + 768}",
                         f"ds_read_b32 v{vEW + 8}, v54"]
                else:
                    R = [f"ds_read_b32 v{vEW + 4 * b}, v54 offset:{256 * (b + 1)}" for b in range(3)]
            if c == 6 and s == 0:
                R += [f"ds_read_b32 v{vMS}, v52", f"ds_read_b32 v{vMS + 1}, v52 offset:64",
                      f"ds_read_b32 v{vRL}, v52 offset:512", f"ds_read_b32 v{vRL + 1}, v52 offset:{512 + 64}"]
            if ty == 0 and c == 6 and s in (1, 2):
                R += [f"ds_read_b128 {vr(vR + 4 * q, 4)}, v53 offset:{512 + 16 * q}" for q in range(4 * (s - 1), 4 * s)]
            if c == 7 and s == 0:
                for rbl in range(2):
                    e = vEX + 4 * rbl
                    extra += [f"v_perm_b32 v{e}, v{vMS + rbl}, v{vMS + rbl}, s33",
                              f"v_xor_b32 v{e}, 0x80008000, v{e}",
                              f"v_mov_b32 v{e + 1}, v{e}",
                              f"v_lshrrev_b32 v{e + 2}, 16, v{vMS + rbl}",
                              f"v_cndmask_b32 v{e + 2}, 0, v{e + 2}, s[34:35]",
                              f"v_mul_f32 v{vRL + rbl}, {LOG2E}, v{vRL + rbl}"]
            R = R + extra
            first = bpos if s == 3 else 1
            for m in M[:first]:
                p(m)
            if s == 3:
                p("s_barrier")
            rest = M[first:]
            per = max(2, -(-len(R) // len(rest)))
            ir = 0
            for m in rest:
                for x in R[ir:ir + per]:
                    p(x)
                ir += per
                p(m)
            assert ir >= len(R)
            p("s_waitcnt lgkmcnt(0)")
            step += 1
    for m in mfmas(vEX, vEW, False):
        p(m)
    p("s_nop 7")
    p.stamp(3)


def mish_block(p, acc, rbl, pk, tmp):
    sel = "op_sel_hi:[1,0]" if rbl == 0 else "op_sel:[0,1] op_sel_hi:[1,1]"
    for q in range(4):
        a = acc + 4 * q
        e, u = tmp, tmp + 4
        p(f"""
        v_pk_mul_f32 {vr(a, 2)}, {vr(a, 2)}, {vr(vRL, 2)} {sel}
        v_pk_mul_f32 {vr(a + 2, 2)}, {vr(a + 2, 2)}, {vr(vRL, 2)} {sel}
        v_exp_f32 v{e}, v{a}
        v_exp_f32 v{e + 1}, v{a + 1}
        v_exp_f32 v{e + 2}, v{a + 2}
        v_exp_f32 v{e + 3}, v{a + 3}
        v_pk_fma_f32 {vr(u, 2)}, {vr(e, 2)}, 0.5, 1.0 op_sel_hi:[1,0,0]
        v_pk_fma_f32 {vr(u + 2, 2)}, {vr(e + 2, 2)}, 0.5, 1.0 op_sel_hi:[1,0,0]
        v_pk_fma_f32 {vr(u, 2)}, {vr(e, 2)}, {vr(u, 2)}, 1.0 op_sel_hi:[1,1,0]
        v_pk_fma_f32 {vr(u + 2, 2)}, {vr(e + 2, 2)}, {vr(u + 2, 2)}, 1.0 op_sel_hi:[1,1,0]
        v_rcp_f32 v{u}, v{u}
        v_rcp_f32 v{u + 1}, v{u + 1}
        v_rcp_f32 v{u + 2}, v{u + 2}
        v_rcp_f32 v{u + 3}, v{u + 3}
        v_pk_fma_f32 {vr(a, 2)}, {vr(a, 2)}, {vr(u, 2)}, {vr(a, 2)} neg_lo:[1,0,0] neg_hi:[1,0,0]
        v_pk_fma_f32 {vr(a + 2, 2)}, {vr(a + 2, 2)}, {vr(u + 2, 2)}, {vr(a + 2, 2)} neg_lo:[1,0,0] neg_hi:[1,0,0]
        v_cvt_pk_bf16_f32 v{pk + 2 * q}, v{a}, v{a + 1}
        v_cvt_pk_bf16_f32 v{pk + 2 * q + 1}, v{a + 2}, v{a + 3}
        """)


def hid_store(p, reg, soff, off, tag):
    o = f" offset:{off}" if off else ""
    p.vmem(f"buffer_store_dwordx4 {vr(reg, 4)}, v{vL16}, s[{S_WS}:{S_WS + 3}], s{soff} offen{o} sc1", tag)


def flag_store(p, kind, rbl):
    fs = p.opt.get("fs", 128)
    p(f"""
    s_add_u32 s{sT0}, s{sBW}, {(rbl * 3 + kind) * 16 * fs}
    s_mov_b64 exec, 1
    """)
    p.vmem(f"buffer_store_dword v{vTAG}, off, s[{S_WS}:{S_WS + 3}], s{sT0} sc1", "flag")
    p("s_mov_b64 exec, -1")


def a_epi_setup(p):
    fs = p.opt.get("fs", 128)
    p(f"""
    s_mul_i32 s{sT0}, s{sCI}, {352 * 1024}
    s_add_u32 s{sT0}, s{sT0}, {WS_HID}
    s_add_u32 s{sT1}, s{sL0}, 16
    s_lshl_b32 s{sT1}, s{sT1}, 12
    s_add_u32 s{sBX}, s{sT0}, s{sT1}
    s_lshr_b32 s{sT1}, s{sNT}, 1
    s_lshl_b32 s{sT1}, s{sT1}, 13
    s_and_b32 s{sT2}, s{sNT}, 1
    s_lshl_b32 s{sT2}, s{sT2}, 11
    s_add_u32 s{sT1}, s{sT1}, s{sT2}
    s_add_u32 s{sBB}, s{sT0}, s{sT1}
    s_mul_i32 s{sBW}, s{sCI}, 96
    s_add_u32 s{sBW}, s{sBW}, s{sNT}
    s_mul_i32 s{sBW}, s{sBW}, {fs}
    s_add_u32 s{sBW}, s{sBW}, {WS_FLAGS}
    """)


def a1_epilogue(p):
    PK, TMP = 64, 96
    light = p.label("light")
    join = p.label("join")
    p(f"""
    s_lshr_b32 s{sT0}, s{sJ}, 3
    s_cmp_eq_u32 s{sT0}, 3
    s_cbranch_scc1 {light}
    """)
    vm0 = list(p.vm)
    n = 0
    for rbl in range(2):
        p(f"s_add_u32 s{sMX}, s{sBX}, {rbl * 176 * 1024}\ns_add_u32 s{sMB}, s{sMX}, 4096")
        for b in range(3):
            pk = PK + 8 * (n & 3)
            n += 1
            mish_block(p, vACC + 16 * (3 * rbl + b), rbl, pk, TMP)
            so, off = (sMX, 2048) if b == 0 else (sMB, 2048 * (b - 1))
            hid_store(p, pk, so, off, ("h", rbl))
            hid_store(p, pk + 4, so, off + 1024, ("h", rbl))
    p.wait_vm(("h", 0))
    flag_store(p, 2, 0)
    p(f"s_branch {join}\n{light}:")
    vm1 = list(p.vm)
    p.vm = list(vm0)
    for rbl in range(2):
        p(f"s_add_u32 s{sMX}, s{sBX}, {rbl * 176 * 1024}")
        mish_block(p, vACC + 16 * (3 * rbl), rbl, PK + 8 * rbl, TMP)
        hid_store(p, PK + 8 * rbl, sMX, 2048, ("h", rbl))
        hid_store(p, PK + 8 * rbl + 4, sMX, 3072, ("h", rbl))
    p.wait_vm(("h", 0))
    flag_store(p, 2, 0)
    p(f"{join}:")
    p.vm = vm1
    p.stamp(4)

    def fl1():
        p.wait_vm(("h", 1))
        flag_store(p, 2, 1)
    stage_rest(p, 5, False, 0, {1: fl1})


def a0_epilogue(p):
    RE = [vACC, vACC + 48]
    IM = [vACC + 16, vACC + 64]
    ML = [vACC + 32, vACC + 80]
    TA, TB, G0, G1 = 56, 58, 118, 120
    E0, GR = 122, 124

    def U(tau):
        rbl, r = divmod(tau, 16)
        return (RE if r % 2 == 0 else IM)[rbl] + (r & ~1)
    g, gn = G0, G1
    for tau in range(0, 32, 2):
        rbl, r = divmod(tau, 16)
        a, b = RE[rbl] + r, IM[rbl] + r
        p(f"""
        v_pk_mul_f32 {vr(TA, 2)}, {vr(a, 2)}, {vr(vR + tau, 2)}
        v_pk_mul_f32 {vr(TB, 2)}, {vr(b, 2)}, {vr(vR + tau, 2)}
        v_pk_mul_f32 {vr(a, 2)}, {vr(TA, 2)}, {vr(vC, 2)} op_sel_hi:[0,1] neg_hi:[0,1]
        v_pk_mul_f32 {vr(b, 2)}, {vr(TA, 2)}, {vr(vC, 2)} op_sel:[1,0] op_sel_hi:[1,1] neg_hi:[0,1]
        v_pk_fma_f32 {vr(a, 2)}, {vr(TB, 2)}, {vr(vC, 2)}, {vr(a, 2)} op_sel:[0,1,0] op_sel_hi:[0,0,1] neg_lo:[0,1,0] neg_hi:[0,1,0]
        v_pk_fma_f32 {vr(b, 2)}, {vr(TB, 2)}, {vr(vC, 2)}, {vr(b, 2)} op_sel:[1,1,0] op_sel_hi:[1,0,1] neg_lo:[0,1,0] neg_hi:[0,1,0]
        """)
        if tau == 0:
            cmul(p, g, U(0), vLp, U(1))
        else:
            cmul(p, gn, g, vLp, U(tau))
            cmul(p, g, gn, vLp, U(tau + 1))
    p(f"""
    v_mov_b32 v{E0}, v{g}
    v_mov_b32 v{E0 + 1}, v{g + 1}
    v_and_b32 v{vT0}, 31, v{vL}
    v_lshlrev_b32 v{vT0}, 4, v{vT0}
    v_permlane32_swap_b32 v{E0}, v{g}
    v_permlane32_swap_b32 v{E0 + 1}, v{g + 1}
    s_lshl_b32 s{sMX}, s{sNT}, 15
    s_add_u32 s{sMX}, s{sMX}, {WS_CARRY}
    """)
    cmul(p, GR, E0, vL32, g)
    p(f"""
    v_mov_b32 v{GR + 2}, v{vTAG}
    v_mov_b32 v{GR + 3}, v{vTAG}
    v_cndmask_b32 v{GR}, 0, v{GR}, s[34:35]
    v_cndmask_b32 v{GR + 1}, 0, v{GR + 1}, s[34:35]
    v_add_u32 v{vT1}, 512, v{vT0}
    v_cndmask_b32 v{vT1}, v{vT0}, v{vT1}, s[34:35]
    s_lshl_b32 s{sT0}, s{sCI}, 9
    s_add_u32 s{sT0}, s{sT0}, s{sMX}
    s_cmp_eq_u32 s{sCI}, 0
    s_cselect_b32 exec_hi, -1, 0
    """)
    p.vmem(f"buffer_store_dwordx4 {vr(GR, 4)}, v{vT1}, s[{S_WS}:{S_WS + 3}], s{sT0} offen sc1", "S")
    p("s_mov_b64 exec, -1")
    PK, TMP = 64, 96
    for rbl in range(2):
        p(f"s_add_u32 s{sMB}, s{sBX}, {rbl * 176 * 1024}")
        mish_block(p, ML[rbl], rbl, PK + 8 * rbl, TMP)
        hid_store(p, PK + 8 * rbl, sMB, 0, "m0")
        hid_store(p, PK + 8 * rbl + 4, sMB, 1024, "m0")
    p.stamp(4)
    GD = 32
    p(f"""
    v_lshrrev_b32 v{vT1}, 5, v{vL}
    v_sub_u32 v{vT1}, s{sCI}, v{vT1}
    v_lshl_add_u32 v{vT1}, v{vT1}, 9, v{vT0}
    s_add_u32 s{sMB}, s{sCI}, 1
    s_lshr_b32 s{sMB}, s{sMB}, 1
    s_mov_b32 s{sKX}, 0
    """)
    back = p.label("gspin")
    lab = [p.label("gl") for _ in range(4)]
    p(f"{back}:")
    for gi in range(3):
        p(f"s_cmp_le_u32 s{sMB}, {4 * (gi + 1)}\ns_cbranch_scc1 {lab[gi]}")
    for gi in range(3, -1, -1):
        p(f"{lab[gi]}:")
        for q in range(4 * gi + 3, 4 * gi - 1, -1):
            p(f"v_subrev_u32 v{vT2}, {1024 * q}, v{vT1}\nv_max_i32 v{vT2}, v{vT2}, v{vT0}")
            p(f"buffer_load_dwordx4 {vr(GD + 4 * q, 4)}, v{vT2}, s[{S_WS}:{S_WS + 3}], s{sMX} offen sc1")
    nofl = p.label("nofl")
    p(f"""
    s_waitcnt vmcnt(0)
    s_cmp_lg_u32 s{sKX}, 0
    s_cbranch_scc1 {nofl}
    s_mov_b32 s{sKX}, 1
    """)
    p.vm = []
    flag_store(p, 1, 0)
    flag_store(p, 1, 1)
    p(f"""
    {nofl}:
    v_mov_b32 v{G0}, 0
    v_mov_b32 v{G0 + 1}, 0
    v_mov_b32 v{vT3}, 0
    """)
    lab = [p.label("gh") for _ in range(4)]
    for gi in range(3):
        p(f"s_cmp_le_u32 s{sMB}, {4 * (gi + 1)}\ns_cbranch_scc1 {lab[gi]}")
    for gi in range(3, -1, -1):
        p(f"{lab[gi]}:")
        for q in range(4 * gi + 3, 4 * gi - 1, -2):
            p(f"v_bitop3_b32 v{vT3}, v{GD + 4 * q + 2}, v{vTAG}, v{vT3} bitop3:0xbe")
            cmul(p, G1, G0, vL128, GD + 4 * q)
            p(f"v_bitop3_b32 v{vT3}, v{GD + 4 * (q - 1) + 2}, v{vTAG}, v{vT3} bitop3:0xbe")
            cmul(p, G0, G1, vL128, GD + 4 * (q - 1))
    p(f"v_cmp_ne_u32 vcc, 0, v{vT3}\ns_nop 4")
    spin_tail(p, back)
    p.stamp(5)
    p(f"""
    v_mov_b32 v{G1}, v{G0}
    v_mov_b32 v{G1 + 1}, v{G0 + 1}
    s_nop 1
    v_permlane32_swap_b32 v{G0}, v{G1}
    v_permlane32_swap_b32 v{G0 + 1}, v{G1 + 1}
    s_nop 1
    """)
    cmul(p, TA, G1, vL64, G0)
    cmul(p, TB, TA, vL32, E0)
    p(f"""
    v_cndmask_b32 v{G0}, v{TB}, v{TA}, s[34:35]
    v_cndmask_b32 v{G0 + 1}, v{TB + 1}, v{TA + 1}, s[34:35]
    """)
    prev = G0
    PA, PO = 32, 64
    TD = [ML[0], ML[1], vR, vR + 16]
    for rbl in range(2):
        for r in range(16):
            u = U(16 * rbl + r)
            cmul(p, u, prev, vLp, u)
            prev = u
            if r & 1:
                u0 = U(16 * rbl + r - 1)
                for part in range(2):
                    p(f"v_cvt_pk_bf16_f32 v{PA + 16 * rbl + 8 * part + (r >> 1)}, v{u0 + part}, v{u + part}")
        p("s_nop 1")
        for part in range(2):
            d = vr(TD[2 * rbl + part], 16)
            a = PA + 16 * rbl + 8 * part
            p(f"v_mfma_f32_32x32x16_bf16 {d}, {vr(a, 4)}, {vr(vID, 4)}, 0")
            p(f"v_mfma_f32_32x32x16_bf16 {d}, {vr(a + 4, 4)}, {vr(vID + 4, 4)}, {d}")
        p(f"s_add_u32 s{sMB}, s{sBB}, {rbl * 176 * 1024}\ns_add_u32 s{sKX}, s{sMB}, 4096\ns_nop 7")
        for part in range(2):
            d = TD[2 * rbl + part]
            o = PO + 16 * rbl + 8 * part
            if part == 1:
                p("s_nop 1")
            for k in range(8):
                p(f"v_cvt_pk_bf16_f32 v{o + k}, v{d + 2 * k}, v{d + 2 * k + 1}")
            so = sMB if part == 0 else sKX
            hid_store(p, o, so, 0, ("h", rbl))
            hid_store(p, o + 4, so, 1024, ("h", rbl))

    def fl():
        p.wait_vm(("h", 0))
        flag_store(p, 0, 0)
        p.wait_vm(("h", 1))
        flag_store(p, 0, 1)
    stage_rest(p, 5, True, 0, {1: fl})


def build(opt):
    p = P(opt)
    entry(p)
    vm_entry = list(p.vm)
    helper_ph1(p)
    vm_h = list(p.vm)
    p(f"s_cmp_eq_u32 s{sISY}, 1\ns_cbranch_scc1 L_Hy")
    stage_rest(p, 6, False, 1)
    p("s_branch L_H2\nL_Hy:")
    p.vm = vm_h
    stage_rest(p, 6, True, 1)
    p("L_H2:")
    ph2_main(p, 6)
    p("s_branch L_final")
    p.vm = list(vm_entry)
    a_prologue(p)
    vm_a = list(p.vm)
    scan_consts(p)
    a_epi_setup(p)
    stage_setup(p, True, 5)
    a_main(p, 0)
    a0_epilogue(p)
    p("s_branch L_A2\nL_A1:")
    p.vm = vm_a
    a_epi_setup(p)
    stage_setup(p, False, 5)
    a_main(p, 1)
    a1_epilogue(p)
    p("L_A2:")
    ph2_main(p, 5)
    final(p)
    t = HEAD + f"; @launch grid=(256,1,1) block=(512,1,1) lds={LDS_BYTES}\n" + '.amdgcn_target "amdgcn-amd-amdhsa--gfx950"\n'
    t += kernel_text(KN + "_kernel", p.text(), vgpr=256, sgpr=102, accum=256)
    return t


if __name__ == "__main__":
    out = sys.argv[1]
    opt = {}
    for a in sys.argv[2:]:
        k, v = a.split("=")
        opt[k] = int(v) if v.lstrip("-").isdigit() else v
    open(out, "w").write(build(opt))
```

```python
import sys
from gen import HEAD, KN, kernel_text

WS_STATS = 4096
WS_CARRY = 64 << 10
WS_FLAGS = 1 << 20
WS_HID = 2 << 20
WS_STAMP = 200 << 20
WS_BYTES = 0x10000000
XR, BR, WR, MISC = 0, 49152, 98304, 155648
L_M, L_R, L_MS, L_EXT = MISC, MISC + 512, MISC + 1024, MISC + 2048
LDS_BYTES = 163840
LOG2E = 0x3fb8aa3b
LN2 = 0x3f317218

S_X, S_B, S_W, S_WS = 4, 8, 12, 16
sT0, sT1, sT2, sT3 = 20, 21, 22, 23
sW, sXCD, sJ, sMT, sNT, sL0, sC0, sM2, sN2, sV = 24, 25, 26, 27, 28, 29, 30, 31, 32, 33
pX, pLRE, pLIM, pBRE, pBIM, pCRE, pCIM, pDT, pD, pW1, pB1, pW2, pOUT, pWS = 36, 38, 40, 42, 44, 46, 48, 50, 52, 56, 58, 60, 62, 66
sKX, sKB, sKW, sBX, sBB, sBW, sMX, sMB, sMASK, sSPIN = 68, 69, 70, 71, 72, 73, 74, 75, 76, 77
sUN = 78
sBUF, sHID, sFLG, sCI, sMH, sMW, sG0 = 85, 86, 87, 88, 89, 90, 91
STAMP_REGS = list(range(92, 102)) + [3, 54, 55, 64, 65, 0]
SPIN_MAX = 400000
NAMES_Y = ["-", "stpub", "G0", "Send", "G8", "G17", "gath", "hst", "-", "end", "GC", "staged", "flA", "lastmf", "gy", "i37"]
NAMES_X = ["-", "dma0", "-", "w1iss", "G8", "Mend", "mish", "flBsent", "fin", "end", "-", "C1iss", "flh", "ydone", "Gy", "T3"]
ORD = [0, 1, 2, 3, 4, 5, 6, 7, 10, 11, 12, 14, 15, 13, 8, 9]


class P:
    def __init__(self, opt):
        self.l = []
        self.vm = []
        self.done = -1
        self.opt = opt
        self.nlab = 0
        self.fs = opt.get("fs", 128)

    def __call__(self, s):
        for x in s.strip("\n").split("\n"):
            x = x.strip()
            if not x:
                continue
            self.l.append(x if x.endswith(":") else "    " + x)

    def vmem(self, s, tag=None):
        self(s)
        self.vm.append(tag)

    def last(self, tag):
        return max(i for i, t in enumerate(self.vm) if t == tag)

    def wait_vm(self, tag):
        idx = self.last(tag)
        if idx <= self.done:
            return
        n = len(self.vm) - 1 - idx
        assert n <= 63, n
        self(f"s_waitcnt vmcnt({n})")
        self.done = idx

    def save(self):
        return (list(self.vm), self.done)

    def restore(self, st):
        self.vm, self.done = list(st[0]), st[1]

    def label(self, base):
        self.nlab += 1
        return f"L_{base}_{self.nlab}"

    def stamp(self, i):
        if self.opt.get("stamps"):
            op = "s_memtime" if self.opt["stamps"] == 2 else "s_memrealtime"
            self(f"{op} s[34:35]\ns_waitcnt lgkmcnt(0)\ns_mov_b32 s{STAMP_REGS[i]}, s34")

    def text(self):
        return "\n".join(self.l) + "\n"


def vr(a, n=1):
    return f"v{a}" if n == 1 else f"v[{a}:{a + n - 1}]"


def off(o):
    return f" offset:{o}" if o else ""


def srd(p, d, ptr, nbytes):
    p(f"""
    s_mov_b32 s{d}, s{ptr}
    s_mov_b32 s{d + 1}, s{ptr + 1}
    s_mov_b32 s{d + 2}, {nbytes}
    s_mov_b32 s{d + 3}, 0x00020000
    """)


def mfma(d, a, b, first=False):
    return f"v_mfma_f32_16x16x32_bf16 {vr(d, 4)}, {vr(a, 4)}, {vr(b, 4)}, {'0' if first else vr(d, 4)}"


def mfma16(d, a, b, first=False):
    return f"v_mfma_f32_16x16x16_bf16 {vr(d, 4)}, {vr(a, 2)}, {vr(b, 2)}, {'0' if first else vr(d, 4)}"


vL, vTAG, vT0, vT1, vT2, vT3, vL16, vL16B = 0, 1, 2, 3, 4, 5, 6, 7


def rowfrag_addr(p, dst):
    p(f"""
    v_and_b32 v{vT0}, 15, v{vL}
    v_bfe_u32 v{vT1}, v{vL}, 1, 3
    v_lshrrev_b32 v{vT2}, 4, v{vL}
    v_xor_b32 v{vT1}, v{vT1}, v{vT2}
    v_lshlrev_b32 v{vT1}, 4, v{vT1}
    v_lshl_add_u32 v{dst}, v{vT0}, 7, v{vT1}
    """)


def w1_tr_addr0(p, dst):
    p(f"""
    v_lshrrev_b32 v{vT0}, 4, v{vL}
    v_bfe_u32 v{vT1}, v{vL}, 2, 2
    v_lshl_add_u32 v{vT2}, v{vT0}, 3, v{vT1}
    v_lshlrev_b32 v{vT2}, 8, v{vT2}
    v_lshl_add_u32 v{vT2}, v{vT1}, 6, v{vT2}
    v_and_b32 v{vT0}, 1, v{vT0}
    v_lshl_add_u32 v{vT2}, v{vT0}, 5, v{vT2}
    v_and_b32 v{vT1}, 3, v{vL}
    v_lshl_add_u32 v{vT2}, v{vT1}, 3, v{vT2}
    v_add_u32 v{dst}, {WR}, v{vT2}
    """)


def w1_dma_setup(p, vow):
    p(f"""
    v_lshrrev_b32 v{vT0}, 4, v{vL}
    v_bfe_u32 v{vT1}, v{vL}, 1, 3
    s_and_b32 s{sT0}, s{sV}, 1
    v_lshl_or_b32 v{vT2}, v{vT0}, 1, s{sT0}
    v_xor_b32 v{vT1}, v{vT1}, v{vT2}
    v_mul_u32_u24 v{vow}, 3584, v{vT0}
    v_lshl_add_u32 v{vow}, v{vT1}, 5, v{vow}
    v_and_b32 v{vT2}, 1, v{vL}
    v_lshl_add_u32 v{vow}, v{vT2}, 4, v{vow}
    s_and_b32 s{sT1}, s{sNT}, 3
    s_cmp_eq_u32 s{sT1}, 3
    s_cselect_b32 s{sT1}, 0x40000000, 0
    v_lshrrev_b32 v{vT1}, 2, v{vT1}
    v_mul_lo_u32 v{vT1}, v{vT1}, s{sT1}
    v_add_u32 v{vow}, v{vow}, v{vT1}
    v_add_u32 v{vow + 1}, 13312, v{vow}
    s_lshl_b32 s{sBW}, s{sL0}, 7
    s_mul_i32 s{sT2}, s{sV}, {8 * 3584}
    s_add_u32 s{sBW}, s{sBW}, s{sT2}
    s_lshl_b32 s{sMW}, s{sV}, 11
    """)


def w1_dma(p, c, vow):
    L = []
    for s in range(2):
        slot = (2 * c + s) % 7

        def a(s=s, slot=slot):
            if s == 0:
                p(f"""
                s_add_u32 s{sT0}, s{sC0}, {c}
                s_and_b32 s{sT0}, s{sT0}, 7
                s_mul_i32 s{sT0}, s{sT0}, {64 * 3584}
                s_add_u32 m0, s{sMW}, {WR + slot * 8192}
                s_add_u32 s{sKW}, s{sBW}, s{sT0}
                """)
            else:
                p(f"s_add_u32 m0, s{sMW}, {WR + slot * 8192}\ns_add_u32 s{sKW}, s{sKW}, {32 * 3584}")
            p.vmem(f"buffer_load_dwordx4 v{vow}, s[{S_W}:{S_W + 3}], s{sKW} offen lds", ("w", c))
        L.append(a)
        L.append(lambda: p.vmem(f"buffer_load_dwordx4 v{vow + 1}, s[{S_W}:{S_W + 3}], s{sKW} offen offset:1024 lds", ("w", c)))
    return L


def c_dma_setup(p, vo):
    p(f"""
    v_lshrrev_b32 v{vT0}, 4, v{vL}
    v_and_b32 v{vT1}, 7, v{vL}
    v_xor_b32 v{vT0}, v{vT0}, v{vT1}
    v_lshlrev_b32 v{vT0}, 4, v{vT0}
    v_lshrrev_b32 v{vT1}, 3, v{vL}
    v_lshl_add_u32 v{vo}, v{vT1}, 10, v{vT0}
    v_xor_b32 v{vo + 1}, 64, v{vo}
    v_add_u32 v{vo + 1}, 7168, v{vo + 1}
    v_add_u32 v{vo + 2}, 14336, v{vo}
    v_add_u32 v{vo + 3}, 14336, v{vo + 1}
    """)


def c_dma(p, pair, part, vo):
    ptr = pCIM if part else pCRE
    srd(p, S_X, ptr, 512 * 1024)
    p(f"""
    s_xor_b32 s{sT0}, s{sG0}, {pair}
    s_lshl1_add_u32 s{sT0}, s{sV}, s{sT0}
    s_lshl_b32 s{sT0}, s{sT0}, 7
    s_lshl_b32 s{sT1}, s{sN2}, 16
    s_add_u32 s{sKX}, s{sT0}, s{sT1}
    s_lshl_b32 s{sT1}, s{sV}, 14
    """)
    for h in range(2):
        p(f"s_add_u32 m0, s{sT1}, {WR + 8192 * part + 4096 * h}")
        p(f"s_add_u32 s{sKX}, s{sKX}, {32768 * h}")
        for k in range(4):
            p.vmem(f"buffer_load_dwordx4 v{vo + k}, s[{S_X}:{S_X + 3}], s{sKX} offen{off(1024 * k)} lds", ("C", pair))


def make_tag(p):
    p(f"""
    s_mov_b32 s{sT0}, 0x9E3779B1
    v_mul_lo_u32 v{vTAG}, v{vTAG}, s{sT0}
    v_add_u32 v{vTAG}, 0x7F4A7C15, v{vTAG}
    """)


def spin_tail(p, back):
    done = p.label("done")
    sl = p.opt.get("sleep", 0)
    p(f"""
    s_cbranch_vccz {done}
    {('s_sleep %d' % sl) if sl else ''}
    s_sub_u32 s{sSPIN}, s{sSPIN}, 1
    s_cmp_gt_i32 s{sSPIN}, 0
    s_cbranch_scc1 {back}
    {done}:
    """)


sPF = 44


def poll_setup(p, grp_expr):
    p(f"""
    s_mul_i32 s{sT0}, s{sM2}, 12
    {grp_expr}
    s_lshl_b32 s{sT0}, s{sT0}, 7
    s_add_u32 s{sT0}, s{sT0}, {WS_FLAGS}
    s_add_u32 s42, s{pWS}, s{sT0}
    s_addc_u32 s43, s{pWS + 1}, 0
    v_readfirstlane_b32 s40, v{vTAG}
    """)


def poll_issue(p, o_):
    p(f"s_load_dwordx8 s[{sPF}:{sPF + 7}], s[42:43], {o_} glc")


def poll_check(p, o_, issued):
    back, chk, done = p.label("spin"), p.label("chk"), p.label("done")
    if issued:
        p(f"s_branch {chk}")
    p(f"{back}:")
    poll_issue(p, o_)
    p(f"{chk}:\ns_waitcnt lgkmcnt(0)\ns_mov_b32 s41, s40")
    for k in range(0, 8, 2):
        p(f"s_xor_b64 s[{sPF + k}:{sPF + k + 1}], s[{sPF + k}:{sPF + k + 1}], s[40:41]")
    p(f"""
    s_or_b64 s[{sPF}:{sPF + 1}], s[{sPF}:{sPF + 1}], s[{sPF + 2}:{sPF + 3}]
    s_or_b64 s[{sPF + 4}:{sPF + 5}], s[{sPF + 4}:{sPF + 5}], s[{sPF + 6}:{sPF + 7}]
    s_or_b64 s[{sPF}:{sPF + 1}], s[{sPF}:{sPF + 1}], s[{sPF + 4}:{sPF + 5}]
    s_cbranch_scc0 {done}
    s_sub_u32 s{sSPIN}, s{sSPIN}, 1
    s_cmp_gt_i32 s{sSPIN}, 0
    s_cbranch_scc1 {back}
    {done}:
    """)


def delay_until(p, us):
    assert p.opt.get("stamps")
    lab = p.label("dly")
    p(f"""
    s_waitcnt vmcnt(0)
    s_add_u32 s{sT0}, s100, {int(us * 100)}
    {lab}:
    s_memrealtime s[34:35]
    s_waitcnt lgkmcnt(0)
    s_sub_u32 s{sT1}, s34, s{sT0}
    s_cmp_lt_i32 s{sT1}, 0
    s_cbranch_scc1 {lab}
    """)


def flag_store(p, sreg, add):
    p(f"s_add_u32 s{sT0}, s{sreg}, {add}\ns_mov_b64 exec, 1")
    p.vmem(f"buffer_store_dword v{vTAG}, off, s[{S_WS}:{S_WS + 3}], s{sT0} sc1", "flag")
    p("s_mov_b64 exec, -1")


def cmul(p, d, a, b, add=None):
    if add is None:
        p(f"v_pk_mul_f32 {vr(d, 2)}, {vr(a, 2)}, {vr(b, 2)} op_sel_hi:[0,1]")
    else:
        p(f"v_pk_fma_f32 {vr(d, 2)}, {vr(a, 2)}, {vr(b, 2)}, {vr(add, 2)} op_sel_hi:[0,1,1]")
    p(f"v_pk_fma_f32 {vr(d, 2)}, {vr(a, 2)}, {vr(b, 2)}, {vr(d, 2)} op_sel:[1,1,0] op_sel_hi:[1,0,1] neg_lo:[0,1,0]")


def entry(p):
    o = p.opt
    p(f"""
    s_load_dwordx16 s[36:51], s[0:1], 0
    s_load_dwordx16 s[52:67], s[0:1], 64
    s_getpc_b64 s[34:35]
    L_pc:
    s_cmp_ge_u32 s2, 256
    s_cbranch_scc1 L_end
    v_lshrrev_b32 v{vT0}, 6, v0
    s_lshr_b32 s{sJ}, s2, 3
    v_and_b32 v{vL}, 63, v0
    v_readfirstlane_b32 s{sW}, v{vT0}
    v_lshl_add_u32 v{vT0}, s{sJ}, 3, v{vT0}
    v_lshlrev_b32 v{vT0}, 7, v{vT0}
    v_min_u32 v{vT0}, L_end-L_pc, v{vT0}
    """)
    p.vmem(f"global_load_dword v255, v{vT0}, s[34:35]", "pf")
    if o.get("stamps"):
        p(("s_memtime" if o["stamps"] == 2 else "s_memrealtime") + " s[92:93]")
        p("s_memrealtime s[100:101]")
    p(f"s_and_b32 s{sXCD}, s2, 7")
    if o.get("part", 24) == 24:
        p(f"""
        s_and_b32 s{sT0}, s{sJ}, 7
        s_lshr_b32 s{sT1}, s{sJ}, 3
        s_lshr_b32 s{sMT}, s{sXCD}, 2
        s_lshl3_add_u32 s{sMT}, s{sMT}, s{sT0}
        s_and_b32 s{sT2}, s{sXCD}, 3
        s_lshl2_add_u32 s{sNT}, s{sT2}, s{sT1}
        """)
    else:
        p(f"""
        s_and_b32 s{sT0}, s{sJ}, 3
        s_lshr_b32 s{sT1}, s{sJ}, 2
        s_lshr_b32 s{sMT}, s{sXCD}, 1
        s_lshl2_add_u32 s{sMT}, s{sMT}, s{sT0}
        s_and_b32 s{sT2}, s{sXCD}, 1
        s_lshl3_add_u32 s{sNT}, s{sT2}, s{sT1}
        """)
    rm, rn, rx, ry = o.get("rm", 1), o.get("rn", 2), o.get("rx", 1), o.get("ry", 0)
    p(f"""
    s_mul_i32 s{sC0}, s{sT0}, {rm}
    s_mul_i32 s{sT1}, s{sT1}, {rn}
    s_add_u32 s{sC0}, s{sC0}, s{sT1}
    s_mul_i32 s{sT1}, s{sXCD}, {rx}
    s_add_u32 s{sC0}, s{sC0}, s{sT1}
    """)
    if ry:
        p(f"s_lshr_b32 s{sT1}, s{sXCD}, 2\ns_mul_i32 s{sT1}, s{sT1}, {ry}\ns_add_u32 s{sC0}, s{sC0}, s{sT1}")
    p(f"""
    s_and_b32 s{sV}, s{sW}, 3
    s_lshr_b32 s{sMH}, s{sV}, 1
    s_cmp_ge_u32 s{sW}, 4
    s_cbranch_scc1 L_X
    """)


def late_ids(p):
    p(f"""
    s_lshr_b32 s{sT0}, s{sNT}, 2
    s_lshl_b32 s{sL0}, s{sNT}, 1
    s_sub_u32 s{sL0}, s{sL0}, s{sT0}
    """)
    if p.opt.get("part2", 81) == 81:
        p(f"""
        s_and_b32 s{sFLG}, s{sJ}, 3
        s_lshl2_add_u32 s{sM2}, s{sXCD}, s{sFLG}
        s_lshr_b32 s{sN2}, s{sJ}, 2
        """)
    else:
        p(f"""
        s_and_b32 s{sFLG}, s{sJ}, 7
        s_lshr_b32 s{sT0}, s{sXCD}, 1
        s_lshl3_add_u32 s{sM2}, s{sT0}, s{sFLG}
        s_and_b32 s{sT0}, s{sXCD}, 1
        s_lshr_b32 s{sN2}, s{sJ}, 3
        s_lshl2_add_u32 s{sN2}, s{sT0}, s{sN2}
        """)
    p(f"""
    s_mov_b32 s{sSPIN}, {SPIN_MAX}
    s_lshl1_add_u32 s{sCI}, s{sMT}, s{sMH}
    s_mov_b32 s{sMASK}, 0xffff0000
    s_mul_i32 s{sFLG}, s{sFLG}, {p.opt.get('rs2', 0)}
    s_mul_i32 s{sT0}, s{sXCD}, {p.opt.get('rx2', 1)}
    s_add_u32 s{sFLG}, s{sFLG}, s{sT0}
    s_add_u32 s{sG0}, s{sFLG}, {('s%d' % sN2) if p.opt.get('rot2', 1) else 0}
    s_and_b32 s{sG0}, s{sG0}, 1
    s_mul_i32 s{sHID}, s{sM2}, {352 * 1024}
    s_add_u32 s{sHID}, s{sHID}, {WS_HID}
    v_lshlrev_b32 v{vL16}, 4, v{vL}
    v_add_u32 v{vL16B}, 4096, v{vL16}
    """)


vRING, NRING, vACC2, vB2 = 8, 13, 64, 128
vPW = 60


def ph2_loop(p, items, hooks_pre, hooks_post, ramp, after_ramp=None):
    n = len(items)
    if p.opt.get("bare"):
        allh = [hooks_post[k] for k in sorted(hooks_post)]
        hooks_pre = {}
        hooks_post = {n - 1: lambda: (p.stamp(4), [h() for h in allh])}

    def load(g):
        if g in hooks_pre:
            hooks_pre[g]()
        sreg, second, tb, _, _ = items[g]
        r = vRING + 4 * (g % NRING)
        p.vmem(f"buffer_load_dwordx4 {vr(r, 4)}, v{vL16B if second else vL16}, s[{S_WS}:{S_WS + 3}], s{sreg} offen{off(1024 * tb)} {p.opt.get('aflag', 'sc1')}", ("a", g))
    depth = p.opt.get("depth", 10)
    assert depth < NRING
    issued = 0
    for g in range(ramp):
        load(g)
        issued += 1
    if after_ramp:
        after_ramp()
    for g in range(n):
        _, _, tb, b2, first = items[g]
        p.wait_vm(("a", g))
        r = vRING + 4 * (g % NRING)
        for db in range(p.opt.get("ndb", 4)):
            p(mfma(vACC2 + 16 * tb + 4 * db, b2 + 4 * db, r, first))
            if db in (0, 2) and issued < n and issued <= g + depth:
                load(issued)
                issued += 1
        if g in hooks_post:
            hooks_post[g]()


def partial_addr(p):
    p(f"""
    v_lshrrev_b32 v{vT0}, 4, v{vL}
    v_and_b32 v{vT1}, 15, v{vL}
    v_xor_b32 v{vT1}, v{vT1}, v{vT0}
    v_lshlrev_b32 v{vT1}, 4, v{vT1}
    v_lshl_add_u32 v{vT1}, v{vT0}, 8, v{vT1}
    v_add_u32 v{vPW}, s{sBUF}, v{vT1}
    v_xor_b32 v{vPW + 1}, 64, v{vPW}
    v_xor_b32 v{vPW + 2}, 128, v{vPW}
    v_xor_b32 v{vPW + 3}, 192, v{vPW}
    """)


def partial_write(p, tb):
    for db in range(4):
        p(f"ds_write_b128 v{vPW + db}, {vr(vACC2 + 16 * tb + 4 * db, 4)} offset:{4096 * tb + 1024 * db}")


yAX, yAB = 8, 10
yOW, yO2 = 8, 10
yCW, yR2 = 14, 60
yC, yL, yL16, yQ16, yQ64, yL256, yPQ = 16, 18, 20, 22, 24, 26, 28
yONE, yB1, ySEL = 32, 30, 36
yCS = 40
yCF = 96
yRE, yIM = 64, 80
yFR = 128
yM, yR = 176, 192
yGD = 96
yTA, yTB, yG0, yG1 = 48, 50, 52, 54


def half_reduce(p, a, t):
    for r in (8, 4, 2, 1):
        p(f"s_nop 1\nv_add_f32_dpp v{a}, v{a}, v{a} row_ror:{r} row_mask:0xf bank_mask:0xf")
    p(f"""
    v_mov_b32 v{t}, v{a}
    s_nop 1
    v_permlane16_swap_b32 v{a}, v{t}
    s_nop 1
    v_add_f32 v{a}, v{a}, v{t}
    """)


def y_prologue(p):
    D = 208
    PR = 244
    p(f"""
    v_and_b32 v{vT0}, 31, v{vL}
    v_lshrrev_b32 v{vT1}, 5, v{vL}
    v_lshlrev_b32 v{vT2}, 4, v{vT0}
    v_lshl_add_u32 v{vT2}, v{vT1}, 10, v{vT2}
    s_lshl4_add_u32 s{sT0}, s{sMT}, s{sNT}
    s_lshl2_add_u32 s{sT0}, s{sT0}, s{sW}
    s_lshl_b32 s{sKX}, s{sT0}, 11
    s_lshl_b32 s{sKB}, s{sT0}, 4
    s_waitcnt lgkmcnt(0)
    """)
    srd(p, S_X, pX, 2048 * 1024)
    p.vmem(f"buffer_load_dwordx4 {vr(D, 4)}, v{vT2}, s[{S_X}:{S_X + 3}], s{sKX} offen", "xr")
    p.vmem(f"buffer_load_dwordx4 {vr(D + 4, 4)}, v{vT2}, s[{S_X}:{S_X + 3}], s{sKX} offen offset:512", "xr")
    srd(p, S_WS, pWS, WS_BYTES)
    p.vmem(f"buffer_load_dword v{vTAG}, off, s[{S_WS}:{S_WS + 3}], 0 sc1", "xr")
    late_ids(p)
    p(f"""
    s_add_u32 s{sKB}, s{sKB}, {WS_STATS}
    v_and_b32 v{vT0}, 15, v{vL}
    s_and_b32 s{sT1}, s{sV}, 1
    s_lshl1_add_u32 s{sT0}, s{sNT}, s{sT1}
    s_lshl_b32 s{sT0}, s{sT0}, 4
    v_add_lshl_u32 v{vT2}, v{vT0}, s{sT0}, 1
    """)
    p.vmem(f"global_load_ushort v{PR}, v{vT2}, s[{pLRE}:{pLRE + 1}]", "par")
    p.vmem(f"global_load_ushort v{PR + 1}, v{vT2}, s[{pLIM}:{pLIM + 1}]", "par")
    p.vmem(f"global_load_ushort v{PR + 2}, v{vT2}, s[{pDT}:{pDT + 1}]", "par")
    p(f"""
    s_lshl1_add_u32 s{sT0}, s{sL0}, s{sV}
    s_lshl_b32 s{sT0}, s{sT0}, 5
    v_add_u32 v{vT2}, s{sT0}, v{vT0}
    v_min_u32 v{vT2}, 1775, v{vT2}
    v_lshlrev_b32 v{vT2}, 1, v{vT2}
    """)
    p.vmem(f"global_load_ushort v{yB1}, v{vT2}, s[{pB1}:{pB1 + 1}]", "par")
    p.vmem(f"global_load_ushort v{yB1 + 1}, v{vT2}, s[{pB1}:{pB1 + 1}] offset:32", "par")
    rowfrag_addr(p, yAX)
    p(f"""
    s_lshl_b32 s{sT0}, s{sT1}, 11
    s_add_u32 s{sT0}, s{sT0}, {BR}
    v_add_u32 v{yAB}, s{sT0}, v{yAX}
    s_lshl_b32 s{sT0}, s{sMH}, 13
    v_add_u32 v{yAX}, s{sT0}, v{yAX}
    v_xor_b32 v{yAX + 1}, 64, v{yAX}
    v_xor_b32 v{yAB + 1}, 64, v{yAB}
    """)
    for k in range(4):
        p(f"v_mov_b32 v{yONE + k}, 0x3f803f80")
    p.wait_vm("xr")
    make_tag(p)
    F = D + 8
    for k in range(8):
        p(f"v_lshlrev_b32 v{F + 2 * k}, 16, v{D + k}\nv_and_b32 v{F + 2 * k + 1}, s{sMASK}, v{D + k}")
    A = D + 24
    p(f"v_pk_add_f32 {vr(A, 2)}, {vr(F, 2)}, {vr(F + 2, 2)}")
    for k in range(2, 8):
        p(f"v_pk_add_f32 {vr(A, 2)}, {vr(A, 2)}, {vr(F + 2 * k, 2)}")
    p(f"v_add_f32 v{A}, v{A}, v{A + 1}")
    half_reduce(p, A, A + 1)
    p(f"v_mul_f32 v{A}, 0x3b000000, v{A}")
    for k in range(8):
        p(f"v_pk_add_f32 {vr(F + 2 * k, 2)}, {vr(F + 2 * k, 2)}, {vr(A, 2)} op_sel_hi:[1,0] neg_lo:[0,1] neg_hi:[0,1]")
    p(f"v_pk_mul_f32 {vr(A + 2, 2)}, {vr(F, 2)}, {vr(F, 2)}")
    for k in range(1, 8):
        p(f"v_pk_fma_f32 {vr(A + 2, 2)}, {vr(F + 2 * k, 2)}, {vr(F + 2 * k, 2)}, {vr(A + 2, 2)}")
    p(f"v_add_f32 v{A + 2}, v{A + 2}, v{A + 3}")
    half_reduce(p, A + 2, A + 3)
    p(f"""
    v_mul_f32 v{A + 2}, 0x3b000000, v{A + 2}
    v_cvt_pk_bf16_f32 v{A + 2}, v{A + 2}, v{A + 2}
    v_and_b32 v{A + 2}, s{sMASK}, v{A + 2}
    v_add_f32 v{A + 2}, 0x3727c5ac, v{A + 2}
    v_cvt_pk_bf16_f32 v{A + 2}, v{A + 2}, v{A + 2}
    v_and_b32 v{A + 2}, s{sMASK}, v{A + 2}
    v_sqrt_f32 v{A + 2}, v{A + 2}
    v_lshrrev_b32 v{vT1}, 5, v{vL}
    v_cvt_pk_bf16_f32 v{A}, v{A}, v{A + 2}
    v_mov_b32 v{A + 1}, v{vTAG}
    v_lshlrev_b32 v{vT1}, 3, v{vT1}
    s_mov_b32 exec_lo, 1
    s_mov_b32 exec_hi, 1
    """)
    p.vmem(f"buffer_store_dwordx2 {vr(A, 2)}, v{vT1}, s[{S_WS}:{S_WS + 3}], s{sKB} offen sc1", "stst")
    p("s_mov_b64 exec, -1")
    p.stamp(1)
    p.wait_vm("par")
    t = 176
    p(f"""
    v_lshlrev_b32 v{PR}, 16, v{PR}
    v_lshlrev_b32 v{PR + 1}, 16, v{PR + 1}
    v_lshlrev_b32 v{PR + 2}, 16, v{PR + 2}
    v_mul_f32 v{PR + 2}, {LOG2E}, v{PR + 2}
    v_exp_f32 v{PR + 2}, v{PR + 2}
    s_nop 0
    v_cvt_pk_bf16_f32 v{PR + 2}, v{PR + 2}, v{PR + 2}
    v_and_b32 v{PR + 2}, s{sMASK}, v{PR + 2}
    v_mul_f32 v{t}, v{PR + 2}, v{PR}
    v_mul_f32 v{t + 1}, v{PR + 2}, v{PR + 1}
    v_mul_f32 v{t}, {LOG2E}, v{t}
    v_mul_f32 v{t + 1}, 0.15915494, v{t + 1}
    v_exp_f32 v{t}, v{t}
    v_rndne_f32 v{t + 2}, v{t + 1}
    v_sub_f32 v{t + 1}, v{t + 1}, v{t + 2}
    v_cos_f32 v{t + 2}, v{t + 1}
    v_sin_f32 v{t + 3}, v{t + 1}
    v_mul_f32 v{t + 4}, v{PR}, v{PR}
    v_fmac_f32 v{t + 4}, v{PR + 1}, v{PR + 1}
    v_rcp_f32 v{t + 4}, v{t + 4}
    v_mul_f32 v{yL}, v{t}, v{t + 2}
    v_mul_f32 v{t + 3}, v{t}, v{t + 3}
    v_sub_f32 v{yL + 1}, 0, v{t + 3}
    v_add_f32 v{t + 2}, -1.0, v{yL}
    v_add_f32 v{t + 4}, v{t + 4}, v{t + 4}
    v_mul_f32 v{yC}, v{t + 2}, v{PR}
    v_fmac_f32 v{yC}, v{t + 3}, v{PR + 1}
    v_mul_f32 v{yC + 1}, v{t + 3}, v{PR}
    v_fma_f32 v{yC + 1}, -v{t + 2}, v{PR + 1}, v{yC + 1}
    v_mul_f32 v{yC}, v{yC}, v{t + 4}
    v_mul_f32 v{yC + 1}, v{yC + 1}, v{t + 4}
    v_and_b32 v{vT0}, 16, v{vL}
    v_cmp_ne_u32 s[{sUN}:{sUN + 1}], 0, v{vT0}
    v_cmp_le_u32 s[{sUN + 2}:{sUN + 3}], 32, v{vL}
    """)
    a, b, c, d = t + 6, t + 8, t + 10, t + 12
    cmul(p, a, yL, yL)
    cmul(p, b, a, a)
    cmul(p, a, b, b)
    cmul(p, yL16, a, a)
    cmul(p, a, yL16, yL16)

    def qpow(dst, p1, p2):
        p(f"""
        v_cndmask_b32 v{c}, 1.0, v{p1}, s[{sUN}:{sUN + 1}]
        v_cndmask_b32 v{c + 1}, 0, v{p1 + 1}, s[{sUN}:{sUN + 1}]
        v_cndmask_b32 v{d}, 1.0, v{p2}, s[{sUN + 2}:{sUN + 3}]
        v_cndmask_b32 v{d + 1}, 0, v{p2 + 1}, s[{sUN + 2}:{sUN + 3}]
        """)
        cmul(p, dst, c, d)
    qpow(yQ16, yL16, a)
    cmul(p, b, a, a)
    cmul(p, a, b, b)
    qpow(yQ64, b, a)
    cmul(p, yL256, a, a)
    p(f"""
    v_and_b32 v{vT0}, 15, v{vL}
    v_lshrrev_b32 v{vT1}, 4, v{vL}
    v_lshlrev_b32 v{vT1}, 2, v{vT1}
    v_sub_u32 v{vT0}, v{vT0}, v{vT1}
    v_mov_b32 v{vT1}, 0x3f80
    v_mov_b32 v{vT2}, 0x3f800000
    """)
    for dw in range(2):
        p(f"""
        v_cmp_eq_u32 vcc, {2 * dw}, v{vT0}
        v_cmp_eq_u32 s[{sT0}:{sT1}], {2 * dw + 1}, v{vT0}
        s_nop 0
        v_cndmask_b32 v{ySEL + dw}, 0, v{vT1}, vcc
        v_cndmask_b32 v{ySEL + dw}, v{ySEL + dw}, v{vT2}, s[{sT0}:{sT1}]
        """)
    p(f"""
    v_lshrrev_b32 v{vT1}, 4, v{vL}
    s_lshl_b32 s{sT0}, s{sMH}, 8
    s_add_u32 s{sT0}, s{sT0}, {L_M}
    v_lshl_add_u32 v12, v{vT1}, 6, s{sT0}
    """)


def y_pass_s(p):
    def reads(c, s, st):
        slot = c % 3
        b = yFR + 24 * st
        L = [f"ds_read_b128 {vr(b + 16 + 4 * k, 4)}, v{yAB + s} offset:{slot * 8192 + k * 4096}" for k in range(2)]
        L += [f"ds_read_b128 {vr(b + 4 * tb, 4)}, v{yAX + s} offset:{slot * 16384 + tb * 2048}" for tb in range(4)]
        return L
    p("s_barrier")
    p.stamp(2)
    for x in reads(0, 0, 0):
        p(x)
    p("s_waitcnt lgkmcnt(0)")
    bpos = p.opt.get("ybpos", 4)
    for n in range(16):
        c, s = divmod(n, 2)
        st = n & 1
        b = yFR + 24 * st
        M = [mfma(yCS, yONE, b + 16, n == 0), mfma(yCS + 4, yONE, b + 20, n == 0)]
        for tb in range(4):
            M += [mfma(yRE + 4 * tb, b + 4 * tb, b + 16, n == 0), mfma(yIM + 4 * tb, b + 4 * tb, b + 20, n == 0)]
        if s == 0:
            R = reads(c, 1, st ^ 1)
        elif c < 7:
            R = reads(c + 1, 0, st ^ 1)
        else:
            R = [f"ds_read_b128 {vr(yM + 4 * tb, 4)}, v12 offset:{16 * tb}" for tb in range(4)]
            R += [f"ds_read_b128 {vr(yR + 4 * tb, 4)}, v12 offset:{512 + 16 * tb}" for tb in range(4)]
        first = bpos if (s == 1 and c < 7) else 1
        for m in M[:first]:
            p(m)
        if s == 1 and c < 7:
            p("s_barrier")
        rest = M[first:]
        per = -(-len(R) // len(rest))
        ir = 0
        for m in rest:
            for x in R[ir:ir + per]:
                p(x)
            ir += per
            p(m)
        p("s_waitcnt lgkmcnt(0)")
    p.stamp(3)


def yU(tau):
    tb, i = divmod(tau, 4)
    return (yRE if i % 2 == 0 else yIM) + 4 * tb + (i & ~1)


def y_window(p):
    g, gn = yG0, yG1
    p(f"""
    s_and_b32 s{sT1}, s{sV}, 1
    s_lshl1_add_u32 s{sMX}, s{sNT}, s{sT1}
    s_lshl_b32 s{sMB}, s{sMX}, 14
    s_add_u32 s{sMB}, s{sMB}, {WS_CARRY}
    s_nop 1
    """)
    for tau in range(0, 16, 2):
        a, b = yRE + tau, yIM + tau
        p(f"""
        v_pk_fma_f32 {vr(yTA, 2)}, {vr(yM + tau, 2)}, {vr(yCS, 2)}, {vr(a, 2)} neg_lo:[1,0,0] neg_hi:[1,0,0]
        v_pk_fma_f32 {vr(yTB, 2)}, {vr(yM + tau, 2)}, {vr(yCS + 4, 2)}, {vr(b, 2)} neg_lo:[1,0,0] neg_hi:[1,0,0]
        v_pk_mul_f32 {vr(yTA, 2)}, {vr(yTA, 2)}, {vr(yR + tau, 2)}
        v_pk_mul_f32 {vr(yTB, 2)}, {vr(yTB, 2)}, {vr(yR + tau, 2)}
        v_pk_mul_f32 {vr(a, 2)}, {vr(yTA, 2)}, {vr(yC, 2)} op_sel_hi:[0,1] neg_hi:[0,1]
        v_pk_mul_f32 {vr(b, 2)}, {vr(yTA, 2)}, {vr(yC, 2)} op_sel:[1,0] op_sel_hi:[1,1] neg_hi:[0,1]
        v_pk_fma_f32 {vr(a, 2)}, {vr(yTB, 2)}, {vr(yC, 2)}, {vr(a, 2)} op_sel:[0,1,0] op_sel_hi:[0,0,1] neg_lo:[0,1,0] neg_hi:[0,1,0]
        v_pk_fma_f32 {vr(b, 2)}, {vr(yTB, 2)}, {vr(yC, 2)}, {vr(b, 2)} op_sel:[1,1,0] op_sel_hi:[1,0,1] neg_lo:[0,1,0] neg_hi:[0,1,0]
        """)
        if tau == 0:
            cmul(p, g, yU(0), yL, yU(1))
        else:
            cmul(p, gn, g, yL, yU(tau))
            cmul(p, g, gn, yL, yU(tau + 1))
    GR = 56
    p(f"""
    v_mov_b32 v{gn}, v{g}
    v_mov_b32 v{gn + 1}, v{g + 1}
    v_and_b32 v{vT0}, 15, v{vL}
    v_lshlrev_b32 v{vT0}, 4, v{vT0}
    v_permlane16_swap_b32 v{g}, v{gn}
    v_permlane16_swap_b32 v{g + 1}, v{gn + 1}
    v_add_u32 v{vT1}, 256, v{vT0}
    v_mov_b32 v{yTA}, v{g}
    v_mov_b32 v{yTA + 1}, v{g + 1}
    v_mov_b32 v{yTB}, v{gn}
    v_mov_b32 v{yTB + 1}, v{gn + 1}
    v_permlane32_swap_b32 v{g}, v{yTA}
    v_permlane32_swap_b32 v{g + 1}, v{yTA + 1}
    v_permlane32_swap_b32 v{gn}, v{yTB}
    v_permlane32_swap_b32 v{gn + 1}, v{yTB + 1}
    v_cndmask_b32 v{vT1}, v{vT1}, v{vT0}, s[{sUN}:{sUN + 1}]
    v_mov_b32 v{GR + 2}, v{vTAG}
    """)
    cmul(p, gn, g, yL16, gn)
    cmul(p, yTA, gn, yL16, yTA)
    cmul(p, GR, yTA, yL16, yTB)
    p(f"""
    v_cndmask_b32 v{GR}, v{GR}, 0, s[{sUN}:{sUN + 1}]
    v_cndmask_b32 v{GR + 1}, v{GR + 1}, 0, s[{sUN}:{sUN + 1}]
    v_mov_b32 v{GR + 3}, v{vTAG}
    s_lshl_b32 s{sT0}, s{sCI}, 8
    s_add_u32 s{sT0}, s{sT0}, s{sMB}
    s_cmp_eq_u32 s{sCI}, 0
    s_cselect_b32 exec_lo, -1, 0xffff
    s_mov_b32 exec_hi, 0
    """)
    p.vmem(f"buffer_store_dwordx4 {vr(GR, 4)}, v{vT1}, s[{S_WS}:{S_WS + 3}], s{sT0} offen sc1", "S")
    p(f"""
    s_mov_b64 exec, -1
    s_barrier
    """)
    p.stamp(4)
    for k in range(2):
        p(f"""
        v_cndmask_b32 v{g + k}, 0, v{g + k}, s[{sUN}:{sUN + 1}]
        v_cndmask_b32 v{gn + k}, v{gn + k}, v{yTA + k}, s[{sUN}:{sUN + 1}]
        v_cndmask_b32 v{yPQ + k}, v{g + k}, v{gn + k}, s[{sUN + 2}:{sUN + 3}]
        """)


class W2Stage:
    def __init__(self, p):
        self.p = p
        self.issued = 0
        self.read = 0

    def can_issue(self):
        u = self.issued // 8
        return u < 7 and (u < 3 or self.read > u - 3)

    def issue(self):
        p = self.p
        u, k = divmod(self.issued, 8)
        h, kk = divmod(k, 4)
        if k == 0:
            p(f"s_lshl_b32 s{sKB}, s{sUN + u}, 16\ns_add_u32 s{sKB}, s{sKB}, s{sBB}")
        if k == 4:
            p(f"s_add_u32 s{sKB}, s{sKB}, 32768")
        self.issued += 1
        return u, h, kk

    def dma(self, n, need_m0=True):
        p = self.p
        for _ in range(n):
            if not self.can_issue():
                break
            k = self.issued % 8
            if need_m0 or k % 4 == 0:
                p(f"s_add_u32 m0, s{sBUF}, {8192 * ((self.issued // 8) % 3) + 4096 * (k // 4)}")
                if k % 4:
                    p("s_nop 0")
                need_m0 = False
            u, h, kk = self.issue()
            p.vmem(f"buffer_load_dwordx4 v{yO2 + kk}, s[{S_B}:{S_B + 3}], s{sKB} offen{off(1024 * kk)} lds", ("u", u))

    def landed(self, u):
        return self.issued >= 8 * (u + 1) and self.p.last(("u", u)) <= self.p.done

    def reads(self, u, dst):
        return [f"ds_read_b64_tr_b16 {vr(dst + 16 * s + 4 * db + 2 * e, 2)}, v{yR2 + db} offset:{8192 * (u % 3) + 4096 * s + 2048 * e}"
                for s in range(2) for db in range(4) for e in range(2)]

    def read_next(self, wait=False):
        u = self.read
        if wait:
            self.p.wait_vm(("u", u))
        for x in self.reads(u, vB2 + 32 * u):
            self.p(x)
        self.p("s_waitcnt lgkmcnt(0)")
        self.read += 1


def y_m_setup(p):
    w1_tr_addr0(p, yCW)
    p(f"""
    s_lshl_b32 s{sT0}, s{sV}, 6
    v_xor_b32 v{yCW}, s{sT0}, v{yCW}
    v_xor_b32 v{yCW + 1}, 32, v{yCW}
    s_mul_i32 s{sBUF}, s{sV}, 24576
    v_lshrrev_b32 v{vT0}, 2, v{vL}
    v_bfe_u32 v{vT1}, v{vL}, 3, 2
    v_lshlrev_b32 v{vT0}, 7, v{vT0}
    v_lshl_add_u32 v{vT0}, v{vT1}, 5, v{vT0}
    v_and_b32 v{vT1}, 3, v{vL}
    v_lshl_add_u32 v{vT0}, v{vT1}, 3, v{vT0}
    v_add_u32 v{yR2}, s{sBUF}, v{vT0}
    v_xor_b32 v{yR2 + 1}, 32, v{yR2}
    v_xor_b32 v{yR2 + 2}, 64, v{yR2}
    v_xor_b32 v{yR2 + 3}, 96, v{yR2}
    s_lshl_b32 s{sBB}, s{sN2}, 7
    """)
    w1_dma_setup(p, 112)
    p(f"""
    v_lshrrev_b32 v{vT0}, 4, v{vL}
    v_and_b32 v{vT1}, 7, v{vL}
    v_lshlrev_b32 v{vT0}, 1, v{vT0}
    v_xor_b32 v{vT0}, v{vT0}, v{vT1}
    v_lshlrev_b32 v{vT0}, 4, v{vT0}
    v_lshrrev_b32 v{vT1}, 3, v{vL}
    v_lshl_add_u32 v114, v{vT1}, 10, v{vT0}
    """)
    srd(p, S_W, pW1, 512 * 3584)
    srd(p, S_B, pW2, 1792 * 1024)


def y_units(p):
    r2 = p.opt.get("rot2", 1)
    p(f"""
    s_mul_i32 s{sT0}, s{sV}, 7
    s_and_b32 s{sT1}, s{sN2}, {1 if r2 else 0}
    s_lshl1_add_u32 s{sT2}, s{sT1}, s{sFLG}
    """)
    for i in range(4):
        p(f"s_add_u32 s{sT3}, s{sT2}, {i}\ns_and_b32 s{sT3}, s{sT3}, 3\ns_lshl1_add_u32 s{sUN + i}, s{sT3}, s{sT0}")
    p(f"""
    s_add_u32 s{sT1}, s{sT1}, s{sFLG}
    s_mul_i32 s{sT2}, s{sT1}, 86
    s_lshr_b32 s{sT2}, s{sT2}, 8
    s_mul_i32 s{sT2}, s{sT2}, 3
    s_sub_u32 s{sT1}, s{sT1}, s{sT2}
    s_add_u32 s{sT0}, s{sT0}, 1
    """)
    for i in range(3):
        p(f"""
        s_lshl1_add_u32 s{sUN + 4 + i}, s{sT1}, s{sT0}
        s_add_u32 s{sT1}, s{sT1}, 1
        s_cmp_eq_u32 s{sT1}, 3
        s_cselect_b32 s{sT1}, 0, s{sT1}
        """)


yGD2, yGA, yNL = 224, 56, 38


def gather_list(p, track):
    L = []
    for j in range(7, -1, -1):
        def f(j=j):
            p(f"v_subrev_u32 v{vT2}, {1024 * j}, v{yGA + 1}\nv_max_i32 v{vT2}, v{vT2}, v{yGA}")
            s = f"buffer_load_dwordx4 {vr(yGD2 + 4 * j, 4)}, v{vT2}, s[{S_WS}:{S_WS + 3}], s{sMB} offen sc1"
            p.vmem(s, "G") if track else p(s)
        L.append(f)
    return L


def cmac(d, a, b, nb):
    return [f"v_fmac_f32 v{d}, v{a}, v{b}", f"v_fmac_f32 v{d + 1}, v{a}, v{b + 1}",
            f"v_fmac_f32 v{d}, v{a + 1}, v{nb}", f"v_fmac_f32 v{d + 1}, v{a + 1}, v{b}"]


def h_work(p):
    W = []

    def check():
        back, chk = p.label("gspin"), p.label("gchk")
        p.wait_vm("G")
        p(f"s_branch {chk}\n{back}:")
        for f in gather_list(p, False):
            f()
        p(f"s_waitcnt vmcnt(0)\n{chk}:")
        p(f"v_xor_b32 v{vT3}, v{yGD2 + 30}, v{vTAG}")
        for j in range(6, -1, -1):
            p(f"v_bitop3_b32 v{vT3}, v{yGD2 + 4 * j + 2}, v{vTAG}, v{vT3} bitop3:0xbe")
        p(f"v_cmp_ne_u32 vcc, 0, v{vT3}\ns_nop 4")
        spin_tail(p, back)
        p.stamp(6)
    W.append(check)
    for j in range(6, -1, -1):
        W += cmac(yGD2 + 4 * j, yGD2 + 4 * (j + 1), yL256, yNL + 1)
    g = yGD2
    W += [f"v_mul_f32 v{yTA}, v{g}, v{yQ64}", f"v_mul_f32 v{yTA + 1}, v{g}, v{yQ64 + 1}",
          f"v_fma_f32 v{yTA}, -v{g + 1}, v{yQ64 + 1}, v{yTA}", f"v_fmac_f32 v{yTA + 1}, v{g + 1}, v{yQ64}"]
    for sw in ("v_permlane16_swap_b32", "v_permlane32_swap_b32"):
        W.append(f"""
        v_mov_b32 v{yTB}, v{yTA}
        v_mov_b32 v{yTB + 1}, v{yTA + 1}
        s_nop 1
        {sw} v{yTA}, v{yTB}
        {sw} v{yTA + 1}, v{yTB + 1}
        s_nop 1
        v_add_f32 v{yTA}, v{yTA}, v{yTB}
        v_add_f32 v{yTA + 1}, v{yTA + 1}, v{yTB + 1}
        """)
        W += [""] * 5
    W += [f"v_fmac_f32 v{yPQ}, v{yTA}, v{yQ16}", f"v_fmac_f32 v{yPQ + 1}, v{yTA}, v{yQ16 + 1}",
          f"v_fma_f32 v{yPQ}, -v{yTA + 1}, v{yQ16 + 1}, v{yPQ}", f"v_fmac_f32 v{yPQ + 1}, v{yTA + 1}, v{yQ16}"]
    prev = yPQ
    PA, TD = 112, 64
    for tau in range(16):
        u = yU(tau)
        W += cmac(u, prev, yL, yNL)
        prev = u
        if tau & 1:
            tb, i = divmod(tau, 4)
            for part in range(2):
                W.append(f"v_cvt_pk_bf16_f32 v{PA + 4 * tb + 2 * part + (i >> 1)}, v{yU(tau - 1) + part}, v{u + part}")

    def transpose():
        p(f"s_mul_i32 s{sT2}, s{sCI}, 88\ns_add_u32 s{sT2}, s{sT2}, s{sMX}")
        for tb in range(4):
            for part in range(2):
                p(mfma16(TD + 8 * tb + 4 * part, PA + 4 * tb + 2 * part, ySEL, True))
        p(f"""
        s_lshl_b32 s{sBX}, s{sT2}, 12
        s_add_u32 s{sBX}, s{sBX}, {WS_HID}
        s_mul_i32 s{sT2}, s{sCI}, 12
        s_lshr_b32 s{sT3}, s{sMX}, 3
        s_add_u32 s{sT2}, s{sT2}, s{sT3}
        s_lshl_b32 s{sT2}, s{sT2}, 7
        s_and_b32 s{sMX}, s{sMX}, 7
        s_lshl2_add_u32 s{sMX}, s{sMX}, s{sT2}
        """)
    W.append(transpose)
    W += [""] * 16
    for tb in range(4):
        for k in range(4):
            W.append(f"v_cvt_pk_bf16_f32 v{PA + 4 * tb + k}, v{TD + 8 * tb + 2 * k}, v{TD + 8 * tb + 2 * k + 1}")
        W.append(lambda tb=tb: p.vmem(f"buffer_store_dwordx4 {vr(PA + 4 * tb, 4)}, v{vL16}, s[{S_WS}:{S_WS + 3}], s{sBX} offen{off(1024 * tb)} sc1", "h"))
    W.append(lambda: p.stamp(7))
    return W


def emit(p, x):
    x() if callable(x) else p(x)


def y_pass_m(p):
    o = p.opt
    st = W2Stage(p)
    p(f"""
    v_mov_b32 v{yO2}, v114
    v_add_u32 v{yO2 + 1}, 7168, v114
    v_add_u32 v{yO2 + 2}, 14336, v114
    v_add_u32 v{yO2 + 3}, 21504, v114
    v_mov_b32 v{yOW}, v112
    v_mov_b32 v{yOW + 1}, v113
    """)
    y_units(p)
    cpf = o.get("cpf", 0)
    if cpf:
        half = o.get("part2", 81) != 81
        p(f"""
        s_and_b32 s{sT0}, s{sV}, 1
        s_cmp_eq_u32 s{sT0}, 0
        s_cselect_b32 s{S_X}, s{pCRE}, s{pCIM}
        s_cselect_b32 s{S_X + 1}, s{pCRE + 1}, s{pCIM + 1}
        s_mov_b32 s{S_X + 2}, {512 * 1024}
        s_mov_b32 s{S_X + 3}, 0x00020000
        s_lshl1_add_u32 s{sKX}, s{sJ}, s{sMH}
        s_lshl_b32 s{sKX}, s{sKX}, {12 if half else 13}
        v_lshlrev_b32 v58, 7, v{vL}
        """)
        if half:
            p(f"""
            s_and_b32 s{sT0}, s{sXCD}, 1
            s_lshl_b32 s{sT0}, s{sT0}, 18
            s_add_u32 s{sKX}, s{sKX}, s{sT0}
            v_lshrrev_b32 v59, 5, v{vL}
            v_lshl_or_b32 v58, v59, 30, v58
            s_lshr_b32 s{sT0}, s{sXCD}, 1
            s_add_u32 s1, s{sJ}, s{sT0}
            """)
        else:
            p(f"s_add_u32 s1, s{sJ}, s{sXCD}")
        p(f"s_and_b32 s1, s1, {cpf - 1}")
    budget = [int(x, 16) for x in str(o.get("bud", "87747880"))]
    gi = o.get("gi", 3)
    W = h_work(p)
    nw = -(-len(W) // (o.get("we_", 7) - gi - 1))
    full = {}
    for c in range(8):
        if 1 <= c <= 5:
            for f in w1_dma(p, c + 2, yOW):
                f()
        for s in range(2):
            slot = (2 * c + s) % 7
            for k in range(2):
                for e in range(2):
                    p(f"ds_read_b64_tr_b16 {vr(yCF + 8 * s + 4 * k + 2 * e, 2)}, v{yCW + k} offset:{8192 * slot + 1024 * e}")
        if c == 1:
            p(f"""
            v_and_b32 v{yGA}, 15, v{vL}
            v_lshlrev_b32 v{yGA}, 4, v{yGA}
            v_lshrrev_b32 v{yGA + 1}, 4, v{vL}
            v_sub_u32 v{yGA + 1}, s{sCI}, v{yGA + 1}
            v_lshl_add_u32 v{yGA + 1}, v{yGA + 1}, 8, v{yGA}
            v_sub_f32 v{yNL}, 0, v{yL + 1}
            v_sub_f32 v{yNL + 1}, 0, v{yL256 + 1}
            """)
        u = st.read
        if u < 4 and c < 7 and full.get(u, 99) <= c - 2 and (u < 3 or c >= gi + 2):
            st.read_next(wait=True)
        else:
            p("s_waitcnt lgkmcnt(0)")
        for s in range(2):
            for k in range(2):
                p(mfma(yCS + 4 * k, yONE, yCF + 8 * s + 4 * k, c == 0 and s == 0))
        if c == 7:
            break
        cp0 = o.get("cp0", 0)
        if cpf and cp0 <= c < cp0 + cpf:
            p(f"""
            s_cmp_eq_u32 s1, {c - cp0}
            s_cselect_b32 s{sT0}, 0, 0x40000000
            v_or_b32 v59, s{sT0}, v58
            """)
            p.vmem(f"buffer_load_dword v{vT0}, v59, s[{S_X}:{S_X + 3}], s{sKX} offen", "cpf")
        if c == gi:
            for f in gather_list(p, True):
                f()
        work = []
        if c > gi:
            work, W = W[:nw], W[nw:]
        nd = budget[c]
        if c == gi + 1:
            st.dma(nd)
            nd = 0
        per = -(-len(work) // (nd + 1))
        first = True
        while work or nd:
            if nd:
                st.dma(1, first)
                first = False
                nd -= 1
            for x in work[:per]:
                emit(p, x)
            work = work[per:]
        for uu in range(st.issued // 8):
            full.setdefault(uu, c)
        if c + 1 >= 3:
            p.wait_vm(("w", c + 1))
        p("s_barrier")
    p(f"""
    v_and_b32 v{vT0}, 15, v{vL}
    s_lshl_b32 s{sT0}, s{sV}, 8
    s_add_u32 s{sT0}, s{sT0}, {L_EXT}
    v_lshl_add_u32 v{vT1}, v{vT0}, 3, s{sT0}
    s_nop 3
    """)
    for k in range(2):
        a = yCS + 4 * k
        p(f"""
        v_and_b32 v{a + 1}, s{sMASK}, v{a}
        v_sub_f32 v{a}, v{a}, v{a + 1}
        v_cvt_pk_bf16_f32 v{a}, v{a + 1}, v{a}
        v_mov_b32 v{a + 1}, v{yB1 + k}
        ds_write_b64 v{vT1}, {vr(a, 2)} offset:{128 * k}
        """)
    st.dma(budget[7])
    c_dma_setup(p, 52)
    p("s_waitcnt lgkmcnt(0)\ns_barrier\ns_barrier")
    p.stamp(5)
    for x in W:
        emit(p, x)
    return st


def y_h(p, st):
    CV = 52
    hf = p.opt.get("hf", 0)
    if hf == 0:
        p.wait_vm("h")
        flag_store(p, sMX, WS_FLAGS)
    c_dma(p, 0, 0, CV)
    if hf == 1:
        p.wait_vm("h")
        flag_store(p, sMX, WS_FLAGS)
    c_dma(p, 0, 1, CV)
    while st.issued < 56 or st.read < 4:
        if st.can_issue():
            st.dma(8)
        else:
            st.read_next(wait=True)
    p.wait_vm(("C", 0))
    p("s_barrier")
    p.stamp(10)


def y_ph2(p, st):
    o = p.opt
    poll_setup(p, f"s_lshl1_add_u32 s{sT0}, s{sV}, s{sT0}\ns_add_u32 s{sT0}, s{sT0}, 4")
    p(f"s_add_u32 s{sT1}, s{sHID}, {32 * 4096}")
    for i in range(7):
        p(f"s_lshl_b32 s{sUN + i}, s{sUN + i}, 13\ns_add_u32 s{sUN + i}, s{sUN + i}, s{sT1}")
    p.stamp(11)
    poll_check(p, 0, False)
    if o.get("dly"):
        if o.get("pfh"):
            delay_until(p, o["dly"] - 3)
            p(f"v_lshlrev_b32 v{vT1}, 7, v{vL}")
            for i in range(7):
                p(f"buffer_load_dword v{vT0}, v{vT1}, s[{S_WS}:{S_WS + 3}], s{sUN + i} offen sc1")
        delay_until(p, o["dly"])
    p.stamp(12)
    items = []

    def b2(step):
        return vB2 + 32 * ((step >> 1) % 4) + 16 * (step & 1)
    ts = o.get("ts", 6)
    for step in range(14 - ts):
        for tb in range(4):
            items.append((sUN + (step >> 1), step & 1, tb, b2(step), step == 0))
    for tb in range(4):
        for step in range(14 - ts, 14):
            items.append((sUN + (step >> 1), step & 1, tb, b2(step), False))
    pre, post = {}, {}
    pre[32 - 10] = lambda: poll_issue(p, 128)
    pre[32] = lambda: poll_check(p, 128, True)

    def parked(u, half):
        def f():
            for x in st.reads(u, vB2 + 32 * (u - 4))[8 * half:8 * half + 8]:
                p(x)
        return f
    for u in range(4, 7):
        post[8 * (u - 4) + 8] = parked(u, 0)
        post[8 * (u - 4) + 9] = parked(u, 1)

    def after_parked():
        p("s_waitcnt lgkmcnt(0)")
        partial_addr(p)
    post[27] = after_parked
    gy = o.get("gy", 28)
    post[gy] = lambda: (p.stamp(14), p("s_barrier"))
    post[37] = lambda: p.stamp(15)
    for tb in range(3):
        def wr(tb=tb):
            p("s_nop 2")
            partial_write(p, tb)
        post[56 - ts * (3 - tb)] = wr
        post[56 - ts * (3 - tb) + 2] = lambda: p("s_waitcnt lgkmcnt(0)\ns_barrier")

    def last():
        p.stamp(13)
        p("s_nop 4")
        partial_write(p, 3)
        p("s_waitcnt lgkmcnt(0)\ns_barrier")
    post[55] = last
    ph2_loop(p, items, pre, post, o.get('ramp', 5))
    p(f"""
    s_lshl3_add_u32 s{sT0}, s{sN2}, s{sW}
    s_lshl_b32 s{sT0}, s{sT0}, 5
    s_add_u32 s{sT0}, s{sT0}, s{sM2}
    s_cmp_lg_u32 s{sT0}, 31
    s_cbranch_scc1 L_fin
    s_mov_b64 exec, 1
    buffer_store_dword v{vTAG}, off, s[{S_WS}:{S_WS + 3}], 0 sc1
    s_branch L_fin
    """)


xTR = 8
xAX, xEA, xRL, xEX = 16, 18, 20, 22
xWF = 32
xOX, xOB, xOW, xSA, xST = 32, 36, 38, 40, 42
xACC, xXF = 64, 128


def x_pass_s(p):
    o = p.opt
    p("L_X:")
    p(f"""
    v_lshrrev_b32 v{vT0}, 4, v{vL}
    v_and_b32 v{vT1}, 7, v{vL}
    v_xor_b32 v{vT1}, v{vT1}, v{vT0}
    v_lshlrev_b32 v{vT1}, 4, v{vT1}
    v_lshrrev_b32 v{vT2}, 3, v{vL}
    v_lshl_add_u32 v{xOB}, v{vT2}, 10, v{vT1}
    v_lshrrev_b32 v{vT2}, 5, v{vL}
    v_mul_u32_u24 v{vT2}, {12 * 1024}, v{vT2}
    v_add_u32 v{xOX}, v{vT2}, v{xOB}
    v_xor_b32 v{xOX + 1}, 64, v{xOX}
    v_xor_b32 v{xOB + 1}, 64, v{xOB}
    v_add_u32 v{xOX + 1}, {31 * 1024}, v{xOX + 1}
    v_add_u32 v{xOB + 1}, 7168, v{xOB + 1}
    v_add_u32 v{xOX + 2}, 2048, v{xOX}
    v_add_u32 v{xOX + 3}, 2048, v{xOX + 1}
    s_and_b32 s{sT1}, s{sV}, 1
    s_lshl1_add_u32 s{sBX}, s{sMT}, s{sMH}
    s_lshl3_add_u32 s{sBX}, s{sBX}, s{sT1}
    s_lshl_b32 s{sBX}, s{sBX}, 13
    s_lshl1_add_u32 s{sBB}, s{sNT}, s{sMH}
    s_lshl_b32 s{sBB}, s{sBB}, 14
    s_lshl_b32 s{sMX}, s{sV}, 12
    s_lshl1_add_u32 s{sMB}, s{sT1}, s{sMH}
    s_lshl_b32 s{sMB}, s{sMB}, 11
    s_cmp_eq_u32 s{sT1}, 0
    s_waitcnt lgkmcnt(0)
    s_cselect_b32 s{S_B}, s{pBRE}, s{pBIM}
    s_cselect_b32 s{S_B + 1}, s{pBRE + 1}, s{pBIM + 1}
    s_mov_b32 s{S_B + 2}, {512 * 1024}
    s_mov_b32 s{S_B + 3}, 0x00020000
    """)
    srd(p, S_X, pX, 2048 * 1024)

    def dma(c):
        slot = c % 3
        p(f"""
        s_add_u32 s{sT0}, s{sC0}, {c}
        s_and_b32 s{sT0}, s{sT0}, 7
        s_lshl_b32 s{sT1}, s{sT0}, 7
        s_add_u32 s{sKX}, s{sBX}, s{sT1}
        s_add_u32 m0, s{sMB}, {BR + slot * 8192}
        s_add_u32 s{sKB}, s{sBB}, s{sT1}
        """)
        for i in range(2):
            p.vmem(f"buffer_load_dwordx4 v{xOB + i}, s[{S_B}:{S_B + 3}], s{sKB} offen{off(1024 * i)} lds", ("c", c))
        p(f"s_add_u32 m0, s{sMX}, {XR + slot * 16384}\ns_nop 0")
        for i in range(4):
            p.vmem(f"buffer_load_dwordx4 v{xOX + i}, s[{S_X}:{S_X + 3}], s{sKX} offen{off(1024 * i)} lds", ("c", c))
    dma(0)
    p.stamp(1)
    srd(p, S_WS, pWS, WS_BYTES)
    p.vmem(f"buffer_load_dword v{vTAG}, off, s[{S_WS}:{S_WS + 3}], 0 sc1", "epoch")
    dma(1)
    late_ids(p)
    w1_dma_setup(p, xOW)
    pf0, pfn = o.get("pf0", 1), o.get("pfn", 4)
    if pfn:
        p(f"""
        s_and_b32 s{sT0}, s{sV}, 1
        s_cmp_eq_u32 s{sT0}, 0
        s_cselect_b32 s{S_W}, s{pW1}, s{pW2}
        s_cselect_b32 s{S_W + 1}, s{pW1 + 1}, s{pW2 + 1}
        s_cselect_b32 s{sT0}, s{pCRE}, s{pCIM}
        s_cselect_b32 s{sT1}, s{pCRE + 1}, s{pCIM + 1}
        s_mov_b32 s{S_W + 2}, {512 * 3584}
        s_cmp_lt_u32 s{sV}, 2
        s_cselect_b32 s{S_W}, s{S_W}, s{sT0}
        s_cselect_b32 s{S_W + 1}, s{S_W + 1}, s{sT1}
        s_cselect_b32 s{S_W + 2}, s{S_W + 2}, {512 * 1024}
        s_mov_b32 s{S_W + 3}, 0x00020000
        s_cselect_b32 s{sT0}, 56, 16
        s_mul_i32 s{sT1}, s{sT0}, s2
        v_cmp_gt_u32 vcc, s{sT0}, v{vL}
        v_add_lshl_u32 v44, v{vL}, s{sT1}, 7
        v_mov_b32 v45, 0x40000000
        v_cndmask_b32 v44, v45, v44, vcc
        s_and_b32 s{sUN + 1}, s{sJ}, {pfn - 1}
        """)
    else:
        srd(p, S_W, pW1, 512 * 3584)
    rowfrag_addr(p, xAX)
    p(f"""
    v_add_u32 v{xAX}, s{sMX}, v{xAX}
    v_xor_b32 v{xAX + 1}, 64, v{xAX}
    v_and_b32 v{xSA}, 31, v{vL}
    v_lshlrev_b32 v{xSA}, 3, v{xSA}
    s_lshl2_add_u32 s{sUN}, s{sMT}, s{sV}
    s_lshl_b32 s{sUN}, s{sUN}, 8
    s_add_u32 s{sUN}, s{sUN}, {WS_STATS}
    """)
    w1_tr_addr0(p, xTR)
    for fb in range(1, 8):
        p(f"v_xor_b32 v{xTR + fb}, {32 * fb}, v{xTR}")
    ld = f"buffer_load_dwordx2 {vr(xST, 2)}, v{xSA}, s[{S_WS}:{S_WS + 3}], s{sUN} offen sc1"
    for c in range(8):
        p.wait_vm(("c", c))
        if c == 1:
            make_tag(p)
        if c == 7:
            back, chk = p.label("stspin"), p.label("stchk")
            p(f"s_branch {chk}\n{back}:\n{ld}\ns_waitcnt vmcnt(0)\n{chk}:\nv_cmp_ne_u32 vcc, v{xST + 1}, v{vTAG}\ns_nop 4")
            spin_tail(p, back)
            p(f"""
            v_and_b32 v{vT0}, s{sMASK}, v{xST}
            v_rcp_f32 v{vT0}, v{vT0}
            v_lshrrev_b32 v{vT1}, 1, v{xSA}
            s_lshl_b32 s{sT0}, s{sV}, 7
            s_add_u32 s{sT0}, s{sT0}, {L_M}
            v_add_u32 v{vT1}, s{sT0}, v{vT1}
            v_lshlrev_b32 v{vT2}, 16, v{xST}
            ds_write_b32 v{vT1}, v{xST} offset:1024
            ds_write_b32 v{vT1}, v{vT0} offset:512
            ds_write_b32 v{vT1}, v{vT2}
            """)
        p("s_waitcnt lgkmcnt(0)\ns_barrier")
        if c == 0:
            p.stamp(2)
        slot = c % 3
        for s in range(2):
            for t in range(2):
                p(f"ds_read_b128 {vr(xXF + 16 * c + 8 * s + 4 * t, 4)}, v{xAX + s} offset:{slot * 16384 + t * 2048}")
        if c == 5:
            p.vmem(ld, "st")
        if c + 2 < 8:
            dma(c + 2)
            if pf0 <= c < pf0 + pfn:
                p(f"""
                s_cmp_eq_u32 s{sUN + 1}, {c - pf0}
                s_cselect_b32 s{sT0}, 0, 0x40000000
                v_or_b32 v45, s{sT0}, v44
                """)
                p.vmem(f"buffer_load_dword v46, v45, s[{S_W}:{S_W + 3}], 0 offen", "pf2")
                if c == pf0 + pfn - 1:
                    srd(p, S_W, pW1, 512 * 3584)
        else:
            for cc in ([0] if c == 6 else [1, 2]):
                for f in w1_dma(p, cc, xOW):
                    f()
    p.stamp(3)
    p(f"""
    v_bfe_u32 v{vT0}, v{vL}, 2, 2
    v_and_b32 v{vT1}, 3, v{vL}
    v_lshl_add_u32 v{vT0}, v{vT0}, 4, v{vT1}
    s_and_b32 s{sT1}, s{sV}, 1
    s_lshl3_add_u32 s{sT0}, s{sMH}, s{sT1}
    s_lshl_b32 s{sT0}, s{sT0}, 5
    s_add_u32 s{sT0}, s{sT0}, {L_M}
    v_lshl_add_u32 v{vT0}, v{vT0}, 2, s{sT0}
    ds_read_b32 v{xEX + 1}, v{vT0} offset:1024
    ds_read_b32 v{xEX + 3}, v{vT0} offset:{1024 + 16}
    ds_read_b32 v{xRL}, v{vT0} offset:512
    ds_read_b32 v{xRL + 1}, v{vT0} offset:{512 + 16}
    v_and_b32 v{xEA}, 15, v{vL}
    v_lshlrev_b32 v{xEA}, 3, v{xEA}
    v_add_u32 v{xEA}, {L_EXT}, v{xEA}
    v_cmp_gt_u32 vcc, 16, v{vL}
    s_mov_b32 s{sT2}, 0x01000100
    s_waitcnt lgkmcnt(0)
    """)
    for t in range(2):
        e = xEX + 2 * t
        p(f"""
        v_perm_b32 v{e}, v{e + 1}, v{e + 1}, s{sT2}
        v_xor_b32 v{e}, 0x80008000, v{e}
        v_lshrrev_b32 v{e + 1}, 16, v{e + 1}
        v_cndmask_b32 v{e}, 0, v{e}, vcc
        v_cndmask_b32 v{e + 1}, 0, v{e + 1}, vcc
        v_mul_f32 v{xRL + t}, {LOG2E}, v{xRL + t}
        """)
    p.wait_vm(("w", 0))
    p("s_barrier")
    p.stamp(4)


def x_pass_m(p):
    PD = p.opt.get("pd", 4)
    WE = p.opt.get("we", 1)
    AL = p.opt.get("al", 0)

    def reads(n):
        if n < 128:
            c, s, fb = n >> 4, (n >> 3) & 1, n & 7
            slot = (2 * c + s) % 7
            return [f"ds_read_b64_tr_b16 {vr(xWF + 4 * (n % 8) + 2 * e, 2)}, v{xTR + fb} offset:{8192 * slot + 1024 * e}" for e in range(2)]
        k = 2 * (n - 128)
        if k >= 8:
            return []
        return [f"ds_read_b64 {vr(xXF + 2 * (k + i), 2)}, v{xEA} offset:{128 * (k + i)}" for i in range(2)]
    nissued = 0
    for n in range(PD):
        for x in reads(n):
            p(x)
            nissued += 1
    if AL:
        p(".p2align 3")
    for n in range(128):
        c, s, fb = n >> 4, (n >> 3) & 1, n & 7
        if n % WE == 0:
            p(f"s_waitcnt lgkmcnt({nissued - 2 * (n + WE)})")
            if AL:
                p("s_nop 0")
        R = reads(n + PD)
        bar = (n & 15) == 16 - PD
        for t in range(2):
            p(mfma(xACC + 8 * fb + 4 * t, xWF + 4 * (n % 8), xXF + 16 * c + 8 * s + 4 * t, n < 8))
            if bar and t == 0:
                if c < 2:
                    p.wait_vm(("w", c + 1))
                elif AL:
                    p("s_nop 0")
                p("s_barrier")
            if R:
                p(R[t])
                nissued += 1
    p("s_waitcnt lgkmcnt(0)\ns_barrier")
    for fb in range(8):
        for t in range(2):
            p(mfma16(xACC + 8 * fb + 4 * t, xXF + 2 * fb, xEX + 2 * t))
    p.stamp(5)


def mish4(p, a, t, pk, tmp):
    sel = "op_sel_hi:[1,0]" if t == 0 else "op_sel:[0,1] op_sel_hi:[1,1]"
    e, u = tmp, tmp + 4
    p(f"""
    v_pk_mul_f32 {vr(a, 2)}, {vr(a, 2)}, {vr(xRL, 2)} {sel}
    v_pk_mul_f32 {vr(a + 2, 2)}, {vr(a + 2, 2)}, {vr(xRL, 2)} {sel}
    v_exp_f32 v{e}, v{a}
    v_exp_f32 v{e + 1}, v{a + 1}
    v_exp_f32 v{e + 2}, v{a + 2}
    v_exp_f32 v{e + 3}, v{a + 3}
    v_pk_fma_f32 {vr(u, 2)}, {vr(e, 2)}, 0.5, 1.0 op_sel_hi:[1,0,0]
    v_pk_fma_f32 {vr(u + 2, 2)}, {vr(e + 2, 2)}, 0.5, 1.0 op_sel_hi:[1,0,0]
    v_pk_fma_f32 {vr(u, 2)}, {vr(e, 2)}, {vr(u, 2)}, 1.0 op_sel_hi:[1,1,0]
    v_pk_fma_f32 {vr(u + 2, 2)}, {vr(e + 2, 2)}, {vr(u + 2, 2)}, 1.0 op_sel_hi:[1,1,0]
    v_rcp_f32 v{u}, v{u}
    v_rcp_f32 v{u + 1}, v{u + 1}
    v_rcp_f32 v{u + 2}, v{u + 2}
    v_rcp_f32 v{u + 3}, v{u + 3}
    v_pk_fma_f32 {vr(a, 2)}, {vr(a, 2)}, {vr(u, 2)}, {vr(a, 2)} neg_lo:[1,0,0] neg_hi:[1,0,0]
    v_pk_fma_f32 {vr(a + 2, 2)}, {vr(a + 2, 2)}, {vr(u + 2, 2)}, {vr(a + 2, 2)} neg_lo:[1,0,0] neg_hi:[1,0,0]
    v_cvt_pk_bf16_f32 v{pk}, v{a}, v{a + 1}
    v_cvt_pk_bf16_f32 v{pk + 1}, v{a + 2}, v{a + 3}
    """)


def x_epilogue(p):
    PK, TMP = 192, 144
    p(f"""
    s_mul_i32 s{sT0}, s{sCI}, 44
    s_add_u32 s{sT0}, s{sT0}, s{sL0}
    s_add_u32 s{sT0}, s{sT0}, 16
    s_and_b32 s{sT1}, s{sV}, 1
    s_lshl2_add_u32 s{sBX}, s{sT0}, s{sT1}
    s_lshl_b32 s{sBX}, s{sBX}, 11
    s_add_u32 s{sBX}, s{sBX}, {WS_HID}
    s_mul_i32 s{sT2}, s{sCI}, 6
    s_lshr_b32 s{sT3}, s{sNT}, 2
    s_add_u32 s{sT2}, s{sT2}, s{sT3}
    s_add_u32 s{sT2}, s{sT2}, 2
    s_lshl_b32 s{sT2}, s{sT2}, 8
    s_and_b32 s{sT3}, s{sNT}, 3
    s_lshl1_add_u32 s{sT3}, s{sT3}, s{sT1}
    s_lshl2_add_u32 s{sBB}, s{sT3}, s{sT2}
    """)

    def unit(u):
        for s in range(2):
            for t in range(2):
                pk = PK + 4 * (4 * u + 2 * s + t)
                for e in range(2):
                    mish4(p, xACC + 8 * (4 * u + 2 * s + e) + 4 * t, t, pk + 2 * e, TMP)
                p.vmem(f"buffer_store_dwordx4 {vr(pk, 4)}, v{vL16B if s else vL16}, s[{S_WS}:{S_WS + 3}], s{sBX} offen{off(1024 * t)} sc1", ("act", u))
    if p.opt.get("xprio"):
        p(f"s_setprio {p.opt['xprio']}")
    unit(0)
    light, heavy = p.label("light"), p.label("heavy")
    p(f"""
    s_and_b32 s{sT0}, s{sNT}, 3
    s_cmp_lg_u32 s{sT0}, 3
    s_cbranch_scc1 {heavy}
    """)
    p.stamp(6)
    p("s_mov_b64 exec, 1")
    for _ in range(4):
        p(f"buffer_load_dword v{vT3}, off, s[{S_WS}:{S_WS + 3}], 0 offset:64")
    p(f"""
    s_mov_b64 exec, -1
    s_branch {light}
    {heavy}:
    s_add_u32 s{sBX}, s{sBX}, 8192
    """)
    unit(1)
    p.stamp(6)
    p(f"{light}:")
    fa = p.opt.get("fa", 0)

    def flag(u):
        p.wait_vm(("act", u))
        flag_store(p, sBB, WS_FLAGS + 128 * u)
        if u == 1:
            p.stamp(7)
    if fa == 0:
        flag(0)
    RA = 60
    p(f"""
    v_and_b32 v{vT0}, 15, v{vL}
    v_bfe_u32 v{vT1}, v{vL}, 1, 3
    v_lshrrev_b32 v{vT2}, 5, v{vL}
    v_xor_b32 v{vT1}, v{vT1}, v{vT2}
    v_lshlrev_b32 v{vT1}, 4, v{vT1}
    v_lshl_add_u32 v{vT0}, v{vT0}, 7, v{vT1}
    v_bfe_u32 v{vT1}, v{vL}, 4, 1
    v_lshl_add_u32 v{vT0}, v{vT1}, 3, v{vT0}
    s_lshl_b32 s{sBUF}, s{sV}, 14
    s_add_u32 s{sBUF}, s{sBUF}, {WR}
    v_add_u32 v{RA}, s{sBUF}, v{vT0}
    v_xor_b32 v{RA + 1}, 32, v{RA}
    v_xor_b32 v{RA + 2}, 64, v{RA}
    v_xor_b32 v{RA + 3}, 96, v{RA}
    """)
    CV = 64
    c_dma_setup(p, CV)
    p("s_barrier")
    p.stamp(10)

    def c_reads(pair):
        L = []
        for j in range(4):
            for db in range(4):
                for part in range(2):
                    L.append(f"ds_read_b64 {vr(vB2 + 64 * pair + 16 * j + 4 * db + 2 * part, 2)}, v{RA + j} offset:{8192 * part + 2048 * db}")
        return L
    for x in c_reads(0):
        p(x)
    poll_setup(p, f"s_add_u32 s{sT0}, s{sT0}, s{sV}")
    p("s_waitcnt lgkmcnt(0)")
    if fa == 1:
        flag(0)
    c_dma(p, 1, 0, CV)
    if fa == 2:
        flag(0)
    c_dma(p, 1, 1, CV)
    for pair in range(2):
        p(f"""
        s_xor_b32 s{sT0}, s{sG0}, {pair}
        s_lshl1_add_u32 s{sT0}, s{sV}, s{sT0}
        s_lshl_b32 s{sT0}, s{sT0}, 14
        s_add_u32 s{sUN + 2 * pair}, s{sT0}, s{sHID}
        s_add_u32 s{sUN + 2 * pair + 1}, s{sUN + 2 * pair}, 8192
        """)
    p.stamp(11)
    poll_check(p, 0, False)
    if p.opt.get("dlx"):
        flag(1)
        if p.opt.get("pfh"):
            delay_until(p, p.opt["dlx"] - 3)
            p(f"v_lshlrev_b32 v{vT1}, 7, v{vL}")
            for i in range(4):
                p(f"buffer_load_dword v{vT0}, v{vT1}, s[{S_WS}:{S_WS + 3}], s{sUN + i} offen sc1")
        delay_until(p, p.opt["dlx"])
    p.stamp(12)
    items = []
    for step in range(8):
        for tb in range(4):
            items.append((sUN + (step >> 1), step & 1, tb, vB2 + 16 * step, step == 0))
    post = {}
    R1 = c_reads(1)
    for i in range(4):
        post[i] = lambda i=i: [p(x) for x in R1[8 * i:8 * i + 8]]

    def after_c():
        p("s_waitcnt lgkmcnt(0)")
        partial_addr(p)
    post[6] = after_c
    post[p.opt.get('fl', 32 - p.opt.get('depth', 10))] = lambda: x_final_loads(p)
    ph2_loop(p, items, {}, post, p.opt.get('xramp', 10), (lambda: None) if p.opt.get('dlx') else (lambda: flag(1)))
    p.stamp(13)
    for tb in range(4):
        if tb == 3:
            p("s_nop 0")
        partial_write(p, tb)


fX, fS, fD, fA = 128, 136, 140, 142


def x_final_loads(p):
    srd(p, S_X, pX, 2048 * 1024)
    srd(p, S_W, pOUT, 2048 * 2048)
    p(f"""
    s_lshl2_add_u32 s{sT0}, s{sM2}, s{sV}
    s_lshl_b32 s{sKX}, s{sT0}, 14
    s_lshl_b32 s{sT1}, s{sN2}, 7
    s_add_u32 s{sKX}, s{sKX}, s{sT1}
    s_lshl_b32 s{sT0}, s{sT0}, 7
    s_add_u32 s{sT0}, s{sT0}, {WS_STATS}
    v_lshrrev_b32 v{fA}, 4, v{vL}
    v_and_b32 v{fA + 1}, 15, v{vL}
    v_lshlrev_b32 v{fA + 2}, 3, v{fA + 1}
    v_lshl_add_u32 v{fA + 3}, v{fA}, 10, v{fA + 2}
    v_lshlrev_b32 v{fA + 4}, 3, v{fA}
    v_add_u32 v{fA + 2}, s{sT1}, v{fA + 2}
    s_mov_b32 s{sKB}, s{sKX}
    """)
    for tb in range(4):
        p.vmem(f"buffer_load_dwordx2 {vr(fX + 2 * tb, 2)}, v{fA + 3}, s[{S_X}:{S_X + 3}], s{sKB} offen", "fin")
        p.vmem(f"buffer_load_dword v{fS + tb}, v{fA + 4}, s[{S_WS}:{S_WS + 3}], s{sT0} offen{off(32 * tb)} sc1", "fin")
        if tb < 3:
            p(f"s_add_u32 s{sKB}, s{sKB}, 4096")
    p.vmem(f"global_load_dwordx2 {vr(fD, 2)}, v{fA + 2}, s[{pD}:{pD + 1}]", "fin")


def x_final(p):
    XF, SS, DD = 160, 176, 148
    RY, RF = fA + 4, fA + 5
    p.wait_vm("fin")
    p(f"""
    s_lshl_b32 s{sT0}, s{sV}, 2
    v_add_u32 v{RF}, s{sT0}, v{fA}
    v_xor_b32 v{RF}, v{RF}, v{fA + 1}
    v_lshlrev_b32 v{RF}, 4, v{RF}
    v_lshl_add_u32 v{RF}, v{fA + 1}, 8, v{RF}
    v_add_u32 v{RY}, {WR}, v{RF}
    v_add_u32 v{fA + 2}, {2 * 24576}, v{RF}
    v_lshlrev_b32 v{fA + 3}, 1, v{fA + 3}
    s_lshl_b32 s{sKX}, s{sKX}, 1
    s_mov_b32 s{sT2}, {LN2}
    v_lshlrev_b32 v{DD}, 16, v{fD}
    v_and_b32 v{DD + 1}, s{sMASK}, v{fD}
    v_lshlrev_b32 v{DD + 2}, 16, v{fD + 1}
    v_and_b32 v{DD + 3}, s{sMASK}, v{fD + 1}
    """)
    for tb in range(4):
        x, s = XF + 4 * tb, SS + 4 * tb
        p(f"""
        v_and_b32 v153, s{sMASK}, v{fS + tb}
        v_rcp_f32 v153, v153
        v_lshlrev_b32 v152, 16, v{fS + tb}
        v_lshlrev_b32 v{x}, 16, v{fX + 2 * tb}
        v_and_b32 v{x + 1}, s{sMASK}, v{fX + 2 * tb}
        v_lshlrev_b32 v{x + 2}, 16, v{fX + 2 * tb + 1}
        v_and_b32 v{x + 3}, s{sMASK}, v{fX + 2 * tb + 1}
        """)
        for k in range(4):
            p(f"v_sub_f32 v{s + k}, v{x + k}, v152")
        for k in range(4):
            p(f"v_mul_f32 v{s + k}, v153, v{s + k}")
    p("s_waitcnt lgkmcnt(0)\ns_barrier")
    p.stamp(14)
    Y = 64
    for tb in range(4):
        for w in range(4):
            p(f"ds_read_b128 {vr(Y + 16 * tb + 4 * w, 4)}, v{RY} offset:{16384 * w + 4096 * tb}")
    for tb in range(4):
        p(f"s_waitcnt lgkmcnt({12 - 4 * tb})")
        y, s = Y + 16 * tb, SS + 4 * tb
        for k in range(4):
            p(f"v_fma_f32 v{s + k}, v{s + k}, v{DD + k}, v{y + k}")
            p(f"v_add_f32 v{y + 4 + k}, v{y + 4 + k}, v{y + 8 + k}")
        for k in range(4):
            p(f"v_add_f32 v{s + k}, v{s + k}, v{y + 12 + k}")
        for k in range(4):
            p(f"v_add_f32 v{s + k}, v{s + k}, v{y + 4 + k}")
        for k in range(4):
            p(f"v_mul_f32 v{s + k}, s{sT2}, v{s + k}")
    for tb in range(4):
        F = Y + 16 * tb
        x, s = XF + 4 * tb, SS + 4 * tb
        p("s_barrier")
        if tb == 3:
            p.stamp(15)
        for w in range(4):
            a, o_ = (RF, 24576 * w) if w < 2 else (fA + 2, 24576 * (w - 2))
            p(f"ds_read_b128 {vr(F + 4 * w, 4)}, v{a} offset:{o_ + 4096 * tb}")
        e = F + 4
        if tb < 3:
            p("s_waitcnt lgkmcnt(2)")
            for k in range(4):
                p(f"v_add_f32 v{F + k}, v{F + k}, v{F + 4 + k}")
            p("s_waitcnt lgkmcnt(0)")
            for k in range(4):
                p(f"v_add_f32 v{F + 8 + k}, v{F + 8 + k}, v{F + 12 + k}")
            for k in range(4):
                p(f"v_add_f32 v{F + k}, v{F + k}, v{F + 8 + k}")
            for k in range(4):
                p(f"v_exp_f32_e64 v{e + k}, -v{F + k}")
            for k in range(4):
                p(f"v_mul_f32 v{s + k}, v{s + k}, v{F + k}")
            for k in range(4):
                p(f"v_add_f32 v{e + k}, 1.0, v{e + k}")
            for k in range(4):
                p(f"v_rcp_f32 v{e + k}, v{e + k}")
            p("s_nop 0")
            for k in range(4):
                p(f"v_fmac_f32 v{x + k}, v{s + k}, v{e + k}")
        else:
            p("s_waitcnt lgkmcnt(2)")
            for h in (0, 2):
                p(f"v_pk_add_f32 {vr(F + h, 2)}, {vr(F + h, 2)}, {vr(F + 4 + h, 2)}")
            p("s_waitcnt lgkmcnt(0)")
            for h in (0, 2):
                p(f"v_pk_add_f32 {vr(F + 8 + h, 2)}, {vr(F + 8 + h, 2)}, {vr(F + 12 + h, 2)}")
            for h in (0, 2):
                p(f"v_pk_add_f32 {vr(F + h, 2)}, {vr(F + h, 2)}, {vr(F + 8 + h, 2)}")
            for k in range(4):
                p(f"v_exp_f32_e64 v{e + k}, -v{F + k}")
            for h in (0, 2):
                p(f"v_pk_mul_f32 {vr(s + h, 2)}, {vr(s + h, 2)}, {vr(F + h, 2)}")
            for h in (0, 2):
                p(f"v_pk_add_f32 {vr(e + h, 2)}, {vr(e + h, 2)}, 1.0 op_sel_hi:[1,0]")
            for k in range(4):
                p(f"v_rcp_f32 v{e + k}, v{e + k}")
            for h in (0, 2):
                p(f"v_pk_fma_f32 {vr(x + h, 2)}, {vr(s + h, 2)}, {vr(e + h, 2)}, {vr(x + h, 2)}")
        p(f"buffer_store_dwordx4 {vr(x, 4)}, v{fA + 3}, s[{S_W}:{S_W + 3}], s{sKX} offen sc1")
        if tb < 3:
            p(f"s_add_u32 s{sKX}, s{sKX}, 8192")


def finish(p):
    p("L_fin:")
    if p.opt.get("stamps"):
        p.stamp(8)
        p("s_waitcnt vmcnt(0)")
        p.stamp(9)
        if "probe" in p.opt:
            p(f"""
            s_lshl_b32 s{sT0}, 1, s{sW}
            s_and_b32 s{sT0}, s{sT0}, {p.opt.get('pw', 255)}
            s_cmp_eq_u32 s{sT0}, 0
            s_cbranch_scc1 L_end
            s_add_u32 s{sT0}, s{STAMP_REGS[p.opt['probe']]}, 5000
            L_probe:
            s_memrealtime s[34:35]
            s_waitcnt lgkmcnt(0)
            s_sub_u32 s{sT1}, s34, s{sT0}
            s_cmp_lt_i32 s{sT1}, 0
            s_cbranch_scc1 L_probe
            s_branch L_end
            """)
        p(f"""
        s_mov_b64 exec, 1
        s_lshl3_add_u32 s{sT0}, s2, s{sW}
        s_lshl_b32 s{sT0}, s{sT0}, 6
        s_add_u32 s{sT0}, s{sT0}, {WS_STAMP}
        """)
        for i in range(16):
            p(f"v_mov_b32 v8, s{STAMP_REGS[i]}\nbuffer_store_dword v8, off, s[{S_WS}:{S_WS + 3}], s{sT0} offset:{4 * i}")
    p("L_end:\ns_endpgm")


def build(opt):
    p = P(opt)
    entry(p)
    st0 = p.save()
    y_prologue(p)
    y_m_setup(p)
    y_pass_s(p)
    y_window(p)
    st = y_pass_m(p)
    y_h(p, st)
    y_ph2(p, st)
    p.restore(st0)
    x_pass_s(p)
    x_pass_m(p)
    x_epilogue(p)
    x_final(p)
    finish(p)
    t = HEAD + f"; @launch grid=(256,1,1) block=(512,1,1) lds={LDS_BYTES}\n" + '.amdgcn_target "amdgcn-amd-amdhsa--gfx950"\n'
    t += kernel_text(KN + "_kernel", p.text(), vgpr=256, sgpr=102, accum=256)
    return t


if __name__ == "__main__":
    out = sys.argv[1]
    opt = {}
    for a in sys.argv[2:]:
        k, v = a.split("=")
        opt[k] = int(v) if v.lstrip("-").isdigit() else v
    open(out, "w").write(build(opt))
```

```python
import sys
from gen import HEAD, KN, kernel_text

WS_STATS = 4096
WS_CARRY = 64 << 10
WS_FLAGS = 1 << 20
WS_HID = 2 << 20
WS_STAMP = 200 << 20
WS_BYTES = 0x10000000
MISC, XR, BR, WR, CR, PKR = 0, 8192, 139264, 8192, 0, 65536
L_M, L_R, L_MS, L_EXT = MISC, MISC + 512, MISC + 1024, MISC + 2048
LDS_BYTES = 163840
LOG2E = 0x3fb8aa3b
LN2 = 0x3f317218

S_X, S_B, S_W, S_WS = 4, 8, 12, 16
sT0, sT1, sT2, sT3 = 20, 21, 22, 23
sW, sXCD, sJ, sMT, sNT, sL0, sC0, sM2, sN2, sV = 24, 25, 26, 27, 28, 29, 30, 31, 32, 33
pX, pLRE, pLIM, pBRE, pBIM, pCRE, pCIM, pDT, pD, pW1, pB1, pW2, pOUT, pWS = 36, 38, 40, 42, 44, 46, 48, 50, 52, 56, 58, 60, 62, 66
sKX, sKB, sKW, sBX, sBB, sBW, sMX, sMB, sMASK, sSPIN = 68, 69, 70, 71, 72, 73, 74, 75, 76, 77
sUN = 78
sBUF, sHID, sFLG, sCI, sMH, sMW, sG0 = 85, 86, 87, 88, 89, 90, 91
STAMP_REGS = list(range(92, 102)) + [3, 54, 55, 64, 65, 0]
SPIN_MAX = 400000
NAMES_Y = ["-", "stpub", "G0", "Send", "G8", "G17", "gath", "hst", "-", "end", "GC", "staged", "flA", "lastmf", "gy", "i37"]
NAMES_X = ["-", "dma0", "-", "w1iss", "G8", "Mend", "mish", "flBsent", "fin", "end", "-", "C1iss", "flh", "ydone", "Gy", "T3"]
ORD = [0, 1, 2, 3, 4, 5, 6, 7, 10, 11, 12, 14, 15, 13, 8, 9]


class P:
    def __init__(self, opt):
        self.l = []
        self.vm = []
        self.done = -1
        self.opt = opt
        self.nlab = 0
        self.ool = []
        self.fs = opt.get("fs", 128)

    def __call__(self, s):
        for x in s.strip("\n").split("\n"):
            x = x.strip()
            if not x:
                continue
            self.l.append(x if x.endswith(":") else "    " + x)

    def vmem(self, s, tag=None):
        self(s)
        self.vm.append(tag)

    def last(self, tag):
        return max(i for i, t in enumerate(self.vm) if t == tag)

    def wait_vm(self, tag):
        idx = self.last(tag)
        if idx <= self.done:
            return
        n = len(self.vm) - 1 - idx
        assert n <= 63, n
        self(f"s_waitcnt vmcnt({n})")
        self.done = idx

    def save(self):
        return (list(self.vm), self.done)

    def restore(self, st):
        self.vm, self.done = list(st[0]), st[1]

    def label(self, base):
        self.nlab += 1
        return f"L_{base}_{self.nlab}"

    def stamp(self, i):
        if self.opt.get("stamps"):
            op = "s_memtime" if self.opt["stamps"] == 2 else "s_memrealtime"
            self(f"{op} s[34:35]\ns_waitcnt lgkmcnt(0)\ns_mov_b32 s{STAMP_REGS[i]}, s34")

    def text(self):
        return "\n".join(self.l) + "\n"


def vr(a, n=1):
    return f"v{a}" if n == 1 else f"v[{a}:{a + n - 1}]"


def off(o):
    return f" offset:{o}" if o else ""


def srd(p, d, ptr, nbytes):
    p(f"""
    s_mov_b32 s{d}, s{ptr}
    s_mov_b32 s{d + 1}, s{ptr + 1}
    s_mov_b32 s{d + 2}, {nbytes}
    s_mov_b32 s{d + 3}, 0x00020000
    """)


def mfma(d, a, b, first=False):
    return f"v_mfma_f32_16x16x32_bf16 {vr(d, 4)}, {vr(a, 4)}, {vr(b, 4)}, {'0' if first else vr(d, 4)}"


def mfma16(d, a, b, first=False):
    return f"v_mfma_f32_16x16x16_bf16 {vr(d, 4)}, {vr(a, 2)}, {vr(b, 2)}, {'0' if first else vr(d, 4)}"


vL, vTAG, vT0, vT1, vT2, vT3, vL16, vL16B = 0, 1, 2, 3, 4, 5, 6, 7


def rowfrag_addr(p, dst):
    p(f"""
    v_and_b32 v{vT0}, 15, v{vL}
    v_bfe_u32 v{vT1}, v{vL}, 1, 3
    v_lshrrev_b32 v{vT2}, 4, v{vL}
    v_xor_b32 v{vT1}, v{vT1}, v{vT2}
    v_lshlrev_b32 v{vT1}, 4, v{vT1}
    v_lshl_add_u32 v{dst}, v{vT0}, 7, v{vT1}
    """)


def w1_tr_addr0(p, dst):
    p(f"""
    v_lshrrev_b32 v{vT0}, 4, v{vL}
    v_bfe_u32 v{vT1}, v{vL}, 2, 2
    v_lshl_add_u32 v{vT2}, v{vT0}, 3, v{vT1}
    v_lshlrev_b32 v{vT2}, 8, v{vT2}
    v_lshl_add_u32 v{vT2}, v{vT1}, 6, v{vT2}
    v_and_b32 v{vT0}, 1, v{vT0}
    v_lshl_add_u32 v{vT2}, v{vT0}, 5, v{vT2}
    v_and_b32 v{vT1}, 3, v{vL}
    v_lshl_add_u32 v{vT2}, v{vT1}, 3, v{vT2}
    v_add_u32 v{dst}, {WR}, v{vT2}
    """)


def w1_dma_setup(p, vow):
    p(f"""
    v_lshrrev_b32 v{vT0}, 4, v{vL}
    v_bfe_u32 v{vT1}, v{vL}, 1, 3
    s_and_b32 s{sT0}, s{sV}, 1
    v_lshl_or_b32 v{vT2}, v{vT0}, 1, s{sT0}
    v_xor_b32 v{vT1}, v{vT1}, v{vT2}
    v_mul_u32_u24 v{vow}, 3584, v{vT0}
    v_lshl_add_u32 v{vow}, v{vT1}, 5, v{vow}
    v_and_b32 v{vT2}, 1, v{vL}
    v_lshl_add_u32 v{vow}, v{vT2}, 4, v{vow}
    s_and_b32 s{sT1}, s{sNT}, 3
    s_cmp_eq_u32 s{sT1}, 3
    s_cselect_b32 s{sT1}, 0x40000000, 0
    v_lshrrev_b32 v{vT1}, 2, v{vT1}
    v_mul_lo_u32 v{vT1}, v{vT1}, s{sT1}
    v_add_u32 v{vow}, v{vow}, v{vT1}
    v_add_u32 v{vow + 1}, 13312, v{vow}
    s_lshl_b32 s{sBW}, s{sL0}, 7
    s_mul_i32 s{sT2}, s{sV}, {8 * 3584}
    s_add_u32 s{sBW}, s{sBW}, s{sT2}
    s_lshl_b32 s{sMW}, s{sV}, 11
    """)


def w1_dma(p, c, vow):
    L = []
    for s in range(2):
        slot = (2 * c + s) % 7

        def a(s=s, slot=slot):
            if s == 0:
                p(f"""
                s_add_u32 s{sT0}, s{sC0}, {c}
                s_and_b32 s{sT0}, s{sT0}, 7
                s_mul_i32 s{sT0}, s{sT0}, {64 * 3584}
                s_add_u32 m0, s{sMW}, {WR + slot * 8192}
                s_add_u32 s{sKW}, s{sBW}, s{sT0}
                """)
            else:
                p(f"s_add_u32 m0, s{sMW}, {WR + slot * 8192}\ns_add_u32 s{sKW}, s{sKW}, {32 * 3584}")
            p.vmem(f"buffer_load_dwordx4 v{vow}, s[{S_W}:{S_W + 3}], s{sKW} offen lds", ("w", c))
        L.append(a)
        L.append(lambda: p.vmem(f"buffer_load_dwordx4 v{vow + 1}, s[{S_W}:{S_W + 3}], s{sKW} offen offset:1024 lds", ("w", c)))
    return L


def c_dma_setup(p, vo):
    p(f"""
    v_lshrrev_b32 v{vT0}, 4, v{vL}
    v_and_b32 v{vT1}, 7, v{vL}
    v_xor_b32 v{vT0}, v{vT0}, v{vT1}
    v_lshlrev_b32 v{vT0}, 4, v{vT0}
    v_lshrrev_b32 v{vT1}, 3, v{vL}
    v_lshl_add_u32 v{vo}, v{vT1}, 10, v{vT0}
    v_xor_b32 v{vo + 1}, 64, v{vo}
    v_add_u32 v{vo + 1}, 7168, v{vo + 1}
    v_add_u32 v{vo + 2}, 14336, v{vo}
    v_add_u32 v{vo + 3}, 14336, v{vo + 1}
    """)


def c_dma(p, pair, part, vo):
    ptr = pCIM if part else pCRE
    srd(p, S_X, ptr, 512 * 1024)
    p(f"""
    s_xor_b32 s{sT0}, s{sG0}, {pair}
    s_lshl1_add_u32 s{sT0}, s{sV}, s{sT0}
    s_lshl_b32 s{sT0}, s{sT0}, 7
    s_lshl_b32 s{sT1}, s{sN2}, 16
    s_add_u32 s{sKX}, s{sT0}, s{sT1}
    s_lshl_b32 s{sT1}, s{sV}, 14
    """)
    for h in range(2):
        p(f"s_add_u32 m0, s{sT1}, {CR + 8192 * part + 4096 * h}")
        p(f"s_add_u32 s{sKX}, s{sKX}, {32768 * h}")
        for k in range(4):
            p.vmem(f"buffer_load_dwordx4 v{vo + k}, s[{S_X}:{S_X + 3}], s{sKX} offen{off(1024 * k)} lds", ("C", pair))


def make_tag(p):
    p(f"""
    s_mov_b32 s{sT0}, 0x9E3779B1
    v_mul_lo_u32 v{vTAG}, v{vTAG}, s{sT0}
    v_add_u32 v{vTAG}, 0x7F4A7C15, v{vTAG}
    """)


def retry(p, cond, test, reload):
    chk, ok, rt = p.label("chk"), p.label("ok"), p.label("retry")
    p(f"{chk}:")
    test()
    p(f"{cond} {rt}\n{ok}:")
    main, p.l = p.l, []
    p(f"""
    {rt}:
    s_sub_u32 s{sSPIN}, s{sSPIN}, 1
    s_cmp_gt_i32 s{sSPIN}, 0
    s_cbranch_scc0 {ok}
    """)
    reload()
    p(f"s_branch {chk}")
    p.ool += p.l
    p.l = main


sPF = 8


def poll_setup(p, grp_expr):
    p(f"""
    s_mul_i32 s{sT0}, s{sM2}, 12
    {grp_expr}
    s_lshl_b32 s{sT0}, s{sT0}, 7
    s_add_u32 s{sT0}, s{sT0}, {WS_FLAGS}
    s_add_u32 s42, s{pWS}, s{sT0}
    s_addc_u32 s43, s{pWS + 1}, 0
    v_readfirstlane_b32 s40, v{vTAG}
    v_readfirstlane_b32 s41, v{vTAG}
    """)


def poll_issue(p, o_):
    p(f"s_load_dwordx8 s[{sPF}:{sPF + 7}], s[42:43], {o_} glc")


def poll_check(p, o_):
    def test():
        p("s_waitcnt lgkmcnt(0)")
        for k in range(0, 8, 2):
            p(f"s_xor_b64 s[{sPF + k}:{sPF + k + 1}], s[{sPF + k}:{sPF + k + 1}], s[40:41]")
        p(f"""
        s_or_b64 s[{sPF}:{sPF + 1}], s[{sPF}:{sPF + 1}], s[{sPF + 2}:{sPF + 3}]
        s_or_b64 s[{sPF + 4}:{sPF + 5}], s[{sPF + 4}:{sPF + 5}], s[{sPF + 6}:{sPF + 7}]
        s_or_b64 s[{sPF}:{sPF + 1}], s[{sPF}:{sPF + 1}], s[{sPF + 4}:{sPF + 5}]
        """)
    retry(p, "s_cbranch_scc1", test, lambda: poll_issue(p, o_))


def spf_setup(p, with_w1):
    p(f"""
    s_lshl2_add_u32 s{sT0}, s2, s{sV}
    s_mul_i32 s{sT0}, s{sT0}, 1792
    s_add_u32 s40, s{pW2}, s{sT0}
    s_addc_u32 s41, s{pW2 + 1}, 0
    """)
    if with_w1:
        p(f"s_add_u32 s80, s{pW1}, s{sT0}\ns_addc_u32 s81, s{pW1 + 1}, 0")
    p(f"""
    s_and_b32 s{sT0}, s{sV}, 1
    s_cmp_eq_u32 s{sT0}, 0
    s_cselect_b32 s50, s{pCRE}, s{pCIM}
    s_cselect_b32 s51, s{pCRE + 1}, s{pCIM + 1}
    s_lshl1_add_u32 s{sT0}, s2, s{sMH}
    s_lshl_b32 s{sT0}, s{sT0}, 10
    s_add_u32 s50, s50, s{sT0}
    s_addc_u32 s51, s51, 0
    """)


SPF = [(80, k) for k in range(14)] + [(40, k) for k in range(14)] + [(50, k) for k in range(8)]


def spf(p, a, b, dummy):
    for base, k in SPF[a:b]:
        p(f"s_load_dwordx2 s[{dummy}:{dummy + 1}], s[{base}:{base + 1}], {128 * k + 60}")


def delay_until(p, us):
    assert p.opt.get("stamps")
    lab = p.label("dly")
    p(f"""
    s_waitcnt vmcnt(0)
    s_add_u32 s{sT0}, s100, {int(us * 100)}
    {lab}:
    s_memrealtime s[34:35]
    s_waitcnt lgkmcnt(0)
    s_sub_u32 s{sT1}, s34, s{sT0}
    s_cmp_lt_i32 s{sT1}, 0
    s_cbranch_scc1 {lab}
    """)


def flag_store(p, sreg, add):
    p(f"s_add_u32 s{sT0}, s{sreg}, {add}\ns_mov_b64 exec, 1")
    p.vmem(f"buffer_store_dword v{vTAG}, off, s[{S_WS}:{S_WS + 3}], s{sT0} sc1", "flag")
    p("s_mov_b64 exec, -1")


def cmul(p, d, a, b, add=None):
    if add is None:
        p(f"v_pk_mul_f32 {vr(d, 2)}, {vr(a, 2)}, {vr(b, 2)} op_sel_hi:[0,1]")
    else:
        p(f"v_pk_fma_f32 {vr(d, 2)}, {vr(a, 2)}, {vr(b, 2)}, {vr(add, 2)} op_sel_hi:[0,1,1]")
    p(f"v_pk_fma_f32 {vr(d, 2)}, {vr(a, 2)}, {vr(b, 2)}, {vr(d, 2)} op_sel:[1,1,0] op_sel_hi:[1,0,1] neg_lo:[0,1,0]")


def entry(p):
    o = p.opt
    p(f"""
    s_load_dwordx16 s[36:51], s[0:1], 0
    s_load_dwordx16 s[52:67], s[0:1], 64
    s_getpc_b64 s[34:35]
    L_pc:
    s_cmp_ge_u32 s2, 256
    s_cbranch_scc1 L_end
    v_lshrrev_b32 v{vT0}, 6, v0
    s_lshr_b32 s{sJ}, s2, 3
    v_and_b32 v{vL}, 63, v0
    v_readfirstlane_b32 s{sW}, v{vT0}
    v_lshl_add_u32 v{vT0}, s{sJ}, 3, v{vT0}
    v_lshlrev_b32 v{vT0}, 7, v{vT0}
    v_min_u32 v{vT0}, L_end-L_pc, v{vT0}
    """)
    p.vmem(f"global_load_dword v255, v{vT0}, s[34:35]", "pf")
    if o.get("stamps"):
        p(("s_memtime" if o["stamps"] == 2 else "s_memrealtime") + " s[92:93]")
        p("s_memrealtime s[100:101]")
    p(f"s_and_b32 s{sXCD}, s2, 7")
    if o.get("part", 24) == 24:
        p(f"""
        s_and_b32 s{sT0}, s{sJ}, 7
        s_lshr_b32 s{sT1}, s{sJ}, 3
        s_lshr_b32 s{sMT}, s{sXCD}, 2
        s_lshl3_add_u32 s{sMT}, s{sMT}, s{sT0}
        s_and_b32 s{sT2}, s{sXCD}, 3
        s_lshl2_add_u32 s{sNT}, s{sT2}, s{sT1}
        """)
    else:
        p(f"""
        s_and_b32 s{sT0}, s{sJ}, 3
        s_lshr_b32 s{sT1}, s{sJ}, 2
        s_lshr_b32 s{sMT}, s{sXCD}, 1
        s_lshl2_add_u32 s{sMT}, s{sMT}, s{sT0}
        s_and_b32 s{sT2}, s{sXCD}, 1
        s_lshl3_add_u32 s{sNT}, s{sT2}, s{sT1}
        """)
    rm, rn, rx, ry = o.get("rm", 1), o.get("rn", 2), o.get("rx", 1), o.get("ry", 0)
    p(f"""
    s_mul_i32 s{sC0}, s{sT0}, {rm}
    s_mul_i32 s{sT1}, s{sT1}, {rn}
    s_add_u32 s{sC0}, s{sC0}, s{sT1}
    s_mul_i32 s{sT1}, s{sXCD}, {rx}
    s_add_u32 s{sC0}, s{sC0}, s{sT1}
    """)
    if ry:
        p(f"s_lshr_b32 s{sT1}, s{sXCD}, 2\ns_mul_i32 s{sT1}, s{sT1}, {ry}\ns_add_u32 s{sC0}, s{sC0}, s{sT1}")
    p(f"""
    s_and_b32 s{sV}, s{sW}, 3
    s_lshr_b32 s{sMH}, s{sV}, 1
    s_cmp_ge_u32 s{sW}, 4
    s_cbranch_scc1 L_X
    """)


def late_ids(p):
    p(f"""
    s_lshr_b32 s{sT0}, s{sNT}, 2
    s_lshl_b32 s{sL0}, s{sNT}, 1
    s_sub_u32 s{sL0}, s{sL0}, s{sT0}
    """)
    if p.opt.get("part2", 81) == 81:
        p(f"""
        s_and_b32 s{sFLG}, s{sJ}, 3
        s_lshl2_add_u32 s{sM2}, s{sXCD}, s{sFLG}
        s_lshr_b32 s{sN2}, s{sJ}, 2
        s_xor_b32 s{sN2}, s{sN2}, {p.opt.get('nx', 5)}
        """)
    else:
        p(f"""
        s_and_b32 s{sFLG}, s{sJ}, 7
        s_lshr_b32 s{sT0}, s{sXCD}, 1
        s_lshl3_add_u32 s{sM2}, s{sT0}, s{sFLG}
        s_and_b32 s{sT0}, s{sXCD}, 1
        s_lshr_b32 s{sN2}, s{sJ}, 3
        s_lshl2_add_u32 s{sN2}, s{sT0}, s{sN2}
        """)
    p(f"""
    s_mov_b32 s{sSPIN}, {SPIN_MAX}
    s_lshl1_add_u32 s{sCI}, s{sMT}, s{sMH}
    s_mov_b32 s{sMASK}, 0xffff0000
    s_mul_i32 s{sFLG}, s{sFLG}, {p.opt.get('rs2', 0)}
    s_mul_i32 s{sT0}, s{sXCD}, {p.opt.get('rx2', 1)}
    s_add_u32 s{sFLG}, s{sFLG}, s{sT0}
    s_add_u32 s{sG0}, s{sFLG}, {('s%d' % sN2) if p.opt.get('rot2', 1) else 0}
    s_and_b32 s{sG0}, s{sG0}, 1
    s_mul_i32 s{sHID}, s{sM2}, {352 * 1024}
    s_add_u32 s{sHID}, s{sHID}, {WS_HID}
    v_lshlrev_b32 v{vL16}, 4, v{vL}
    v_add_u32 v{vL16B}, 4096, v{vL16}
    """)


vRING, NRING, vACC2, vB2 = 8, 13, 64, 128
vPW = 60


def ph2_loop(p, items, hooks_pre, hooks_post, side, ramp, after_ramp=None):
    n = len(items)

    def load(g):
        if g in hooks_pre:
            hooks_pre[g]()
        sreg, second, tb, _, _ = items[g]
        r = vRING + 4 * (g % NRING)
        p.vmem(f"buffer_load_dwordx4 {vr(r, 4)}, v{vL16B if second else vL16}, s[{S_WS}:{S_WS + 3}], s{sreg} offen{off(1024 * (tb ^ second))} sc1", ("a", g))
    depth = p.opt.get("depth", 10)
    assert depth < NRING
    issued = 0
    for g in range(ramp):
        load(g)
        issued += 1
    if after_ramp:
        after_ramp()
    for g in range(n):
        _, _, tb, b2, first = items[g]
        p.wait_vm(("a", g))
        r = vRING + 4 * (g % NRING)
        sd = side.get(g, [])
        for db in range(4):
            p(mfma(vACC2 + 16 * tb + 4 * db, b2 + 4 * db, r, first))
            if db in (0, 2) and issued < n and issued <= g + depth:
                load(issued)
                issued += 1
            if db >= 1:
                k = -(-len(sd) // (4 - db))
                for x in sd[:k]:
                    p(x)
                sd = sd[k:]
        if g in hooks_post:
            hooks_post[g]()


def spread(side, L, start, per):
    for i in range(0, len(L), per):
        side.setdefault(start + i // per, []).extend(L[i:i + per])


def partial_addr():
    return f"""v_lshrrev_b32 v{vT0}, 4, v{vL}
    v_and_b32 v{vT1}, 15, v{vL}
    v_xor_b32 v{vT1}, v{vT1}, v{vT0}
    v_lshlrev_b32 v{vT1}, 4, v{vT1}
    v_lshl_add_u32 v{vT1}, v{vT0}, 8, v{vT1}
    v_add_u32 v{vPW}, s{sBUF}, v{vT1}
    v_xor_b32 v{vPW + 1}, 64, v{vPW}
    v_xor_b32 v{vPW + 2}, 128, v{vPW}
    v_xor_b32 v{vPW + 3}, 192, v{vPW}""".split("\n")


def partial_write(p, tb):
    for db in range(4):
        p(f"ds_write_b128 v{vPW + db}, {vr(vACC2 + 16 * tb + 4 * db, 4)} offset:{4096 * tb + 1024 * db}")


yAX, yAB = 8, 10
yOW, yO2 = 8, 10
yCW, yR2 = 14, 60
yC, yL, yL16, yQ16, yQ64, yL256, yPQ = 16, 18, 20, 22, 24, 26, 28
yONE, yB1, ySEL = 32, 30, 36
yCS = 40
yCF = 96
yRE, yIM = 64, 80
yFR = 128
yM, yR = 176, 192
yGD = 96
yTA, yTB, yG0, yG1 = 48, 50, 52, 54


def half_reduce(p, a, t):
    for r in (8, 4, 2, 1):
        p(f"s_nop 1\nv_add_f32_dpp v{a}, v{a}, v{a} row_ror:{r} row_mask:0xf bank_mask:0xf")
    p(f"""
    v_mov_b32 v{t}, v{a}
    s_nop 1
    v_permlane16_swap_b32 v{a}, v{t}
    s_nop 1
    v_add_f32 v{a}, v{a}, v{t}
    """)


def y_prologue(p):
    D = 208
    PR = 244
    p(f"""
    v_and_b32 v{vT0}, 31, v{vL}
    v_lshrrev_b32 v{vT1}, 5, v{vL}
    v_lshlrev_b32 v{vT2}, 4, v{vT0}
    v_lshl_add_u32 v{vT2}, v{vT1}, 10, v{vT2}
    s_lshl4_add_u32 s{sT0}, s{sMT}, s{sNT}
    s_lshl2_add_u32 s{sT0}, s{sT0}, s{sW}
    s_lshl_b32 s{sKX}, s{sT0}, 11
    s_lshl_b32 s{sKB}, s{sT0}, 4
    s_waitcnt lgkmcnt(0)
    """)
    srd(p, S_X, pX, 2048 * 1024)
    p.vmem(f"buffer_load_dwordx4 {vr(D, 4)}, v{vT2}, s[{S_X}:{S_X + 3}], s{sKX} offen", "xr")
    p.vmem(f"buffer_load_dwordx4 {vr(D + 4, 4)}, v{vT2}, s[{S_X}:{S_X + 3}], s{sKX} offen offset:512", "xr")
    srd(p, S_WS, pWS, WS_BYTES)
    p.vmem(f"buffer_load_dword v{vTAG}, off, s[{S_WS}:{S_WS + 3}], 0 sc1", "xr")
    late_ids(p)
    if p.opt.get("pt", 1):
        p(f"""
        s_add_u32 s82, s{pWS}, s{sKB}
        s_addc_u32 s83, s{pWS + 1}, 0
        s_load_dword s84, s[82:83], {WS_STATS}
        s_mul_i32 s{sT0}, s{sCI}, 12
        s_lshr_b32 s{sT1}, s{sNT}, 2
        s_add_u32 s{sT0}, s{sT0}, s{sT1}
        s_lshl_b32 s{sT0}, s{sT0}, 7
        s_add_u32 s{sT0}, s{sT0}, {WS_FLAGS}
        s_add_u32 s82, s{pWS}, s{sT0}
        s_addc_u32 s83, s{pWS + 1}, 0
        s_load_dword s84, s[82:83], 0
        """)
    p(f"""
    s_add_u32 s{sKB}, s{sKB}, {WS_STATS}
    v_and_b32 v{vT0}, 15, v{vL}
    s_and_b32 s{sT1}, s{sV}, 1
    s_lshl1_add_u32 s{sT0}, s{sNT}, s{sT1}
    s_lshl_b32 s{sT0}, s{sT0}, 4
    v_add_lshl_u32 v{vT2}, v{vT0}, s{sT0}, 1
    """)
    p.vmem(f"global_load_ushort v{PR}, v{vT2}, s[{pLRE}:{pLRE + 1}]", "par")
    p.vmem(f"global_load_ushort v{PR + 1}, v{vT2}, s[{pLIM}:{pLIM + 1}]", "par")
    p.vmem(f"global_load_ushort v{PR + 2}, v{vT2}, s[{pDT}:{pDT + 1}]", "par")
    rowfrag_addr(p, yAX)
    p(f"""
    s_lshl_b32 s{sT0}, s{sT1}, 11
    s_add_u32 s{sT0}, s{sT0}, {BR}
    v_add_u32 v{yAB}, s{sT0}, v{yAX}
    s_lshl_b32 s{sT0}, s{sMH}, 13
    s_add_u32 s{sT0}, s{sT0}, {XR}
    v_add_u32 v{yAX}, s{sT0}, v{yAX}
    v_xor_b32 v{yAX + 1}, 64, v{yAX}
    v_xor_b32 v{yAB + 1}, 64, v{yAB}
    """)
    for k in range(4):
        p(f"v_mov_b32 v{yONE + k}, 0x3f803f80")
    p.wait_vm("xr")
    make_tag(p)
    F = D + 8
    for k in range(8):
        p(f"v_lshlrev_b32 v{F + 2 * k}, 16, v{D + k}\nv_and_b32 v{F + 2 * k + 1}, s{sMASK}, v{D + k}")
    A = D + 24
    p(f"v_pk_add_f32 {vr(A, 2)}, {vr(F, 2)}, {vr(F + 2, 2)}")
    for k in range(2, 8):
        p(f"v_pk_add_f32 {vr(A, 2)}, {vr(A, 2)}, {vr(F + 2 * k, 2)}")
    p(f"v_add_f32 v{A}, v{A}, v{A + 1}")
    half_reduce(p, A, A + 1)
    p(f"v_mul_f32 v{A}, 0x3b000000, v{A}")
    for k in range(8):
        p(f"v_pk_add_f32 {vr(F + 2 * k, 2)}, {vr(F + 2 * k, 2)}, {vr(A, 2)} op_sel_hi:[1,0] neg_lo:[0,1] neg_hi:[0,1]")
    p(f"v_pk_mul_f32 {vr(A + 2, 2)}, {vr(F, 2)}, {vr(F, 2)}")
    for k in range(1, 8):
        p(f"v_pk_fma_f32 {vr(A + 2, 2)}, {vr(F + 2 * k, 2)}, {vr(F + 2 * k, 2)}, {vr(A + 2, 2)}")
    p(f"v_add_f32 v{A + 2}, v{A + 2}, v{A + 3}")
    half_reduce(p, A + 2, A + 3)
    p(f"""
    v_mul_f32 v{A + 2}, 0x3b000000, v{A + 2}
    v_cvt_pk_bf16_f32 v{A + 2}, v{A + 2}, v{A + 2}
    v_and_b32 v{A + 2}, s{sMASK}, v{A + 2}
    v_add_f32 v{A + 2}, 0x3727c5ac, v{A + 2}
    v_cvt_pk_bf16_f32 v{A + 2}, v{A + 2}, v{A + 2}
    v_and_b32 v{A + 2}, s{sMASK}, v{A + 2}
    v_sqrt_f32 v{A + 2}, v{A + 2}
    v_lshrrev_b32 v{vT1}, 5, v{vL}
    v_cvt_pk_bf16_f32 v{A}, v{A}, v{A + 2}
    v_mov_b32 v{A + 1}, v{vTAG}
    v_lshlrev_b32 v{vT1}, 3, v{vT1}
    s_mov_b32 exec_lo, 1
    s_mov_b32 exec_hi, 1
    """)
    p.vmem(f"buffer_store_dwordx2 {vr(A, 2)}, v{vT1}, s[{S_WS}:{S_WS + 3}], s{sKB} offen sc1", "stst")
    p("s_mov_b64 exec, -1")
    p.stamp(1)
    p.wait_vm("par")
    t = 176
    p(f"""
    v_lshlrev_b32 v{PR}, 16, v{PR}
    v_lshlrev_b32 v{PR + 1}, 16, v{PR + 1}
    v_lshlrev_b32 v{PR + 2}, 16, v{PR + 2}
    v_mul_f32 v{PR + 2}, {LOG2E}, v{PR + 2}
    v_exp_f32 v{PR + 2}, v{PR + 2}
    s_nop 0
    v_cvt_pk_bf16_f32 v{PR + 2}, v{PR + 2}, v{PR + 2}
    v_and_b32 v{PR + 2}, s{sMASK}, v{PR + 2}
    v_mul_f32 v{t}, v{PR + 2}, v{PR}
    v_mul_f32 v{t + 1}, v{PR + 2}, v{PR + 1}
    v_mul_f32 v{t}, {LOG2E}, v{t}
    v_mul_f32 v{t + 1}, 0.15915494, v{t + 1}
    v_exp_f32 v{t}, v{t}
    v_rndne_f32 v{t + 2}, v{t + 1}
    v_sub_f32 v{t + 1}, v{t + 1}, v{t + 2}
    v_cos_f32 v{t + 2}, v{t + 1}
    v_sin_f32 v{t + 3}, v{t + 1}
    v_mul_f32 v{t + 4}, v{PR}, v{PR}
    v_fmac_f32 v{t + 4}, v{PR + 1}, v{PR + 1}
    v_rcp_f32 v{t + 4}, v{t + 4}
    v_mul_f32 v{yL}, v{t}, v{t + 2}
    v_mul_f32 v{t + 3}, v{t}, v{t + 3}
    v_sub_f32 v{yL + 1}, 0, v{t + 3}
    v_add_f32 v{t + 2}, -1.0, v{yL}
    v_add_f32 v{t + 4}, v{t + 4}, v{t + 4}
    v_mul_f32 v{yC}, v{t + 2}, v{PR}
    v_fmac_f32 v{yC}, v{t + 3}, v{PR + 1}
    v_mul_f32 v{yC + 1}, v{t + 3}, v{PR}
    v_fma_f32 v{yC + 1}, -v{t + 2}, v{PR + 1}, v{yC + 1}
    v_mul_f32 v{yC}, v{yC}, v{t + 4}
    v_mul_f32 v{yC + 1}, v{yC + 1}, v{t + 4}
    v_and_b32 v{vT0}, 16, v{vL}
    v_cmp_ne_u32 s[{sUN}:{sUN + 1}], 0, v{vT0}
    v_cmp_le_u32 s[{sUN + 2}:{sUN + 3}], 32, v{vL}
    """)
    a, b, c, d = t + 6, t + 8, t + 10, t + 12
    cmul(p, a, yL, yL)
    cmul(p, b, a, a)
    cmul(p, a, b, b)
    cmul(p, yL16, a, a)
    cmul(p, a, yL16, yL16)

    def qpow(dst, p1, p2):
        p(f"""
        v_cndmask_b32 v{c}, 1.0, v{p1}, s[{sUN}:{sUN + 1}]
        v_cndmask_b32 v{c + 1}, 0, v{p1 + 1}, s[{sUN}:{sUN + 1}]
        v_cndmask_b32 v{d}, 1.0, v{p2}, s[{sUN + 2}:{sUN + 3}]
        v_cndmask_b32 v{d + 1}, 0, v{p2 + 1}, s[{sUN + 2}:{sUN + 3}]
        """)
        cmul(p, dst, c, d)
    qpow(yQ16, yL16, a)
    cmul(p, b, a, a)
    cmul(p, a, b, b)
    qpow(yQ64, b, a)
    cmul(p, yL256, a, a)
    p(f"""
    v_and_b32 v{vT0}, 15, v{vL}
    v_lshrrev_b32 v{vT1}, 4, v{vL}
    v_lshlrev_b32 v{vT1}, 2, v{vT1}
    v_sub_u32 v{vT0}, v{vT0}, v{vT1}
    v_mov_b32 v{vT1}, 0x3f80
    v_mov_b32 v{vT2}, 0x3f800000
    """)
    for dw in range(2):
        p(f"""
        v_cmp_eq_u32 vcc, {2 * dw}, v{vT0}
        v_cmp_eq_u32 s[{sT0}:{sT1}], {2 * dw + 1}, v{vT0}
        s_nop 0
        v_cndmask_b32 v{ySEL + dw}, 0, v{vT1}, vcc
        v_cndmask_b32 v{ySEL + dw}, v{ySEL + dw}, v{vT2}, s[{sT0}:{sT1}]
        """)
    p(f"""
    v_lshrrev_b32 v{vT1}, 4, v{vL}
    s_lshl_b32 s{sT0}, s{sMH}, 8
    s_add_u32 s{sT0}, s{sT0}, {L_M}
    v_lshl_add_u32 v12, v{vT1}, 6, s{sT0}
    """)


def y_pass_s(p):
    def reads(c, s, st):
        slot = c % 3
        b = yFR + 24 * st
        L = [f"ds_read_b128 {vr(b + 16 + 4 * k, 4)}, v{yAB + s} offset:{slot * 8192 + k * 4096}" for k in range(2)]
        L += [f"ds_read_b128 {vr(b + 4 * tb, 4)}, v{yAX + s} offset:{(c & 3) * 16384 + tb * 2048}" for tb in range(4)]
        if c == 4:
            L.insert(0, f"v_add_u32 v{yAX + s}, 65536, v{yAX + s}")
        return L
    p("s_barrier")
    p.stamp(2)
    for x in reads(0, 0, 0):
        p(x)
    p("s_waitcnt lgkmcnt(0)")
    bpos = p.opt.get("ybpos", 4)
    for n in range(16):
        c, s = divmod(n, 2)
        st = n & 1
        b = yFR + 24 * st
        M = [mfma(yCS, yONE, b + 16, n == 0), mfma(yCS + 4, yONE, b + 20, n == 0)]
        for tb in range(4):
            M += [mfma(yRE + 4 * tb, b + 4 * tb, b + 16, n == 0), mfma(yIM + 4 * tb, b + 4 * tb, b + 20, n == 0)]
        if s == 0:
            R = reads(c, 1, st ^ 1)
        elif c < 7:
            R = reads(c + 1, 0, st ^ 1)
        else:
            R = [f"ds_read_b128 {vr(yM + 4 * tb, 4)}, v12 offset:{16 * tb}" for tb in range(4)]
            R += [f"ds_read_b128 {vr(yR + 4 * tb, 4)}, v12 offset:{512 + 16 * tb}" for tb in range(4)]
        first = bpos if (s == 1 and c < 7) else 1
        for m in M[:first]:
            p(m)
        if s == 1 and c < 7:
            p("s_barrier")
        rest = M[first:]
        per = -(-len(R) // len(rest))
        ir = 0
        for m in rest:
            for x in R[ir:ir + per]:
                p(x)
            ir += per
            p(m)
        p("s_waitcnt lgkmcnt(0)")
    p.stamp(3)


def yU(tau):
    tb, i = divmod(tau, 4)
    return (yRE if i % 2 == 0 else yIM) + 4 * tb + (i & ~1)


def y_window(p):
    g, gn = yG0, yG1
    p(f"""
    s_and_b32 s{sT1}, s{sV}, 1
    s_lshl1_add_u32 s{sMX}, s{sNT}, s{sT1}
    s_lshl_b32 s{sMB}, s{sMX}, 14
    s_add_u32 s{sMB}, s{sMB}, {WS_CARRY}
    s_nop 1
    """)
    if p.opt.get("pfy"):
        spf(p, 28, 35, 38)
    for tau in range(0, 16, 2):
        a, b = yRE + tau, yIM + tau
        p(f"""
        v_pk_fma_f32 {vr(yTA, 2)}, {vr(yM + tau, 2)}, {vr(yCS, 2)}, {vr(a, 2)} neg_lo:[1,0,0] neg_hi:[1,0,0]
        v_pk_fma_f32 {vr(yTB, 2)}, {vr(yM + tau, 2)}, {vr(yCS + 4, 2)}, {vr(b, 2)} neg_lo:[1,0,0] neg_hi:[1,0,0]
        v_pk_mul_f32 {vr(yTA, 2)}, {vr(yTA, 2)}, {vr(yR + tau, 2)}
        v_pk_mul_f32 {vr(yTB, 2)}, {vr(yTB, 2)}, {vr(yR + tau, 2)}
        v_pk_mul_f32 {vr(a, 2)}, {vr(yTA, 2)}, {vr(yC, 2)} op_sel_hi:[0,1] neg_hi:[0,1]
        v_pk_mul_f32 {vr(b, 2)}, {vr(yTA, 2)}, {vr(yC, 2)} op_sel:[1,0] op_sel_hi:[1,1] neg_hi:[0,1]
        v_pk_fma_f32 {vr(a, 2)}, {vr(yTB, 2)}, {vr(yC, 2)}, {vr(a, 2)} op_sel:[0,1,0] op_sel_hi:[0,0,1] neg_lo:[0,1,0] neg_hi:[0,1,0]
        v_pk_fma_f32 {vr(b, 2)}, {vr(yTB, 2)}, {vr(yC, 2)}, {vr(b, 2)} op_sel:[1,1,0] op_sel_hi:[1,0,1] neg_lo:[0,1,0] neg_hi:[0,1,0]
        """)
        if tau == 0:
            cmul(p, g, yU(0), yL, yU(1))
        else:
            cmul(p, gn, g, yL, yU(tau))
            cmul(p, g, gn, yL, yU(tau + 1))
    GR = 56
    p(f"""
    v_mov_b32 v{gn}, v{g}
    v_mov_b32 v{gn + 1}, v{g + 1}
    v_and_b32 v{vT0}, 15, v{vL}
    v_lshlrev_b32 v{vT0}, 4, v{vT0}
    v_permlane16_swap_b32 v{g}, v{gn}
    v_permlane16_swap_b32 v{g + 1}, v{gn + 1}
    v_add_u32 v{vT1}, 256, v{vT0}
    v_mov_b32 v{yTA}, v{g}
    v_mov_b32 v{yTA + 1}, v{g + 1}
    v_mov_b32 v{yTB}, v{gn}
    v_mov_b32 v{yTB + 1}, v{gn + 1}
    v_permlane32_swap_b32 v{g}, v{yTA}
    v_permlane32_swap_b32 v{g + 1}, v{yTA + 1}
    v_permlane32_swap_b32 v{gn}, v{yTB}
    v_permlane32_swap_b32 v{gn + 1}, v{yTB + 1}
    v_cndmask_b32 v{vT1}, v{vT1}, v{vT0}, s[{sUN}:{sUN + 1}]
    v_mov_b32 v{GR + 2}, v{vTAG}
    """)
    cmul(p, gn, g, yL16, gn)
    cmul(p, yTA, gn, yL16, yTA)
    cmul(p, GR, yTA, yL16, yTB)
    p(f"""
    v_cndmask_b32 v{GR}, v{GR}, 0, s[{sUN}:{sUN + 1}]
    v_cndmask_b32 v{GR + 1}, v{GR + 1}, 0, s[{sUN}:{sUN + 1}]
    v_mov_b32 v{GR + 3}, v{vTAG}
    s_lshl_b32 s{sT0}, s{sCI}, 8
    s_add_u32 s{sT0}, s{sT0}, s{sMB}
    s_cmp_eq_u32 s{sCI}, 0
    s_cselect_b32 exec_lo, -1, 0xffff
    s_mov_b32 exec_hi, 0
    """)
    p.vmem(f"buffer_store_dwordx4 {vr(GR, 4)}, v{vT1}, s[{S_WS}:{S_WS + 3}], s{sT0} offen sc1", "S")
    p(f"""
    s_mov_b64 exec, -1
    s_barrier
    """)
    p.stamp(4)
    for k in range(2):
        p(f"""
        v_cndmask_b32 v{g + k}, 0, v{g + k}, s[{sUN}:{sUN + 1}]
        v_cndmask_b32 v{gn + k}, v{gn + k}, v{yTA + k}, s[{sUN}:{sUN + 1}]
        v_cndmask_b32 v{yPQ + k}, v{g + k}, v{gn + k}, s[{sUN + 2}:{sUN + 3}]
        """)


class W2Stage:
    def __init__(self, p):
        self.p = p
        self.issued = 0
        self.read = 0

    def can_issue(self):
        u = self.issued // 8
        return u < 7 and (u < 3 or self.read > u - 3)

    def issue(self):
        p = self.p
        u, k = divmod(self.issued, 8)
        h, kk = divmod(k, 4)
        if k == 0:
            p(f"s_lshl_b32 s{sKB}, s{sUN + u}, 16\ns_add_u32 s{sKB}, s{sKB}, s{sBB}")
        if k == 4:
            p(f"s_add_u32 s{sKB}, s{sKB}, 32768")
        self.issued += 1
        return u, h, kk

    def dma(self, n, need_m0=True):
        p = self.p
        for _ in range(n):
            if not self.can_issue():
                break
            k = self.issued % 8
            if need_m0 or k % 4 == 0:
                p(f"s_add_u32 m0, s{sBUF}, {8192 * ((self.issued // 8) % 3) + 4096 * (k // 4)}")
                if k % 4:
                    p("s_nop 0")
                need_m0 = False
            u, h, kk = self.issue()
            p.vmem(f"buffer_load_dwordx4 v{yO2 + kk}, s[{S_B}:{S_B + 3}], s{sKB} offen{off(1024 * kk)} lds", ("u", u))

    def landed(self, u):
        return self.issued >= 8 * (u + 1) and self.p.last(("u", u)) <= self.p.done

    def reads(self, u, dst):
        return [f"ds_read_b64_tr_b16 {vr(dst + 16 * s + 4 * db + 2 * e, 2)}, v{yR2 + db} offset:{8192 * (u % 3) + 4096 * s + 2048 * e}"
                for s in range(2) for db in range(4) for e in range(2)]

    def read_next(self, wait=False):
        u = self.read
        if wait:
            self.p.wait_vm(("u", u))
        for x in self.reads(u, vB2 + 32 * u):
            self.p(x)
        self.p("s_waitcnt lgkmcnt(0)")
        self.read += 1


def y_m_setup(p):
    p(f"""
    s_mul_i32 s{sBUF}, s{sV}, 24576
    s_add_u32 s{sBUF}, s{sBUF}, {PKR}
    v_lshrrev_b32 v{vT0}, 2, v{vL}
    v_bfe_u32 v{vT1}, v{vL}, 3, 2
    v_lshlrev_b32 v{vT0}, 7, v{vT0}
    v_lshl_add_u32 v{vT0}, v{vT1}, 5, v{vT0}
    v_and_b32 v{vT1}, 3, v{vL}
    v_lshl_add_u32 v{vT0}, v{vT1}, 3, v{vT0}
    v_add_u32 v{yR2}, s{sBUF}, v{vT0}
    v_xor_b32 v{yR2 + 1}, 32, v{yR2}
    v_xor_b32 v{yR2 + 2}, 64, v{yR2}
    v_xor_b32 v{yR2 + 3}, 96, v{yR2}
    s_lshl_b32 s{sBB}, s{sN2}, 7
    """)
    w1_dma_setup(p, 112)
    p(f"""
    v_lshrrev_b32 v{vT0}, 4, v{vL}
    v_and_b32 v{vT1}, 7, v{vL}
    v_lshlrev_b32 v{vT0}, 1, v{vT0}
    v_xor_b32 v{vT0}, v{vT0}, v{vT1}
    v_lshlrev_b32 v{vT0}, 4, v{vT0}
    v_lshrrev_b32 v{vT1}, 3, v{vL}
    v_lshl_add_u32 v114, v{vT1}, 10, v{vT0}
    """)
    srd(p, S_W, pW1, 512 * 3584)
    srd(p, S_B, pW2, 1792 * 1024)
    if p.opt.get("pfy"):
        spf_setup(p, False)


def y_units(p):
    r2 = p.opt.get("rot2", 1)
    p(f"""
    s_mul_i32 s{sT0}, s{sV}, 7
    s_and_b32 s{sKX}, s{sM2}, 1
    s_and_b32 s{sT1}, s{sN2}, {1 if r2 else 0}
    s_lshl1_add_u32 s{sT2}, s{sT1}, s{sFLG}
    """)
    for i in range(4):
        p(f"""
        s_add_u32 s{sT3}, s{sT2}, {i}
        s_and_b32 s{sT3}, s{sT3}, 3
        s_lshl1_add_u32 s{sT3}, s{sT3}, s{sKX}
        s_min_u32 s{sT3}, s{sT3}, 6
        s_add_u32 s{sUN + i}, s{sT3}, s{sT0}
        """)
    p(f"""
    s_add_u32 s{sT1}, s{sT1}, s{sFLG}
    s_mul_i32 s{sT2}, s{sT1}, 86
    s_lshr_b32 s{sT2}, s{sT2}, 8
    s_mul_i32 s{sT2}, s{sT2}, 3
    s_sub_u32 s{sT1}, s{sT1}, s{sT2}
    s_add_u32 s{sT0}, s{sT0}, 1
    s_sub_u32 s{sT0}, s{sT0}, s{sKX}
    """)
    for i in range(3):
        p(f"""
        s_lshl1_add_u32 s{sUN + 4 + i}, s{sT1}, s{sT0}
        s_add_u32 s{sT1}, s{sT1}, 1
        s_cmp_eq_u32 s{sT1}, 3
        s_cselect_b32 s{sT1}, 0, s{sT1}
        """)


yGD2, yGA, yNL = 96, 56, 38


def gather_list(p, track):
    L = []
    for j in range(7, -1, -1):
        def f(j=j):
            p(f"v_subrev_u32 v{vT2}, {1024 * j}, v{yGA + 1}\nv_max_i32 v{vT2}, v{vT2}, v{yGA}")
            s = f"buffer_load_dwordx4 {vr(yGD2 + 4 * j, 4)}, v{vT2}, s[{S_WS}:{S_WS + 3}], s{sMB} offen sc1"
            p.vmem(s, "G") if track else p(s)
        L.append(f)
    return L


def cmac(d, a, b, nb):
    return [f"v_fmac_f32 v{d}, v{a}, v{b}", f"v_fmac_f32 v{d + 1}, v{a}, v{b + 1}",
            f"v_fmac_f32 v{d}, v{a + 1}, v{nb}", f"v_fmac_f32 v{d + 1}, v{a + 1}, v{b}"]


def h_work(p):
    W = []

    def check():
        p.wait_vm("G")

        def test():
            p(f"v_xor_b32 v{vT3}, v{yGD2 + 30}, v{vTAG}")
            for j in range(6, -1, -1):
                p(f"v_bitop3_b32 v{vT3}, v{yGD2 + 4 * j + 2}, v{vTAG}, v{vT3} bitop3:0xbe")
            p(f"v_cmp_ne_u32 vcc, 0, v{vT3}\ns_nop 4")

        def reload():
            for f in gather_list(p, False):
                f()
            p("s_waitcnt vmcnt(0)")
        retry(p, "s_cbranch_vccnz", test, reload)
        p.stamp(6)
    W.append(check)
    for j in range(6, -1, -1):
        W += cmac(yGD2 + 4 * j, yGD2 + 4 * (j + 1), yL256, yNL + 1)
    g = yGD2
    W += [f"v_mul_f32 v{yTA}, v{g}, v{yQ64}", f"v_mul_f32 v{yTA + 1}, v{g}, v{yQ64 + 1}",
          f"v_fma_f32 v{yTA}, -v{g + 1}, v{yQ64 + 1}, v{yTA}", f"v_fmac_f32 v{yTA + 1}, v{g + 1}, v{yQ64}"]
    for sw in ("v_permlane16_swap_b32", "v_permlane32_swap_b32"):
        W.append(f"""
        v_mov_b32 v{yTB}, v{yTA}
        v_mov_b32 v{yTB + 1}, v{yTA + 1}
        s_nop 1
        {sw} v{yTA}, v{yTB}
        {sw} v{yTA + 1}, v{yTB + 1}
        s_nop 1
        v_add_f32 v{yTA}, v{yTA}, v{yTB}
        v_add_f32 v{yTA + 1}, v{yTA + 1}, v{yTB + 1}
        """)
        W += [""] * 5
    W += [f"v_fmac_f32 v{yPQ}, v{yTA}, v{yQ16}", f"v_fmac_f32 v{yPQ + 1}, v{yTA}, v{yQ16 + 1}",
          f"v_fma_f32 v{yPQ}, -v{yTA + 1}, v{yQ16 + 1}, v{yPQ}", f"v_fmac_f32 v{yPQ + 1}, v{yTA + 1}, v{yQ16}"]
    prev = yPQ
    PA, TD = 112, 64
    for tau in range(16):
        u = yU(tau)
        W += cmac(u, prev, yL, yNL)
        prev = u
        if tau & 1:
            tb, i = divmod(tau, 4)
            for part in range(2):
                W.append(f"v_cvt_pk_bf16_f32 v{PA + 4 * tb + 2 * part + (i >> 1)}, v{yU(tau - 1) + part}, v{u + part}")

    def transpose():
        p(f"s_mul_i32 s{sT2}, s{sCI}, 88\ns_add_u32 s{sT2}, s{sT2}, s{sMX}")
        for tb in range(4):
            for part in range(2):
                p(mfma16(TD + 8 * tb + 4 * part, PA + 4 * tb + 2 * part, ySEL, True))
        p(f"""
        s_lshl_b32 s{sBX}, s{sT2}, 12
        s_add_u32 s{sBX}, s{sBX}, {WS_HID}
        s_mul_i32 s{sT2}, s{sCI}, 12
        s_lshr_b32 s{sT3}, s{sMX}, 3
        s_add_u32 s{sT2}, s{sT2}, s{sT3}
        s_lshl_b32 s{sT2}, s{sT2}, 7
        s_and_b32 s{sMX}, s{sMX}, 7
        s_lshl2_add_u32 s{sMX}, s{sMX}, s{sT2}
        """)
    W.append(transpose)
    W += [""] * 16
    for tb in range(4):
        for k in range(4):
            W.append(f"v_cvt_pk_bf16_f32 v{PA + 4 * tb + k}, v{TD + 8 * tb + 2 * k}, v{TD + 8 * tb + 2 * k + 1}")
        W.append(lambda tb=tb: p.vmem(f"buffer_store_dwordx4 {vr(PA + 4 * tb, 4)}, v{14 + (tb & 1)}, s[{S_WS}:{S_WS + 3}], s{sBX} offen{off(2048 * (tb >> 1))} sc1", "h"))
    W.append(lambda: p.stamp(7))
    return W


def emit(p, x):
    x() if callable(x) else p(x)


def y_pass_m(p):
    o = p.opt
    st = W2Stage(p)
    p(f"""
    v_mov_b32 v{yO2}, v114
    v_add_u32 v{yO2 + 1}, 7168, v114
    v_add_u32 v{yO2 + 2}, 14336, v114
    v_add_u32 v{yO2 + 3}, 21504, v114
    v_mov_b32 v{yOW}, v112
    v_mov_b32 v{yOW + 1}, v113
    """)
    y_units(p)
    cpf = o.get("cpf", 0)
    if cpf:
        half = o.get("part2", 81) != 81
        p(f"""
        s_and_b32 s{sT0}, s{sV}, 1
        s_cmp_eq_u32 s{sT0}, 0
        s_cselect_b32 s{S_X}, s{pCRE}, s{pCIM}
        s_cselect_b32 s{S_X + 1}, s{pCRE + 1}, s{pCIM + 1}
        s_mov_b32 s{S_X + 2}, {512 * 1024}
        s_mov_b32 s{S_X + 3}, 0x00020000
        s_lshl1_add_u32 s{sKX}, s{sJ}, s{sMH}
        s_lshl_b32 s{sKX}, s{sKX}, {12 if half else 13}
        v_lshlrev_b32 v58, 7, v{vL}
        """)
        if half:
            p(f"""
            s_and_b32 s{sT0}, s{sXCD}, 1
            s_lshl_b32 s{sT0}, s{sT0}, 18
            s_add_u32 s{sKX}, s{sKX}, s{sT0}
            v_lshrrev_b32 v59, 5, v{vL}
            v_lshl_or_b32 v58, v59, 30, v58
            s_lshr_b32 s{sT0}, s{sXCD}, 1
            s_add_u32 s1, s{sJ}, s{sT0}
            """)
        else:
            p(f"s_add_u32 s1, s{sJ}, s{sXCD}")
        p(f"s_and_b32 s1, s1, {cpf - 1}")
    budget = [int(x, 16) for x in str(o.get("bud", "87747880")).zfill(8)]
    gi = o.get("gi", 3)
    W = h_work(p)
    nw = -(-len(W) // (o.get("we_", 7) - gi - 1))
    full = {}
    for c in range(8):
        if 1 <= c <= 5:
            for f in w1_dma(p, c + 2, yOW):
                f()
        if c == 1 and o.get("pfy"):
            spf(p, 35, 36, 38)
        if c == 1:
            p(f"""
            v_and_b32 v{yGA}, 15, v{vL}
            v_lshlrev_b32 v{yGA}, 4, v{yGA}
            v_lshrrev_b32 v{yGA + 1}, 4, v{vL}
            v_sub_u32 v{yGA + 1}, s{sCI}, v{yGA + 1}
            v_lshl_add_u32 v{yGA + 1}, v{yGA + 1}, 8, v{yGA}
            v_sub_f32 v{yNL}, 0, v{yL + 1}
            v_sub_f32 v{yNL + 1}, 0, v{yL256 + 1}
            s_and_b32 s{sT0}, s{sV}, 1
            v_lshl_add_u32 v14, s{sT0}, 10, v{vL16}
            v_xor_b32 v15, 1024, v14
            """)
        u = st.read
        if u < 4 and full.get(u, 99) <= c - 2:
            st.read_next(wait=True)
        cp0 = o.get("cp0", 0)
        if cpf and cp0 <= c < cp0 + cpf:
            p(f"""
            s_cmp_eq_u32 s1, {c - cp0}
            s_cselect_b32 s{sT0}, 0, 0x40000000
            v_or_b32 v59, s{sT0}, v58
            """)
            p.vmem(f"buffer_load_dword v{vT0}, v59, s[{S_X}:{S_X + 3}], s{sKX} offen", "cpf")
        if c == gi:
            for f in gather_list(p, True):
                f()
        work = []
        if c > gi:
            work, W = W[:nw], W[nw:]
        nd = budget[c]
        if c == gi + 1:
            st.dma(nd)
            nd = 0
        per = -(-len(work) // (nd + 1))
        first = True
        while work or nd:
            if nd:
                st.dma(1, first)
                first = False
                nd -= 1
            for x in work[:per]:
                emit(p, x)
            work = work[per:]
        for uu in range(st.issued // 8):
            full.setdefault(uu, c)
        if 3 <= c + 1 <= 7:
            p.wait_vm(("w", c + 1))
        if c == 7:
            c_dma_setup(p, 52)
        p("s_barrier")
    p("s_barrier")
    p.stamp(5)
    for x in W:
        emit(p, x)
    return st


def y_h(p, st):
    CV = 52
    hf = p.opt.get("hf", 0)
    if hf == 0:
        p.wait_vm("h")
        flag_store(p, sMX, WS_FLAGS)
    c_dma(p, 0, 0, CV)
    if hf == 1:
        p.wait_vm("h")
        flag_store(p, sMX, WS_FLAGS)
    c_dma(p, 0, 1, CV)
    while st.issued < 56 or st.read < 4:
        if st.can_issue():
            st.dma(8)
        else:
            st.read_next(wait=True)
    p.wait_vm(("C", 0))
    p("s_barrier")
    p.stamp(10)


def y_ph2(p, st):
    o = p.opt
    poll_setup(p, f"s_lshl1_add_u32 s{sT0}, s{sV}, s{sT0}\ns_add_u32 s{sT0}, s{sT0}, 4")
    p(f"s_add_u32 s{sT1}, s{sHID}, {32 * 4096}")
    for i in range(7):
        p(f"s_lshl_b32 s{sUN + i}, s{sUN + i}, 13\ns_add_u32 s{sUN + i}, s{sUN + i}, s{sT1}")
    p.stamp(11)
    poll_issue(p, 0)
    poll_check(p, 0)
    if o.get("dly"):
        if o.get("pfh"):
            delay_until(p, o["dly"] - 3)
            p(f"v_lshlrev_b32 v{vT1}, 7, v{vL}")
            for i in range(7):
                p(f"buffer_load_dword v{vT0}, v{vT1}, s[{S_WS}:{S_WS + 3}], s{sUN + i} offen sc1")
        delay_until(p, o["dly"])
    p.stamp(12)
    items = []

    def b2(step):
        return vB2 + 32 * ((step >> 1) % 4) + 16 * (step & 1)
    ts = o.get("ts", 6)
    for step in range(14 - ts):
        for tb in range(4):
            items.append((sUN + (step >> 1), step & 1, tb, b2(step), step == 0))
    for tb in range(4):
        for step in range(14 - ts, 14):
            items.append((sUN + (step >> 1), step & 1, tb, b2(step), False))
    pre, post, side = {}, {}, {}
    pre[32 - 10] = lambda: poll_issue(p, 128)
    pre[32] = lambda: poll_check(p, 128)
    for u in range(4, 7):
        R = st.reads(u, vB2 + 32 * (u - 4))
        spread(side, R[:8], 8 * (u - 4) + 5, 2)
        spread(side, R[8:], 8 * (u - 4) + 9, 2)
    side.setdefault(31, []).append("s_waitcnt lgkmcnt(0)")
    spread(side, partial_addr(), 32, 3)
    gy = o.get("gy", 28)
    post[gy] = lambda: (p.stamp(14), p("s_barrier"))
    post[37] = lambda: p.stamp(15)
    for tb in range(3):
        def wr(tb=tb):
            p("s_nop 2")
            partial_write(p, tb)
        post[56 - ts * (3 - tb)] = wr
        post[56 - ts * (3 - tb) + 2] = lambda: p("s_waitcnt lgkmcnt(0)\ns_barrier")

    def last():
        p.stamp(13)
        p("s_nop 4")
        partial_write(p, 3)
        p("s_waitcnt lgkmcnt(0)\ns_barrier")
    post[55] = last
    ph2_loop(p, items, pre, post, side, o.get('ramp', 5))
    p(f"""
    s_lshl3_add_u32 s{sT0}, s{sN2}, s{sW}
    s_lshl_b32 s{sT0}, s{sT0}, 5
    s_add_u32 s{sT0}, s{sT0}, s{sM2}
    s_cmp_lg_u32 s{sT0}, 31
    s_cbranch_scc1 L_fin
    s_mov_b64 exec, 1
    buffer_store_dword v{vTAG}, off, s[{S_WS}:{S_WS + 3}], 0 sc1
    s_branch L_fin
    """)


xTR = 8
xAX, xEA, xRL, xEX = 16, 18, 20, 22
xWF, NWF = 32, 6
xONE, xB1, xCS = 28, 26, 56
xOX, xOB, xOW, xSA, xST = 32, 36, 38, 40, 42
xACC, xXF = 64, 128


def x_pass_s(p):
    o = p.opt
    p("L_X:")
    p(f"""
    v_lshrrev_b32 v{vT0}, 4, v{vL}
    v_and_b32 v{vT1}, 7, v{vL}
    v_xor_b32 v{vT1}, v{vT1}, v{vT0}
    v_lshlrev_b32 v{vT1}, 4, v{vT1}
    v_lshrrev_b32 v{vT2}, 3, v{vL}
    v_lshl_add_u32 v{xOB}, v{vT2}, 10, v{vT1}
    v_lshrrev_b32 v{vT2}, 5, v{vL}
    v_mul_u32_u24 v{vT2}, {12 * 1024}, v{vT2}
    v_add_u32 v{xOX}, v{vT2}, v{xOB}
    v_xor_b32 v{xOX + 1}, 64, v{xOX}
    v_xor_b32 v{xOB + 1}, 64, v{xOB}
    v_add_u32 v{xOX + 1}, {31 * 1024}, v{xOX + 1}
    v_add_u32 v{xOB + 1}, 7168, v{xOB + 1}
    v_add_u32 v{xOX + 2}, 2048, v{xOX}
    v_add_u32 v{xOX + 3}, 2048, v{xOX + 1}
    s_and_b32 s{sT1}, s{sV}, 1
    s_lshl1_add_u32 s{sBX}, s{sMT}, s{sMH}
    s_lshl3_add_u32 s{sBX}, s{sBX}, s{sT1}
    s_lshl_b32 s{sBX}, s{sBX}, 13
    s_lshl1_add_u32 s{sBB}, s{sNT}, s{sMH}
    s_lshl_b32 s{sBB}, s{sBB}, 14
    s_lshl_b32 s{sMX}, s{sV}, 12
    s_lshl1_add_u32 s{sMB}, s{sT1}, s{sMH}
    s_lshl_b32 s{sMB}, s{sMB}, 11
    s_cmp_eq_u32 s{sT1}, 0
    s_waitcnt lgkmcnt(0)
    s_cselect_b32 s{S_B}, s{pBRE}, s{pBIM}
    s_cselect_b32 s{S_B + 1}, s{pBRE + 1}, s{pBIM + 1}
    s_mov_b32 s{S_B + 2}, {512 * 1024}
    s_mov_b32 s{S_B + 3}, 0x00020000
    """)
    srd(p, S_X, pX, 2048 * 1024)

    def dma(c):
        slot = c % 3
        p(f"""
        s_add_u32 s{sT0}, s{sC0}, {c}
        s_and_b32 s{sT0}, s{sT0}, 7
        s_lshl_b32 s{sT1}, s{sT0}, 7
        s_add_u32 s{sKX}, s{sBX}, s{sT1}
        s_add_u32 m0, s{sMB}, {BR + slot * 8192}
        s_add_u32 s{sKB}, s{sBB}, s{sT1}
        """)
        for i in range(2):
            p.vmem(f"buffer_load_dwordx4 v{xOB + i}, s[{S_B}:{S_B + 3}], s{sKB} offen{off(1024 * i)} lds", ("c", c))
        p(f"s_add_u32 m0, s{sMX}, {XR + c * 16384}\ns_nop 0")
        for i in range(4):
            p.vmem(f"buffer_load_dwordx4 v{xOX + i}, s[{S_X}:{S_X + 3}], s{sKX} offen{off(1024 * i)} lds", ("c", c))
    dma(0)
    p.stamp(1)
    srd(p, S_WS, pWS, WS_BYTES)
    p.vmem(f"buffer_load_dword v{vTAG}, off, s[{S_WS}:{S_WS + 3}], 0 sc1", "epoch")
    dma(1)
    late_ids(p)
    w1_dma_setup(p, xOW)
    srd(p, S_W, pW1, 512 * 3584)
    p(f"""
    v_and_b32 v{vT0}, 15, v{vL}
    s_lshl1_add_u32 s{sT0}, s{sL0}, s{sV}
    s_lshl_b32 s{sT0}, s{sT0}, 5
    v_add_u32 v{vT2}, s{sT0}, v{vT0}
    v_min_u32 v{vT2}, 1775, v{vT2}
    v_lshlrev_b32 v{vT2}, 1, v{vT2}
    """)
    p.vmem(f"global_load_ushort v{xB1}, v{vT2}, s[{pB1}:{pB1 + 1}]", "par")
    p.vmem(f"global_load_ushort v{xB1 + 1}, v{vT2}, s[{pB1}:{pB1 + 1}] offset:32", "par")
    if o.get("pt", 1):
        p(f"""
        s_mul_i32 s{sT0}, s{sCI}, 6
        s_lshr_b32 s{sT1}, s{sNT}, 2
        s_add_u32 s{sT0}, s{sT0}, s{sT1}
        s_lshl_b32 s{sT0}, s{sT0}, 8
        s_add_u32 s{sT0}, s{sT0}, {WS_FLAGS + 512}
        s_add_u32 s42, s{pWS}, s{sT0}
        s_addc_u32 s43, s{pWS + 1}, 0
        s_load_dword s84, s[42:43], 0
        s_load_dword s84, s[42:43], 128
        """)
    pfx = [int(x, 16) for x in str(o.get("pfx", "x0000000"))[1:]]
    if o.get("pfx"):
        spf_setup(p, True)
    npf = pfx[0]
    spf(p, 0, npf, 82)
    for k in range(4):
        p(f"v_mov_b32 v{xONE + k}, 0x3f803f80")
    rowfrag_addr(p, xAX)
    p(f"""
    s_add_u32 s{sT0}, s{sMX}, {XR}
    v_add_u32 v{xAX}, s{sT0}, v{xAX}
    v_xor_b32 v{xAX + 1}, 64, v{xAX}
    v_and_b32 v{xSA}, 31, v{vL}
    v_lshlrev_b32 v{xSA}, 3, v{xSA}
    s_lshl2_add_u32 s{sUN}, s{sMT}, s{sV}
    s_lshl_b32 s{sUN}, s{sUN}, 8
    s_add_u32 s{sUN}, s{sUN}, {WS_STATS}
    """)
    w1_tr_addr0(p, xTR)
    p(f"s_lshl_b32 s{sT0}, s{sV}, 6\nv_xor_b32 v{xTR}, s{sT0}, v{xTR}")
    for fb in range(1, 8):
        p(f"v_xor_b32 v{xTR + fb}, {32 * fb}, v{xTR}")
    tp = o.get("tp", 0)
    tw1 = o.get("tw1", 0)

    def touch():
        p(f"""
        s_and_b32 s{sT0}, s{sV}, 1
        s_cmp_eq_u32 s{sT0}, 0
        s_cselect_b32 s{S_B}, s{pW1 if tw1 else pW2}, s{pW2}
        s_cselect_b32 s{S_B + 1}, s{(pW1 if tw1 else pW2) + 1}, s{pW2 + 1}
        s_cselect_b32 s{sT2}, s{pCRE}, s{pCIM}
        s_cselect_b32 s{sT3}, s{pCRE + 1}, s{pCIM + 1}
        s_mov_b32 s{S_B + 2}, {512 * 3584}
        s_lshl1_add_u32 s{sT0}, s2, s{sT0}
        s_cmp_lt_u32 s{sV}, 2
        s_cselect_b32 s{S_B}, s{S_B}, s{sT2}
        s_cselect_b32 s{S_B + 1}, s{S_B + 1}, s{sT3}
        s_cselect_b32 s{S_B + 2}, s{S_B + 2}, {512 * 1024}
        s_cselect_b32 s{sT0}, {'s2' if tw1 else 's%d' % sT0}, s2
        s_cselect_b32 s{sT2}, {56 if tw1 else 28}, 16
        s_mul_i32 s{sT1}, s{sT2}, s{sT0}
        v_cmp_gt_u32 vcc, s{sT2}, v{vL}
        v_add_lshl_u32 v44, v{vL}, s{sT1}, 7
        v_mov_b32 v45, 0x40000000
        v_cndmask_b32 v44, v45, v44, vcc
        """)
        p.vmem(f"buffer_load_dword v19, v44, s[{S_B}:{S_B + 3}], 0 offen", "touch")
    ld = f"buffer_load_dwordx2 {vr(xST, 2)}, v{xSA}, s[{S_WS}:{S_WS + 3}], s{sUN} offen sc1"
    for c in range(8):
        p.wait_vm(("c", c))
        if c == 1:
            make_tag(p)
        if c == 7:
            retry(p, "s_cbranch_vccnz", lambda: p(f"v_cmp_ne_u32 vcc, v{xST + 1}, v{vTAG}\ns_nop 4"),
                  lambda: p(f"{ld}\ns_waitcnt vmcnt(0)"))
            p(f"""
            v_and_b32 v{vT0}, s{sMASK}, v{xST}
            v_rcp_f32 v{vT0}, v{vT0}
            v_lshrrev_b32 v{vT1}, 1, v{xSA}
            s_lshl_b32 s{sT0}, s{sV}, 7
            s_add_u32 s{sT0}, s{sT0}, {L_M}
            v_add_u32 v{vT1}, s{sT0}, v{vT1}
            v_lshlrev_b32 v{vT2}, 16, v{xST}
            ds_write_b32 v{vT1}, v{xST} offset:1024
            ds_write_b32 v{vT1}, v{vT0} offset:512
            ds_write_b32 v{vT1}, v{vT2}
            """)
        if c >= 6:
            p("s_waitcnt lgkmcnt(0)")
        p("s_barrier")
        if c == 5:
            p.vmem(ld, "st")
        if c + 2 < 8:
            dma(c + 2)
        if c == 4:
            p(f"v_add_u32 v{xAX}, 65536, v{xAX}\nv_add_u32 v{xAX + 1}, 65536, v{xAX + 1}")
        for s in range(2):
            for t in range(2):
                p(f"ds_read_b128 {vr(xXF + 16 * c + 8 * s + 4 * t, 4)}, v{xAX + s} offset:{(c & 3) * 16384 + t * 2048}")
        if c >= 6:
            for cc in ([0] if c == 6 else [1, 2]):
                for f in w1_dma(p, cc, xOW):
                    f()
                if (tp, cc) in ((2, 0), (3, 2)):
                    touch()
        if c == 5 and tp == 1:
            touch()
        if c < 5:
            spf(p, npf, npf + pfx[1 + c], 82)
            npf += pfx[1 + c]
    p.stamp(3)
    p(f"""
    v_bfe_u32 v{vT0}, v{vL}, 2, 2
    v_and_b32 v{vT1}, 3, v{vL}
    v_lshl_add_u32 v{vT0}, v{vT0}, 4, v{vT1}
    s_and_b32 s{sT1}, s{sV}, 1
    s_lshl3_add_u32 s{sT0}, s{sMH}, s{sT1}
    s_lshl_b32 s{sT0}, s{sT0}, 5
    s_add_u32 s{sT0}, s{sT0}, {L_M}
    v_lshl_add_u32 v{vT0}, v{vT0}, 2, s{sT0}
    ds_read_b32 v{xEX + 1}, v{vT0} offset:1024
    ds_read_b32 v{xEX + 3}, v{vT0} offset:{1024 + 16}
    ds_read_b32 v{xRL}, v{vT0} offset:512
    ds_read_b32 v{xRL + 1}, v{vT0} offset:{512 + 16}
    v_and_b32 v{xEA}, 15, v{vL}
    v_lshlrev_b32 v{xEA}, 3, v{xEA}
    s_lshl_b32 s{sT0}, s{sV}, 8
    s_add_u32 s{sT0}, s{sT0}, {L_EXT}
    v_add_u32 v{xEA}, s{sT0}, v{xEA}
    v_cmp_gt_u32 vcc, 16, v{vL}
    s_mov_b32 s{sT2}, 0x01000100
    s_waitcnt lgkmcnt(0)
    """)
    spf(p, npf, npf + pfx[6], 82)
    for t in range(2):
        e = xEX + 2 * t
        p(f"""
        v_perm_b32 v{e}, v{e + 1}, v{e + 1}, s{sT2}
        v_xor_b32 v{e}, 0x80008000, v{e}
        v_lshrrev_b32 v{e + 1}, 16, v{e + 1}
        v_cndmask_b32 v{e}, 0, v{e}, vcc
        v_cndmask_b32 v{e + 1}, 0, v{e + 1}, vcc
        v_mul_f32 v{xRL + t}, {LOG2E}, v{xRL + t}
        """)
    p.wait_vm(("w", 0))
    p("s_waitcnt lgkmcnt(0)\ns_barrier")
    p.stamp(4)


def x_pass_m(p):
    PD = 4
    WE = p.opt.get("we", 1)

    def reads(n):
        if n >= 128:
            return []
        c, s, fb = n >> 4, (n >> 3) & 1, n & 7
        slot = (2 * c + s) % 7
        return [f"ds_read_b64_tr_b16 {vr(xWF + 4 * (n % NWF) + 2 * e, 2)}, v{xTR + fb} offset:{8192 * slot + 1024 * e}" for e in range(2)]
    nissued = 0
    for n in range(PD):
        for x in reads(n):
            p(x)
            nissued += 1
    for n in range(128):
        c, s, fb = n >> 4, (n >> 3) & 1, n & 7
        if n % WE == 0 and n < 126:
            p(f"s_waitcnt lgkmcnt({nissued - 2 * (n + WE)})")
        R = reads(n + PD)
        bar = (n & 15) == 16 - PD and c < 7
        w = xWF + 4 * (n % NWF)
        if n == 126:
            p("s_waitcnt lgkmcnt(0)")
        for t in range(2):
            p(mfma(xACC + 8 * fb + 4 * t, w, xXF + 16 * c + 8 * s + 4 * t, n < 8))
            if bar and t == 0:
                if c < 2:
                    p.wait_vm(("w", c + 1))
                p("s_barrier")
            if n == 126 and t == 0:
                p("s_barrier")
            if n >= 126:
                k = 2 * (n - 126) + t
                for i in range(2):
                    p(f"ds_read_b64 {vr(xXF + 2 * (2 * k + i), 2)}, v{xTR + k} offset:{128 * i}")
            if R:
                p(R[t])
                nissued += 1
        if fb < 2:
            p(mfma(xCS + 4 * fb, xONE, w, n < 8))
        if n in (123, 124):
            k = n - 123
            a = xCS + 4 * k
            p(f"""
            v_and_b32 v{a + 1}, s{sMASK}, v{a}
            v_sub_f32 v{a}, v{a}, v{a + 1}
            v_cvt_pk_bf16_f32 v{a}, v{a + 1}, v{a}
            v_mov_b32 v{a + 1}, v{xB1 + k}
            ds_write_b64 v{xEA}, {vr(a, 2)} offset:{128 * k}
            """)
            nissued += 1
        if n == 125:
            p(f"v_mov_b32 v{xTR}, v{xEA}")
            for k in range(1, 4):
                p(f"v_xor_b32 v{xTR + k}, {256 * k}, v{xEA}")
    p("s_waitcnt lgkmcnt(0)\ns_barrier")
    for fb in range(8):
        for t in range(2):
            p(mfma16(xACC + 8 * fb + 4 * t, xXF + 2 * fb, xEX + 2 * t))
    p.stamp(5)


def mish4(p, a, t, pk, tmp):
    sel = "op_sel_hi:[1,0]" if t == 0 else "op_sel:[0,1] op_sel_hi:[1,1]"
    e, u = tmp, tmp + 4
    p(f"""
    v_pk_mul_f32 {vr(a, 2)}, {vr(a, 2)}, {vr(xRL, 2)} {sel}
    v_pk_mul_f32 {vr(a + 2, 2)}, {vr(a + 2, 2)}, {vr(xRL, 2)} {sel}
    v_exp_f32 v{e}, v{a}
    v_exp_f32 v{e + 1}, v{a + 1}
    v_exp_f32 v{e + 2}, v{a + 2}
    v_exp_f32 v{e + 3}, v{a + 3}
    v_pk_fma_f32 {vr(u, 2)}, {vr(e, 2)}, 0.5, 1.0 op_sel_hi:[1,0,0]
    v_pk_fma_f32 {vr(u + 2, 2)}, {vr(e + 2, 2)}, 0.5, 1.0 op_sel_hi:[1,0,0]
    v_pk_fma_f32 {vr(u, 2)}, {vr(e, 2)}, {vr(u, 2)}, 1.0 op_sel_hi:[1,1,0]
    v_pk_fma_f32 {vr(u + 2, 2)}, {vr(e + 2, 2)}, {vr(u + 2, 2)}, 1.0 op_sel_hi:[1,1,0]
    v_rcp_f32 v{u}, v{u}
    v_rcp_f32 v{u + 1}, v{u + 1}
    v_rcp_f32 v{u + 2}, v{u + 2}
    v_rcp_f32 v{u + 3}, v{u + 3}
    v_pk_fma_f32 {vr(a, 2)}, {vr(a, 2)}, {vr(u, 2)}, {vr(a, 2)} neg_lo:[1,0,0] neg_hi:[1,0,0]
    v_pk_fma_f32 {vr(a + 2, 2)}, {vr(a + 2, 2)}, {vr(u + 2, 2)}, {vr(a + 2, 2)} neg_lo:[1,0,0] neg_hi:[1,0,0]
    v_cvt_pk_bf16_f32 v{pk}, v{a}, v{a + 1}
    v_cvt_pk_bf16_f32 v{pk + 1}, v{a + 2}, v{a + 3}
    """)


def x_epilogue(p):
    PK, TMP, VO = 192, 144, 152
    p(f"""
    s_mul_i32 s{sT0}, s{sCI}, 44
    s_add_u32 s{sT0}, s{sT0}, s{sL0}
    s_add_u32 s{sT0}, s{sT0}, s{sMH}
    s_add_u32 s{sT0}, s{sT0}, 16
    s_and_b32 s{sT1}, s{sV}, 1
    s_lshl2_add_u32 s{sBX}, s{sT0}, s{sT1}
    s_lshl_b32 s{sBX}, s{sBX}, 11
    s_add_u32 s{sBX}, s{sBX}, {WS_HID}
    s_mul_i32 s{sT2}, s{sT1}, 5120
    v_add_u32 v{VO}, s{sT2}, v{vL16}
    v_xor_b32 v{VO + 1}, 1024, v{VO}
    v_xor_b32 v{VO + 2}, 5120, v{VO}
    v_xor_b32 v{VO + 3}, 4096, v{VO}
    s_mul_i32 s{sT2}, s{sCI}, 6
    s_lshr_b32 s{sT3}, s{sNT}, 2
    s_add_u32 s{sT2}, s{sT2}, s{sT3}
    s_add_u32 s{sT2}, s{sT2}, 2
    s_lshl_b32 s{sT2}, s{sT2}, 8
    s_and_b32 s{sT3}, s{sNT}, 3
    s_lshl1_add_u32 s{sKW}, s{sT3}, s{sMH}
    s_lshl1_add_u32 s{sT3}, s{sT3}, s{sT1}
    s_lshl2_add_u32 s{sBB}, s{sT3}, s{sT2}
    """)
    if p.opt.get("xprio"):
        p(f"s_setprio {p.opt['xprio']}")
    for u in range(2):
        skip, join = p.label("skip"), p.label("join")
        p(f"s_cmp_eq_u32 s{sKW}, {7 - u}\ns_cbranch_scc1 {skip}")
        for s in range(2):
            for t in range(2):
                pk = PK + 4 * (4 * u + 2 * s + t)
                for e in range(2):
                    mish4(p, xACC + 8 * (4 * u + 2 * s + e) + 4 * t, t, pk + 2 * e, TMP)
                p.vmem(f"buffer_store_dwordx4 {vr(pk, 4)}, v{VO + 2 * s + t}, s[{S_WS}:{S_WS + 3}], s{sBX} offen sc1", ("act", u))
        p(f"{join}:")
        p.ool += [f"{skip}:", f"    s_branch {join}"]
        if u == 0:
            p(f"s_lshl_b32 s{sT0}, s{sMH}, 14\ns_add_u32 s{sBX}, s{sBX}, 8192\ns_sub_u32 s{sBX}, s{sBX}, s{sT0}")
    lt, hv = p.label("light"), p.label("heavy")
    p(f"s_cmp_ge_u32 s{sKW}, 6\ns_cbranch_scc1 {lt}\n{hv}:")
    p.ool += [f"{lt}:", "    s_waitcnt vmcnt(0)", f"    s_branch {hv}"]
    p.stamp(6)
    fa = p.opt.get("fa", 0)

    def flag(u):
        p.wait_vm(("act", u))
        flag_store(p, sBB, WS_FLAGS + 128 * u)
        if u == 1:
            p.stamp(7)
    poll_setup(p, f"s_add_u32 s{sT0}, s{sT0}, s{sV}")
    poll_issue(p, 0)
    if fa == 0:
        flag(0)
    RA = 60
    p(f"""
    v_and_b32 v{vT0}, 15, v{vL}
    v_bfe_u32 v{vT1}, v{vL}, 1, 3
    v_lshrrev_b32 v{vT2}, 5, v{vL}
    v_xor_b32 v{vT1}, v{vT1}, v{vT2}
    v_lshlrev_b32 v{vT1}, 4, v{vT1}
    v_lshl_add_u32 v{vT0}, v{vT0}, 7, v{vT1}
    v_bfe_u32 v{vT1}, v{vL}, 4, 1
    v_lshl_add_u32 v{vT0}, v{vT1}, 3, v{vT0}
    s_lshl_b32 s{sBUF}, s{sV}, 14
    v_add_u32 v{RA}, s{sBUF}, v{vT0}
    v_xor_b32 v{RA + 1}, 32, v{RA}
    v_xor_b32 v{RA + 2}, 64, v{RA}
    v_xor_b32 v{RA + 3}, 96, v{RA}
    """)
    CV = 64
    c_dma_setup(p, CV)
    p("s_barrier")
    p.stamp(10)

    def c_reads(pair):
        L = []
        for j in range(4):
            for db in range(4):
                for part in range(2):
                    L.append(f"ds_read_b64 {vr(vB2 + 64 * pair + 16 * j + 4 * db + 2 * part, 2)}, v{RA + j} offset:{8192 * part + 2048 * db}")
        return L
    for x in c_reads(0):
        p(x)
    p("s_waitcnt lgkmcnt(0)")
    if fa == 1:
        flag(0)
    c_dma(p, 1, 0, CV)
    if fa == 2:
        flag(0)
    c_dma(p, 1, 1, CV)
    if fa == 3:
        flag(0)
    for pair in range(2):
        p(f"""
        s_xor_b32 s{sT0}, s{sG0}, {pair}
        s_lshl1_add_u32 s{sT0}, s{sV}, s{sT0}
        s_lshl_b32 s{sT0}, s{sT0}, 14
        s_add_u32 s{sUN + 2 * pair}, s{sT0}, s{sHID}
        s_add_u32 s{sUN + 2 * pair + 1}, s{sUN + 2 * pair}, 8192
        """)
    p.stamp(11)
    poll_check(p, 0)
    if p.opt.get("dlx"):
        flag(1)
        if p.opt.get("pfh"):
            delay_until(p, p.opt["dlx"] - 3)
            p(f"v_lshlrev_b32 v{vT1}, 7, v{vL}")
            for i in range(4):
                p(f"buffer_load_dword v{vT0}, v{vT1}, s[{S_WS}:{S_WS + 3}], s{sUN + i} offen sc1")
        delay_until(p, p.opt["dlx"])
    p.stamp(12)
    items = []
    for step in range(8):
        for tb in range(4):
            items.append((sUN + (step >> 1), step & 1, tb, vB2 + 16 * step, step == 0))
    side = {}
    spread(side, c_reads(1), 0, 3)
    side.setdefault(14, []).append("s_waitcnt lgkmcnt(0)")
    spread(side, partial_addr(), 16, 3)
    ph2_loop(p, items, {}, {}, side, p.opt.get('xramp', 10), (lambda: None) if p.opt.get('dlx') else (lambda: flag(1)))
    p.stamp(13)
    x_final_loads(p)
    for tb in range(4):
        partial_write(p, tb)


fX, fS, fD, fA = 128, 136, 140, 142


def x_final_loads(p):
    srd(p, S_X, pX, 2048 * 1024)
    srd(p, S_W, pOUT, 2048 * 2048)
    p(f"""
    s_lshl2_add_u32 s{sT0}, s{sM2}, s{sV}
    s_lshl_b32 s{sKX}, s{sT0}, 14
    s_lshl_b32 s{sT1}, s{sN2}, 7
    s_add_u32 s{sKX}, s{sKX}, s{sT1}
    s_lshl_b32 s{sT0}, s{sT0}, 7
    s_add_u32 s{sT0}, s{sT0}, {WS_STATS}
    v_lshrrev_b32 v{fA}, 4, v{vL}
    v_and_b32 v{fA + 1}, 15, v{vL}
    v_lshlrev_b32 v{fA + 2}, 3, v{fA + 1}
    v_lshl_add_u32 v{fA + 3}, v{fA}, 10, v{fA + 2}
    v_lshlrev_b32 v{fA + 4}, 3, v{fA}
    v_add_u32 v{fA + 2}, s{sT1}, v{fA + 2}
    s_mov_b32 s{sKB}, s{sKX}
    """)
    for tb in range(4):
        p.vmem(f"buffer_load_dwordx2 {vr(fX + 2 * tb, 2)}, v{fA + 3}, s[{S_X}:{S_X + 3}], s{sKB} offen", "fin")
        p.vmem(f"buffer_load_dword v{fS + tb}, v{fA + 4}, s[{S_WS}:{S_WS + 3}], s{sT0} offen{off(32 * tb)} sc1", "fin")
        if tb < 3:
            p(f"s_add_u32 s{sKB}, s{sKB}, 4096")
    p.vmem(f"global_load_dwordx2 {vr(fD, 2)}, v{fA + 2}, s[{pD}:{pD + 1}]", "fin")


def x_final(p):
    XF, SS, DD = 160, 176, 148
    RY, RF = fA + 4, fA + 5
    p.wait_vm("fin")
    p(f"""
    s_lshl_b32 s{sT0}, s{sV}, 2
    v_add_u32 v{RF}, s{sT0}, v{fA}
    v_xor_b32 v{RF}, v{RF}, v{fA + 1}
    v_lshlrev_b32 v{RF}, 4, v{RF}
    v_lshl_add_u32 v{RF}, v{fA + 1}, 8, v{RF}
    v_mov_b32 v{RY}, v{RF}
    v_add_u32 v{fA + 2}, {PKR + 2 * 24576}, v{RF}
    v_add_u32 v{RF}, {PKR}, v{RF}
    v_lshlrev_b32 v{fA + 3}, 1, v{fA + 3}
    s_lshl_b32 s{sKX}, s{sKX}, 1
    s_mov_b32 s{sT2}, {LN2}
    v_lshlrev_b32 v{DD}, 16, v{fD}
    v_and_b32 v{DD + 1}, s{sMASK}, v{fD}
    v_lshlrev_b32 v{DD + 2}, 16, v{fD + 1}
    v_and_b32 v{DD + 3}, s{sMASK}, v{fD + 1}
    """)
    for tb in range(4):
        x, s = XF + 4 * tb, SS + 4 * tb
        p(f"""
        v_and_b32 v153, s{sMASK}, v{fS + tb}
        v_rcp_f32 v153, v153
        v_lshlrev_b32 v152, 16, v{fS + tb}
        v_lshlrev_b32 v{x}, 16, v{fX + 2 * tb}
        v_and_b32 v{x + 1}, s{sMASK}, v{fX + 2 * tb}
        v_lshlrev_b32 v{x + 2}, 16, v{fX + 2 * tb + 1}
        v_and_b32 v{x + 3}, s{sMASK}, v{fX + 2 * tb + 1}
        """)
        for k in range(4):
            p(f"v_sub_f32 v{s + k}, v{x + k}, v152")
        for k in range(4):
            p(f"v_mul_f32 v{s + k}, v153, v{s + k}")
    p("s_waitcnt lgkmcnt(0)\ns_barrier")
    p.stamp(14)
    Y = 64
    for tb in range(4):
        for w in range(4):
            p(f"ds_read_b128 {vr(Y + 16 * tb + 4 * w, 4)}, v{RY} offset:{16384 * w + 4096 * tb}")
    for tb in range(4):
        p(f"s_waitcnt lgkmcnt({12 - 4 * tb})")
        y, s = Y + 16 * tb, SS + 4 * tb
        for k in range(4):
            p(f"v_fma_f32 v{s + k}, v{s + k}, v{DD + k}, v{y + k}")
            p(f"v_add_f32 v{y + 4 + k}, v{y + 4 + k}, v{y + 8 + k}")
        for k in range(4):
            p(f"v_add_f32 v{s + k}, v{s + k}, v{y + 12 + k}")
        for k in range(4):
            p(f"v_add_f32 v{s + k}, v{s + k}, v{y + 4 + k}")
        for k in range(4):
            p(f"v_mul_f32 v{s + k}, s{sT2}, v{s + k}")
    for tb in range(4):
        F = Y + 16 * tb
        x, s = XF + 4 * tb, SS + 4 * tb
        p("s_barrier")
        if tb == 3:
            p.stamp(15)
        for w in range(4):
            a, o_ = (RF, 24576 * w) if w < 2 else (fA + 2, 24576 * (w - 2))
            p(f"ds_read_b128 {vr(F + 4 * w, 4)}, v{a} offset:{o_ + 4096 * tb}")
        e = F + 4
        if tb < 3:
            p("s_waitcnt lgkmcnt(2)")
            for k in range(4):
                p(f"v_add_f32 v{F + k}, v{F + k}, v{F + 4 + k}")
            p("s_waitcnt lgkmcnt(0)")
            for k in range(4):
                p(f"v_add_f32 v{F + 8 + k}, v{F + 8 + k}, v{F + 12 + k}")
            for k in range(4):
                p(f"v_add_f32 v{F + k}, v{F + k}, v{F + 8 + k}")
            for k in range(4):
                p(f"v_exp_f32_e64 v{e + k}, -v{F + k}")
            for k in range(4):
                p(f"v_mul_f32 v{s + k}, v{s + k}, v{F + k}")
            for k in range(4):
                p(f"v_add_f32 v{e + k}, 1.0, v{e + k}")
            for k in range(4):
                p(f"v_rcp_f32 v{e + k}, v{e + k}")
            p("s_nop 0")
            for k in range(4):
                p(f"v_fmac_f32 v{x + k}, v{s + k}, v{e + k}")
        else:
            p("s_waitcnt lgkmcnt(2)")
            for h in (0, 2):
                p(f"v_pk_add_f32 {vr(F + h, 2)}, {vr(F + h, 2)}, {vr(F + 4 + h, 2)}")
            p("s_waitcnt lgkmcnt(0)")
            for h in (0, 2):
                p(f"v_pk_add_f32 {vr(F + 8 + h, 2)}, {vr(F + 8 + h, 2)}, {vr(F + 12 + h, 2)}")
            for h in (0, 2):
                p(f"v_pk_add_f32 {vr(F + h, 2)}, {vr(F + h, 2)}, {vr(F + 8 + h, 2)}")
            for k in range(4):
                p(f"v_exp_f32_e64 v{e + k}, -v{F + k}")
            for h in (0, 2):
                p(f"v_pk_mul_f32 {vr(s + h, 2)}, {vr(s + h, 2)}, {vr(F + h, 2)}")
            for h in (0, 2):
                p(f"v_pk_add_f32 {vr(e + h, 2)}, {vr(e + h, 2)}, 1.0 op_sel_hi:[1,0]")
            for k in range(4):
                p(f"v_rcp_f32 v{e + k}, v{e + k}")
            for h in (0, 2):
                p(f"v_pk_fma_f32 {vr(x + h, 2)}, {vr(s + h, 2)}, {vr(e + h, 2)}, {vr(x + h, 2)}")
        p(f"buffer_store_dwordx4 {vr(x, 4)}, v{fA + 3}, s[{S_W}:{S_W + 3}], s{sKX} offen sc1")
        if tb < 3:
            p(f"s_add_u32 s{sKX}, s{sKX}, 8192")


def finish(p):
    p("L_fin:")
    if p.opt.get("stamps"):
        p.stamp(8)
        p("s_waitcnt vmcnt(0)")
        p.stamp(9)
        if "probe" in p.opt:
            p(f"""
            s_lshl_b32 s{sT0}, 1, s{sW}
            s_and_b32 s{sT0}, s{sT0}, {p.opt.get('pw', 255)}
            s_cmp_eq_u32 s{sT0}, 0
            s_cbranch_scc1 L_end
            s_add_u32 s{sT0}, s{STAMP_REGS[p.opt['probe']]}, 5000
            L_probe:
            s_memrealtime s[34:35]
            s_waitcnt lgkmcnt(0)
            s_sub_u32 s{sT1}, s34, s{sT0}
            s_cmp_lt_i32 s{sT1}, 0
            s_cbranch_scc1 L_probe
            s_branch L_end
            """)
        p(f"""
        s_mov_b64 exec, 1
        s_lshl3_add_u32 s{sT0}, s2, s{sW}
        s_lshl_b32 s{sT0}, s{sT0}, 6
        s_add_u32 s{sT0}, s{sT0}, {WS_STAMP}
        """)
        for i in range(16):
            p(f"v_mov_b32 v8, s{STAMP_REGS[i]}\nbuffer_store_dword v8, off, s[{S_WS}:{S_WS + 3}], s{sT0} offset:{4 * i}")
    p("s_endpgm")
    p.l += p.ool
    p("L_end:\ns_endpgm")


def build(opt):
    p = P(opt)
    entry(p)
    st0 = p.save()
    y_prologue(p)
    y_m_setup(p)
    y_pass_s(p)
    y_window(p)
    st = y_pass_m(p)
    y_h(p, st)
    y_ph2(p, st)
    p.restore(st0)
    x_pass_s(p)
    x_pass_m(p)
    x_epilogue(p)
    x_final(p)
    finish(p)
    t = HEAD + f"; @launch grid=(256,1,1) block=(512,1,1) lds={LDS_BYTES}\n" + '.amdgcn_target "amdgcn-amd-amdhsa--gfx950"\n'
    t += kernel_text(KN + "_kernel", p.text(), vgpr=256, sgpr=102, accum=256)
    return t


if __name__ == "__main__":
    out = sys.argv[1]
    opt = {}
    for a in sys.argv[2:]:
        k, v = a.split("=")
        opt[k] = int(v) if v.lstrip("-").isdigit() else v
    open(out, "w").write(build(opt))
```

```python
import sys
from gen import HEAD, KN, kernel_text

WS_STATS = 4096
WS_CARRY = 64 << 10
WS_FLAGS = 1 << 20
WS_HID = 2 << 20
WS_STAMP = 200 << 20
WS_BYTES = 0x10000000
MISC, XR, BR, WR, CR, PKR = 0, 8192, 139264, 8192, 0, 65536
L_M, L_R, L_MS, L_EXT, L_S = MISC, MISC + 512, MISC + 1024, MISC + 2048, MISC + 3072
LDS_BYTES = 163840
LOG2E = 0x3fb8aa3b
LN2 = 0x3f317218

S_X, S_B, S_W, S_WS = 4, 8, 12, 16
sT0, sT1, sT2, sT3 = 20, 21, 22, 23
sW, sXCD, sJ, sMT, sNT, sL0, sC0, sM2, sN2, sV = 24, 25, 26, 27, 28, 29, 30, 31, 32, 33
pX, pLRE, pLIM, pBRE, pBIM, pCRE, pCIM, pDT, pD, pW1, pB1, pW2, pOUT, pWS = 36, 38, 40, 42, 44, 46, 48, 50, 52, 56, 58, 60, 62, 66
sKX, sKB, sKW, sBX, sBB, sBW, sMX, sMB, sMASK, sSPIN = 68, 69, 70, 71, 72, 73, 74, 75, 76, 77
sUN = 78
sBUF, sHID, sFLG, sCI, sMH, sMW, sG0 = 85, 86, 87, 88, 89, 90, 91
STAMP_REGS = list(range(92, 102)) + [3, 54, 55, 64, 65, 0]
SPIN_MAX = 400000
NAMES_Y = ["-", "stpub", "G0", "Send", "G8", "G17", "gath", "hst", "-", "end", "GC", "staged", "flA", "lastmf", "gy", "i37"]
NAMES_X = ["-", "dma0", "c0", "w1iss", "G8", "Mend", "mish", "flBsent", "fin", "end", "-", "C1iss", "flh", "ydone", "Gy", "T3"]
ORD = [0, 1, 2, 3, 4, 5, 6, 7, 10, 11, 12, 14, 15, 13, 8, 9]


class P:
    def __init__(self, opt):
        self.l = []
        self.vm = []
        self.done = -1
        self.opt = opt
        self.nlab = 0
        self.ool = []
        self.fs = opt.get("fs", 128)

    def __call__(self, s):
        for x in s.strip("\n").split("\n"):
            x = x.strip()
            if not x:
                continue
            self.l.append(x if x.endswith(":") else "    " + x)

    def vmem(self, s, tag=None):
        self(s)
        self.vm.append(tag)

    def last(self, tag):
        return max(i for i, t in enumerate(self.vm) if t == tag)

    def wait_vm(self, tag):
        idx = self.last(tag)
        if idx <= self.done:
            return
        n = len(self.vm) - 1 - idx
        assert n <= 63, n
        self(f"s_waitcnt vmcnt({n})")
        self.done = idx

    def save(self):
        return (list(self.vm), self.done)

    def restore(self, st):
        self.vm, self.done = list(st[0]), st[1]

    def label(self, base):
        self.nlab += 1
        return f"L_{base}_{self.nlab}"

    def stamp(self, i, group=0):
        if self.opt.get("stamps") and self.opt.get("sg", 0) == group:
            op = "s_memtime" if self.opt["stamps"] == 2 else "s_memrealtime"
            self(f"{op} s[34:35]\ns_waitcnt lgkmcnt(0)\ns_mov_b32 s{STAMP_REGS[i]}, s34")

    def text(self):
        return "\n".join(self.l) + "\n"


def vr(a, n=1):
    return f"v{a}" if n == 1 else f"v[{a}:{a + n - 1}]"


def off(o):
    return f" offset:{o}" if o else ""


def srd(p, d, ptr, nbytes):
    p(f"""
    s_mov_b32 s{d}, s{ptr}
    s_mov_b32 s{d + 1}, s{ptr + 1}
    s_mov_b32 s{d + 2}, {nbytes}
    s_mov_b32 s{d + 3}, 0x00020000
    """)


def mfma(d, a, b, first=False):
    return f"v_mfma_f32_16x16x32_bf16 {vr(d, 4)}, {vr(a, 4)}, {vr(b, 4)}, {'0' if first else vr(d, 4)}"


def mfma16(d, a, b, first=False):
    return f"v_mfma_f32_16x16x16_bf16 {vr(d, 4)}, {vr(a, 2)}, {vr(b, 2)}, {'0' if first else vr(d, 4)}"


vL, vTAG, vT0, vT1, vT2, vT3, vL16, vL16B = 0, 1, 2, 3, 4, 5, 6, 7


def rowfrag_addr(p, dst):
    p(f"""
    v_and_b32 v{vT0}, 15, v{vL}
    v_bfe_u32 v{vT1}, v{vL}, 1, 3
    v_lshrrev_b32 v{vT2}, 4, v{vL}
    v_xor_b32 v{vT1}, v{vT1}, v{vT2}
    v_lshlrev_b32 v{vT1}, 4, v{vT1}
    v_lshl_add_u32 v{dst}, v{vT0}, 7, v{vT1}
    """)


def w1_tr_addr0(p, dst):
    p(f"""
    v_lshrrev_b32 v{vT0}, 4, v{vL}
    v_bfe_u32 v{vT1}, v{vL}, 2, 2
    v_lshl_add_u32 v{vT2}, v{vT0}, 3, v{vT1}
    v_lshlrev_b32 v{vT2}, 8, v{vT2}
    v_lshl_add_u32 v{vT2}, v{vT1}, 6, v{vT2}
    v_and_b32 v{vT0}, 1, v{vT0}
    v_lshl_add_u32 v{vT2}, v{vT0}, 5, v{vT2}
    v_and_b32 v{vT1}, 3, v{vL}
    v_lshl_add_u32 v{vT2}, v{vT1}, 3, v{vT2}
    v_add_u32 v{dst}, {WR}, v{vT2}
    """)


def w1_dma_setup(p, vow):
    p(f"""
    v_lshrrev_b32 v{vT0}, 4, v{vL}
    v_bfe_u32 v{vT1}, v{vL}, 1, 3
    s_and_b32 s{sT0}, s{sV}, 1
    v_lshl_or_b32 v{vT2}, v{vT0}, 1, s{sT0}
    v_xor_b32 v{vT1}, v{vT1}, v{vT2}
    v_mul_u32_u24 v{vow}, 3584, v{vT0}
    v_lshl_add_u32 v{vow}, v{vT1}, 5, v{vow}
    v_and_b32 v{vT2}, 1, v{vL}
    v_lshl_add_u32 v{vow}, v{vT2}, 4, v{vow}
    s_and_b32 s{sT1}, s{sNT}, 3
    s_cmp_eq_u32 s{sT1}, 3
    s_cselect_b32 s{sT1}, 0x40000000, 0
    v_lshrrev_b32 v{vT1}, 2, v{vT1}
    v_mul_lo_u32 v{vT1}, v{vT1}, s{sT1}
    v_add_u32 v{vow}, v{vow}, v{vT1}
    v_add_u32 v{vow + 1}, 13312, v{vow}
    s_lshl_b32 s{sBW}, s{sL0}, 7
    s_mul_i32 s{sT2}, s{sV}, {8 * 3584}
    s_add_u32 s{sBW}, s{sBW}, s{sT2}
    s_lshl_b32 s{sMW}, s{sV}, 11
    """)


def w1_dma(p, c, vow):
    L = []
    for s in range(2):
        slot = (2 * c + s) % 7

        def a(s=s, slot=slot):
            if s == 0:
                p(f"""
                s_add_u32 s{sT0}, s{sC0}, {c}
                s_and_b32 s{sT0}, s{sT0}, 7
                s_mul_i32 s{sT0}, s{sT0}, {64 * 3584}
                s_add_u32 m0, s{sMW}, {WR + slot * 8192}
                s_add_u32 s{sKW}, s{sBW}, s{sT0}
                """)
            else:
                p(f"s_add_u32 m0, s{sMW}, {WR + slot * 8192}\ns_add_u32 s{sKW}, s{sKW}, {32 * 3584}")
            p.vmem(f"buffer_load_dwordx4 v{vow}, s[{S_W}:{S_W + 3}], s{sKW} offen lds", ("w", c))
        L.append(a)
        L.append(lambda: p.vmem(f"buffer_load_dwordx4 v{vow + 1}, s[{S_W}:{S_W + 3}], s{sKW} offen offset:1024 lds", ("w", c)))
    return L


def c_dma_setup(p, vo):
    p(f"""
    v_lshrrev_b32 v{vT0}, 4, v{vL}
    v_and_b32 v{vT1}, 7, v{vL}
    v_xor_b32 v{vT0}, v{vT0}, v{vT1}
    v_lshlrev_b32 v{vT0}, 4, v{vT0}
    v_lshrrev_b32 v{vT1}, 3, v{vL}
    v_lshl_add_u32 v{vo}, v{vT1}, 10, v{vT0}
    v_xor_b32 v{vo + 1}, 64, v{vo}
    v_add_u32 v{vo + 1}, 7168, v{vo + 1}
    v_add_u32 v{vo + 2}, 14336, v{vo}
    v_add_u32 v{vo + 3}, 14336, v{vo + 1}
    """)


def c_dma(p, pair, part, vo, thr=0):
    ptr = pCIM if part else pCRE
    srd(p, S_X, ptr, 512 * 1024)
    p(f"""
    s_xor_b32 s{sT0}, s{sG0}, {pair}
    s_lshl1_add_u32 s{sT0}, s{sV}, s{sT0}
    s_lshl_b32 s{sT0}, s{sT0}, 7
    s_lshl_b32 s{sT1}, s{sN2}, 16
    s_add_u32 s{sKX}, s{sT0}, s{sT1}
    s_lshl_b32 s{sT1}, s{sV}, 14
    """)
    for h in range(2):
        p(f"s_add_u32 m0, s{sT1}, {CR + 8192 * part + 4096 * h}")
        p(f"s_add_u32 s{sKX}, s{sKX}, {32768 * h}")
        for k in range(4):
            p.vmem(f"buffer_load_dwordx4 v{vo + k}, s[{S_X}:{S_X + 3}], s{sKX} offen{off(1024 * k)} lds", ("C", pair))
            if thr:
                p(f"s_waitcnt vmcnt({thr})")


def make_tag(p):
    p(f"""
    s_mov_b32 s{sT0}, 0x9E3779B1
    v_mul_lo_u32 v{vTAG}, v{vTAG}, s{sT0}
    v_add_u32 v{vTAG}, 0x7F4A7C15, v{vTAG}
    """)


def retry(p, cond, test, reload):
    chk, ok, rt = p.label("chk"), p.label("ok"), p.label("retry")
    p(f"{chk}:")
    test()
    p(f"{cond} {rt}\n{ok}:")
    main, p.l = p.l, []
    p(f"""
    {rt}:
    s_sub_u32 s{sSPIN}, s{sSPIN}, 1
    s_cmp_gt_i32 s{sSPIN}, 0
    s_cbranch_scc0 {ok}
    """)
    reload()
    p(f"s_branch {chk}")
    p.ool += p.l
    p.l = main


sPF = 8


def poll_setup(p, grp_expr):
    p(f"""
    s_mul_i32 s{sT0}, s{sM2}, 12
    {grp_expr}
    s_lshl_b32 s{sT0}, s{sT0}, 7
    s_add_u32 s{sT0}, s{sT0}, {WS_FLAGS}
    s_add_u32 s42, s{pWS}, s{sT0}
    s_addc_u32 s43, s{pWS + 1}, 0
    v_readfirstlane_b32 s40, v{vTAG}
    v_readfirstlane_b32 s41, v{vTAG}
    """)


def poll_issue(p, o_):
    p(f"s_load_dwordx8 s[{sPF}:{sPF + 7}], s[42:43], {o_} glc")


def poll_check(p, o_):
    def test():
        p("s_waitcnt lgkmcnt(0)")
        for k in range(0, 8, 2):
            p(f"s_xor_b64 s[{sPF + k}:{sPF + k + 1}], s[{sPF + k}:{sPF + k + 1}], s[40:41]")
        p(f"""
        s_or_b64 s[{sPF}:{sPF + 1}], s[{sPF}:{sPF + 1}], s[{sPF + 2}:{sPF + 3}]
        s_or_b64 s[{sPF + 4}:{sPF + 5}], s[{sPF + 4}:{sPF + 5}], s[{sPF + 6}:{sPF + 7}]
        s_or_b64 s[{sPF}:{sPF + 1}], s[{sPF}:{sPF + 1}], s[{sPF + 4}:{sPF + 5}]
        """)
    retry(p, "s_cbranch_scc1", test, lambda: poll_issue(p, o_))


def spf_setup(p, with_w1):
    p(f"""
    s_lshl2_add_u32 s{sT0}, s2, s{sV}
    s_mul_i32 s{sT0}, s{sT0}, 1792
    s_add_u32 s40, s{pW2}, s{sT0}
    s_addc_u32 s41, s{pW2 + 1}, 0
    """)
    if with_w1:
        p(f"s_add_u32 s80, s{pW1}, s{sT0}\ns_addc_u32 s81, s{pW1 + 1}, 0")
    p(f"""
    s_and_b32 s{sT0}, s{sV}, 1
    s_cmp_eq_u32 s{sT0}, 0
    s_cselect_b32 s50, s{pCRE}, s{pCIM}
    s_cselect_b32 s51, s{pCRE + 1}, s{pCIM + 1}
    s_lshl1_add_u32 s{sT0}, s2, s{sMH}
    s_lshl_b32 s{sT0}, s{sT0}, 10
    s_add_u32 s50, s50, s{sT0}
    s_addc_u32 s51, s51, 0
    """)


SPF = [(80, k) for k in range(14)] + [(40, k) for k in range(14)] + [(50, k) for k in range(8)]


def spf(p, a, b, dummy):
    for base, k in SPF[a:b]:
        p(f"s_load_dwordx2 s[{dummy}:{dummy + 1}], s[{base}:{base + 1}], {128 * k + 60}")


def delay_until(p, us):
    assert p.opt.get("stamps")
    lab = p.label("dly")
    p(f"""
    s_waitcnt vmcnt(0)
    s_add_u32 s{sT0}, s100, {int(us * 100)}
    {lab}:
    s_memrealtime s[34:35]
    s_waitcnt lgkmcnt(0)
    s_sub_u32 s{sT1}, s34, s{sT0}
    s_cmp_lt_i32 s{sT1}, 0
    s_cbranch_scc1 {lab}
    """)


def flag_store(p, sreg, add):
    p(f"s_add_u32 s{sT0}, s{sreg}, {add}\ns_mov_b64 exec, 1")
    p.vmem(f"buffer_store_dword v{vTAG}, off, s[{S_WS}:{S_WS + 3}], s{sT0} sc1", "flag")
    p("s_mov_b64 exec, -1")


def cmul(p, d, a, b, add=None):
    if add is None:
        p(f"v_pk_mul_f32 {vr(d, 2)}, {vr(a, 2)}, {vr(b, 2)} op_sel_hi:[0,1]")
    else:
        p(f"v_pk_fma_f32 {vr(d, 2)}, {vr(a, 2)}, {vr(b, 2)}, {vr(add, 2)} op_sel_hi:[0,1,1]")
    p(f"v_pk_fma_f32 {vr(d, 2)}, {vr(a, 2)}, {vr(b, 2)}, {vr(d, 2)} op_sel:[1,1,0] op_sel_hi:[1,0,1] neg_lo:[0,1,0]")


def entry(p):
    o = p.opt
    p(f"""
    s_load_dwordx16 s[36:51], s[0:1], 0
    s_load_dwordx16 s[52:67], s[0:1], 64
    s_getpc_b64 s[34:35]
    L_pc:
    s_cmp_ge_u32 s2, 256
    s_cbranch_scc1 L_end
    v_lshrrev_b32 v{vT0}, 6, v0
    s_lshr_b32 s{sJ}, s2, 3
    v_and_b32 v{vL}, 63, v0
    v_readfirstlane_b32 s{sW}, v{vT0}
    v_lshl_add_u32 v{vT0}, s{sJ}, 3, v{vT0}
    v_lshlrev_b32 v{vT0}, 7, v{vT0}
    v_min_u32 v{vT0}, L_end-L_pc, v{vT0}
    """)
    p.vmem(f"global_load_dword v255, v{vT0}, s[34:35]", "pf")
    if o.get("stamps"):
        p(("s_memtime" if o["stamps"] == 2 else "s_memrealtime") + " s[92:93]")
        p("s_memrealtime s[100:101]")
    p(f"s_and_b32 s{sXCD}, s2, 7")
    if o.get("part", 24) == 24:
        p(f"""
        s_and_b32 s{sT0}, s{sJ}, 7
        s_lshr_b32 s{sT1}, s{sJ}, 3
        s_lshr_b32 s{sMT}, s{sXCD}, 2
        s_lshl3_add_u32 s{sMT}, s{sMT}, s{sT0}
        s_and_b32 s{sT2}, s{sXCD}, 3
        s_lshl2_add_u32 s{sNT}, s{sT2}, s{sT1}
        """)
    else:
        p(f"""
        s_and_b32 s{sT0}, s{sJ}, 3
        s_lshr_b32 s{sT1}, s{sJ}, 2
        s_lshr_b32 s{sMT}, s{sXCD}, 1
        s_lshl2_add_u32 s{sMT}, s{sMT}, s{sT0}
        s_and_b32 s{sT2}, s{sXCD}, 1
        s_lshl3_add_u32 s{sNT}, s{sT2}, s{sT1}
        """)
    rm, rn, rx, ry = o.get("rm", 1), o.get("rn", 2), o.get("rx", 1), o.get("ry", 0)
    p(f"""
    s_mul_i32 s{sC0}, s{sT0}, {rm}
    s_mul_i32 s{sT1}, s{sT1}, {rn}
    s_add_u32 s{sC0}, s{sC0}, s{sT1}
    s_mul_i32 s{sT1}, s{sXCD}, {rx}
    s_add_u32 s{sC0}, s{sC0}, s{sT1}
    """)
    if ry:
        p(f"s_lshr_b32 s{sT1}, s{sXCD}, 2\ns_mul_i32 s{sT1}, s{sT1}, {ry}\ns_add_u32 s{sC0}, s{sC0}, s{sT1}")
    p(f"""
    s_and_b32 s{sV}, s{sW}, 3
    s_lshr_b32 s{sMH}, s{sV}, 1
    s_cmp_ge_u32 s{sW}, 4
    s_cbranch_scc1 L_X
    """)


def late_ids(p):
    p(f"""
    s_lshr_b32 s{sT0}, s{sNT}, 2
    s_lshl_b32 s{sL0}, s{sNT}, 1
    s_sub_u32 s{sL0}, s{sL0}, s{sT0}
    """)
    if p.opt.get("part2", 81) == 81:
        p(f"""
        s_and_b32 s{sFLG}, s{sJ}, 3
        s_lshl2_add_u32 s{sM2}, s{sXCD}, s{sFLG}
        s_lshr_b32 s{sN2}, s{sJ}, 2
        s_xor_b32 s{sN2}, s{sN2}, {p.opt.get('nx', 5)}
        """)
    else:
        p(f"""
        s_and_b32 s{sFLG}, s{sJ}, 7
        s_lshr_b32 s{sT0}, s{sXCD}, 1
        s_lshl3_add_u32 s{sM2}, s{sT0}, s{sFLG}
        s_and_b32 s{sT0}, s{sXCD}, 1
        s_lshr_b32 s{sN2}, s{sJ}, 3
        s_lshl2_add_u32 s{sN2}, s{sT0}, s{sN2}
        """)
    p(f"""
    s_mov_b32 s{sSPIN}, {SPIN_MAX}
    s_lshl1_add_u32 s{sCI}, s{sMT}, s{sMH}
    s_mov_b32 s{sMASK}, 0xffff0000
    s_mul_i32 s{sFLG}, s{sFLG}, {p.opt.get('rs2', 0)}
    s_mul_i32 s{sT0}, s{sXCD}, {p.opt.get('rx2', 1)}
    s_add_u32 s{sFLG}, s{sFLG}, s{sT0}
    s_add_u32 s{sG0}, s{sFLG}, {('s%d' % sN2) if p.opt.get('rot2', 1) else 0}
    s_and_b32 s{sG0}, s{sG0}, 1
    s_mul_i32 s{sHID}, s{sM2}, {352 * 1024}
    s_add_u32 s{sHID}, s{sHID}, {WS_HID}
    v_lshlrev_b32 v{vL16}, 4, v{vL}
    v_add_u32 v{vL16B}, 4096, v{vL16}
    """)


vRING, NRING, vACC2, vB2 = 8, 13, 64, 128
vPW = 60


def ph2_loop(p, items, hooks_pre, hooks_post, side, ramp, after_ramp=None):
    n = len(items)

    def load(g):
        if g in hooks_pre:
            hooks_pre[g]()
        sreg, second, tb, _, _ = items[g]
        r = vRING + 4 * (g % NRING)
        p.vmem(f"buffer_load_dwordx4 {vr(r, 4)}, v{vL16B if second else vL16}, s[{S_WS}:{S_WS + 3}], s{sreg} offen{off(1024 * (tb ^ second))} sc1", ("a", g))
    depth = p.opt.get("depth", 10)
    assert depth < NRING
    issued = 0
    for g in range(ramp):
        load(g)
        issued += 1
    if after_ramp:
        after_ramp()
    for g in range(n):
        _, _, tb, b2, first = items[g]
        p.wait_vm(("a", g))
        r = vRING + 4 * (g % NRING)
        sd = side.get(g, [])
        for db in range(4):
            p(mfma(vACC2 + 16 * tb + 4 * db, b2 + 4 * db, r, first))
            if db in (0, 2) and issued < n and issued <= g + depth:
                load(issued)
                issued += 1
            if db >= 1:
                k = -(-len(sd) // (4 - db))
                for x in sd[:k]:
                    p(x)
                sd = sd[k:]
        if g in hooks_post:
            hooks_post[g]()


def spread(side, L, start, per):
    for i in range(0, len(L), per):
        side.setdefault(start + i // per, []).extend(L[i:i + per])


def partial_addr():
    return f"""v_lshrrev_b32 v{vT0}, 4, v{vL}
    v_and_b32 v{vT1}, 15, v{vL}
    v_xor_b32 v{vT1}, v{vT1}, v{vT0}
    v_lshlrev_b32 v{vT1}, 4, v{vT1}
    v_lshl_add_u32 v{vT1}, v{vT0}, 8, v{vT1}
    v_add_u32 v{vPW}, s{sBUF}, v{vT1}
    v_xor_b32 v{vPW + 1}, 64, v{vPW}
    v_xor_b32 v{vPW + 2}, 128, v{vPW}
    v_xor_b32 v{vPW + 3}, 192, v{vPW}""".split("\n")


def partial_write(p, tb):
    for db in range(4):
        p(f"ds_write_b128 v{vPW + db}, {vr(vACC2 + 16 * tb + 4 * db, 4)} offset:{4096 * tb + 1024 * db}")


yAX, yAB, yAS = 248, 250, 252
yOW, yO2 = 8, 10
yCW, yR2 = 14, 60
yC, yL, yL16, yQ16, yQ64, yL256, yPQ = 16, 18, 20, 22, 24, 26, 28
yONE, yB1, ySEL = 32, 30, 36
yCS = 40
yCF = 96
yRE, yIM = 64, 80
yFR = 128
yM, yR = 176, 192
yGD = 96
yTA, yTB, yG0, yG1 = 48, 50, 52, 54
yL64, yQM, yGD2, yGA, yNL, ySA = 30, 126, 96, 118, 38, 122


def half_reduce(p, a, t):
    for r in (8, 4, 2, 1):
        p(f"s_nop 1\nv_add_f32_dpp v{a}, v{a}, v{a} row_ror:{r} row_mask:0xf bank_mask:0xf")
    p(f"""
    v_mov_b32 v{t}, v{a}
    s_nop 1
    v_permlane16_swap_b32 v{a}, v{t}
    s_nop 1
    v_add_f32 v{a}, v{a}, v{t}
    """)


def y_prologue(p):
    D = 208
    PR = 244
    p(f"""
    v_and_b32 v{vT0}, 31, v{vL}
    v_lshrrev_b32 v{vT1}, 5, v{vL}
    v_lshlrev_b32 v{vT2}, 4, v{vT0}
    v_lshl_add_u32 v{vT2}, v{vT1}, 10, v{vT2}
    s_lshl4_add_u32 s{sT0}, s{sMT}, s{sNT}
    s_lshl2_add_u32 s{sT0}, s{sT0}, s{sW}
    s_lshl_b32 s{sKX}, s{sT0}, 11
    s_lshl_b32 s{sKB}, s{sT0}, 4
    s_waitcnt lgkmcnt(0)
    """)
    srd(p, S_X, pX, 2048 * 1024)
    p.vmem(f"buffer_load_dwordx4 {vr(D, 4)}, v{vT2}, s[{S_X}:{S_X + 3}], s{sKX} offen", "xr")
    p.vmem(f"buffer_load_dwordx4 {vr(D + 4, 4)}, v{vT2}, s[{S_X}:{S_X + 3}], s{sKX} offen offset:512", "xr")
    srd(p, S_WS, pWS, WS_BYTES)
    p.vmem(f"buffer_load_dword v{vTAG}, off, s[{S_WS}:{S_WS + 3}], 0 sc1", "xr")
    late_ids(p)
    if p.opt.get("pt", 1):
        p(f"""
        s_add_u32 s52, s{pWS}, s{sKB}
        s_addc_u32 s53, s{pWS + 1}, 0
        s_load_dword s58, s[52:53], {WS_STATS}
        s_mul_i32 s{sT0}, s{sCI}, 12
        s_lshr_b32 s{sT1}, s{sNT}, 2
        s_add_u32 s{sT0}, s{sT0}, s{sT1}
        s_lshl_b32 s{sT0}, s{sT0}, 7
        s_add_u32 s{sT0}, s{sT0}, {WS_FLAGS}
        s_add_u32 s52, s{pWS}, s{sT0}
        s_addc_u32 s53, s{pWS + 1}, 0
        s_load_dword s58, s[52:53], 0
        """)
    p(f"""
    s_add_u32 s{sKB}, s{sKB}, {WS_STATS}
    v_and_b32 v{vT0}, 15, v{vL}
    s_and_b32 s{sT1}, s{sV}, 1
    s_lshl1_add_u32 s{sT0}, s{sNT}, s{sT1}
    s_lshl_b32 s{sT0}, s{sT0}, 4
    v_add_lshl_u32 v{vT2}, v{vT0}, s{sT0}, 1
    """)
    p.vmem(f"global_load_ushort v{PR}, v{vT2}, s[{pLRE}:{pLRE + 1}]", "par")
    p.vmem(f"global_load_ushort v{PR + 1}, v{vT2}, s[{pLIM}:{pLIM + 1}]", "par")
    p.vmem(f"global_load_ushort v{PR + 2}, v{vT2}, s[{pDT}:{pDT + 1}]", "par")
    rowfrag_addr(p, yAX)
    p(f"""
    s_lshl_b32 s{sT0}, s{sT1}, 11
    s_add_u32 s{sT0}, s{sT0}, {BR}
    v_add_u32 v{yAB}, s{sT0}, v{yAX}
    s_lshl_b32 s{sT0}, s{sMH}, 13
    s_add_u32 s{sT0}, s{sT0}, {XR}
    v_add_u32 v{yAX}, s{sT0}, v{yAX}
    v_xor_b32 v{yAX + 1}, 64, v{yAX}
    v_xor_b32 v{yAB + 1}, 64, v{yAB}
    """)
    for k in range(4):
        p(f"v_mov_b32 v{yONE + k}, 0x3f803f80")
    p(f"""
    v_and_b32 v{vT0}, 15, v{vL}
    v_lshrrev_b32 v{vT1}, 4, v{vL}
    v_lshlrev_b32 v{vT1}, 2, v{vT1}
    v_sub_u32 v{vT0}, v{vT0}, v{vT1}
    v_mov_b32 v{vT1}, 0x3f80
    v_mov_b32 v{vT2}, 0x3f800000
    """)
    for dw in range(2):
        p(f"""
        v_cmp_eq_u32 vcc, {2 * dw}, v{vT0}
        v_cmp_eq_u32 s[{sT0}:{sT1}], {2 * dw + 1}, v{vT0}
        s_nop 0
        v_cndmask_b32 v{ySEL + dw}, 0, v{vT1}, vcc
        v_cndmask_b32 v{ySEL + dw}, v{ySEL + dw}, v{vT2}, s[{sT0}:{sT1}]
        """)
    p(f"""
    v_lshrrev_b32 v{vT1}, 4, v{vL}
    s_lshl_b32 s{sT0}, s{sMH}, 8
    s_add_u32 s{sT0}, s{sT0}, {L_M}
    v_lshl_add_u32 v{yAS}, v{vT1}, 6, s{sT0}
    """)
    y_m_setup(p)
    p.wait_vm("xr")
    make_tag(p)
    F = D + 8
    for k in range(8):
        p(f"v_lshlrev_b32 v{F + 2 * k}, 16, v{D + k}\nv_and_b32 v{F + 2 * k + 1}, s{sMASK}, v{D + k}")
    A = D + 24
    p(f"v_pk_add_f32 {vr(A, 2)}, {vr(F, 2)}, {vr(F + 2, 2)}")
    for k in range(2, 8):
        p(f"v_pk_add_f32 {vr(A, 2)}, {vr(A, 2)}, {vr(F + 2 * k, 2)}")
    p(f"v_add_f32 v{A}, v{A}, v{A + 1}")
    half_reduce(p, A, A + 1)
    p(f"v_mul_f32 v{A}, 0x3b000000, v{A}")
    for k in range(8):
        p(f"v_pk_add_f32 {vr(F + 2 * k, 2)}, {vr(F + 2 * k, 2)}, {vr(A, 2)} op_sel_hi:[1,0] neg_lo:[0,1] neg_hi:[0,1]")
    p(f"v_pk_mul_f32 {vr(A + 2, 2)}, {vr(F, 2)}, {vr(F, 2)}")
    for k in range(1, 8):
        p(f"v_pk_fma_f32 {vr(A + 2, 2)}, {vr(F + 2 * k, 2)}, {vr(F + 2 * k, 2)}, {vr(A + 2, 2)}")
    p(f"v_add_f32 v{A + 2}, v{A + 2}, v{A + 3}")
    half_reduce(p, A + 2, A + 3)
    p(f"""
    v_mul_f32 v{A + 2}, 0x3b000000, v{A + 2}
    v_cvt_pk_bf16_f32 v{A + 2}, v{A + 2}, v{A + 2}
    v_and_b32 v{A + 2}, s{sMASK}, v{A + 2}
    v_add_f32 v{A + 2}, 0x3727c5ac, v{A + 2}
    v_cvt_pk_bf16_f32 v{A + 2}, v{A + 2}, v{A + 2}
    v_and_b32 v{A + 2}, s{sMASK}, v{A + 2}
    v_sqrt_f32 v{A + 2}, v{A + 2}
    v_lshrrev_b32 v{vT1}, 5, v{vL}
    v_cvt_pk_bf16_f32 v{A}, v{A}, v{A + 2}
    v_mov_b32 v{A + 1}, v{vTAG}
    v_lshlrev_b32 v{vT1}, 3, v{vT1}
    s_mov_b32 exec_lo, 1
    s_mov_b32 exec_hi, 1
    """)
    p.vmem(f"buffer_store_dwordx2 {vr(A, 2)}, v{vT1}, s[{S_WS}:{S_WS + 3}], s{sKB} offen sc1", "stst")
    p("s_mov_b64 exec, -1")
    p.stamp(1)


def y_consts(p):
    PR, t = 244, 208
    main, p.l = p.l, []
    p(f"v_mov_b32 v58, v{vTAG}\nv_mov_b32 v59, v{vTAG}")
    p(f"""
    v_lshlrev_b32 v{PR}, 16, v{PR}
    v_lshlrev_b32 v{PR + 1}, 16, v{PR + 1}
    v_lshlrev_b32 v{PR + 2}, 16, v{PR + 2}
    v_mul_f32 v{PR + 2}, {LOG2E}, v{PR + 2}
    v_exp_f32 v{PR + 2}, v{PR + 2}
    s_nop 0
    v_cvt_pk_bf16_f32 v{PR + 2}, v{PR + 2}, v{PR + 2}
    v_and_b32 v{PR + 2}, s{sMASK}, v{PR + 2}
    v_mul_f32 v{t}, v{PR + 2}, v{PR}
    v_mul_f32 v{t + 1}, v{PR + 2}, v{PR + 1}
    v_mul_f32 v{t}, {LOG2E}, v{t}
    v_mul_f32 v{t + 1}, 0.15915494, v{t + 1}
    v_exp_f32 v{t}, v{t}
    v_rndne_f32 v{t + 2}, v{t + 1}
    v_sub_f32 v{t + 1}, v{t + 1}, v{t + 2}
    v_cos_f32 v{t + 2}, v{t + 1}
    v_sin_f32 v{t + 3}, v{t + 1}
    v_mul_f32 v{t + 4}, v{PR}, v{PR}
    v_fmac_f32 v{t + 4}, v{PR + 1}, v{PR + 1}
    v_rcp_f32 v{t + 4}, v{t + 4}
    v_mul_f32 v{yL}, v{t}, v{t + 2}
    v_mul_f32 v{t + 3}, v{t}, v{t + 3}
    v_sub_f32 v{yL + 1}, 0, v{t + 3}
    v_add_f32 v{t + 2}, -1.0, v{yL}
    v_add_f32 v{t + 4}, v{t + 4}, v{t + 4}
    v_mul_f32 v{yC}, v{t + 2}, v{PR}
    v_fmac_f32 v{yC}, v{t + 3}, v{PR + 1}
    v_mul_f32 v{yC + 1}, v{t + 3}, v{PR}
    v_fma_f32 v{yC + 1}, -v{t + 2}, v{PR + 1}, v{yC + 1}
    v_mul_f32 v{yC}, v{yC}, v{t + 4}
    v_mul_f32 v{yC + 1}, v{yC + 1}, v{t + 4}
    v_and_b32 v{vT0}, 16, v{vL}
    v_cmp_ne_u32 s[42:43], 0, v{vT0}
    v_cmp_le_u32 s[44:45], 32, v{vL}
    """)
    a, b, c, d = t + 6, t + 8, t + 10, t + 12
    cmul(p, a, yL, yL)
    cmul(p, b, a, a)
    cmul(p, a, b, b)
    cmul(p, yL16, a, a)
    cmul(p, a, yL16, yL16)

    def qpow(dst, p1, p2):
        p(f"""
        v_cndmask_b32 v{c}, 1.0, v{p1}, s[42:43]
        v_cndmask_b32 v{c + 1}, 0, v{p1 + 1}, s[42:43]
        v_cndmask_b32 v{d}, 1.0, v{p2}, s[44:45]
        v_cndmask_b32 v{d + 1}, 0, v{p2 + 1}, s[44:45]
        """)
        cmul(p, dst, c, d)
    qpow(yQ16, yL16, a)
    cmul(p, yL64, a, a)
    p(f"""
    s_cmp_eq_u32 s{sMH}, 0
    s_cselect_b64 vcc, -1, 0
    s_cselect_b32 s59, 0, 1.0
    v_cndmask_b32_e64 v{c}, v{yL64}, 1.0, vcc
    v_cndmask_b32_e64 v{c + 1}, v{yL64 + 1}, 0, vcc
    """)
    cmul(p, yQM, c, yQ16)
    cmul(p, a, yL64, yL64)
    cmul(p, b, a, a)
    qpow(yQ64, a, b)
    cmul(p, yL256, b, b)
    p(f"""
    v_sub_f32 v{yNL}, 0, v{yL + 1}
    v_sub_f32 v{yNL + 1}, 0, v{yL256 + 1}
    """)
    L, p.l = p.l, main
    return L


def y_pass_s(p):
    def reads(c, s, st):
        b = yFR + 24 * st
        G = [[f"ds_read_b128 {vr(b + 16 + 4 * k, 4)}, v{yAB + s} offset:{(c % 3) * 8192 + k * 4096}" for k in range(2)]]
        G += [[f"ds_read_b128 {vr(b + 4 * tb, 4)}, v{yAX + s} offset:{(c & 3) * 16384 + tb * 2048}"] for tb in range(4)]
        return G
    p("s_waitcnt lgkmcnt(0)\ns_barrier")
    p.stamp(2)
    issued, mark = 0, {}
    for g, L in enumerate(reads(0, 0, 0)):
        for x in L:
            p(x)
            issued += 1
        mark[(0, g)] = issued
    K = y_consts(p)
    nk = -(-len(K) // p.opt.get("kn", 5))
    for n in range(16):
        c, s = divmod(n, 2)
        st = n & 1
        b = yFR + 24 * st
        M = [[mfma(yCS, yONE, b + 16, n == 0), mfma(yCS + 4, yONE, b + 20, n == 0)]]
        M += [[mfma(yRE + 4 * tb, b + 4 * tb, b + 16, n == 0), mfma(yIM + 4 * tb, b + 4 * tb, b + 20, n == 0)] for tb in range(4)]
        if n < 15:
            R = reads((n + 1) >> 1, (n + 1) & 1, st ^ 1)
        else:
            R = [[f"ds_read_b128 {vr(yM + 4 * tb, 4)}, v{yAS} offset:{16 * tb}", f"ds_read_b128 {vr(yR + 4 * tb, 4)}, v{yAS} offset:{512 + 16 * tb}"] for tb in range(4)] + [[]]
        for g in range(5):
            p(f"s_waitcnt lgkmcnt({issued - mark[(n, g)]})")
            p(M[g][0])
            if g == 0 and s == 1 and c < 7:
                p(M[g][1])
                if K:
                    p.wait_vm("par")
                for x in K[:nk]:
                    p(x)
                K = K[nk:]
                p("s_barrier")
            if g == 0 and n in (7, 8):
                p(f"v_add_u32 v{yAX + ((n + 1) & 1)}, 65536, v{yAX + ((n + 1) & 1)}")
            for i, x in enumerate(R[g]):
                p(x)
                issued += 1
                if i == 0 and not (g == 0 and s == 1 and c < 7):
                    p(M[g][1])
            if not R[g]:
                p(M[g][1])
            mark[(n + 1, g)] = issued
    p("s_waitcnt lgkmcnt(0)")
    p.stamp(3)


def yU(tau):
    tb, i = divmod(tau, 4)
    return (yRE if i % 2 == 0 else yIM) + 4 * tb + (i & ~1)


def y_window(p):
    g, gn = yG0, yG1
    p("s_nop 1")
    if p.opt.get("pfy"):
        spf(p, 28, 35, 38)
    for tau in range(0, 16, 2):
        a, b = yRE + tau, yIM + tau
        p(f"""
        v_pk_fma_f32 {vr(yTA, 2)}, {vr(yM + tau, 2)}, {vr(yCS, 2)}, {vr(a, 2)} neg_lo:[1,0,0] neg_hi:[1,0,0]
        v_pk_fma_f32 {vr(yTB, 2)}, {vr(yM + tau, 2)}, {vr(yCS + 4, 2)}, {vr(b, 2)} neg_lo:[1,0,0] neg_hi:[1,0,0]
        v_pk_mul_f32 {vr(yTA, 2)}, {vr(yTA, 2)}, {vr(yR + tau, 2)}
        v_pk_mul_f32 {vr(yTB, 2)}, {vr(yTB, 2)}, {vr(yR + tau, 2)}
        v_pk_mul_f32 {vr(a, 2)}, {vr(yTA, 2)}, {vr(yC, 2)} op_sel_hi:[0,1] neg_hi:[0,1]
        v_pk_mul_f32 {vr(b, 2)}, {vr(yTA, 2)}, {vr(yC, 2)} op_sel:[1,0] op_sel_hi:[1,1] neg_hi:[0,1]
        v_pk_fma_f32 {vr(a, 2)}, {vr(yTB, 2)}, {vr(yC, 2)}, {vr(a, 2)} op_sel:[0,1,0] op_sel_hi:[0,0,1] neg_lo:[0,1,0] neg_hi:[0,1,0]
        v_pk_fma_f32 {vr(b, 2)}, {vr(yTB, 2)}, {vr(yC, 2)}, {vr(b, 2)} op_sel:[1,1,0] op_sel_hi:[1,0,1] neg_lo:[0,1,0] neg_hi:[0,1,0]
        """)
        if tau == 0:
            cmul(p, g, yU(0), yL, yU(1))
        else:
            cmul(p, gn, g, yL, yU(tau))
            cmul(p, g, gn, yL, yU(tau + 1))
    GR = 56
    p(f"""
    v_mov_b32 v{gn}, v{g}
    v_mov_b32 v{gn + 1}, v{g + 1}
    s_nop 1
    v_permlane16_swap_b32 v{g}, v{gn}
    v_permlane16_swap_b32 v{g + 1}, v{gn + 1}
    v_mov_b32 v{yTA}, v{g}
    v_mov_b32 v{yTA + 1}, v{g + 1}
    v_mov_b32 v{yTB}, v{gn}
    v_mov_b32 v{yTB + 1}, v{gn + 1}
    v_permlane32_swap_b32 v{g}, v{yTA}
    v_permlane32_swap_b32 v{g + 1}, v{yTA + 1}
    v_permlane32_swap_b32 v{gn}, v{yTB}
    v_permlane32_swap_b32 v{gn + 1}, v{yTB + 1}
    s_nop 0
    """)
    cmul(p, gn, g, yL16, gn)
    cmul(p, yTA, gn, yL16, yTA)
    cmul(p, GR, yTA, yL16, yTB)
    p(f"ds_write_b64 v{ySA}, {vr(GR, 2)}")
    for k in range(2):
        p(f"""
        v_cndmask_b32 v{g + k}, 0, v{g + k}, s[42:43]
        v_cndmask_b32 v{gn + k}, v{gn + k}, v{yTA + k}, s[42:43]
        v_cndmask_b32 v{yPQ + k}, v{g + k}, v{gn + k}, s[44:45]
        """)
    p("s_waitcnt lgkmcnt(0)\ns_barrier")
    p.stamp(4)
    p.stamp(1, 1)
    p.stamp(1, 2)
    p(f"ds_read_b64 {vr(yTA, 2)}, v{ySA + 1}")


def y_publish(p):
    GR = 56
    p(f"""
    s_waitcnt lgkmcnt(0)
    v_mul_f32 v{yTA}, s59, v{yTA}
    v_mul_f32 v{yTA + 1}, s59, v{yTA + 1}
    v_mul_f32 v{GR}, s59, v{GR}
    v_mul_f32 v{GR + 1}, s59, v{GR + 1}
    v_fmac_f32 v{GR}, v{yTA}, v{yL64}
    v_fmac_f32 v{GR + 1}, v{yTA}, v{yL64 + 1}
    v_fma_f32 v{GR}, -v{yTA + 1}, v{yL64 + 1}, v{GR}
    v_fmac_f32 v{GR + 1}, v{yTA + 1}, v{yL64}
    s_mov_b64 exec, 0xffff
    """)
    p.vmem(f"buffer_store_dwordx4 {vr(GR, 4)}, v{ySA + 2}, s[{S_WS}:{S_WS + 3}], s{sMB} offen sc1", "S")
    p(f"""
    s_mov_b64 exec, -1
    v_fmac_f32 v{yPQ}, v{yTA}, v{yQ16}
    v_fmac_f32 v{yPQ + 1}, v{yTA}, v{yQ16 + 1}
    v_fma_f32 v{yPQ}, -v{yTA + 1}, v{yQ16 + 1}, v{yPQ}
    v_fmac_f32 v{yPQ + 1}, v{yTA + 1}, v{yQ16}
    """)


class W2Stage:
    def __init__(self, p):
        self.p = p
        self.issued = 0
        self.read = 0

    def can_issue(self):
        u = self.issued // 8
        return u < 7 and (u < 3 or self.read > u - 3)

    def issue(self):
        p = self.p
        u, k = divmod(self.issued, 8)
        h, kk = divmod(k, 4)
        if k == 0:
            p(f"s_lshl_b32 s{sKB}, s{sUN + u}, 16\ns_add_u32 s{sKB}, s{sKB}, s{sBB}")
        if k == 4:
            p(f"s_add_u32 s{sKB}, s{sKB}, 32768")
        self.issued += 1
        return u, h, kk

    def dma(self, n, need_m0=True):
        p = self.p
        for _ in range(n):
            if not self.can_issue():
                break
            k = self.issued % 8
            if need_m0 or k % 4 == 0:
                p(f"s_add_u32 m0, s{sBUF}, {8192 * ((self.issued // 8) % 3) + 4096 * (k // 4)}")
                if k % 4:
                    p("s_nop 0")
                need_m0 = False
            u, h, kk = self.issue()
            p.vmem(f"buffer_load_dwordx4 v{yO2 + kk}, s[{S_B}:{S_B + 3}], s{sKB} offen{off(1024 * kk)} lds", ("u", u))

    def landed(self, u):
        return self.issued >= 8 * (u + 1) and self.p.last(("u", u)) <= self.p.done

    def reads(self, u, dst):
        return [f"ds_read_b64_tr_b16 {vr(dst + 16 * s + 4 * db + 2 * e, 2)}, v{yR2 + db} offset:{8192 * (u % 3) + 4096 * s + 2048 * e}"
                for s in range(2) for db in range(4) for e in range(2)]

    def read_next(self, wait=False):
        u = self.read
        if wait:
            self.p.wait_vm(("u", u))
        for x in self.reads(u, vB2 + 32 * u):
            self.p(x)
        self.p("s_waitcnt lgkmcnt(0)")
        self.read += 1


def y_m_setup(p):
    p(f"""
    s_mul_i32 s{sBUF}, s{sV}, 24576
    s_add_u32 s{sBUF}, s{sBUF}, {PKR}
    v_lshrrev_b32 v{vT0}, 2, v{vL}
    v_bfe_u32 v{vT1}, v{vL}, 3, 2
    v_lshlrev_b32 v{vT0}, 7, v{vT0}
    v_lshl_add_u32 v{vT0}, v{vT1}, 5, v{vT0}
    v_and_b32 v{vT1}, 3, v{vL}
    v_lshl_add_u32 v{vT0}, v{vT1}, 3, v{vT0}
    v_add_u32 v{yR2}, s{sBUF}, v{vT0}
    v_xor_b32 v{yR2 + 1}, 32, v{yR2}
    v_xor_b32 v{yR2 + 2}, 64, v{yR2}
    v_xor_b32 v{yR2 + 3}, 96, v{yR2}
    s_lshl_b32 s{sBB}, s{sN2}, 7
    """)
    w1_dma_setup(p, yOW)
    p(f"""
    v_lshrrev_b32 v{vT0}, 4, v{vL}
    v_and_b32 v{vT1}, 7, v{vL}
    v_lshlrev_b32 v{vT0}, 1, v{vT0}
    v_xor_b32 v{vT0}, v{vT0}, v{vT1}
    v_lshlrev_b32 v{vT0}, 4, v{vT0}
    v_lshrrev_b32 v{vT1}, 3, v{vL}
    v_lshl_add_u32 v{yO2}, v{vT1}, 10, v{vT0}
    v_add_u32 v{yO2 + 1}, 7168, v{yO2}
    v_add_u32 v{yO2 + 2}, 14336, v{yO2}
    v_add_u32 v{yO2 + 3}, 21504, v{yO2}
    s_and_b32 s{sT1}, s{sV}, 1
    s_lshl1_add_u32 s{sMX}, s{sNT}, s{sT1}
    s_lshl_b32 s{sMB}, s{sMX}, 14
    s_add_u32 s{sMB}, s{sMB}, {WS_CARRY}
    v_lshl_add_u32 v14, s{sT1}, 10, v{vL16}
    v_xor_b32 v15, 1024, v14
    v_and_b32 v{vT0}, 15, v{vL}
    s_lshl_b32 s{sT1}, s{sT1}, 8
    s_add_u32 s{sT1}, s{sT1}, {L_S}
    v_lshl_add_u32 v{ySA + 1}, v{vT0}, 3, s{sT1}
    s_lshl_b32 s{sT1}, s{sMH}, 7
    v_add_u32 v{ySA}, s{sT1}, v{ySA + 1}
    v_lshlrev_b32 v{vT0}, 4, v{vT0}
    s_add_u32 s{sT1}, s{sMT}, 1
    s_mul_i32 s{sT1}, s{sT1}, s{sMH}
    s_lshl_b32 s{sT1}, s{sT1}, 8
    v_add_u32 v{ySA + 2}, s{sT1}, v{vT0}
    v_lshrrev_b32 v{vT1}, 4, v{vL}
    v_sub_u32 v{vT1}, s{sMT}, v{vT1}
    v_lshl_add_u32 v{vT1}, v{vT1}, 8, v{vT0}
    """)
    for j in range(4):
        p(f"v_subrev_u32 v{yGA + j}, {1024 * j}, v{vT1}\nv_max_i32 v{yGA + j}, v{yGA + j}, v{vT0}")
    y_units(p)
    srd(p, S_W, pW1, 512 * 3584)
    srd(p, S_B, pW2, 1792 * 1024)
    if p.opt.get("pfy"):
        spf_setup(p, False)


def y_units(p):
    r2 = p.opt.get("rot2", 1)
    p(f"""
    s_mul_i32 s{sT0}, s{sV}, 7
    s_and_b32 s{sKX}, s{sM2}, 1
    s_and_b32 s{sT1}, s{sN2}, {1 if r2 else 0}
    s_lshl1_add_u32 s{sT2}, s{sT1}, s{sFLG}
    """)
    for i in range(4):
        p(f"""
        s_add_u32 s{sT3}, s{sT2}, {i}
        s_and_b32 s{sT3}, s{sT3}, 3
        s_lshl1_add_u32 s{sT3}, s{sT3}, s{sKX}
        s_min_u32 s{sT3}, s{sT3}, 6
        s_add_u32 s{sUN + i}, s{sT3}, s{sT0}
        """)
    p(f"""
    s_add_u32 s{sT1}, s{sT1}, s{sFLG}
    s_mul_i32 s{sT2}, s{sT1}, 86
    s_lshr_b32 s{sT2}, s{sT2}, 8
    s_mul_i32 s{sT2}, s{sT2}, 3
    s_sub_u32 s{sT1}, s{sT1}, s{sT2}
    s_add_u32 s{sT0}, s{sT0}, 1
    s_sub_u32 s{sT0}, s{sT0}, s{sKX}
    """)
    for i in range(3):
        p(f"""
        s_lshl1_add_u32 s{sUN + 4 + i}, s{sT1}, s{sT0}
        s_add_u32 s{sT1}, s{sT1}, 1
        s_cmp_eq_u32 s{sT1}, 3
        s_cselect_b32 s{sT1}, 0, s{sT1}
        """)


def gather_list(p, track):
    L = []
    for j in range(3, -1, -1):
        def f(j=j):
            s = f"buffer_load_dwordx4 {vr(yGD2 + 4 * j, 4)}, v{yGA + j}, s[{S_WS}:{S_WS + 3}], s{sMB} offen sc1"
            p.vmem(s, "G") if track else p(s)
        L.append(f)
    return L


def cmac(d, a, b, nb):
    return [f"v_fmac_f32 v{d}, v{a}, v{b}", f"v_fmac_f32 v{d + 1}, v{a}, v{b + 1}",
            f"v_fmac_f32 v{d}, v{a + 1}, v{nb}", f"v_fmac_f32 v{d + 1}, v{a + 1}, v{b}"]


def h_work(p):
    W = []

    def check():
        p.wait_vm("G")

        def test():
            p(f"v_xor_b32 v{vT3}, v{yGD2 + 14}, v{vTAG}")
            for j in range(2, -1, -1):
                p(f"v_bitop3_b32 v{vT3}, v{yGD2 + 4 * j + 2}, v{vTAG}, v{vT3} bitop3:0xbe")
            p(f"v_cmp_ne_u32 vcc, 0, v{vT3}\ns_nop 4")

        def reload():
            for f in gather_list(p, False):
                f()
            p("s_waitcnt vmcnt(0)")
        retry(p, "s_cbranch_vccnz", test, reload)
        p.stamp(6)
    W.append(check)
    for j in range(2, -1, -1):
        W += cmac(yGD2 + 4 * j, yGD2 + 4 * (j + 1), yL256, yNL + 1)
    g = yGD2
    W += [f"v_mul_f32 v{yTA}, v{g}, v{yQ64}", f"v_mul_f32 v{yTA + 1}, v{g}, v{yQ64 + 1}",
          f"v_fma_f32 v{yTA}, -v{g + 1}, v{yQ64 + 1}, v{yTA}", f"v_fmac_f32 v{yTA + 1}, v{g + 1}, v{yQ64}"]
    for sw in ("v_permlane16_swap_b32", "v_permlane32_swap_b32"):
        W.append(f"""
        v_mov_b32 v{yTB}, v{yTA}
        v_mov_b32 v{yTB + 1}, v{yTA + 1}
        s_nop 1
        {sw} v{yTA}, v{yTB}
        {sw} v{yTA + 1}, v{yTB + 1}
        s_nop 1
        v_add_f32 v{yTA}, v{yTA}, v{yTB}
        v_add_f32 v{yTA + 1}, v{yTA + 1}, v{yTB + 1}
        """)
        W += [""] * 5
    W += [f"v_fmac_f32 v{yPQ}, v{yTA}, v{yQM}", f"v_fmac_f32 v{yPQ + 1}, v{yTA}, v{yQM + 1}",
          f"v_fma_f32 v{yPQ}, -v{yTA + 1}, v{yQM + 1}, v{yPQ}", f"v_fmac_f32 v{yPQ + 1}, v{yTA + 1}, v{yQM}"]
    prev = yPQ
    PA, TD = 112, 64
    for tau in range(16):
        u = yU(tau)
        W += cmac(u, prev, yL, yNL)
        prev = u
        if tau & 1:
            tb, i = divmod(tau, 4)
            for part in range(2):
                W.append(f"v_cvt_pk_bf16_f32 v{PA + 4 * tb + 2 * part + (i >> 1)}, v{yU(tau - 1) + part}, v{u + part}")

    def transpose():
        p(f"s_mul_i32 s{sT2}, s{sCI}, 88\ns_add_u32 s{sT2}, s{sT2}, s{sMX}")
        for tb in range(4):
            for part in range(2):
                p(mfma16(TD + 8 * tb + 4 * part, PA + 4 * tb + 2 * part, ySEL, True))
        p(f"""
        s_lshl_b32 s{sBX}, s{sT2}, 12
        s_add_u32 s{sBX}, s{sBX}, {WS_HID}
        s_mul_i32 s{sT2}, s{sCI}, 12
        s_lshr_b32 s{sT3}, s{sMX}, 3
        s_add_u32 s{sT2}, s{sT2}, s{sT3}
        s_lshl_b32 s{sT2}, s{sT2}, 7
        s_and_b32 s{sMX}, s{sMX}, 7
        s_lshl2_add_u32 s{sMX}, s{sMX}, s{sT2}
        """)
    W.append(transpose)
    W += [""] * 16
    for tb in range(4):
        for k in range(4):
            W.append(f"v_cvt_pk_bf16_f32 v{PA + 4 * tb + k}, v{TD + 8 * tb + 2 * k}, v{TD + 8 * tb + 2 * k + 1}")
        W.append(lambda tb=tb: p.vmem(f"buffer_store_dwordx4 {vr(PA + 4 * tb, 4)}, v{14 + (tb & 1)}, s[{S_WS}:{S_WS + 3}], s{sBX} offen{off(2048 * (tb >> 1))} sc1", "h"))
    W.append(lambda: p.stamp(7))
    return W


def emit(p, x):
    x() if callable(x) else p(x)


def y_pass_m(p):
    o = p.opt
    st = W2Stage(p)
    y_publish(p)
    cpf = o.get("cpf", 0)
    if cpf:
        half = o.get("part2", 81) != 81
        p(f"""
        s_and_b32 s{sT0}, s{sV}, 1
        s_cmp_eq_u32 s{sT0}, 0
        s_cselect_b32 s{S_X}, s{pCRE}, s{pCIM}
        s_cselect_b32 s{S_X + 1}, s{pCRE + 1}, s{pCIM + 1}
        s_mov_b32 s{S_X + 2}, {512 * 1024}
        s_mov_b32 s{S_X + 3}, 0x00020000
        s_lshl1_add_u32 s{sKX}, s{sJ}, s{sMH}
        s_lshl_b32 s{sKX}, s{sKX}, {12 if half else 13}
        v_lshlrev_b32 v58, 7, v{vL}
        """)
        if half:
            p(f"""
            s_and_b32 s{sT0}, s{sXCD}, 1
            s_lshl_b32 s{sT0}, s{sT0}, 18
            s_add_u32 s{sKX}, s{sKX}, s{sT0}
            v_lshrrev_b32 v59, 5, v{vL}
            v_lshl_or_b32 v58, v59, 30, v58
            s_lshr_b32 s{sT0}, s{sXCD}, 1
            s_add_u32 s1, s{sJ}, s{sT0}
            """)
        else:
            p(f"s_add_u32 s1, s{sJ}, s{sXCD}")
        p(f"s_and_b32 s1, s1, {cpf - 1}")
    budget = [int(x, 16) for x in str(o.get("bud", "87747880")).zfill(8)]
    gi = o.get("gi", 3)
    W = h_work(p)
    nW = len(W)
    wd = [int(x, 16) for x in str(o.get("wd", "24440")).zfill(9)]
    full = {}
    for c in range(8):
        V = []
        if 1 <= c <= 5:
            V += w1_dma(p, c + 2, yOW)
        cp0 = o.get("cp0", 0)
        if cpf and cp0 <= c < cp0 + cpf:
            def cp(c=c):
                p(f"""
                s_cmp_eq_u32 s1, {c - cp0}
                s_cselect_b32 s{sT0}, 0, 0x40000000
                v_or_b32 v59, s{sT0}, v58
                """)
                p.vmem(f"buffer_load_dword v{vT0}, v59, s[{S_X}:{S_X + 3}], s{sKX} offen", "cpf")
            V.append(cp)
        if c == gi:
            V += gather_list(p, True)
        for k in range(budget[c]):
            V.append(lambda k=k: st.dma(1, k == 0))
        A = []
        u = st.read
        rd = u < 4 and full.get(u, 99) <= c - 2
        L = []
        if rd:
            L = [lambda u=u: p.wait_vm(("u", u))] + st.reads(u, vB2 + 32 * u)
        late = 0
        n = -(-nW * wd[c] // sum(wd))
        if n and len(W) == nW:
            late = len(V) * o.get("late", 2) // 4
        A, W = A + W[:n], W[n:]
        slots = len(V) + 1
        for k in range(slots):
            if k < len(V):
                V[k]()
            nl = -(-len(L) // max(1, slots - 1 - k))
            for x in L[:nl]:
                emit(p, x)
            L = L[nl:]
            if k >= late:
                na = -(-len(A) // (slots - k))
                na += na & 1
                for x in A[:na]:
                    emit(p, x)
                A = A[na:]
        if rd:
            p("s_waitcnt lgkmcnt(0)")
            st.read += 1
        for uu in range(st.issued // 8):
            full.setdefault(uu, c)
        if c < 7:
            p.stamp(2 + 2 * c, 2)
        if 3 <= c + 1 <= 7:
            p.wait_vm(("w", c + 1))
        if c == 7:
            c_dma_setup(p, 52)
        if c < 7:
            p.stamp(2 + 2 * c, 1)
        p("s_barrier")
        if c < 7:
            p.stamp(3 + 2 * c, 1)
            p.stamp(3 + 2 * c, 2)
    p("s_barrier")
    p.stamp(5)
    for x in W:
        emit(p, x)
    return st


def y_h(p, st):
    CV = 52
    hf = p.opt.get("hf", 0)
    yd = p.opt.get("yd", 0)
    if hf == 0:
        p.wait_vm("h")
        flag_store(p, sMX, WS_FLAGS)
    c_dma(p, 0, 0, CV, yd)
    if hf == 1:
        p.wait_vm("h")
        flag_store(p, sMX, WS_FLAGS)
    c_dma(p, 0, 1, CV, yd)
    if hf == 2:
        p.wait_vm("h")
        flag_store(p, sMX, WS_FLAGS)
    left = p.opt.get("gce", 99)
    first = True
    while st.issued < 56 or st.read < 4:
        if left == 0:
            break
        if st.can_issue():
            st.dma(1, first)
            first = False
            left -= 1
            if yd:
                p(f"s_waitcnt vmcnt({yd})")
        else:
            st.read_next(wait=True)
    p.wait_vm(("C", 0))
    p("s_barrier")
    p.stamp(10)
    while st.issued < 56 or st.read < 4:
        if st.can_issue():
            st.dma(8)
        else:
            st.read_next(wait=True)


def y_ph2(p, st):
    o = p.opt
    poll_setup(p, f"s_lshl1_add_u32 s{sT0}, s{sV}, s{sT0}\ns_add_u32 s{sT0}, s{sT0}, 4")
    p(f"s_add_u32 s{sT1}, s{sHID}, {32 * 4096}")
    for i in range(7):
        p(f"s_lshl_b32 s{sUN + i}, s{sUN + i}, 13\ns_add_u32 s{sUN + i}, s{sUN + i}, s{sT1}")
    p.stamp(11)
    poll_issue(p, 0)
    poll_check(p, 0)
    if o.get("dly"):
        if o.get("pfh"):
            delay_until(p, o["dly"] - 3)
            p(f"v_lshlrev_b32 v{vT1}, 7, v{vL}")
            for i in range(7):
                p(f"buffer_load_dword v{vT0}, v{vT1}, s[{S_WS}:{S_WS + 3}], s{sUN + i} offen sc1")
        delay_until(p, o["dly"])
    p.stamp(12)
    items = []

    def b2(step):
        return vB2 + 32 * ((step >> 1) % 4) + 16 * (step & 1)
    ts = o.get("ts", 6)
    for step in range(14 - ts):
        for tb in range(4):
            items.append((sUN + (step >> 1), step & 1, tb, b2(step), step == 0))
    for tb in range(4):
        for step in range(14 - ts, 14):
            items.append((sUN + (step >> 1), step & 1, tb, b2(step), False))
    pre, post, side = {}, {}, {}
    pre[32 - 10] = lambda: poll_issue(p, 128)
    pre[32] = lambda: poll_check(p, 128)
    for u in range(4, 7):
        R = st.reads(u, vB2 + 32 * (u - 4))
        spread(side, R[:8], 8 * (u - 4) + 5, 2)
        spread(side, R[8:], 8 * (u - 4) + 9, 2)
    side.setdefault(31, []).append("s_waitcnt lgkmcnt(0)")
    spread(side, partial_addr(), 32, 3)
    gy = o.get("gy", 28)
    post[gy] = lambda: (p.stamp(14), p("s_barrier"))
    post[37] = lambda: p.stamp(15)
    wp = o.get("wp", 4)
    for tb in range(3):
        i0 = 56 - ts * (3 - tb)
        if wp == 4:
            def wr(tb=tb):
                p("s_nop 2")
                partial_write(p, tb)
            post[i0] = wr
            post[i0 + 2] = lambda: p("s_waitcnt lgkmcnt(0)\ns_barrier")
        else:
            spread(side, [f"ds_write_b128 v{vPW + db}, {vr(vACC2 + 16 * tb + 4 * db, 4)} offset:{4096 * tb + 1024 * db}" for db in range(4)], i0 + 1, wp)
            post[i0 + 1 + 4 // wp] = lambda: p("s_waitcnt lgkmcnt(0)\ns_barrier")

    def last():
        p.stamp(13)
        p("s_nop 4")
        partial_write(p, 3)
        p("s_waitcnt lgkmcnt(0)\ns_barrier")
    post[55] = last
    ph2_loop(p, items, pre, post, side, o.get('ramp', 5))
    p(f"""
    s_lshl3_add_u32 s{sT0}, s{sN2}, s{sW}
    s_lshl_b32 s{sT0}, s{sT0}, 5
    s_add_u32 s{sT0}, s{sT0}, s{sM2}
    s_cmp_lg_u32 s{sT0}, 31
    s_cbranch_scc1 L_fin
    s_mov_b64 exec, 1
    buffer_store_dword v{vTAG}, off, s[{S_WS}:{S_WS + 3}], 0 sc1
    s_branch L_fin
    """)


xTR = 8
xAX, xEA, xRL, xEX = 16, 18, 20, 22
xWF, NWF = 32, 6
xONE, xB1, xCS = 28, 26, 56
xOX, xOB, xOW, xSA, xST = 32, 36, 38, 40, 42
xACC, xXF = 64, 128


def x_pass_s(p):
    o = p.opt
    p("L_X:")
    p(f"""
    v_lshrrev_b32 v{vT0}, 4, v{vL}
    v_and_b32 v{vT1}, 7, v{vL}
    v_xor_b32 v{vT1}, v{vT1}, v{vT0}
    v_lshlrev_b32 v{vT1}, 4, v{vT1}
    v_lshrrev_b32 v{vT2}, 3, v{vL}
    v_lshl_add_u32 v{xOB}, v{vT2}, 10, v{vT1}
    v_lshrrev_b32 v{vT2}, 5, v{vL}
    v_mul_u32_u24 v{vT2}, {12 * 1024}, v{vT2}
    v_add_u32 v{xOX}, v{vT2}, v{xOB}
    v_xor_b32 v{xOX + 1}, 64, v{xOX}
    v_xor_b32 v{xOB + 1}, 64, v{xOB}
    v_add_u32 v{xOX + 1}, {31 * 1024}, v{xOX + 1}
    v_add_u32 v{xOB + 1}, 7168, v{xOB + 1}
    v_add_u32 v{xOX + 2}, 2048, v{xOX}
    v_add_u32 v{xOX + 3}, 2048, v{xOX + 1}
    s_and_b32 s{sT1}, s{sV}, 1
    s_lshl1_add_u32 s{sBX}, s{sMT}, s{sMH}
    s_lshl3_add_u32 s{sBX}, s{sBX}, s{sT1}
    s_lshl_b32 s{sBX}, s{sBX}, 13
    s_lshl1_add_u32 s{sBB}, s{sNT}, s{sMH}
    s_lshl_b32 s{sBB}, s{sBB}, 14
    s_lshl_b32 s{sMX}, s{sV}, 12
    s_lshl1_add_u32 s{sMB}, s{sT1}, s{sMH}
    s_lshl_b32 s{sMB}, s{sMB}, 11
    s_cmp_eq_u32 s{sT1}, 0
    s_waitcnt lgkmcnt(0)
    s_cselect_b32 s{S_B}, s{pBRE}, s{pBIM}
    s_cselect_b32 s{S_B + 1}, s{pBRE + 1}, s{pBIM + 1}
    s_mov_b32 s{S_B + 2}, {512 * 1024}
    s_mov_b32 s{S_B + 3}, 0x00020000
    """)
    srd(p, S_X, pX, 2048 * 1024)

    def dma_b(c):
        p(f"""
        s_add_u32 s{sT0}, s{sC0}, {c}
        s_and_b32 s{sT0}, s{sT0}, 7
        s_lshl_b32 s{sT1}, s{sT0}, 7
        s_add_u32 m0, s{sMB}, {BR + (c % 3) * 8192}
        s_add_u32 s{sKB}, s{sBB}, s{sT1}
        """)
        for i in range(2):
            p.vmem(f"buffer_load_dwordx4 v{xOB + i}, s[{S_B}:{S_B + 3}], s{sKB} offen{off(1024 * i)} lds", ("c", c))

    def dma_x(c, same=False):
        if not same:
            p(f"s_add_u32 s{sT0}, s{sC0}, {c}\ns_and_b32 s{sT0}, s{sT0}, 7\ns_lshl_b32 s{sT1}, s{sT0}, 7")
        p(f"s_add_u32 m0, s{sMX}, {XR + c * 16384}\ns_add_u32 s{sKX}, s{sBX}, s{sT1}")
        for i in range(4):
            p.vmem(f"buffer_load_dwordx4 v{xOX + i}, s[{S_X}:{S_X + 3}], s{sKX} offen{off(1024 * i)} lds", ("c", c))

    def dma(c):
        dma_b(c)
        dma_x(c, True)
    xa = o.get("xa", 0)
    pre = o.get("pre", 0)
    if pre:
        p(f"""
        s_lshl_b32 s{sT0}, s{sMT}, 10
        s_add_u32 s{sT0}, s{sT0}, s{sBB}
        v_lshlrev_b32 v{vT2}, 7, v{vL}
        s_mov_b64 exec, 0xff
        """)
        p.vmem(f"buffer_load_dword v19, v{vT2}, s[{S_B}:{S_B + 3}], s{sT0} offen", "pre")
        p("s_mov_b64 exec, -1")
    else:
        dma(0)
        p.stamp(1)
    srd(p, S_WS, pWS, WS_BYTES)
    p.vmem(f"buffer_load_dword v{vTAG}, off, s[{S_WS}:{S_WS + 3}], 0 sc1", "epoch")
    if not pre:
        dma(1)
    late_ids(p)
    w1_dma_setup(p, xOW)
    srd(p, S_W, pW1, 512 * 3584)
    p(f"""
    v_and_b32 v{vT0}, 15, v{vL}
    s_lshl1_add_u32 s{sT0}, s{sL0}, s{sV}
    s_lshl_b32 s{sT0}, s{sT0}, 5
    v_add_u32 v{vT2}, s{sT0}, v{vT0}
    v_min_u32 v{vT2}, 1775, v{vT2}
    v_lshlrev_b32 v{vT2}, 1, v{vT2}
    """)
    p.vmem(f"global_load_ushort v{xB1}, v{vT2}, s[{pB1}:{pB1 + 1}]", "par")
    p.vmem(f"global_load_ushort v{xB1 + 1}, v{vT2}, s[{pB1}:{pB1 + 1}] offset:32", "par")
    if o.get("pt", 1):
        p(f"""
        s_mul_i32 s{sT0}, s{sCI}, 6
        s_lshr_b32 s{sT1}, s{sNT}, 2
        s_add_u32 s{sT0}, s{sT0}, s{sT1}
        s_lshl_b32 s{sT0}, s{sT0}, 8
        s_add_u32 s{sT0}, s{sT0}, {WS_FLAGS + 512}
        s_add_u32 s42, s{pWS}, s{sT0}
        s_addc_u32 s43, s{pWS + 1}, 0
        s_load_dword s84, s[42:43], 0
        s_load_dword s84, s[42:43], 128
        """)
    pfx = [int(x, 16) for x in str(o.get("pfx", "x0000000"))[1:]]
    if o.get("pfx"):
        spf_setup(p, True)
    npf = pfx[0]
    spf(p, 0, npf, 82)
    for k in range(4):
        p(f"v_mov_b32 v{xONE + k}, 0x3f803f80")
    rowfrag_addr(p, xAX)
    p(f"""
    s_add_u32 s{sT0}, s{sMX}, {XR}
    v_add_u32 v{xAX}, s{sT0}, v{xAX}
    v_xor_b32 v{xAX + 1}, 64, v{xAX}
    v_and_b32 v{xSA}, 31, v{vL}
    v_lshlrev_b32 v{xSA}, 3, v{xSA}
    s_lshl2_add_u32 s{sUN}, s{sMT}, s{sV}
    s_lshl_b32 s{sUN}, s{sUN}, 8
    s_add_u32 s{sUN}, s{sUN}, {WS_STATS}
    """)
    w1_tr_addr0(p, xTR)
    p(f"s_lshl_b32 s{sT0}, s{sV}, 6\nv_xor_b32 v{xTR}, s{sT0}, v{xTR}")
    for fb in range(1, 8):
        p(f"v_xor_b32 v{xTR + fb}, {32 * fb}, v{xTR}")
    tp = o.get("tp", 0)
    tw1 = o.get("tw1", 0)

    def touch():
        p(f"""
        s_and_b32 s{sT0}, s{sV}, 1
        s_cmp_eq_u32 s{sT0}, 0
        s_cselect_b32 s{S_B}, s{pW1 if tw1 else pW2}, s{pW2}
        s_cselect_b32 s{S_B + 1}, s{(pW1 if tw1 else pW2) + 1}, s{pW2 + 1}
        s_cselect_b32 s{sT2}, s{pCRE}, s{pCIM}
        s_cselect_b32 s{sT3}, s{pCRE + 1}, s{pCIM + 1}
        s_mov_b32 s{S_B + 2}, {512 * 3584}
        s_lshl1_add_u32 s{sT0}, s2, s{sT0}
        s_cmp_lt_u32 s{sV}, 2
        s_cselect_b32 s{S_B}, s{S_B}, s{sT2}
        s_cselect_b32 s{S_B + 1}, s{S_B + 1}, s{sT3}
        s_cselect_b32 s{S_B + 2}, s{S_B + 2}, {512 * 1024}
        s_cselect_b32 s{sT0}, {'s2' if tw1 else 's%d' % sT0}, s2
        s_cselect_b32 s{sT2}, {56 if tw1 else 28}, 16
        s_mul_i32 s{sT1}, s{sT2}, s{sT0}
        v_cmp_gt_u32 vcc, s{sT2}, v{vL}
        v_add_lshl_u32 v44, v{vL}, s{sT1}, 7
        v_mov_b32 v45, 0x40000000
        v_cndmask_b32 v44, v45, v44, vcc
        """)
        p.vmem(f"buffer_load_dword v19, v44, s[{S_B}:{S_B + 3}], 0 offen", "touch")
    ld = f"buffer_load_dwordx2 {vr(xST, 2)}, v{xSA}, s[{S_WS}:{S_WS + 3}], s{sUN} offen sc1"
    if pre:
        if pre == 1:
            p.wait_vm("pre")
        elif pre == 3:
            p.wait_vm("pf")
        p.stamp(1)
        dma(0)
        dma(1)
    for c in range(8):
        if c < 7:
            p.wait_vm(("c", c))
        if c == 1:
            make_tag(p)
        if c == 7:
            p.wait_vm("st")
            retry(p, "s_cbranch_vccnz", lambda: p(f"v_cmp_ne_u32 vcc, v{xST + 1}, v{vTAG}\ns_nop 4"),
                  lambda: p(f"{ld}\ns_waitcnt vmcnt(0)"))
            p(f"""
            v_and_b32 v{vT0}, s{sMASK}, v{xST}
            v_rcp_f32 v{vT0}, v{vT0}
            v_lshrrev_b32 v{vT1}, 1, v{xSA}
            s_lshl_b32 s{sT0}, s{sV}, 7
            s_add_u32 s{sT0}, s{sT0}, {L_M}
            v_add_u32 v{vT1}, s{sT0}, v{vT1}
            v_lshlrev_b32 v{vT2}, 16, v{xST}
            ds_write_b32 v{vT1}, v{xST} offset:1024
            ds_write_b32 v{vT1}, v{vT0} offset:512
            ds_write_b32 v{vT1}, v{vT2}
            """)
            p.wait_vm(("c", c))
        if c >= 6 - xa:
            p("s_waitcnt lgkmcnt(0)")
        if c == 0:
            p.stamp(2)
        if c > 0:
            p.stamp(2 * c, 3)
        p("s_barrier")
        p.stamp(2 * c + 1, 3)
        if c == 5:
            p.vmem(ld, "st")
        if not xa:
            if c + 2 < 8:
                dma(c + 2)
        else:
            if c == 0:
                dma(2)
            elif c + 2 < 8:
                dma_b(c + 2)
            if c + 3 < 8:
                dma_x(c + 3)
        if c == 4:
            p(f"v_add_u32 v{xAX}, 65536, v{xAX}\nv_add_u32 v{xAX + 1}, 65536, v{xAX + 1}")
        for s in range(2):
            for t in range(2):
                p(f"ds_read_b128 {vr(xXF + 16 * c + 8 * s + 4 * t, 4)}, v{xAX + s} offset:{(c & 3) * 16384 + t * 2048}")
        if c >= 6 - xa:
            for cc in ([c - 5] if xa else [0] if c == 6 else [1, 2]):
                for f in w1_dma(p, cc, xOW):
                    f()
                if (tp, cc) in ((2, 0), (4, 1), (3, 2)):
                    touch()
        if c == 5 and tp == 1:
            touch()
        if c < 5:
            spf(p, npf, npf + pfx[1 + c], 82)
            npf += pfx[1 + c]
    p.stamp(3)
    p(f"""
    v_bfe_u32 v{vT0}, v{vL}, 2, 2
    v_and_b32 v{vT1}, 3, v{vL}
    v_lshl_add_u32 v{vT0}, v{vT0}, 4, v{vT1}
    s_and_b32 s{sT1}, s{sV}, 1
    s_lshl3_add_u32 s{sT0}, s{sMH}, s{sT1}
    s_lshl_b32 s{sT0}, s{sT0}, 5
    s_add_u32 s{sT0}, s{sT0}, {L_M}
    v_lshl_add_u32 v{vT0}, v{vT0}, 2, s{sT0}
    ds_read_b32 v{xEX + 1}, v{vT0} offset:1024
    ds_read_b32 v{xEX + 3}, v{vT0} offset:{1024 + 16}
    ds_read_b32 v{xRL}, v{vT0} offset:512
    ds_read_b32 v{xRL + 1}, v{vT0} offset:{512 + 16}
    v_and_b32 v{xEA}, 15, v{vL}
    v_lshlrev_b32 v{xEA}, 3, v{xEA}
    s_lshl_b32 s{sT0}, s{sV}, 8
    s_add_u32 s{sT0}, s{sT0}, {L_EXT}
    v_add_u32 v{xEA}, s{sT0}, v{xEA}
    v_cmp_gt_u32 vcc, 16, v{vL}
    s_mov_b32 s{sT2}, 0x01000100
    s_waitcnt lgkmcnt(0)
    """)
    spf(p, npf, npf + pfx[6], 82)
    for t in range(2):
        e = xEX + 2 * t
        p(f"""
        v_perm_b32 v{e}, v{e + 1}, v{e + 1}, s{sT2}
        v_xor_b32 v{e}, 0x80008000, v{e}
        v_lshrrev_b32 v{e + 1}, 16, v{e + 1}
        v_cndmask_b32 v{e}, 0, v{e}, vcc
        v_cndmask_b32 v{e + 1}, 0, v{e + 1}, vcc
        v_mul_f32 v{xRL + t}, {LOG2E}, v{xRL + t}
        """)
    p.wait_vm(("w", 0))
    p("s_waitcnt lgkmcnt(0)\ns_barrier")
    p.stamp(4)


def x_pass_m(p):
    PD = 4
    WE = p.opt.get("we", 1)

    def reads(n):
        if n >= 128:
            return []
        c, s, fb = n >> 4, (n >> 3) & 1, n & 7
        slot = (2 * c + s) % 7
        return [f"ds_read_b64_tr_b16 {vr(xWF + 4 * (n % NWF) + 2 * e, 2)}, v{xTR + fb} offset:{8192 * slot + 1024 * e}" for e in range(2)]
    nissued = 0
    for n in range(PD):
        for x in reads(n):
            p(x)
            nissued += 1
    for n in range(128):
        c, s, fb = n >> 4, (n >> 3) & 1, n & 7
        if n % WE == 0 and n < 126:
            p(f"s_waitcnt lgkmcnt({nissued - 2 * (n + WE)})")
        R = reads(n + PD)
        bar = (n & 15) == 16 - PD and c < 7
        w = xWF + 4 * (n % NWF)
        if n == 126:
            p("s_waitcnt lgkmcnt(0)")
        for t in range(2):
            p(mfma(xACC + 8 * fb + 4 * t, w, xXF + 16 * c + 8 * s + 4 * t, n < 8))
            if bar and t == 0:
                if c < 2:
                    p.wait_vm(("w", c + 1))
                p("s_barrier")
            if n == 126 and t == 0:
                p("s_barrier")
            if n >= 126:
                k = 2 * (n - 126) + t
                for i in range(2):
                    p(f"ds_read_b64 {vr(xXF + 2 * (2 * k + i), 2)}, v{xTR + k} offset:{128 * i}")
            if R:
                p(R[t])
                nissued += 1
        if fb < 2:
            p(mfma(xCS + 4 * fb, xONE, w, n < 8))
        if n in (123, 124):
            k = n - 123
            a = xCS + 4 * k
            p(f"""
            v_and_b32 v{a + 1}, s{sMASK}, v{a}
            v_sub_f32 v{a}, v{a}, v{a + 1}
            v_cvt_pk_bf16_f32 v{a}, v{a + 1}, v{a}
            v_mov_b32 v{a + 1}, v{xB1 + k}
            ds_write_b64 v{xEA}, {vr(a, 2)} offset:{128 * k}
            """)
            nissued += 1
        if n == 125:
            p(f"v_mov_b32 v{xTR}, v{xEA}")
            for k in range(1, 4):
                p(f"v_xor_b32 v{xTR + k}, {256 * k}, v{xEA}")
    p("s_waitcnt lgkmcnt(0)\ns_barrier")
    for fb in range(8):
        for t in range(2):
            p(mfma16(xACC + 8 * fb + 4 * t, xXF + 2 * fb, xEX + 2 * t))
    p.stamp(5)


def mish4(p, a, t, pk, tmp):
    sel = "op_sel_hi:[1,0]" if t == 0 else "op_sel:[0,1] op_sel_hi:[1,1]"
    e, u = tmp, tmp + 4
    p(f"""
    v_pk_mul_f32 {vr(a, 2)}, {vr(a, 2)}, {vr(xRL, 2)} {sel}
    v_pk_mul_f32 {vr(a + 2, 2)}, {vr(a + 2, 2)}, {vr(xRL, 2)} {sel}
    v_exp_f32 v{e}, v{a}
    v_exp_f32 v{e + 1}, v{a + 1}
    v_exp_f32 v{e + 2}, v{a + 2}
    v_exp_f32 v{e + 3}, v{a + 3}
    v_pk_fma_f32 {vr(u, 2)}, {vr(e, 2)}, 0.5, 1.0 op_sel_hi:[1,0,0]
    v_pk_fma_f32 {vr(u + 2, 2)}, {vr(e + 2, 2)}, 0.5, 1.0 op_sel_hi:[1,0,0]
    v_pk_fma_f32 {vr(u, 2)}, {vr(e, 2)}, {vr(u, 2)}, 1.0 op_sel_hi:[1,1,0]
    v_pk_fma_f32 {vr(u + 2, 2)}, {vr(e + 2, 2)}, {vr(u + 2, 2)}, 1.0 op_sel_hi:[1,1,0]
    v_rcp_f32 v{u}, v{u}
    v_rcp_f32 v{u + 1}, v{u + 1}
    v_rcp_f32 v{u + 2}, v{u + 2}
    v_rcp_f32 v{u + 3}, v{u + 3}
    v_pk_fma_f32 {vr(a, 2)}, {vr(a, 2)}, {vr(u, 2)}, {vr(a, 2)} neg_lo:[1,0,0] neg_hi:[1,0,0]
    v_pk_fma_f32 {vr(a + 2, 2)}, {vr(a + 2, 2)}, {vr(u + 2, 2)}, {vr(a + 2, 2)} neg_lo:[1,0,0] neg_hi:[1,0,0]
    v_cvt_pk_bf16_f32 v{pk}, v{a}, v{a + 1}
    v_cvt_pk_bf16_f32 v{pk + 1}, v{a + 2}, v{a + 3}
    """)


def x_epilogue(p):
    PK, TMP, VO = 192, 144, 224
    p(f"""
    s_mul_i32 s{sT0}, s{sCI}, 44
    s_add_u32 s{sT0}, s{sT0}, s{sL0}
    s_add_u32 s{sT0}, s{sT0}, s{sMH}
    s_add_u32 s{sT0}, s{sT0}, 16
    s_and_b32 s{sT1}, s{sV}, 1
    s_lshl2_add_u32 s{sBX}, s{sT0}, s{sT1}
    s_lshl_b32 s{sBX}, s{sBX}, 11
    s_add_u32 s{sBX}, s{sBX}, {WS_HID}
    s_mul_i32 s{sT2}, s{sT1}, 5120
    v_add_u32 v{VO}, s{sT2}, v{vL16}
    v_xor_b32 v{VO + 1}, 1024, v{VO}
    v_xor_b32 v{VO + 2}, 5120, v{VO}
    v_xor_b32 v{VO + 3}, 4096, v{VO}
    s_mul_i32 s{sT2}, s{sCI}, 6
    s_lshr_b32 s{sT3}, s{sNT}, 2
    s_add_u32 s{sT2}, s{sT2}, s{sT3}
    s_add_u32 s{sT2}, s{sT2}, 2
    s_lshl_b32 s{sT2}, s{sT2}, 8
    s_and_b32 s{sT3}, s{sNT}, 3
    s_lshl1_add_u32 s{sKW}, s{sT3}, s{sMH}
    s_lshl1_add_u32 s{sT3}, s{sT3}, s{sT1}
    s_lshl2_add_u32 s{sBB}, s{sT3}, s{sT2}
    """)
    if p.opt.get("xprio"):
        p(f"s_setprio {p.opt['xprio']}")
    ls = p.opt.get("ls", 0)
    p(f"s_lshl_b32 s{sT0}, s{sMH}, 14\ns_add_u32 s{sMX}, s{sBX}, 8192\ns_sub_u32 s{sMX}, s{sMX}, s{sT0}")

    def store(u, s, t):
        p.vmem(f"buffer_store_dwordx4 {vr(PK + 4 * (4 * u + 2 * s + t), 4)}, v{VO + 2 * s + t}, s[{S_WS}:{S_WS + 3}], s{sMX if u else sBX} offen sc1", ("act", u))

    def guarded(u, body):
        join = p.label("join")
        p(f"s_cmp_eq_u32 s{sKW}, {7 - u}\ns_cbranch_scc1 {join}")
        body()
        p(f"{join}:")

    def stores(u):
        for s in range(2):
            for t in range(2):
                store(u, s, t)

    for u in range(2):
        def body(u=u):
            for s in range(2):
                for t in range(2):
                    pk = PK + 4 * (4 * u + 2 * s + t)
                    for e in range(2):
                        mish4(p, xACC + 8 * (4 * u + 2 * s + e) + 4 * t, t, pk + 2 * e, TMP)
                    if ls == 0:
                        store(u, s, t)
            if ls == 1:
                stores(u)
        guarded(u, body)

    def late_stores():
        for u in range(2):
            guarded(u, lambda: stores(u))
    if ls == 2:
        late_stores()
    p.stamp(6)
    fa = p.opt.get("fa", 0)

    def flag(u):
        p.wait_vm(("act", u))
        if u == 0:
            lt, hv = p.label("light"), p.label("heavy")
            p(f"s_cmp_ge_u32 s{sKW}, 6\ns_cbranch_scc1 {lt}\n{hv}:")
            p.ool += [f"{lt}:", f"    s_waitcnt vmcnt({len(p.vm) - 1 - p.last(('act', 1))})", f"    s_branch {hv}"]
        flag_store(p, sBB, WS_FLAGS + 128 * u)
        if u == 1:
            p.stamp(7)
    poll_setup(p, f"s_add_u32 s{sT0}, s{sT0}, s{sV}")
    poll_issue(p, 0)
    if fa == 0:
        flag(0)
    RA = 60
    p(f"""
    v_and_b32 v{vT0}, 15, v{vL}
    v_bfe_u32 v{vT1}, v{vL}, 1, 3
    v_lshrrev_b32 v{vT2}, 5, v{vL}
    v_xor_b32 v{vT1}, v{vT1}, v{vT2}
    v_lshlrev_b32 v{vT1}, 4, v{vT1}
    v_lshl_add_u32 v{vT0}, v{vT0}, 7, v{vT1}
    v_bfe_u32 v{vT1}, v{vL}, 4, 1
    v_lshl_add_u32 v{vT0}, v{vT1}, 3, v{vT0}
    s_lshl_b32 s{sBUF}, s{sV}, 14
    v_add_u32 v{RA}, s{sBUF}, v{vT0}
    v_xor_b32 v{RA + 1}, 32, v{RA}
    v_xor_b32 v{RA + 2}, 64, v{RA}
    v_xor_b32 v{RA + 3}, 96, v{RA}
    """)
    CV = 64
    c_dma_setup(p, CV)
    p("s_barrier")
    p.stamp(10)

    def c_reads(pair):
        L = []
        for j in range(4):
            for db in range(4):
                for part in range(2):
                    L.append(f"ds_read_b64 {vr(vB2 + 64 * pair + 16 * j + 4 * db + 2 * part, 2)}, v{RA + j} offset:{8192 * part + 2048 * db}")
        return L
    for x in c_reads(0):
        p(x)
    if ls == 3:
        if p.opt.get("dls"):
            delay_until(p, p.opt["dls"])
            p.stamp(1)
        late_stores()
        if p.opt.get("dls"):
            p.stamp(3)
            if p.opt.get("ackw"):
                p("s_waitcnt vmcnt(0)")
            p.stamp(4)
    p("s_waitcnt lgkmcnt(0)")
    if fa == 1:
        flag(0)
    c_dma(p, 1, 0, CV)
    if fa == 2:
        flag(0)
    c_dma(p, 1, 1, CV)
    if fa == 3:
        flag(0)
    for pair in range(2):
        p(f"""
        s_xor_b32 s{sT0}, s{sG0}, {pair}
        s_lshl1_add_u32 s{sT0}, s{sV}, s{sT0}
        s_lshl_b32 s{sT0}, s{sT0}, 14
        s_add_u32 s{sUN + 2 * pair}, s{sT0}, s{sHID}
        s_add_u32 s{sUN + 2 * pair + 1}, s{sUN + 2 * pair}, 8192
        """)
    p.stamp(11)
    poll_check(p, 0)
    if p.opt.get("dlx"):
        flag(1)
        if p.opt.get("pfh"):
            delay_until(p, p.opt["dlx"] - 3)
            p(f"v_lshlrev_b32 v{vT1}, 7, v{vL}")
            for i in range(4):
                p(f"buffer_load_dword v{vT0}, v{vT1}, s[{S_WS}:{S_WS + 3}], s{sUN + i} offen sc1")
        delay_until(p, p.opt["dlx"])
    p.stamp(12)
    items = []
    for step in range(8):
        for tb in range(4):
            items.append((sUN + (step >> 1), step & 1, tb, vB2 + 16 * step, step == 0))
    side = {}
    spread(side, c_reads(1), 0, 3)
    side.setdefault(14, []).append("s_waitcnt lgkmcnt(0)")
    spread(side, partial_addr(), 16, 3)
    ph2_loop(p, items, {}, {}, side, p.opt.get('xramp', 10), (lambda: None) if p.opt.get('dlx') else (lambda: flag(1)))
    p.stamp(13)
    x_final_loads(p)
    for tb in range(4):
        partial_write(p, tb)


fX, fS, fD, fA = 128, 136, 140, 142


def x_final_loads(p):
    srd(p, S_X, pX, 2048 * 1024)
    srd(p, S_W, pOUT, 2048 * 2048)
    p(f"""
    s_lshl2_add_u32 s{sT0}, s{sM2}, s{sV}
    s_lshl_b32 s{sKX}, s{sT0}, 14
    s_lshl_b32 s{sT1}, s{sN2}, 7
    s_add_u32 s{sKX}, s{sKX}, s{sT1}
    s_lshl_b32 s{sT0}, s{sT0}, 7
    s_add_u32 s{sT0}, s{sT0}, {WS_STATS}
    v_lshrrev_b32 v{fA}, 4, v{vL}
    v_and_b32 v{fA + 1}, 15, v{vL}
    v_lshlrev_b32 v{fA + 2}, 3, v{fA + 1}
    v_lshl_add_u32 v{fA + 3}, v{fA}, 10, v{fA + 2}
    v_lshlrev_b32 v{fA + 4}, 3, v{fA}
    v_add_u32 v{fA + 2}, s{sT1}, v{fA + 2}
    s_mov_b32 s{sKB}, s{sKX}
    """)
    for tb in range(4):
        p.vmem(f"buffer_load_dwordx2 {vr(fX + 2 * tb, 2)}, v{fA + 3}, s[{S_X}:{S_X + 3}], s{sKB} offen", "fin")
        p.vmem(f"buffer_load_dword v{fS + tb}, v{fA + 4}, s[{S_WS}:{S_WS + 3}], s{sT0} offen{off(32 * tb)} sc1", "fin")
        if tb < 3:
            p(f"s_add_u32 s{sKB}, s{sKB}, 4096")
    p.vmem(f"global_load_dwordx2 {vr(fD, 2)}, v{fA + 2}, s[{pD}:{pD + 1}]", "fin")


def x_final(p):
    XF, SS, DD = 160, 176, 148
    RY, RF = fA + 4, fA + 5
    p.wait_vm("fin")
    p(f"""
    s_lshl_b32 s{sT0}, s{sV}, 2
    v_add_u32 v{RF}, s{sT0}, v{fA}
    v_xor_b32 v{RF}, v{RF}, v{fA + 1}
    v_lshlrev_b32 v{RF}, 4, v{RF}
    v_lshl_add_u32 v{RF}, v{fA + 1}, 8, v{RF}
    v_mov_b32 v{RY}, v{RF}
    v_add_u32 v{fA + 2}, {PKR + 2 * 24576}, v{RF}
    v_add_u32 v{RF}, {PKR}, v{RF}
    v_lshlrev_b32 v{fA + 3}, 1, v{fA + 3}
    s_lshl_b32 s{sKX}, s{sKX}, 1
    s_mov_b32 s{sT2}, {LN2}
    v_lshlrev_b32 v{DD}, 16, v{fD}
    v_and_b32 v{DD + 1}, s{sMASK}, v{fD}
    v_lshlrev_b32 v{DD + 2}, 16, v{fD + 1}
    v_and_b32 v{DD + 3}, s{sMASK}, v{fD + 1}
    """)
    for tb in range(4):
        x, s = XF + 4 * tb, SS + 4 * tb
        p(f"""
        v_and_b32 v153, s{sMASK}, v{fS + tb}
        v_rcp_f32 v153, v153
        v_lshlrev_b32 v152, 16, v{fS + tb}
        v_lshlrev_b32 v{x}, 16, v{fX + 2 * tb}
        v_and_b32 v{x + 1}, s{sMASK}, v{fX + 2 * tb}
        v_lshlrev_b32 v{x + 2}, 16, v{fX + 2 * tb + 1}
        v_and_b32 v{x + 3}, s{sMASK}, v{fX + 2 * tb + 1}
        """)
        for k in range(4):
            p(f"v_sub_f32 v{s + k}, v{x + k}, v152")
        for k in range(4):
            p(f"v_mul_f32 v{s + k}, v153, v{s + k}")
    p("s_waitcnt lgkmcnt(0)\ns_barrier")
    p.stamp(14)
    Y = 64
    for tb in range(4):
        for w in range(4):
            p(f"ds_read_b128 {vr(Y + 16 * tb + 4 * w, 4)}, v{RY} offset:{16384 * w + 4096 * tb}")
    for tb in range(4):
        p(f"s_waitcnt lgkmcnt({12 - 4 * tb})")
        y, s = Y + 16 * tb, SS + 4 * tb
        for k in range(4):
            p(f"v_fma_f32 v{s + k}, v{s + k}, v{DD + k}, v{y + k}")
            p(f"v_add_f32 v{y + 4 + k}, v{y + 4 + k}, v{y + 8 + k}")
        for k in range(4):
            p(f"v_add_f32 v{s + k}, v{s + k}, v{y + 12 + k}")
        for k in range(4):
            p(f"v_add_f32 v{s + k}, v{s + k}, v{y + 4 + k}")
        for k in range(4):
            p(f"v_mul_f32 v{s + k}, s{sT2}, v{s + k}")
    for tb in range(4):
        F = Y + 16 * tb
        x, s = XF + 4 * tb, SS + 4 * tb
        p("s_barrier")
        if tb == 3:
            p.stamp(15)
        for w in range(4):
            a, o_ = (RF, 24576 * w) if w < 2 else (fA + 2, 24576 * (w - 2))
            p(f"ds_read_b128 {vr(F + 4 * w, 4)}, v{a} offset:{o_ + 4096 * tb}")
        e = F + 4
        if tb < 3:
            p("s_waitcnt lgkmcnt(2)")
            for k in range(4):
                p(f"v_add_f32 v{F + k}, v{F + k}, v{F + 4 + k}")
            p("s_waitcnt lgkmcnt(0)")
            for k in range(4):
                p(f"v_add_f32 v{F + 8 + k}, v{F + 8 + k}, v{F + 12 + k}")
            for k in range(4):
                p(f"v_add_f32 v{F + k}, v{F + k}, v{F + 8 + k}")
            for k in range(4):
                p(f"v_exp_f32_e64 v{e + k}, -v{F + k}")
            for k in range(4):
                p(f"v_mul_f32 v{s + k}, v{s + k}, v{F + k}")
            for k in range(4):
                p(f"v_add_f32 v{e + k}, 1.0, v{e + k}")
            for k in range(4):
                p(f"v_rcp_f32 v{e + k}, v{e + k}")
            p("s_nop 0")
            for k in range(4):
                p(f"v_fmac_f32 v{x + k}, v{s + k}, v{e + k}")
        else:
            p("s_waitcnt lgkmcnt(2)")
            for h in (0, 2):
                p(f"v_pk_add_f32 {vr(F + h, 2)}, {vr(F + h, 2)}, {vr(F + 4 + h, 2)}")
            p("s_waitcnt lgkmcnt(0)")
            for h in (0, 2):
                p(f"v_pk_add_f32 {vr(F + 8 + h, 2)}, {vr(F + 8 + h, 2)}, {vr(F + 12 + h, 2)}")
            for h in (0, 2):
                p(f"v_pk_add_f32 {vr(F + h, 2)}, {vr(F + h, 2)}, {vr(F + 8 + h, 2)}")
            for k in range(4):
                p(f"v_exp_f32_e64 v{e + k}, -v{F + k}")
            for h in (0, 2):
                p(f"v_pk_mul_f32 {vr(s + h, 2)}, {vr(s + h, 2)}, {vr(F + h, 2)}")
            for h in (0, 2):
                p(f"v_pk_add_f32 {vr(e + h, 2)}, {vr(e + h, 2)}, 1.0 op_sel_hi:[1,0]")
            for k in range(4):
                p(f"v_rcp_f32 v{e + k}, v{e + k}")
            for h in (0, 2):
                p(f"v_pk_fma_f32 {vr(x + h, 2)}, {vr(s + h, 2)}, {vr(e + h, 2)}, {vr(x + h, 2)}")
        p(f"buffer_store_dwordx4 {vr(x, 4)}, v{fA + 3}, s[{S_W}:{S_W + 3}], s{sKX} offen sc1")
        if tb < 3:
            p(f"s_add_u32 s{sKX}, s{sKX}, 8192")


def finish(p):
    p("L_fin:")
    if p.opt.get("stamps"):
        p.stamp(8)
        p("s_waitcnt vmcnt(0)")
        p.stamp(9)
        if "probe" in p.opt:
            p(f"""
            s_lshl_b32 s{sT0}, 1, s{sW}
            s_and_b32 s{sT0}, s{sT0}, {p.opt.get('pw', 255)}
            s_cmp_eq_u32 s{sT0}, 0
            s_cbranch_scc1 L_end
            s_add_u32 s{sT0}, s{STAMP_REGS[p.opt['probe']]}, 5000
            L_probe:
            s_memrealtime s[34:35]
            s_waitcnt lgkmcnt(0)
            s_sub_u32 s{sT1}, s34, s{sT0}
            s_cmp_lt_i32 s{sT1}, 0
            s_cbranch_scc1 L_probe
            s_branch L_end
            """)
        p(f"""
        s_mov_b64 exec, 1
        s_lshl3_add_u32 s{sT0}, s2, s{sW}
        s_lshl_b32 s{sT0}, s{sT0}, 6
        s_add_u32 s{sT0}, s{sT0}, {WS_STAMP}
        """)
        for i in range(16):
            p(f"v_mov_b32 v8, s{STAMP_REGS[i]}\nbuffer_store_dword v8, off, s[{S_WS}:{S_WS + 3}], s{sT0} offset:{4 * i}")
    p("s_endpgm")
    p.l += p.ool
    p("L_end:\ns_endpgm")


def build(opt):
    p = P(opt)
    entry(p)
    st0 = p.save()
    y_prologue(p)
    y_pass_s(p)
    y_window(p)
    st = y_pass_m(p)
    y_h(p, st)
    y_ph2(p, st)
    p.restore(st0)
    x_pass_s(p)
    x_pass_m(p)
    x_epilogue(p)
    x_final(p)
    finish(p)
    t = HEAD + f"; @launch grid=(256,1,1) block=(512,1,1) lds={LDS_BYTES}\n" + '.amdgcn_target "amdgcn-amd-amdhsa--gfx950"\n'
    t += kernel_text(KN + "_kernel", p.text(), vgpr=256, sgpr=102, accum=256)
    return t


if __name__ == "__main__":
    out = sys.argv[1]
    opt = {}
    for a in sys.argv[2:]:
        k, v = a.split("=")
        opt[k] = int(v) if v.lstrip("-").isdigit() else v
    open(out, "w").write(build(opt))
```

```python
import sys
from gen import HEAD, KN, kernel_text

WS_STATS = 4096
WS_CARRY = 64 << 10
WS_FLAGS = 1 << 20
WS_HID = 2 << 20
WS_STAMP = 200 << 20
WS_BYTES = 0x10000000
MISC, XR, BR, WR, CR, PKR = 0, 8192, 139264, 8192, 0, 65536
L_M, L_R, L_MS, L_EXT, L_S = MISC, MISC + 512, MISC + 1024, MISC + 2048, MISC + 3072
LDS_BYTES = 163840
LOG2E = 0x3fb8aa3b
LN2 = 0x3f317218

S_X, S_B, S_W, S_WS = 4, 8, 12, 16
sT0, sT1, sT2, sT3 = 20, 21, 22, 23
sW, sXCD, sJ, sMT, sNT, sL0, sC0, sM2, sN2, sV = 24, 25, 26, 27, 28, 29, 30, 31, 32, 33
pX, pLRE, pLIM, pBRE, pBIM, pCRE, pCIM, pDT, pD, pW1, pB1, pW2, pOUT, pWS = 36, 38, 40, 42, 44, 46, 48, 50, 52, 56, 58, 60, 62, 66
sKX, sKB, sKW, sBX, sBB, sBW, sMX, sMB, sMASK, sSPIN = 68, 69, 70, 71, 72, 73, 74, 75, 76, 77
sUN = 78
sBUF, sHID, sFLG, sCI, sMH, sMW, sG0 = 85, 86, 87, 88, 89, 90, 91
STAMP_REGS = list(range(92, 102)) + [3, 54, 55, 64, 65, 0]
SPIN_MAX = 400000
NAMES_Y = ["-", "stpub", "G0", "Send", "G8", "G17", "gath", "hst", "fin", "end", "GC", "wiss", "flh", "ydone", "Gy", "T3"]
NAMES_X = ["-", "dma0", "c0", "w1iss", "G8", "Mend", "mish", "flB", "-", "end", "GC", "staged", "go", "lastmf", "gy", "i37"]
ORD = [0, 1, 2, 3, 4, 5, 6, 7, 10, 11, 12, 14, 15, 13, 8, 9]


class P:
    def __init__(self, opt):
        self.l = []
        self.vm = []
        self.done = -1
        self.opt = opt
        self.nlab = 0
        self.ool = []
        self.fs = opt.get("fs", 128)

    def __call__(self, s):
        for x in s.strip("\n").split("\n"):
            x = x.strip()
            if not x:
                continue
            self.l.append(x if x.endswith(":") else "    " + x)

    def vmem(self, s, tag=None):
        self(s)
        self.vm.append(tag)

    def last(self, tag):
        return max(i for i, t in enumerate(self.vm) if t == tag)

    def wait_vm(self, tag):
        idx = self.last(tag)
        if idx <= self.done:
            return
        n = len(self.vm) - 1 - idx
        assert n <= 63, n
        self(f"s_waitcnt vmcnt({n})")
        self.done = idx

    def save(self):
        return (list(self.vm), self.done)

    def restore(self, st):
        self.vm, self.done = list(st[0]), st[1]

    def label(self, base):
        self.nlab += 1
        return f"L_{base}_{self.nlab}"

    def stamp(self, i, group=0):
        if self.opt.get("stamps") and self.opt.get("sg", 0) == group:
            op = "s_memtime" if self.opt["stamps"] == 2 else "s_memrealtime"
            self(f"{op} s[34:35]\ns_waitcnt lgkmcnt(0)\ns_mov_b32 s{STAMP_REGS[i]}, s34")

    def raw(self, i):
        if self.opt.get("stamps") and self.opt.get("sg", 0) == 4:
            self(f"s_memrealtime s[{92 + 2 * i}:{93 + 2 * i}]")

    def text(self):
        return "\n".join(self.l) + "\n"


def vr(a, n=1):
    return f"v{a}" if n == 1 else f"v[{a}:{a + n - 1}]"


def off(o):
    return f" offset:{o}" if o else ""


def srd(p, d, ptr, nbytes):
    p(f"""
    s_mov_b32 s{d}, s{ptr}
    s_mov_b32 s{d + 1}, s{ptr + 1}
    s_mov_b32 s{d + 2}, {nbytes}
    s_mov_b32 s{d + 3}, 0x00020000
    """)


def mfma(d, a, b, first=False):
    return f"v_mfma_f32_16x16x32_bf16 {vr(d, 4)}, {vr(a, 4)}, {vr(b, 4)}, {'0' if first else vr(d, 4)}"


def mfma16(d, a, b, first=False):
    return f"v_mfma_f32_16x16x16_bf16 {vr(d, 4)}, {vr(a, 2)}, {vr(b, 2)}, {'0' if first else vr(d, 4)}"


vL, vTAG, vT0, vT1, vT2, vT3, vL16, vL16B = 0, 1, 2, 3, 4, 5, 6, 7


def rowfrag_addr(p, dst):
    p(f"""
    v_and_b32 v{vT0}, 15, v{vL}
    v_bfe_u32 v{vT1}, v{vL}, 1, 3
    v_lshrrev_b32 v{vT2}, 4, v{vL}
    v_xor_b32 v{vT1}, v{vT1}, v{vT2}
    v_lshlrev_b32 v{vT1}, 4, v{vT1}
    v_lshl_add_u32 v{dst}, v{vT0}, 7, v{vT1}
    """)


def w1_tr_addr0(p, dst):
    p(f"""
    v_lshrrev_b32 v{vT0}, 4, v{vL}
    v_bfe_u32 v{vT1}, v{vL}, 2, 2
    v_lshl_add_u32 v{vT2}, v{vT0}, 3, v{vT1}
    v_lshlrev_b32 v{vT2}, 8, v{vT2}
    v_lshl_add_u32 v{vT2}, v{vT1}, 6, v{vT2}
    v_and_b32 v{vT0}, 1, v{vT0}
    v_lshl_add_u32 v{vT2}, v{vT0}, 5, v{vT2}
    v_and_b32 v{vT1}, 3, v{vL}
    v_lshl_add_u32 v{vT2}, v{vT1}, 3, v{vT2}
    v_add_u32 v{dst}, {WR}, v{vT2}
    """)


def w1_dma_setup(p, vow):
    p(f"""
    v_lshrrev_b32 v{vT0}, 4, v{vL}
    v_bfe_u32 v{vT1}, v{vL}, 1, 3
    s_and_b32 s{sT0}, s{sV}, 1
    v_lshl_or_b32 v{vT2}, v{vT0}, 1, s{sT0}
    v_xor_b32 v{vT1}, v{vT1}, v{vT2}
    v_mul_u32_u24 v{vow}, 3584, v{vT0}
    v_lshl_add_u32 v{vow}, v{vT1}, 5, v{vow}
    v_and_b32 v{vT2}, 1, v{vL}
    v_lshl_add_u32 v{vow}, v{vT2}, 4, v{vow}
    s_and_b32 s{sT1}, s{sNT}, 3
    s_cmp_eq_u32 s{sT1}, 3
    s_cselect_b32 s{sT1}, 0x40000000, 0
    v_lshrrev_b32 v{vT1}, 2, v{vT1}
    v_mul_lo_u32 v{vT1}, v{vT1}, s{sT1}
    v_add_u32 v{vow}, v{vow}, v{vT1}
    v_add_u32 v{vow + 1}, 13312, v{vow}
    s_lshl_b32 s{sBW}, s{sL0}, 7
    s_mul_i32 s{sT2}, s{sV}, {8 * 3584}
    s_add_u32 s{sBW}, s{sBW}, s{sT2}
    s_lshl_b32 s{sMW}, s{sV}, 11
    """)


def w1_dma(p, c, vow):
    L = []
    for s in range(2):
        slot = (2 * c + s) % 7

        def a(s=s, slot=slot):
            if s == 0:
                p(f"""
                s_add_u32 s{sT0}, s{sC0}, {c}
                s_and_b32 s{sT0}, s{sT0}, 7
                s_mul_i32 s{sT0}, s{sT0}, {64 * 3584}
                s_add_u32 m0, s{sMW}, {WR + slot * 8192}
                s_add_u32 s{sKW}, s{sBW}, s{sT0}
                """)
            else:
                p(f"s_add_u32 m0, s{sMW}, {WR + slot * 8192}\ns_add_u32 s{sKW}, s{sKW}, {32 * 3584}")
            p.vmem(f"buffer_load_dwordx4 v{vow}, s[{S_W}:{S_W + 3}], s{sKW} offen lds", ("w", c))
        L.append(a)
        L.append(lambda: p.vmem(f"buffer_load_dwordx4 v{vow + 1}, s[{S_W}:{S_W + 3}], s{sKW} offen offset:1024 lds", ("w", c)))
    return L


def c_dma_setup(p, vo):
    p(f"""
    v_lshrrev_b32 v{vT0}, 4, v{vL}
    v_and_b32 v{vT1}, 7, v{vL}
    v_xor_b32 v{vT0}, v{vT0}, v{vT1}
    v_lshlrev_b32 v{vT0}, 4, v{vT0}
    v_lshrrev_b32 v{vT1}, 3, v{vL}
    v_lshl_add_u32 v{vo}, v{vT1}, 10, v{vT0}
    v_xor_b32 v{vo + 1}, 64, v{vo}
    v_add_u32 v{vo + 1}, 7168, v{vo + 1}
    v_add_u32 v{vo + 2}, 14336, v{vo}
    v_add_u32 v{vo + 3}, 14336, v{vo + 1}
    """)


def make_tag(p):
    p(f"""
    s_mov_b32 s{sT0}, 0x9E3779B1
    v_mul_lo_u32 v{vTAG}, v{vTAG}, s{sT0}
    v_add_u32 v{vTAG}, 0x7F4A7C15, v{vTAG}
    """)


def retry(p, cond, test, reload):
    chk, ok, rt = p.label("chk"), p.label("ok"), p.label("retry")
    p(f"{chk}:")
    test()
    p(f"{cond} {rt}\n{ok}:")
    main, p.l = p.l, []
    p(f"""
    {rt}:
    s_sub_u32 s{sSPIN}, s{sSPIN}, 1
    s_cmp_gt_i32 s{sSPIN}, 0
    s_cbranch_scc0 {ok}
    """)
    reload()
    p(f"s_branch {chk}")
    p.ool += p.l
    p.l = main


sPF = 8


def poll_setup(p, grp_expr):
    p(f"""
    s_mul_i32 s{sT0}, s{sM2}, 12
    {grp_expr}
    s_lshl_b32 s{sT0}, s{sT0}, 7
    s_add_u32 s{sT0}, s{sT0}, {WS_FLAGS}
    s_add_u32 s42, s{pWS}, s{sT0}
    s_addc_u32 s43, s{pWS + 1}, 0
    v_readfirstlane_b32 s40, v{vTAG}
    v_readfirstlane_b32 s41, v{vTAG}
    """)


def poll_issue(p, o_, sPF=sPF):
    p(f"s_load_dwordx8 s[{sPF}:{sPF + 7}], s[42:43], {o_} glc")


def poll_check(p, o_, sPF=sPF):
    def test():
        p("s_waitcnt lgkmcnt(0)")
        for k in range(0, 8, 2):
            p(f"s_xor_b64 s[{sPF + k}:{sPF + k + 1}], s[{sPF + k}:{sPF + k + 1}], s[40:41]")
        p(f"""
        s_or_b64 s[{sPF}:{sPF + 1}], s[{sPF}:{sPF + 1}], s[{sPF + 2}:{sPF + 3}]
        s_or_b64 s[{sPF + 4}:{sPF + 5}], s[{sPF + 4}:{sPF + 5}], s[{sPF + 6}:{sPF + 7}]
        s_or_b64 s[{sPF}:{sPF + 1}], s[{sPF}:{sPF + 1}], s[{sPF + 4}:{sPF + 5}]
        """)
    retry(p, "s_cbranch_scc1", test, lambda: poll_issue(p, o_, sPF))


def delay_until(p, us):
    assert p.opt.get("stamps")
    lab = p.label("dly")
    p(f"""
    s_waitcnt vmcnt(0)
    s_add_u32 s{sT0}, s100, {int(us * 100)}
    {lab}:
    s_memrealtime s[34:35]
    s_waitcnt lgkmcnt(0)
    s_sub_u32 s{sT1}, s34, s{sT0}
    s_cmp_lt_i32 s{sT1}, 0
    s_cbranch_scc1 {lab}
    """)


def flag_store(p, sreg, add):
    p(f"s_add_u32 s{sT0}, s{sreg}, {add}\ns_mov_b64 exec, 1")
    p.vmem(f"buffer_store_dword v{vTAG}, off, s[{S_WS}:{S_WS + 3}], s{sT0} sc1", "flag")
    p("s_mov_b64 exec, -1")


def cmul(p, d, a, b, add=None):
    if add is None:
        p(f"v_pk_mul_f32 {vr(d, 2)}, {vr(a, 2)}, {vr(b, 2)} op_sel_hi:[0,1]")
    else:
        p(f"v_pk_fma_f32 {vr(d, 2)}, {vr(a, 2)}, {vr(b, 2)}, {vr(add, 2)} op_sel_hi:[0,1,1]")
    p(f"v_pk_fma_f32 {vr(d, 2)}, {vr(a, 2)}, {vr(b, 2)}, {vr(d, 2)} op_sel:[1,1,0] op_sel_hi:[1,0,1] neg_lo:[0,1,0]")


def entry(p):
    o = p.opt
    p(f"""
    s_load_dwordx16 s[36:51], s[0:1], 0
    s_load_dwordx16 s[52:67], s[0:1], 64
    s_getpc_b64 s[34:35]
    L_pc:
    s_cmp_ge_u32 s2, 256
    s_cbranch_scc1 L_end
    v_lshrrev_b32 v{vT0}, 6, v0
    s_lshr_b32 s{sJ}, s2, 3
    v_and_b32 v{vL}, 63, v0
    v_readfirstlane_b32 s{sW}, v{vT0}
    v_lshl_add_u32 v{vT0}, s{sJ}, 3, v{vT0}
    v_lshlrev_b32 v{vT0}, 7, v{vT0}
    v_min_u32 v{vT0}, L_end-L_pc, v{vT0}
    """)
    p.vmem(f"global_load_dword v255, v{vT0}, s[34:35]", "pf")
    if o.get("stamps"):
        p(("s_memtime" if o["stamps"] == 2 else "s_memrealtime") + " s[92:93]")
        if o.get("sg", 0) != 4:
            p("s_memrealtime s[100:101]")
    p(f"s_and_b32 s{sXCD}, s2, 7")
    if o.get("part", 24) == 24:
        p(f"""
        s_and_b32 s{sT0}, s{sJ}, 7
        s_lshr_b32 s{sT1}, s{sJ}, 3
        s_lshr_b32 s{sMT}, s{sXCD}, 2
        s_lshl3_add_u32 s{sMT}, s{sMT}, s{sT0}
        s_and_b32 s{sT2}, s{sXCD}, 3
        s_lshl2_add_u32 s{sNT}, s{sT2}, s{sT1}
        """)
    else:
        p(f"""
        s_and_b32 s{sT0}, s{sJ}, 3
        s_lshr_b32 s{sT1}, s{sJ}, 2
        s_lshr_b32 s{sMT}, s{sXCD}, 1
        s_lshl2_add_u32 s{sMT}, s{sMT}, s{sT0}
        s_and_b32 s{sT2}, s{sXCD}, 1
        s_lshl3_add_u32 s{sNT}, s{sT2}, s{sT1}
        """)
    rm, rn, rx, ry = o.get("rm", 1), o.get("rn", 2), o.get("rx", 1), o.get("ry", 0)
    p(f"""
    s_mul_i32 s{sC0}, s{sT0}, {rm}
    s_mul_i32 s{sT1}, s{sT1}, {rn}
    s_add_u32 s{sC0}, s{sC0}, s{sT1}
    s_mul_i32 s{sT1}, s{sXCD}, {rx}
    s_add_u32 s{sC0}, s{sC0}, s{sT1}
    """)
    if ry:
        p(f"s_lshr_b32 s{sT1}, s{sXCD}, 2\ns_mul_i32 s{sT1}, s{sT1}, {ry}\ns_add_u32 s{sC0}, s{sC0}, s{sT1}")
    p(f"""
    s_and_b32 s{sV}, s{sW}, 3
    s_lshr_b32 s{sMH}, s{sV}, 1
    s_cmp_ge_u32 s{sW}, 4
    s_cbranch_scc1 L_X
    """)


def late_ids(p):
    p(f"""
    s_lshr_b32 s{sT0}, s{sNT}, 2
    s_lshl_b32 s{sL0}, s{sNT}, 1
    s_sub_u32 s{sL0}, s{sL0}, s{sT0}
    """)
    if p.opt.get("part2", 81) == 81:
        p(f"""
        s_and_b32 s{sFLG}, s{sJ}, 3
        s_lshl2_add_u32 s{sM2}, s{sXCD}, s{sFLG}
        s_lshr_b32 s{sN2}, s{sJ}, 2
        s_xor_b32 s{sN2}, s{sN2}, {p.opt.get('nx', 5)}
        """)
    else:
        p(f"""
        s_and_b32 s{sFLG}, s{sJ}, 7
        s_lshr_b32 s{sT0}, s{sXCD}, 1
        s_lshl3_add_u32 s{sM2}, s{sT0}, s{sFLG}
        s_and_b32 s{sT0}, s{sXCD}, 1
        s_lshr_b32 s{sN2}, s{sJ}, 3
        s_lshl2_add_u32 s{sN2}, s{sT0}, s{sN2}
        """)
    p(f"""
    s_mov_b32 s{sSPIN}, {SPIN_MAX}
    s_lshl1_add_u32 s{sCI}, s{sMT}, s{sMH}
    s_mov_b32 s{sMASK}, 0xffff0000
    s_mul_i32 s{sFLG}, s{sFLG}, {p.opt.get('rs2', 0)}
    s_mul_i32 s{sT0}, s{sXCD}, {p.opt.get('rx2', 1)}
    s_add_u32 s{sFLG}, s{sFLG}, s{sT0}
    s_add_u32 s{sG0}, s{sFLG}, {('s%d' % sN2) if p.opt.get('rot2', 1) else 0}
    s_and_b32 s{sG0}, s{sG0}, 1
    s_mul_i32 s{sHID}, s{sM2}, {352 * 1024}
    s_add_u32 s{sHID}, s{sHID}, {WS_HID}
    v_lshlrev_b32 v{vL16}, 4, v{vL}
    v_add_u32 v{vL16B}, 4096, v{vL16}
    """)


vRING, NRING, vACC2, vB2 = 8, 13, 64, 128
vPW = 60


def ph2_loop(p, items, hooks_pre, hooks_post, side, ramp, after_ramp=None, NRING=NRING, depth=None, tail=None):
    n = len(items)

    def load(g):
        if g in hooks_pre:
            hooks_pre[g]()
        sreg, second, tb, _, _ = items[g]
        r = vRING + 4 * (g % NRING)
        p.vmem(f"buffer_load_dwordx4 {vr(r, 4)}, v{vL16B if second else vL16}, s[{S_WS}:{S_WS + 3}], s{sreg} offen{off(1024 * (tb ^ second))} sc1", ("a", g))
    depth = depth or p.opt.get("depth", 10)
    assert depth < NRING
    issued = 0
    for g in range(ramp):
        load(g)
        issued += 1
    if after_ramp:
        after_ramp()
    nreg = n if tail is None else tail[0]
    for g in range(nreg):
        _, _, tb, b2, first = items[g]
        p.wait_vm(("a", g))
        r = vRING + 4 * (g % NRING)
        sd = side.get(g, [])
        for db in range(4):
            p(mfma(vACC2 + 16 * tb + 4 * db, b2 + 4 * db, r, first))
            if db in (0, 2) and issued < n and issued <= g + depth:
                load(issued)
                issued += 1
            if db >= 1:
                k = -(-len(sd) // (4 - db))
                for x in sd[:k]:
                    p(x)
                sd = sd[k:]
        if g in hooks_post:
            hooks_post[g]()
    if tail is None:
        return
    _, ts = tail
    pend = None
    for g0 in range(nreg, n, ts):
        tb = items[g0][2]
        W = pw_list(tb)
        for db in range(4):
            for k in range(ts):
                g = g0 + k
                if db == 0:
                    p.wait_vm(("a", g))
                p(mfma(vACC2 + 16 * tb + 4 * db, items[g][3] + 4 * db, vRING + 4 * (g % NRING), False))
                free = g if db == 3 else g0 - 1
                if (k & 1 or db == 3) and issued < n and issued - NRING < free:
                    load(issued)
                    issued += 1
                if k == ts - 1 and pend is not None:
                    p("s_nop 1" if db else "s_nop 0")
                    p(pend)
                    pend = None
                if db == 1 and k == 2 and g0 > nreg:
                    p("s_waitcnt lgkmcnt(0)\ns_barrier")
                for x in side.get((g0, db, k), []):
                    p(x)
            pend = W[db]
    p.stamp(13)
    p("s_nop 7")
    p(pend)
    p("s_waitcnt lgkmcnt(0)\ns_barrier")


def spread(side, L, start, per):
    for i in range(0, len(L), per):
        side.setdefault(start + i // per, []).extend(L[i:i + per])


def partial_addr():
    return f"""v_lshrrev_b32 v{vT0}, 4, v{vL}
    v_and_b32 v{vT1}, 15, v{vL}
    v_xor_b32 v{vT1}, v{vT1}, v{vT0}
    v_lshlrev_b32 v{vT1}, 4, v{vT1}
    v_lshl_add_u32 v{vT1}, v{vT0}, 8, v{vT1}
    v_add_u32 v{vPW}, s{sBUF}, v{vT1}
    v_xor_b32 v{vPW + 1}, 64, v{vPW}
    v_xor_b32 v{vPW + 2}, 128, v{vPW}
    v_xor_b32 v{vPW + 3}, 192, v{vPW}""".split("\n")


def pw_list(tb):
    o_ = 32768 * (tb >> 1) + 4096 * (tb & 1)
    return [f"ds_write_b128 v{vPW + db}, {vr(vACC2 + 16 * tb + 4 * db, 4)} offset:{o_ + 1024 * db}" for db in range(4)]


def partial_write(p, tb):
    for x in pw_list(tb):
        p(x)


yAX, yAB, yAS = 248, 250, 252
yOW = 8
yCW, yR2 = 14, 60
yC, yL, yL16, yQ16, yQ64, yL256, yPQ = 16, 18, 20, 22, 24, 26, 28
yONE, yB1, ySEL = 32, 30, 36
yCS = 40
yCF = 96
yRE, yIM = 64, 80
yFR = 128
yM, yR = 176, 192
yGD = 96
yTA, yTB, yG0, yG1 = 48, 50, 52, 54
yL64, yQM, yGD2, yGA, yNL, ySA = 30, 126, 96, 118, 38, 122


def half_reduce(p, a, t):
    for r in (8, 4, 2, 1):
        p(f"s_nop 1\nv_add_f32_dpp v{a}, v{a}, v{a} row_ror:{r} row_mask:0xf bank_mask:0xf")
    p(f"""
    v_mov_b32 v{t}, v{a}
    s_nop 1
    v_permlane16_swap_b32 v{a}, v{t}
    s_nop 1
    v_add_f32 v{a}, v{a}, v{t}
    """)


def y_prologue(p):
    D = 208
    PR = 244
    p.raw(1)
    p(f"""
    v_and_b32 v{vT0}, 31, v{vL}
    v_lshrrev_b32 v{vT1}, 5, v{vL}
    v_lshlrev_b32 v{vT2}, 4, v{vT0}
    v_lshl_add_u32 v{vT2}, v{vT1}, 10, v{vT2}
    s_lshl4_add_u32 s{sT0}, s{sMT}, s{sNT}
    s_lshl2_add_u32 s{sT0}, s{sT0}, s{sW}
    s_lshl_b32 s{sKX}, s{sT0}, 11
    s_lshl_b32 s{sKB}, s{sT0}, 4
    s_waitcnt lgkmcnt(0)
    """)
    srd(p, S_X, pX, 2048 * 1024)
    p.vmem(f"buffer_load_dwordx4 {vr(D, 4)}, v{vT2}, s[{S_X}:{S_X + 3}], s{sKX} offen", "xr")
    p.vmem(f"buffer_load_dwordx4 {vr(D + 4, 4)}, v{vT2}, s[{S_X}:{S_X + 3}], s{sKX} offen offset:512", "xr")
    p.raw(2)
    srd(p, S_WS, pWS, WS_BYTES)
    p.vmem(f"buffer_load_dword v{vTAG}, off, s[{S_WS}:{S_WS + 3}], 0 sc1", "xr")
    p.l.append("@YCUT")
    late_ids(p)
    p(f"""
    s_add_u32 s{sKB}, s{sKB}, {WS_STATS}
    v_and_b32 v{vT0}, 15, v{vL}
    s_and_b32 s{sT1}, s{sV}, 1
    s_lshl1_add_u32 s{sT0}, s{sNT}, s{sT1}
    s_lshl_b32 s{sT0}, s{sT0}, 4
    v_add_lshl_u32 v{vT2}, v{vT0}, s{sT0}, 1
    """)
    p.vmem(f"global_load_ushort v{PR}, v{vT2}, s[{pLRE}:{pLRE + 1}]", "par")
    p.vmem(f"global_load_ushort v{PR + 1}, v{vT2}, s[{pLIM}:{pLIM + 1}]", "par")
    p.vmem(f"global_load_ushort v{PR + 2}, v{vT2}, s[{pDT}:{pDT + 1}]", "par")
    rowfrag_addr(p, yAX)
    p(f"""
    s_lshl_b32 s{sT0}, s{sT1}, 11
    s_add_u32 s{sT0}, s{sT0}, {BR}
    v_add_u32 v{yAB}, s{sT0}, v{yAX}
    s_lshl_b32 s{sT0}, s{sMH}, 13
    s_add_u32 s{sT0}, s{sT0}, {XR}
    v_add_u32 v{yAX}, s{sT0}, v{yAX}
    v_xor_b32 v{yAX + 1}, 64, v{yAX}
    v_xor_b32 v{yAB + 1}, 64, v{yAB}
    """)
    for k in range(4):
        p(f"v_mov_b32 v{yONE + k}, 0x3f803f80")
    p(f"""
    v_and_b32 v{vT0}, 15, v{vL}
    v_lshrrev_b32 v{vT1}, 4, v{vL}
    v_lshlrev_b32 v{vT1}, 2, v{vT1}
    v_sub_u32 v{vT0}, v{vT0}, v{vT1}
    v_mov_b32 v{vT1}, 0x3f80
    v_mov_b32 v{vT2}, 0x3f800000
    """)
    for dw in range(2):
        p(f"""
        v_cmp_eq_u32 vcc, {2 * dw}, v{vT0}
        v_cmp_eq_u32 s[{sT0}:{sT1}], {2 * dw + 1}, v{vT0}
        s_nop 0
        v_cndmask_b32 v{ySEL + dw}, 0, v{vT1}, vcc
        v_cndmask_b32 v{ySEL + dw}, v{ySEL + dw}, v{vT2}, s[{sT0}:{sT1}]
        """)
    p(f"""
    v_lshrrev_b32 v{vT1}, 4, v{vL}
    s_lshl_b32 s{sT0}, s{sMH}, 8
    s_add_u32 s{sT0}, s{sT0}, {L_M}
    v_lshl_add_u32 v{yAS}, v{vT1}, 6, s{sT0}
    """)
    y_m_setup(p)
    if p.opt.get("pt", 1):
        p(f"""
        s_add_u32 s38, s{pWS}, s{sKB}
        s_addc_u32 s39, s{pWS + 1}, 0
        s_load_dword s58, s[38:39], 0 {'glc' if p.opt.get('ptg', 1) else ''}
        s_mul_i32 s{sT0}, s{sCI}, 12
        s_lshr_b32 s{sT1}, s{sNT}, 2
        s_add_u32 s{sT0}, s{sT0}, s{sT1}
        s_lshl_b32 s{sT0}, s{sT0}, 7
        s_add_u32 s{sT0}, s{sT0}, {WS_FLAGS}
        s_add_u32 s38, s{pWS}, s{sT0}
        s_addc_u32 s39, s{pWS + 1}, 0
        s_load_dword s58, s[38:39], 0 {'glc' if p.opt.get('ptg', 1) else ''}
        """)
    p.raw(3)
    p.wait_vm("xr")
    p.raw(4)
    make_tag(p)
    F = D + 8
    for k in range(8):
        p(f"v_lshlrev_b32 v{F + 2 * k}, 16, v{D + k}\nv_and_b32 v{F + 2 * k + 1}, s{sMASK}, v{D + k}")
    A = D + 24
    p(f"v_pk_add_f32 {vr(A, 2)}, {vr(F, 2)}, {vr(F + 2, 2)}")
    for k in range(2, 8):
        p(f"v_pk_add_f32 {vr(A, 2)}, {vr(A, 2)}, {vr(F + 2 * k, 2)}")
    p(f"v_add_f32 v{A}, v{A}, v{A + 1}")
    half_reduce(p, A, A + 1)
    p(f"v_mul_f32 v{A}, 0x3b000000, v{A}")
    for k in range(8):
        p(f"v_pk_add_f32 {vr(F + 2 * k, 2)}, {vr(F + 2 * k, 2)}, {vr(A, 2)} op_sel_hi:[1,0] neg_lo:[0,1] neg_hi:[0,1]")
    p(f"v_pk_mul_f32 {vr(A + 2, 2)}, {vr(F, 2)}, {vr(F, 2)}")
    for k in range(1, 8):
        p(f"v_pk_fma_f32 {vr(A + 2, 2)}, {vr(F + 2 * k, 2)}, {vr(F + 2 * k, 2)}, {vr(A + 2, 2)}")
    p(f"v_add_f32 v{A + 2}, v{A + 2}, v{A + 3}")
    half_reduce(p, A + 2, A + 3)
    p(f"""
    v_mul_f32 v{A + 2}, 0x3b000000, v{A + 2}
    v_cvt_pk_bf16_f32 v{A + 2}, v{A + 2}, v{A + 2}
    v_and_b32 v{A + 2}, s{sMASK}, v{A + 2}
    v_add_f32 v{A + 2}, 0x3727c5ac, v{A + 2}
    v_cvt_pk_bf16_f32 v{A + 2}, v{A + 2}, v{A + 2}
    v_and_b32 v{A + 2}, s{sMASK}, v{A + 2}
    v_sqrt_f32 v{A + 2}, v{A + 2}
    v_lshrrev_b32 v{vT1}, 5, v{vL}
    v_cvt_pk_bf16_f32 v{A}, v{A}, v{A + 2}
    v_mov_b32 v{A + 1}, v{vTAG}
    v_lshlrev_b32 v{vT1}, 3, v{vT1}
    s_mov_b32 exec_lo, 1
    s_mov_b32 exec_hi, 1
    """)
    p.vmem(f"buffer_store_dwordx2 {vr(A, 2)}, v{vT1}, s[{S_WS}:{S_WS + 3}], s{sKB} offen sc1", "stst")
    p("s_mov_b64 exec, -1")
    p.stamp(1)


def y_consts(p):
    PR, t = 244, 208
    main, p.l = p.l, []
    p(f"v_mov_b32 v58, v{vTAG}\nv_mov_b32 v59, v{vTAG}")
    p(f"""
    v_lshlrev_b32 v{PR}, 16, v{PR}
    v_lshlrev_b32 v{PR + 1}, 16, v{PR + 1}
    v_lshlrev_b32 v{PR + 2}, 16, v{PR + 2}
    v_mul_f32 v{PR + 2}, {LOG2E}, v{PR + 2}
    v_exp_f32 v{PR + 2}, v{PR + 2}
    s_nop 0
    v_cvt_pk_bf16_f32 v{PR + 2}, v{PR + 2}, v{PR + 2}
    v_and_b32 v{PR + 2}, s{sMASK}, v{PR + 2}
    v_mul_f32 v{t}, v{PR + 2}, v{PR}
    v_mul_f32 v{t + 1}, v{PR + 2}, v{PR + 1}
    v_mul_f32 v{t}, {LOG2E}, v{t}
    v_mul_f32 v{t + 1}, 0.15915494, v{t + 1}
    v_exp_f32 v{t}, v{t}
    v_rndne_f32 v{t + 2}, v{t + 1}
    v_sub_f32 v{t + 1}, v{t + 1}, v{t + 2}
    v_cos_f32 v{t + 2}, v{t + 1}
    v_sin_f32 v{t + 3}, v{t + 1}
    v_mul_f32 v{t + 4}, v{PR}, v{PR}
    v_fmac_f32 v{t + 4}, v{PR + 1}, v{PR + 1}
    v_rcp_f32 v{t + 4}, v{t + 4}
    v_mul_f32 v{yL}, v{t}, v{t + 2}
    v_mul_f32 v{t + 3}, v{t}, v{t + 3}
    v_sub_f32 v{yL + 1}, 0, v{t + 3}
    v_add_f32 v{t + 2}, -1.0, v{yL}
    v_add_f32 v{t + 4}, v{t + 4}, v{t + 4}
    v_mul_f32 v{yC}, v{t + 2}, v{PR}
    v_fmac_f32 v{yC}, v{t + 3}, v{PR + 1}
    v_mul_f32 v{yC + 1}, v{t + 3}, v{PR}
    v_fma_f32 v{yC + 1}, -v{t + 2}, v{PR + 1}, v{yC + 1}
    v_mul_f32 v{yC}, v{yC}, v{t + 4}
    v_mul_f32 v{yC + 1}, v{yC + 1}, v{t + 4}
    v_and_b32 v{vT0}, 16, v{vL}
    v_cmp_ne_u32 s[42:43], 0, v{vT0}
    v_cmp_le_u32 s[44:45], 32, v{vL}
    """)
    a, b, c, d = t + 6, t + 8, t + 10, t + 12
    cmul(p, a, yL, yL)
    cmul(p, b, a, a)
    cmul(p, a, b, b)
    cmul(p, yL16, a, a)
    cmul(p, a, yL16, yL16)

    def qpow(dst, p1, p2):
        p(f"""
        v_cndmask_b32 v{c}, 1.0, v{p1}, s[42:43]
        v_cndmask_b32 v{c + 1}, 0, v{p1 + 1}, s[42:43]
        v_cndmask_b32 v{d}, 1.0, v{p2}, s[44:45]
        v_cndmask_b32 v{d + 1}, 0, v{p2 + 1}, s[44:45]
        """)
        cmul(p, dst, c, d)
    qpow(yQ16, yL16, a)
    cmul(p, yL64, a, a)
    p(f"""
    s_cmp_eq_u32 s{sMH}, 0
    s_cselect_b64 vcc, -1, 0
    s_cselect_b32 s59, 0, 1.0
    v_cndmask_b32_e64 v{c}, v{yL64}, 1.0, vcc
    v_cndmask_b32_e64 v{c + 1}, v{yL64 + 1}, 0, vcc
    """)
    cmul(p, yQM, c, yQ16)
    cmul(p, a, yL64, yL64)
    cmul(p, b, a, a)
    qpow(yQ64, a, b)
    cmul(p, yL256, b, b)
    p(f"""
    v_sub_f32 v{yNL}, 0, v{yL + 1}
    v_sub_f32 v{yNL + 1}, 0, v{yL256 + 1}
    """)
    L, p.l = p.l, main
    return L


def y_pass_s(p):
    def reads(c, s, st):
        b = yFR + 24 * st
        G = [[f"ds_read_b128 {vr(b + 16 + 4 * k, 4)}, v{yAB + s} offset:{(c % 3) * 8192 + k * 4096}" for k in range(2)]]
        G += [[f"ds_read_b128 {vr(b + 4 * tb, 4)}, v{yAX + s} offset:{(c & 3) * 16384 + tb * 2048}"] for tb in range(4)]
        return G
    p("s_waitcnt lgkmcnt(0)\ns_barrier")
    p.stamp(2)
    issued, mark = 0, {}
    for g, L in enumerate(reads(0, 0, 0)):
        for x in L:
            p(x)
            issued += 1
        mark[(0, g)] = issued
    K = y_consts(p)
    nk = -(-len(K) // p.opt.get("kn", 5))
    for n in range(16):
        c, s = divmod(n, 2)
        st = n & 1
        b = yFR + 24 * st
        M = [[mfma(yCS, yONE, b + 16, n == 0), mfma(yCS + 4, yONE, b + 20, n == 0)]]
        M += [[mfma(yRE + 4 * tb, b + 4 * tb, b + 16, n == 0), mfma(yIM + 4 * tb, b + 4 * tb, b + 20, n == 0)] for tb in range(4)]
        if n < 15:
            R = reads((n + 1) >> 1, (n + 1) & 1, st ^ 1)
        else:
            R = [[f"ds_read_b128 {vr(yM + 4 * tb, 4)}, v{yAS} offset:{16 * tb}", f"ds_read_b128 {vr(yR + 4 * tb, 4)}, v{yAS} offset:{512 + 16 * tb}"] for tb in range(4)] + [[]]
        for g in range(5):
            p(f"s_waitcnt lgkmcnt({issued - mark[(n, g)]})")
            p(M[g][0])
            if g == 0 and s == 1 and c < 7:
                p(M[g][1])
                if K:
                    p.wait_vm("par")
                for x in K[:nk]:
                    p(x)
                K = K[nk:]
                p("s_barrier")
            if g == 0 and n in (7, 8):
                p(f"v_add_u32 v{yAX + ((n + 1) & 1)}, 65536, v{yAX + ((n + 1) & 1)}")
            for i, x in enumerate(R[g]):
                p(x)
                issued += 1
                if i == 0 and not (g == 0 and s == 1 and c < 7):
                    p(M[g][1])
            if not R[g]:
                p(M[g][1])
            mark[(n + 1, g)] = issued
    p("s_waitcnt lgkmcnt(0)")
    p.stamp(3)


def yU(tau):
    tb, i = divmod(tau, 4)
    return (yRE if i % 2 == 0 else yIM) + 4 * tb + (i & ~1)


def y_window(p):
    g, gn = yG0, yG1
    p("s_nop 1")
    if p.opt.get("al", 1):
        p(".p2align 3")
    for tau in range(0, 16, 2):
        a, b = yRE + tau, yIM + tau
        p(f"""
        v_pk_fma_f32 {vr(yTA, 2)}, {vr(yM + tau, 2)}, {vr(yCS, 2)}, {vr(a, 2)} neg_lo:[1,0,0] neg_hi:[1,0,0]
        v_pk_fma_f32 {vr(yTB, 2)}, {vr(yM + tau, 2)}, {vr(yCS + 4, 2)}, {vr(b, 2)} neg_lo:[1,0,0] neg_hi:[1,0,0]
        v_pk_mul_f32 {vr(yTA, 2)}, {vr(yTA, 2)}, {vr(yR + tau, 2)}
        v_pk_mul_f32 {vr(yTB, 2)}, {vr(yTB, 2)}, {vr(yR + tau, 2)}
        v_pk_mul_f32 {vr(a, 2)}, {vr(yTA, 2)}, {vr(yC, 2)} op_sel_hi:[0,1] neg_hi:[0,1]
        v_pk_mul_f32 {vr(b, 2)}, {vr(yTA, 2)}, {vr(yC, 2)} op_sel:[1,0] op_sel_hi:[1,1] neg_hi:[0,1]
        v_pk_fma_f32 {vr(a, 2)}, {vr(yTB, 2)}, {vr(yC, 2)}, {vr(a, 2)} op_sel:[0,1,0] op_sel_hi:[0,0,1] neg_lo:[0,1,0] neg_hi:[0,1,0]
        v_pk_fma_f32 {vr(b, 2)}, {vr(yTB, 2)}, {vr(yC, 2)}, {vr(b, 2)} op_sel:[1,1,0] op_sel_hi:[1,0,1] neg_lo:[0,1,0] neg_hi:[0,1,0]
        """)
        if tau == 0:
            cmul(p, g, yU(0), yL, yU(1))
        else:
            cmul(p, gn, g, yL, yU(tau))
            cmul(p, g, gn, yL, yU(tau + 1))
    GR = 56
    p(f"""
    v_mov_b32 v{gn}, v{g}
    v_mov_b32 v{gn + 1}, v{g + 1}
    s_nop 1
    v_permlane16_swap_b32 v{g}, v{gn}
    v_permlane16_swap_b32 v{g + 1}, v{gn + 1}
    v_mov_b32 v{yTA}, v{g}
    v_mov_b32 v{yTA + 1}, v{g + 1}
    v_mov_b32 v{yTB}, v{gn}
    v_mov_b32 v{yTB + 1}, v{gn + 1}
    v_permlane32_swap_b32 v{g}, v{yTA}
    v_permlane32_swap_b32 v{g + 1}, v{yTA + 1}
    v_permlane32_swap_b32 v{gn}, v{yTB}
    v_permlane32_swap_b32 v{gn + 1}, v{yTB + 1}
    s_nop 0
    """)
    cmul(p, gn, g, yL16, gn)
    cmul(p, yTA, gn, yL16, yTA)
    cmul(p, GR, yTA, yL16, yTB)
    p(f"ds_write_b64 v{ySA}, {vr(GR, 2)}")
    for k in range(2):
        p(f"""
        v_cndmask_b32 v{g + k}, 0, v{g + k}, s[42:43]
        v_cndmask_b32 v{gn + k}, v{gn + k}, v{yTA + k}, s[42:43]
        v_cndmask_b32 v{yPQ + k}, v{g + k}, v{gn + k}, s[44:45]
        """)
    p("s_waitcnt lgkmcnt(0)\ns_barrier")
    p.stamp(4)
    p.stamp(1, 1)
    p.stamp(1, 2)
    p(f"ds_read_b64 {vr(yTA, 2)}, v{ySA + 1}")


def y_publish(p):
    GR = 56
    p(f"""
    s_waitcnt lgkmcnt(0)
    v_mul_f32 v{yTA}, s59, v{yTA}
    v_mul_f32 v{yTA + 1}, s59, v{yTA + 1}
    v_mul_f32 v{GR}, s59, v{GR}
    v_mul_f32 v{GR + 1}, s59, v{GR + 1}
    v_fmac_f32 v{GR}, v{yTA}, v{yL64}
    v_fmac_f32 v{GR + 1}, v{yTA}, v{yL64 + 1}
    v_fma_f32 v{GR}, -v{yTA + 1}, v{yL64 + 1}, v{GR}
    v_fmac_f32 v{GR + 1}, v{yTA + 1}, v{yL64}
    s_mov_b64 exec, 0xffff
    """)
    p.vmem(f"buffer_store_dwordx4 {vr(GR, 4)}, v{ySA + 2}, s[{S_WS}:{S_WS + 3}], s{sMB} offen sc1", "S")
    p(f"""
    s_mov_b64 exec, -1
    v_fmac_f32 v{yPQ}, v{yTA}, v{yQ16}
    v_fmac_f32 v{yPQ + 1}, v{yTA}, v{yQ16 + 1}
    v_fma_f32 v{yPQ}, -v{yTA + 1}, v{yQ16 + 1}, v{yPQ}
    v_fmac_f32 v{yPQ + 1}, v{yTA + 1}, v{yQ16}
    """)


class Rebase:
    def __init__(self, reg, base):
        self.reg, self.base = reg, base

    def at(self, q):
        d = 32768 * q - self.base
        if d in (0, 32768):
            return [], d
        self.base += d
        op, d = ("v_add_u32", d) if d > 0 else ("v_subrev_u32", -d)
        return [f"{op} v{self.reg + k}, {d}, v{self.reg + k}" for k in range(4)], 0


def with_pre(pre, L):
    if pre:
        L[0] = "\n".join(pre) + "\n" + L[0]
    return L


def w2_unit_head(p, slot):
    p(f"s_lshl_b32 s{sKB}, s{sUN + slot}, 16\ns_add_u32 s{sKB}, s{sKB}, s{sBB}")


yOC, yO2 = 10, 32


class Stage:
    ORDERS = {0: "C2 C3 C4 C2 W3 W4 W2 W0 W1",
              1: "C2 W3 W4 C2 W2 C0 C1 W0 W1",
              2: "W3 W4 W2 C0 C1 C0 C1 W0 W1",
              3: "C2 C4 W3 W4 W2 C0 C1 W0 W1",
              4: "C2 W3 C4 C2 W4 W2 C0 W0 W1"}

    def __init__(self, p):
        self.p = p
        self.todo, n, last, self.cq = [], {"C": 0, "W": 0}, {}, []
        for x in self.ORDERS[p.opt.get("seq", 0)].split():
            kind, q = x[0], int(x[1])
            self.todo.append((kind, n[kind], q, last.get(q, -1)))
            if kind == "C":
                last[q] = n[kind]
                self.cq.append(q)
            n[kind] += 1
        self.cur, self.k = None, 0
        self.read = 0
        self.full = set()
        self.late = False
        self.rb = Rebase(yR2, 65536)

    def pick(self):
        if self.cur is None:
            for u in self.todo:
                if (u[2] >= 2 or self.late) and self.read > u[3]:
                    self.cur, self.k = u, 0
                    self.todo.remove(u)
                    break
        return self.cur

    def left(self):
        return 8 * len(self.todo) + (8 - self.k if self.cur else 0)

    def done(self):
        return not self.todo and self.cur is None

    def dma(self, need_m0=True):
        p = self.p
        if self.pick() is None:
            return False
        kind, u, q, _ = self.cur
        k = self.k
        if need_m0 or k % 4 == 0:
            p(f"s_add_u32 m0, s{sBUF}, {32768 * q + 4096 * (k // 4)}")
            if k % 4:
                p("s_nop 0")
        if k == 0 and kind == "W":
            w2_unit_head(p, u)
        if k == 0 and kind == "C":
            ptr = pCIM if u & 1 else pCRE
            p(f"s_mov_b32 s{S_X}, s{ptr}\ns_mov_b32 s{S_X + 1}, s{ptr + 1}\ns_xor_b32 s{sKB}, s{sKX}, {128 * (u >> 1)}")
        if k == 4:
            p(f"s_add_u32 s{sKB}, s{sKB}, 32768")
        vo, sr = (yOC, S_X) if kind == "C" else (yO2, S_B)
        p.vmem(f"buffer_load_dwordx4 v{vo + k % 4}, s[{sr}:{sr + 3}], s{sKB} offen{off(1024 * (k % 4))} lds", (kind, u) if kind == "C" else "W")
        self.k += 1
        if self.k == 8:
            self.full.add((kind, u))
            self.cur = None
        return True

    def reads(self, u):
        pre, imm = self.rb.at(self.cq[u])
        if pre and self.late and self.p.opt.get("yp", 1):
            pre = ["s_setprio 3"] + pre + ["s_setprio 0"]
        return with_pre(pre, [f"ds_read_b64 {vr(vB2 + 64 * (u >> 1) + 16 * j + 4 * db + 2 * (u & 1), 2)}, v{yR2 + j} offset:{imm + 2048 * db}"
                              for j in range(4) for db in range(4)])

    def read_next(self):
        self.p.wait_vm(("C", self.read))
        for x in self.reads(self.read):
            self.p(x)
        self.p("s_waitcnt lgkmcnt(0)")
        self.read += 1


def w2_dma_setup(p, vo):
    p(f"""
    v_lshrrev_b32 v{vT0}, 4, v{vL}
    v_and_b32 v{vT1}, 7, v{vL}
    v_lshlrev_b32 v{vT0}, 1, v{vT0}
    v_xor_b32 v{vT0}, v{vT0}, v{vT1}
    v_lshlrev_b32 v{vT0}, 4, v{vT0}
    v_lshrrev_b32 v{vT1}, 3, v{vL}
    v_lshl_add_u32 v{vo}, v{vT1}, 10, v{vT0}
    v_add_u32 v{vo + 1}, 7168, v{vo}
    v_add_u32 v{vo + 2}, 14336, v{vo}
    v_add_u32 v{vo + 3}, 21504, v{vo}
    """)


def y_m_setup(p):
    p(f"""
    s_lshl_b32 s{sBUF}, s{sV}, 13
    s_add_u32 s{sT0}, s{sBUF}, 65536
    v_and_b32 v{vT0}, 15, v{vL}
    v_bfe_u32 v{vT1}, v{vL}, 1, 3
    v_lshrrev_b32 v{vT2}, 5, v{vL}
    v_xor_b32 v{vT1}, v{vT1}, v{vT2}
    v_lshlrev_b32 v{vT1}, 4, v{vT1}
    v_lshl_add_u32 v{vT0}, v{vT0}, 7, v{vT1}
    v_bfe_u32 v{vT1}, v{vL}, 4, 1
    v_lshl_add_u32 v{vT0}, v{vT1}, 3, v{vT0}
    v_add_u32 v{yR2}, s{sT0}, v{vT0}
    v_xor_b32 v{yR2 + 1}, 32, v{yR2}
    v_xor_b32 v{yR2 + 2}, 64, v{yR2}
    v_xor_b32 v{yR2 + 3}, 96, v{yR2}
    s_lshl_b32 s{sBB}, s{sN2}, 7
    """)
    w1_dma_setup(p, yOW)
    c_dma_setup(p, yOC)
    p(f"""
    s_and_b32 s{sT1}, s{sV}, 1
    s_lshl1_add_u32 s{sMX}, s{sNT}, s{sT1}
    s_lshl_b32 s{sMB}, s{sMX}, 14
    s_add_u32 s{sMB}, s{sMB}, {WS_CARRY}
    v_lshl_add_u32 v14, s{sT1}, 10, v{vL16}
    v_xor_b32 v15, 1024, v14
    v_and_b32 v{vT0}, 15, v{vL}
    s_lshl_b32 s{sT1}, s{sT1}, 8
    s_add_u32 s{sT1}, s{sT1}, {L_S}
    v_lshl_add_u32 v{ySA + 1}, v{vT0}, 3, s{sT1}
    s_lshl_b32 s{sT1}, s{sMH}, 7
    v_add_u32 v{ySA}, s{sT1}, v{ySA + 1}
    v_lshlrev_b32 v{vT0}, 4, v{vT0}
    s_add_u32 s{sT1}, s{sMT}, 1
    s_mul_i32 s{sT1}, s{sT1}, s{sMH}
    s_lshl_b32 s{sT1}, s{sT1}, 8
    v_add_u32 v{ySA + 2}, s{sT1}, v{vT0}
    v_lshrrev_b32 v{vT1}, 4, v{vL}
    v_sub_u32 v{vT1}, s{sMT}, v{vT1}
    v_lshl_add_u32 v{vT1}, v{vT1}, 8, v{vT0}
    """)
    for j in range(4):
        p(f"v_subrev_u32 v{yGA + j}, {1024 * j}, v{vT1}\nv_max_i32 v{yGA + j}, v{yGA + j}, v{vT0}")
    y_units(p)
    srd(p, S_W, pW1, 512 * 3584)
    srd(p, S_B, pW2, 1792 * 1024)
    p(f"""
    s_mov_b32 s{S_X + 2}, {512 * 1024}
    s_lshl1_add_u32 s{sKX}, s{sV}, s{sG0}
    s_lshl_b32 s{sKX}, s{sKX}, 7
    s_lshl_b32 s{sT1}, s{sN2}, 16
    s_add_u32 s{sKX}, s{sKX}, s{sT1}
    """)


def y_units(p, only0=None):
    r2 = p.opt.get("rot2", 1)
    p(f"""
    s_mul_i32 s{sT0}, s{sV}, 7
    s_and_b32 s{sKX}, s{sM2}, 1
    s_and_b32 s{sT1}, s{sN2}, {1 if r2 else 0}
    s_lshl1_add_u32 s{sT2}, s{sT1}, s{sFLG}
    """)
    for i in range(4):
        p(f"""
        s_add_u32 s{sT3}, s{sT2}, {i}
        s_and_b32 s{sT3}, s{sT3}, 3
        s_lshl1_add_u32 s{sT3}, s{sT3}, s{sKX}
        s_min_u32 s{sT3}, s{sT3}, 6
        s_add_u32 s{sUN + i if only0 is None else only0}, s{sT3}, s{sT0}
        """)
        if only0 is not None:
            return
    p(f"""
    s_add_u32 s{sT1}, s{sT1}, s{sFLG}
    s_mul_i32 s{sT2}, s{sT1}, 86
    s_lshr_b32 s{sT2}, s{sT2}, 8
    s_mul_i32 s{sT2}, s{sT2}, 3
    s_sub_u32 s{sT1}, s{sT1}, s{sT2}
    s_add_u32 s{sT0}, s{sT0}, 1
    s_sub_u32 s{sT0}, s{sT0}, s{sKX}
    """)
    for i in range(3):
        p(f"""
        s_lshl1_add_u32 s{sUN + 4 + i}, s{sT1}, s{sT0}
        s_add_u32 s{sT1}, s{sT1}, 1
        s_cmp_eq_u32 s{sT1}, 3
        s_cselect_b32 s{sT1}, 0, s{sT1}
        """)


def gather_list(p, track):
    L = []
    for j in range(3, -1, -1):
        def f(j=j):
            s = f"buffer_load_dwordx4 {vr(yGD2 + 4 * j, 4)}, v{yGA + j}, s[{S_WS}:{S_WS + 3}], s{sMB} offen sc1"
            p.vmem(s, "G") if track else p(s)
        L.append(f)
    return L


def cmac(d, a, b, nb):
    return [f"v_fmac_f32 v{d}, v{a}, v{b}", f"v_fmac_f32 v{d + 1}, v{a}, v{b + 1}",
            f"v_fmac_f32 v{d}, v{a + 1}, v{nb}", f"v_fmac_f32 v{d + 1}, v{a + 1}, v{b}"]


def h_work(p):
    W = []

    def check():
        p.wait_vm("G")

        def test():
            p(f"v_xor_b32 v{vT3}, v{yGD2 + 14}, v{vTAG}")
            for j in range(2, -1, -1):
                p(f"v_bitop3_b32 v{vT3}, v{yGD2 + 4 * j + 2}, v{vTAG}, v{vT3} bitop3:0xbe")
            p(f"v_cmp_ne_u32 vcc, 0, v{vT3}\ns_nop 4")

        def reload():
            for f in gather_list(p, False):
                f()
            p("s_waitcnt vmcnt(0)")
        retry(p, "s_cbranch_vccnz", test, reload)
        p.stamp(6)
    W.append(check)
    for j in range(2, -1, -1):
        W += cmac(yGD2 + 4 * j, yGD2 + 4 * (j + 1), yL256, yNL + 1)
    g = yGD2
    W += [f"v_mul_f32 v{yTA}, v{g}, v{yQ64}", f"v_mul_f32 v{yTA + 1}, v{g}, v{yQ64 + 1}",
          f"v_fma_f32 v{yTA}, -v{g + 1}, v{yQ64 + 1}, v{yTA}", f"v_fmac_f32 v{yTA + 1}, v{g + 1}, v{yQ64}"]
    for sw in ("v_permlane16_swap_b32", "v_permlane32_swap_b32"):
        W.append(f"""
        v_mov_b32 v{yTB}, v{yTA}
        v_mov_b32 v{yTB + 1}, v{yTA + 1}
        s_nop 1
        {sw} v{yTA}, v{yTB}
        {sw} v{yTA + 1}, v{yTB + 1}
        s_nop 1
        v_add_f32 v{yTA}, v{yTA}, v{yTB}
        v_add_f32 v{yTA + 1}, v{yTA + 1}, v{yTB + 1}
        """)
        W += [""] * 5
    W += [f"v_fmac_f32 v{yPQ}, v{yTA}, v{yQM}", f"v_fmac_f32 v{yPQ + 1}, v{yTA}, v{yQM + 1}",
          f"v_fma_f32 v{yPQ}, -v{yTA + 1}, v{yQM + 1}, v{yPQ}", f"v_fmac_f32 v{yPQ + 1}, v{yTA + 1}, v{yQM}"]
    prev = yPQ
    PA, TD = 112, 64
    for tau in range(16):
        u = yU(tau)
        W += cmac(u, prev, yL, yNL)
        prev = u
        if tau & 1:
            tb, i = divmod(tau, 4)
            for part in range(2):
                W.append(f"v_cvt_pk_bf16_f32 v{PA + 4 * tb + 2 * part + (i >> 1)}, v{yU(tau - 1) + part}, v{u + part}")

    def transpose():
        p(f"s_mul_i32 s{sT2}, s{sCI}, 88\ns_add_u32 s{sT2}, s{sT2}, s{sMX}")
        for tb in range(4):
            for part in range(2):
                p(mfma16(TD + 8 * tb + 4 * part, PA + 4 * tb + 2 * part, ySEL, True))
        p(f"""
        s_lshl_b32 s{sBX}, s{sT2}, 12
        s_add_u32 s{sBX}, s{sBX}, {WS_HID}
        s_mul_i32 s{sT2}, s{sCI}, 12
        s_lshr_b32 s{sT3}, s{sMX}, 3
        s_add_u32 s{sT2}, s{sT2}, s{sT3}
        s_lshl_b32 s{sT2}, s{sT2}, 7
        s_and_b32 s{sMX}, s{sMX}, 7
        s_lshl2_add_u32 s{sMX}, s{sMX}, s{sT2}
        """)
    W.append(transpose)
    W += [""] * 16
    for tb in range(4):
        for k in range(4):
            W.append(f"v_cvt_pk_bf16_f32 v{PA + 4 * tb + k}, v{TD + 8 * tb + 2 * k}, v{TD + 8 * tb + 2 * k + 1}")
        W.append(lambda tb=tb: p.vmem(f"buffer_store_dwordx4 {vr(PA + 4 * tb, 4)}, v{14 + (tb & 1)}, s[{S_WS}:{S_WS + 3}], s{sBX} offen{off(2048 * (tb >> 1))} sc1", "h"))
    W.append(lambda: p.stamp(7))
    return W


def emit(p, x):
    x() if callable(x) else p(x)


def capture(p, f):
    main, p.l = p.l, []
    f()
    L, p.l = p.l, main
    return L


def y_pass_m(p):
    o = p.opt
    st = Stage(p)
    y_publish(p)
    budget = [int(x, 16) for x in str(o.get("bud", "40525588")).zfill(8)]
    gi = o.get("gi", 3)
    W = h_work(p)
    nW = len(W)
    wd = [int(x, 16) for x in str(o.get("wd", "24440")).zfill(9)]
    full = {}
    for c in range(8):
        V = []
        if 1 <= c <= 5:
            V += w1_dma(p, c + 2, yOW)
        if c == gi:
            V += gather_list(p, True)
        for k in range(budget[c]):
            V.append(lambda k=k: st.dma(k == 0))
        A = []
        if c == 0:
            A = capture(p, lambda: w2_dma_setup(p, yO2))
            if st.todo[0][0] == "W":
                for x in A:
                    p(x)
                A = []
            assert budget[0] <= 8
        if c == 1:
            A = capture(p, lambda: poll_setup(p, f"s_add_u32 s{sT0}, s{sT0}, s{sV}"))
            A = ["\n".join(A)]
        u = st.read
        rd = u < 4 and full.get(u, 99) <= c - o.get("rdl", 2)
        L = []
        if rd:
            L = [lambda u=u: p.wait_vm(("C", u))] + st.reads(u)
        late = 0
        n = -(-nW * wd[c] // sum(wd))
        if n and len(W) == nW:
            late = len(V) * o.get("late", 2) // 4
        A, W = A + W[:n], W[n:]
        slots = len(V) + 1
        l0 = len(V) // 2 if rd and full[u] == c - 1 else 0
        for k in range(slots):
            if k < len(V):
                V[k]()
            if k >= l0:
                nl = -(-len(L) // max(1, slots - 1 - k))
                for x in L[:nl]:
                    emit(p, x)
                L = L[nl:]
            if k >= late:
                na = -(-len(A) // (slots - k))
                na += na & 1
                for x in A[:na]:
                    emit(p, x)
                A = A[na:]
        if rd:
            p("s_waitcnt lgkmcnt(0)")
            st.read += 1
        for kind, uu in st.full:
            if kind == "C":
                full.setdefault(uu, c)
        if 3 <= c + 1 <= 7:
            p.wait_vm(("w", c + 1))
        if c < 7:
            p.stamp(2 + 2 * c, 1)
        p("s_barrier")
        if c < 7:
            p.stamp(3 + 2 * c, 1)
    p("s_barrier")
    p.stamp(5)
    p.stamp(1, 5)
    p.stamp(2, 5)
    for x in W:
        emit(p, x)
    return st


def y_ph2(p, st):
    o = p.opt
    st.late = True
    hf = o.get("hf", 0)
    n, first, pend, polled = 0, True, [], False
    lag = o.get("lag", 8)
    while not st.done() or st.read < 4:
        if n == hf:
            p.wait_vm("h")
            flag_store(p, sMX, WS_FLAGS)
            n += 1
        u = st.read
        if not pend and u < 4 and ("C", u) in st.full and len(p.vm) - 1 - p.last(("C", u)) >= lag:
            p.wait_vm(("C", u))
            pend = st.reads(u) + [None]
        if not polled and all(("C", k) in st.full for k in range(4)) and st.left() <= o.get("pl", 10):
            poll_issue(p, 0, 44)
            polled = True
        ok = st.dma(first)
        if ok and st.left() % 4 == 0 and st.left() <= 40:
            p.stamp(12 - st.left() // 4, 5)
        if ok:
            first = False
            n += n < hf
        elif not pend:
            st.read_next()
        k = 4 if ok else len(pend)
        for x in pend[:k]:
            if x is None:
                p("s_waitcnt lgkmcnt(0)")
                st.read += 1
            else:
                p(x)
        pend = pend[k:]
    assert n > hf and polled
    p.stamp(11)
    for pair in range(2):
        p(f"""
        s_xor_b32 s{sT0}, s{sG0}, {pair}
        s_lshl1_add_u32 s{sT0}, s{sV}, s{sT0}
        s_lshl_b32 s{sT0}, s{sT0}, 14
        s_add_u32 s{sUN + 2 * pair}, s{sT0}, s{sHID}
        s_add_u32 s{sUN + 2 * pair + 1}, s{sUN + 2 * pair}, 8192
        """)
    p(f"s_add_u32 s{sBUF}, s{sBUF}, {3 * 32768}")
    poll_check(p, 0, 44)
    p.stamp(12)
    items = []
    for step in range(8):
        for tb in range(4):
            items.append((sUN + (step >> 1), step & 1, tb, vB2 + 16 * step, step == 0))

    def after_ramp():
        p.stamp(13, 5)
        p.wait_vm("W")
        p.stamp(14, 5)
        p("s_barrier")
        p.stamp(10)
        p.stamp(15, 5)
    post = {o.get("ys", 22): lambda: p("s_barrier")}
    side = {}
    spread(side, partial_addr(), 4, 3)
    if o.get("ef"):
        final_loads(p)
        ph2_loop(p, items, {}, post, side, min(9, o.get("yramp", 8)), after_ramp, 10, 9)
    else:
        ph2_loop(p, items, {}, post, side, o.get("yramp", 8), after_ramp)
    p.stamp(13)
    if not o.get("ef"):
        final_loads(p)
    for tb in range(4):
        partial_write(p, tb)
    final(p)
    p("s_branch L_fin")


xTR = 8
xAX, xEA, xRL, xEX = 16, 18, 20, 22
xWF, NWF = 32, 6
xONE, xB1, xCS = 28, 26, 56
xOX, xOB, xOW, xSA, xST = 32, 36, 38, 40, 42
xACC, xXF = 64, 128


def x_pass_s(p):
    o = p.opt
    p("L_X:")
    if o.get("xp0"):
        p("s_setprio 2")
    p.raw(1)
    p(f"""
    v_lshrrev_b32 v{vT0}, 4, v{vL}
    v_and_b32 v{vT1}, 7, v{vL}
    v_xor_b32 v{vT1}, v{vT1}, v{vT0}
    v_lshlrev_b32 v{vT1}, 4, v{vT1}
    v_lshrrev_b32 v{vT2}, 3, v{vL}
    v_lshl_add_u32 v{xOB}, v{vT2}, 10, v{vT1}
    v_lshrrev_b32 v{vT2}, 5, v{vL}
    v_mul_u32_u24 v{vT2}, {12 * 1024}, v{vT2}
    v_add_u32 v{xOX}, v{vT2}, v{xOB}
    v_xor_b32 v{xOX + 1}, 64, v{xOX}
    v_xor_b32 v{xOB + 1}, 64, v{xOB}
    v_add_u32 v{xOX + 1}, {31 * 1024}, v{xOX + 1}
    v_add_u32 v{xOB + 1}, 7168, v{xOB + 1}
    v_add_u32 v{xOX + 2}, 2048, v{xOX}
    v_add_u32 v{xOX + 3}, 2048, v{xOX + 1}
    s_and_b32 s{sT1}, s{sV}, 1
    s_lshl1_add_u32 s{sBX}, s{sMT}, s{sMH}
    s_lshl3_add_u32 s{sBX}, s{sBX}, s{sT1}
    s_lshl_b32 s{sBX}, s{sBX}, 13
    s_lshl1_add_u32 s{sBB}, s{sNT}, s{sMH}
    s_lshl_b32 s{sBB}, s{sBB}, 14
    s_lshl_b32 s{sMX}, s{sV}, 12
    s_lshl1_add_u32 s{sMB}, s{sT1}, s{sMH}
    s_lshl_b32 s{sMB}, s{sMB}, 11
    s_cmp_eq_u32 s{sT1}, 0
    s_waitcnt lgkmcnt(0)
    s_cselect_b32 s{S_B}, s{pBRE}, s{pBIM}
    s_cselect_b32 s{S_B + 1}, s{pBRE + 1}, s{pBIM + 1}
    s_mov_b32 s{S_B + 2}, {512 * 1024}
    s_mov_b32 s{S_B + 3}, 0x00020000
    """)
    srd(p, S_X, pX, 2048 * 1024)
    p.raw(2)

    def dma_b(c):
        p(f"""
        s_add_u32 s{sT0}, s{sC0}, {c}
        s_and_b32 s{sT0}, s{sT0}, 7
        s_lshl_b32 s{sT1}, s{sT0}, 7
        s_add_u32 m0, s{sMB}, {BR + (c % 3) * 8192}
        s_add_u32 s{sKB}, s{sBB}, s{sT1}
        """)
        for i in range(2):
            p.vmem(f"buffer_load_dwordx4 v{xOB + i}, s[{S_B}:{S_B + 3}], s{sKB} offen{off(1024 * i)} lds", ("c", c))

    def dma_x(c, same=False):
        if not same:
            p(f"s_add_u32 s{sT0}, s{sC0}, {c}\ns_and_b32 s{sT0}, s{sT0}, 7\ns_lshl_b32 s{sT1}, s{sT0}, 7")
        p(f"s_add_u32 m0, s{sMX}, {XR + c * 16384}\ns_add_u32 s{sKX}, s{sBX}, s{sT1}")
        for i in range(4):
            p.vmem(f"buffer_load_dwordx4 v{xOX + i}, s[{S_X}:{S_X + 3}], s{sKX} offen{off(1024 * i)} lds", ("c", c))

    def dma(c):
        dma_b(c)
        dma_x(c, True)
    xa = o.get("xa", 0)
    pre = o.get("pre", 0)
    if pre:
        p(f"""
        s_lshl_b32 s{sT0}, s{sMT}, 10
        s_add_u32 s{sT0}, s{sT0}, s{sBB}
        v_lshlrev_b32 v{vT2}, 7, v{vL}
        s_mov_b64 exec, 0xff
        """)
        p.vmem(f"buffer_load_dword v19, v{vT2}, s[{S_B}:{S_B + 3}], s{sT0} offen", "pre")
        p("s_mov_b64 exec, -1")
    else:
        dma(0)
        p.stamp(1)
        p.raw(3)
    srd(p, S_WS, pWS, WS_BYTES)
    p.vmem(f"buffer_load_dword v{vTAG}, off, s[{S_WS}:{S_WS + 3}], 0 sc1", "epoch")
    if not pre:
        dma(1)
    if o.get("xp0"):
        p("s_setprio 0")
    p.l.append("@XCUT")
    late_ids(p)
    w1_dma_setup(p, xOW)
    srd(p, S_W, pW1, 512 * 3584)
    p(f"""
    v_and_b32 v{vT0}, 15, v{vL}
    s_lshl1_add_u32 s{sT0}, s{sL0}, s{sV}
    s_lshl_b32 s{sT0}, s{sT0}, 5
    v_add_u32 v{vT2}, s{sT0}, v{vT0}
    v_min_u32 v{vT2}, 1775, v{vT2}
    v_lshlrev_b32 v{vT2}, 1, v{vT2}
    """)
    p.vmem(f"global_load_ushort v{xB1}, v{vT2}, s[{pB1}:{pB1 + 1}]", "par")
    p.vmem(f"global_load_ushort v{xB1 + 1}, v{vT2}, s[{pB1}:{pB1 + 1}] offset:32", "par")
    for k in range(4):
        p(f"v_mov_b32 v{xONE + k}, 0x3f803f80")
    rowfrag_addr(p, xAX)
    p(f"""
    s_add_u32 s{sT0}, s{sMX}, {XR}
    v_add_u32 v{xAX}, s{sT0}, v{xAX}
    v_xor_b32 v{xAX + 1}, 64, v{xAX}
    v_and_b32 v{xSA}, 31, v{vL}
    v_lshlrev_b32 v{xSA}, 3, v{xSA}
    s_lshl2_add_u32 s{sUN}, s{sMT}, s{sV}
    s_lshl_b32 s{sUN}, s{sUN}, 8
    s_add_u32 s{sUN}, s{sUN}, {WS_STATS}
    """)
    w1_tr_addr0(p, xTR)
    p(f"s_lshl_b32 s{sT0}, s{sV}, 6\nv_xor_b32 v{xTR}, s{sT0}, v{xTR}")
    for fb in range(1, 8):
        p(f"v_xor_b32 v{xTR + fb}, {32 * fb}, v{xTR}")
    tp = o.get("tp", 0)
    tw1 = o.get("tw1", 0)

    def touch():
        p(f"""
        s_and_b32 s{sT0}, s{sV}, 1
        s_cmp_eq_u32 s{sT0}, 0
        s_cselect_b32 s{S_B}, s{pW1 if tw1 else pW2}, s{pW2}
        s_cselect_b32 s{S_B + 1}, s{(pW1 if tw1 else pW2) + 1}, s{pW2 + 1}
        s_cselect_b32 s{sT2}, s{pCRE}, s{pCIM}
        s_cselect_b32 s{sT3}, s{pCRE + 1}, s{pCIM + 1}
        s_mov_b32 s{S_B + 2}, {512 * 3584}
        s_lshl1_add_u32 s{sT0}, s2, s{sT0}
        s_cmp_lt_u32 s{sV}, 2
        s_cselect_b32 s{S_B}, s{S_B}, s{sT2}
        s_cselect_b32 s{S_B + 1}, s{S_B + 1}, s{sT3}
        s_cselect_b32 s{S_B + 2}, s{S_B + 2}, {512 * 1024}
        s_cselect_b32 s{sT0}, {'s2' if tw1 else 's%d' % sT0}, s2
        s_cselect_b32 s{sT2}, {(56 if tw1 else 28) if o.get('tm', 3) & 1 else 0}, {16 if o.get('tm', 3) & 2 else 0}
        s_mul_i32 s{sT1}, s{sT2}, s{sT0}
        v_cmp_gt_u32 vcc, s{sT2}, v{vL}
        v_add_lshl_u32 v44, v{vL}, s{sT1}, 7
        v_mov_b32 v45, 0x40000000
        v_cndmask_b32 v44, v45, v44, vcc
        """)
        p.vmem(f"buffer_load_dword v19, v44, s[{S_B}:{S_B + 3}], 0 offen", "touch")
    ld = f"buffer_load_dwordx2 {vr(xST, 2)}, v{xSA}, s[{S_WS}:{S_WS + 3}], s{sUN} offen sc1"
    if pre:
        if pre == 1:
            p.wait_vm("pre")
        elif pre == 3:
            p.wait_vm("pf")
        p.stamp(1)
        dma(0)
        dma(1)
    for c in range(8):
        if c < 7:
            p.wait_vm(("c", c))
        if c == 1:
            make_tag(p)
        if c == 7:
            p.wait_vm("st")
            retry(p, "s_cbranch_vccnz", lambda: p(f"v_cmp_ne_u32 vcc, v{xST + 1}, v{vTAG}\ns_nop 4"),
                  lambda: p(f"{ld}\ns_waitcnt vmcnt(0)"))
            p(f"""
            v_and_b32 v{vT0}, s{sMASK}, v{xST}
            v_rcp_f32 v{vT0}, v{vT0}
            v_lshrrev_b32 v{vT1}, 1, v{xSA}
            s_lshl_b32 s{sT0}, s{sV}, 7
            s_add_u32 s{sT0}, s{sT0}, {L_M}
            v_add_u32 v{vT1}, s{sT0}, v{vT1}
            v_lshlrev_b32 v{vT2}, 16, v{xST}
            ds_write_b32 v{vT1}, v{xST} offset:1024
            ds_write_b32 v{vT1}, v{vT0} offset:512
            ds_write_b32 v{vT1}, v{vT2}
            """)
            p.wait_vm(("c", c))
        if c in (o.get("lw", 6 - xa), 7):
            p("s_waitcnt lgkmcnt(0)")
        if c == 0:
            p.stamp(2)
            p.raw(4)
        if c > 0:
            p.stamp(2 * c, 3)
        p("s_barrier")
        p.stamp(2 * c + 1, 3)
        if c == 5:
            p.vmem(ld, "st")
        if not xa:
            if c + 2 < 8:
                dma(c + 2)
        else:
            if c == 0:
                dma(2)
            elif c + 2 < 8:
                dma_b(c + 2)
            if c + 3 < 8:
                dma_x(c + 3)
        if c == 4:
            p(f"v_add_u32 v{xAX}, 65536, v{xAX}\nv_add_u32 v{xAX + 1}, 65536, v{xAX + 1}")
        for s in range(2):
            for t in range(2):
                p(f"ds_read_b128 {vr(xXF + 16 * c + 8 * s + 4 * t, 4)}, v{xAX + s} offset:{(c & 3) * 16384 + t * 2048}")
        if c >= 6 - xa:
            for cc in ([c - 5] if xa else [0] if c == 6 else [1, 2]):
                for f in w1_dma(p, cc, xOW):
                    f()
                if (tp, cc) in ((2, 0), (4, 1), (3, 2)):
                    touch()
        if c == 5 and tp == 1:
            touch()
        if o.get("pt", 1) and c == 1:
            p(f"""
            s_mul_i32 s{sT0}, s{sCI}, 6
            s_lshr_b32 s{sT1}, s{sNT}, 2
            s_add_u32 s{sT0}, s{sT0}, s{sT1}
            s_lshl_b32 s{sT0}, s{sT0}, 8
            s_add_u32 s{sT0}, s{sT0}, {WS_FLAGS + 512}
            s_add_u32 s42, s{pWS}, s{sT0}
            s_addc_u32 s43, s{pWS + 1}, 0
            s_load_dword s84, s[42:43], 0 {'glc' if o.get('ptg', 1) else ''}
            s_load_dword s84, s[42:43], 128 {'glc' if o.get('ptg', 1) else ''}
            """)
    p.stamp(3)
    p(f"""
    v_bfe_u32 v{vT0}, v{vL}, 2, 2
    v_and_b32 v{vT1}, 3, v{vL}
    v_lshl_add_u32 v{vT0}, v{vT0}, 4, v{vT1}
    s_and_b32 s{sT1}, s{sV}, 1
    s_lshl3_add_u32 s{sT0}, s{sMH}, s{sT1}
    s_lshl_b32 s{sT0}, s{sT0}, 5
    s_add_u32 s{sT0}, s{sT0}, {L_M}
    v_lshl_add_u32 v{vT0}, v{vT0}, 2, s{sT0}
    ds_read_b32 v{xEX + 1}, v{vT0} offset:1024
    ds_read_b32 v{xEX + 3}, v{vT0} offset:{1024 + 16}
    ds_read_b32 v{xRL}, v{vT0} offset:512
    ds_read_b32 v{xRL + 1}, v{vT0} offset:{512 + 16}
    v_and_b32 v{xEA}, 15, v{vL}
    v_lshlrev_b32 v{xEA}, 3, v{xEA}
    s_lshl_b32 s{sT0}, s{sV}, 8
    s_add_u32 s{sT0}, s{sT0}, {L_EXT}
    v_add_u32 v{xEA}, s{sT0}, v{xEA}
    v_cmp_gt_u32 vcc, 16, v{vL}
    s_mov_b32 s{sT2}, 0x01000100
    s_waitcnt lgkmcnt(0)
    """)
    for t in range(2):
        e = xEX + 2 * t
        p(f"""
        v_perm_b32 v{e}, v{e + 1}, v{e + 1}, s{sT2}
        v_xor_b32 v{e}, 0x80008000, v{e}
        v_lshrrev_b32 v{e + 1}, 16, v{e + 1}
        v_cndmask_b32 v{e}, 0, v{e}, vcc
        v_cndmask_b32 v{e + 1}, 0, v{e + 1}, vcc
        v_mul_f32 v{xRL + t}, {LOG2E}, v{xRL + t}
        """)
    p.wait_vm(("w", 0))
    p("s_waitcnt lgkmcnt(0)\ns_barrier")
    p.stamp(4)


def x_pass_m(p):
    PD = 4
    WE = p.opt.get("we", 1)

    def reads(n):
        if n >= 128:
            return []
        c, s, fb = n >> 4, (n >> 3) & 1, n & 7
        slot = (2 * c + s) % 7
        return [f"ds_read_b64_tr_b16 {vr(xWF + 4 * (n % NWF) + 2 * e, 2)}, v{xTR + fb} offset:{8192 * slot + 1024 * e}" for e in range(2)]
    nissued = 0
    for n in range(PD):
        for x in reads(n):
            p(x)
            nissued += 1
    for n in range(128):
        c, s, fb = n >> 4, (n >> 3) & 1, n & 7
        if n % WE == 0 and n < 126:
            p(f"s_waitcnt lgkmcnt({nissued - 2 * (n + WE)})")
        R = reads(n + PD)
        bar = (n & 15) == 16 - PD and c < 7
        w = xWF + 4 * (n % NWF)
        if n == 126:
            p("s_waitcnt lgkmcnt(0)")
        for t in range(2):
            p(mfma(xACC + 8 * fb + 4 * t, w, xXF + 16 * c + 8 * s + 4 * t, n < 8))
            if bar and t == 0:
                if c < 2:
                    p.wait_vm(("w", c + 1))
                p("s_barrier")
            if n == 126 and t == 0:
                p("s_barrier")
            if n >= 126:
                k = 2 * (n - 126) + t
                for i in range(2):
                    p(f"ds_read_b64 {vr(xXF + 2 * (2 * k + i), 2)}, v{xTR + k} offset:{128 * i}")
            if R:
                p(R[t])
                nissued += 1
        if fb < 2:
            p(mfma(xCS + 4 * fb, xONE, w, n < 8))
        if n in (123, 124):
            k = n - 123
            a = xCS + 4 * k
            p(f"""
            v_and_b32 v{a + 1}, s{sMASK}, v{a}
            v_sub_f32 v{a}, v{a}, v{a + 1}
            v_cvt_pk_bf16_f32 v{a}, v{a + 1}, v{a}
            v_mov_b32 v{a + 1}, v{xB1 + k}
            ds_write_b64 v{xEA}, {vr(a, 2)} offset:{128 * k}
            """)
            nissued += 1
        if n == 125:
            p(f"v_mov_b32 v{xTR}, v{xEA}")
            for k in range(1, 4):
                p(f"v_xor_b32 v{xTR + k}, {256 * k}, v{xEA}")
    p("s_waitcnt lgkmcnt(0)\ns_barrier")
    p.stamp(1, 5)
    for fb in range(8):
        for t in range(2):
            p(mfma16(xACC + 8 * fb + 4 * t, xXF + 2 * fb, xEX + 2 * t))
    p.stamp(5)
    p.stamp(2, 5)


def mish4(p, a, t, pk, tmp):
    sel = "op_sel_hi:[1,0]" if t == 0 else "op_sel:[0,1] op_sel_hi:[1,1]"
    e, u = tmp, tmp + 4
    p(f"""
    v_pk_mul_f32 {vr(a, 2)}, {vr(a, 2)}, {vr(xRL, 2)} {sel}
    v_pk_mul_f32 {vr(a + 2, 2)}, {vr(a + 2, 2)}, {vr(xRL, 2)} {sel}
    v_exp_f32 v{e}, v{a}
    v_exp_f32 v{e + 1}, v{a + 1}
    v_exp_f32 v{e + 2}, v{a + 2}
    v_exp_f32 v{e + 3}, v{a + 3}
    v_pk_fma_f32 {vr(u, 2)}, {vr(e, 2)}, 0.5, 1.0 op_sel_hi:[1,0,0]
    v_pk_fma_f32 {vr(u + 2, 2)}, {vr(e + 2, 2)}, 0.5, 1.0 op_sel_hi:[1,0,0]
    v_pk_fma_f32 {vr(u, 2)}, {vr(e, 2)}, {vr(u, 2)}, 1.0 op_sel_hi:[1,1,0]
    v_pk_fma_f32 {vr(u + 2, 2)}, {vr(e + 2, 2)}, {vr(u + 2, 2)}, 1.0 op_sel_hi:[1,1,0]
    v_rcp_f32 v{u}, v{u}
    v_rcp_f32 v{u + 1}, v{u + 1}
    v_rcp_f32 v{u + 2}, v{u + 2}
    v_rcp_f32 v{u + 3}, v{u + 3}
    v_pk_fma_f32 {vr(a, 2)}, {vr(a, 2)}, {vr(u, 2)}, {vr(a, 2)} neg_lo:[1,0,0] neg_hi:[1,0,0]
    v_pk_fma_f32 {vr(a + 2, 2)}, {vr(a + 2, 2)}, {vr(u + 2, 2)}, {vr(a + 2, 2)} neg_lo:[1,0,0] neg_hi:[1,0,0]
    v_cvt_pk_bf16_f32 v{pk}, v{a}, v{a + 1}
    v_cvt_pk_bf16_f32 v{pk + 1}, v{a + 2}, v{a + 3}
    """)


def x_epilogue(p):
    PK, TMP, VO = 192, 228, 224
    p(f"""
    s_mul_i32 s{sT0}, s{sCI}, 44
    s_add_u32 s{sT0}, s{sT0}, s{sL0}
    s_add_u32 s{sT0}, s{sT0}, s{sMH}
    s_add_u32 s{sT0}, s{sT0}, 16
    s_and_b32 s{sT1}, s{sV}, 1
    s_lshl2_add_u32 s{sBX}, s{sT0}, s{sT1}
    s_lshl_b32 s{sBX}, s{sBX}, 11
    s_add_u32 s{sBX}, s{sBX}, {WS_HID}
    s_mul_i32 s{sT2}, s{sT1}, 5120
    v_add_u32 v{VO}, s{sT2}, v{vL16}
    v_xor_b32 v{VO + 1}, 1024, v{VO}
    v_xor_b32 v{VO + 2}, 5120, v{VO}
    v_xor_b32 v{VO + 3}, 4096, v{VO}
    s_mul_i32 s{sT2}, s{sCI}, 6
    s_lshr_b32 s{sT3}, s{sNT}, 2
    s_add_u32 s{sT2}, s{sT2}, s{sT3}
    s_add_u32 s{sT2}, s{sT2}, 2
    s_lshl_b32 s{sT2}, s{sT2}, 8
    s_and_b32 s{sT3}, s{sNT}, 3
    s_lshl1_add_u32 s{sKW}, s{sT3}, s{sMH}
    s_lshl1_add_u32 s{sT3}, s{sT3}, s{sT1}
    s_lshl2_add_u32 s{sMB}, s{sT3}, s{sT2}
    """)
    if p.opt.get("xprio"):
        p(f"s_setprio {p.opt['xprio']}")
    p(f"s_lshl_b32 s{sT0}, s{sMH}, 14\ns_add_u32 s{sMX}, s{sBX}, 8192\ns_sub_u32 s{sMX}, s{sMX}, s{sT0}")

    def store(u, s, t):
        p.vmem(f"buffer_store_dwordx4 {vr(PK + 4 * (4 * u + 2 * s + t), 4)}, v{VO + 2 * s + t}, s[{S_WS}:{S_WS + 3}], s{sMX if u else sBX} offen sc1", ("act", u))

    def guarded(u, body):
        join = p.label("join")
        p(f"s_cmp_eq_u32 s{sKW}, {7 - u}\ns_cbranch_scc1 {join}")
        body()
        p(f"{join}:")

    def frags(u, L):
        def body():
            for s, t in L:
                pk = PK + 4 * (4 * u + 2 * s + t)
                for e in range(2):
                    mish4(p, xACC + 8 * (4 * u + 2 * s + e) + 4 * t, t, pk + 2 * e, TMP)
                store(u, s, t)
                p.stamp(3 + 4 * u + 2 * s + t, 5)
        if L:
            if p.opt.get("al", 1):
                p(".p2align 3")
            guarded(u, body)
    ST = [(0, 0), (0, 1), (1, 0), (1, 1)]
    frags(0, ST)
    frags(1, ST)
    p.stamp(6)
    o = p.opt
    fa = o.get("fa", 1)

    def flag(u):
        p.wait_vm(("act", u))
        if u == 0:
            lt, hv = p.label("light"), p.label("heavy")
            p(f"s_cmp_ge_u32 s{sKW}, 6\ns_cbranch_scc1 {lt}\n{hv}:")
            p.ool += [f"{lt}:", f"    s_waitcnt vmcnt({len(p.vm) - 1 - p.last(('act', 1))})", f"    s_branch {hv}"]
        flag_store(p, sMB, WS_FLAGS + 128 * u)
        p.stamp(11 + u, 5)
        if u == 1:
            p.stamp(7)
    RA, CV = 60, 64
    p(f"""
    s_lshl_b32 s{sBUF}, s{sV}, 13
    s_add_u32 s{sT0}, s{sBUF}, {3 * 32768}
    v_lshrrev_b32 v{vT0}, 2, v{vL}
    v_bfe_u32 v{vT1}, v{vL}, 3, 2
    v_lshlrev_b32 v{vT0}, 7, v{vT0}
    v_lshl_add_u32 v{vT0}, v{vT1}, 5, v{vT0}
    v_and_b32 v{vT1}, 3, v{vL}
    v_lshl_add_u32 v{vT0}, v{vT1}, 3, v{vT0}
    v_add_u32 v{RA}, s{sT0}, v{vT0}
    v_xor_b32 v{RA + 1}, 32, v{RA}
    v_xor_b32 v{RA + 2}, 64, v{RA}
    v_xor_b32 v{RA + 3}, 96, v{RA}
    s_lshl_b32 s{sBB}, s{sN2}, 7
    """)
    w2_dma_setup(p, CV)
    y_units(p)
    srd(p, S_X, pW2, 1792 * 1024)
    poll_setup(p, f"s_lshl1_add_u32 s{sT0}, s{sV}, s{sT0}\ns_add_u32 s{sT0}, s{sT0}, 4")
    for u in range(fa):
        flag(u)
    p(f"s_setprio {o.get('xprio2', 0)}\ns_barrier")
    p.stamp(10)
    rb = Rebase(RA, 3 * 32768)
    QW = [3, 4, 2, 0, 1, 0, 2]

    def reads(u):
        pre, imm = rb.at(QW[u])
        dst = vB2 + 32 * (u % 4)
        return with_pre(pre, [f"ds_read_b64_tr_b16 {vr(dst + 16 * s + 4 * db + 2 * e, 2)}, v{RA + db} offset:{imm + 4096 * s + 2048 * e}"
                              for s in range(2) for db in range(4) for e in range(2)])
    for u in range(4):
        for x in reads(u):
            p(x)
    for u in range(fa, 2):
        flag(u)
    p("s_waitcnt lgkmcnt(0)")
    poll_issue(p, 0)
    for u in (5, 6):
        for h in range(2):
            p(f"s_add_u32 m0, s{sBUF}, {32768 * QW[u] + 4096 * h}")
            if h == 0:
                w2_unit_head(p, u)
            else:
                p(f"s_add_u32 s{sKB}, s{sKB}, 32768")
            for k in range(4):
                p.vmem(f"buffer_load_dwordx4 v{CV + k}, s[{S_X}:{S_X + 3}], s{sKB} offen{off(1024 * k)} lds", "W")
    p(f"s_add_u32 s{sT1}, s{sHID}, {32 * 4096}")
    for i in range(7):
        p(f"s_lshl_b32 s{sUN + i}, s{sUN + i}, 13\ns_add_u32 s{sUN + i}, s{sUN + i}, s{sT1}")
    p.stamp(11)
    pb = o.get("pb", 0)
    if pb == 0:
        poll_check(p, 0)
    p("s_barrier")
    if pb == 1:
        poll_check(p, 0)
    p.stamp(12)
    items = []

    def b2(step):
        return vB2 + 32 * ((step >> 1) % 4) + 16 * (step & 1)
    ts = 6
    for step in range(14 - ts):
        for tb in range(4):
            items.append((sUN + (step >> 1), step & 1, tb, b2(step), step == 0))
    for tb in range(4):
        for step in range(14 - ts, 14):
            items.append((sUN + (step >> 1), step & 1, tb, b2(step), False))
    pre, post, side = {}, {}, {}
    pre[32 - 10] = lambda: poll_issue(p, 128)
    pre[32] = lambda: poll_check(p, 128)
    for u in range(4, 7):
        R = reads(u)
        spread(side, R[:8], 8 * (u - 4) + 5, 2)
        spread(side, R[8:], 8 * (u - 4) + 9, 2)
    side.setdefault(31, []).append("s_waitcnt lgkmcnt(0)")
    spread(side, partial_addr(), 32, 3)
    post[o.get("gy", 28)] = lambda: (p.stamp(14), p("s_barrier"))
    post[37] = lambda: p.stamp(15)
    wp = o.get("wp", 2)
    for tb in range(3):
        i0 = 56 - ts * (3 - tb)
        spread(side, pw_list(tb), i0 + 1, wp)
        post[i0 + 1 + 4 // wp] = lambda: p("s_waitcnt lgkmcnt(0)\ns_barrier")

    def last():
        p.stamp(13)
        p("s_nop 4")
        partial_write(p, 3)
        p("s_waitcnt lgkmcnt(0)\ns_barrier")
    post[55] = last
    if o.get("dbm"):
        g0 = 56 - ts
        W2 = pw_list(2)
        side[(g0, 0, 4)] = W2[0:1]
        side[(g0, 0, 5)] = W2[1:2]
        side[(g0, 1, 0)] = W2[2:3]
        side[(g0, 1, 1)] = W2[3:4]
        side[(g0, 1, 4)] = ["s_waitcnt lgkmcnt(0)", "s_barrier"]
        ph2_loop(p, items, pre, post, side, o.get('ramp', 5), tail=(g0, ts))
    else:
        ph2_loop(p, items, pre, post, side, o.get('ramp', 5))
    p(f"""
    s_lshl3_add_u32 s{sT0}, s{sN2}, s{sV}
    s_lshl_b32 s{sT0}, s{sT0}, 5
    s_add_u32 s{sT0}, s{sT0}, s{sM2}
    s_cmp_lg_u32 s{sT0}, 31
    s_cbranch_scc1 L_fin
    s_mov_b64 exec, 1
    buffer_store_dword v{vTAG}, off, s[{S_WS}:{S_WS + 3}], 0 sc1
    """)


fA = 142


def fin_regs(p):
    return (48, 56, vT2) if p.opt.get("ef") else (128, 136, 140)


def final_loads(p):
    fX, fS, fD = fin_regs(p)
    A = 64 if p.opt.get("ef") else 148
    srd(p, S_X, pX, 2048 * 1024)
    srd(p, S_W, pOUT, 2048 * 2048)
    p(f"""
    s_lshl2_add_u32 s{sT0}, s{sM2}, s{sV}
    s_lshl_b32 s{sKX}, s{sT0}, 14
    s_lshl_b32 s{sT1}, s{sN2}, 7
    s_add_u32 s{sKX}, s{sKX}, s{sT1}
    s_lshl_b32 s{sT0}, s{sT0}, 7
    s_add_u32 s{sT0}, s{sT0}, {WS_STATS}
    v_lshrrev_b32 v{A}, 4, v{vL}
    v_and_b32 v{A + 1}, 15, v{vL}
    v_lshlrev_b32 v{A + 2}, 3, v{A + 1}
    v_lshl_add_u32 v{A + 3}, v{A}, 10, v{A + 2}
    v_lshlrev_b32 v{A}, 3, v{A}
    v_add_u32 v{A + 2}, s{sT1}, v{A + 2}
    s_mov_b32 s{sKB}, s{sKX}
    """)
    for tb in range(4):
        p.vmem(f"buffer_load_dwordx2 {vr(fX + 2 * tb, 2)}, v{A + 3}, s[{S_X}:{S_X + 3}], s{sKB} offen", "fin")
        p.vmem(f"buffer_load_dword v{fS + tb}, v{A}, s[{S_WS}:{S_WS + 3}], s{sT0} offen{off(32 * tb)} sc1", "fin")
        if tb < 3:
            p(f"s_add_u32 s{sKB}, s{sKB}, 4096")
    p.vmem(f"global_load_dwordx2 {vr(fD, 2)}, v{A + 2}, s[{pD}:{pD + 1}]", "fin")


def final(p):
    XF, SS, DD = 160, 176, 148
    RY, RF = fA + 4, fA + 5
    fX, fS, fD = fin_regs(p)
    p.wait_vm("fin")
    p(f"""
    v_lshrrev_b32 v{fA}, 4, v{vL}
    v_and_b32 v{fA + 1}, 15, v{vL}
    v_lshlrev_b32 v{fA + 3}, 3, v{fA + 1}
    v_lshl_add_u32 v{fA + 3}, v{fA}, 10, v{fA + 3}
    s_lshl_b32 s{sT0}, s{sV}, 2
    v_add_u32 v{RF}, s{sT0}, v{fA}
    v_xor_b32 v{RF}, v{RF}, v{fA + 1}
    v_lshlrev_b32 v{RF}, 4, v{RF}
    v_lshl_add_u32 v{RF}, v{fA + 1}, 8, v{RF}
    v_add_u32 v{RY}, {3 * 32768}, v{RF}
    v_lshlrev_b32 v{fA + 3}, 1, v{fA + 3}
    s_lshl_b32 s{sKX}, s{sKX}, 1
    s_mov_b32 s{sT2}, {LN2}
    v_lshlrev_b32 v{DD}, 16, v{fD}
    v_and_b32 v{DD + 1}, s{sMASK}, v{fD}
    v_lshlrev_b32 v{DD + 2}, 16, v{fD + 1}
    v_and_b32 v{DD + 3}, s{sMASK}, v{fD + 1}
    """)
    for tb in range(4):
        x, s = XF + 4 * tb, SS + 4 * tb
        p(f"""
        v_and_b32 v153, s{sMASK}, v{fS + tb}
        v_rcp_f32 v153, v153
        v_lshlrev_b32 v152, 16, v{fS + tb}
        v_lshlrev_b32 v{x}, 16, v{fX + 2 * tb}
        v_and_b32 v{x + 1}, s{sMASK}, v{fX + 2 * tb}
        v_lshlrev_b32 v{x + 2}, 16, v{fX + 2 * tb + 1}
        v_and_b32 v{x + 3}, s{sMASK}, v{fX + 2 * tb + 1}
        """)
        for k in range(4):
            p(f"v_sub_f32 v{s + k}, v{x + k}, v152")
        for k in range(4):
            p(f"v_mul_f32 v{s + k}, v153, v{s + k}")
    p("s_waitcnt lgkmcnt(0)\ns_barrier")
    p.stamp(14)
    Y = 64
    for tb in range(4):
        for w in range(4):
            p(f"ds_read_b128 {vr(Y + 16 * tb + 4 * w, 4)}, v{RY} offset:{8192 * w + 32768 * (tb >> 1) + 4096 * (tb & 1)}")
    for tb in range(4):
        p(f"s_waitcnt lgkmcnt({12 - 4 * tb})")
        y, s = Y + 16 * tb, SS + 4 * tb
        for k in range(4):
            p(f"v_fma_f32 v{s + k}, v{s + k}, v{DD + k}, v{y + k}")
            p(f"v_add_f32 v{y + 4 + k}, v{y + 4 + k}, v{y + 8 + k}")
        for k in range(4):
            p(f"v_add_f32 v{s + k}, v{s + k}, v{y + 12 + k}")
        for k in range(4):
            p(f"v_add_f32 v{s + k}, v{s + k}, v{y + 4 + k}")
        for k in range(4):
            p(f"v_mul_f32 v{s + k}, s{sT2}, v{s + k}")
    for tb in range(4):
        F = Y + 16 * tb
        x, s = XF + 4 * tb, SS + 4 * tb
        p("s_barrier")
        if tb == 3:
            p.stamp(15)
        for w in range(4):
            p(f"ds_read_b128 {vr(F + 4 * w, 4)}, v{RF} offset:{8192 * w + 32768 * (tb >> 1) + 4096 * (tb & 1)}")
        e = F + 4
        if tb < 3:
            p("s_waitcnt lgkmcnt(2)")
            for k in range(4):
                p(f"v_add_f32 v{F + k}, v{F + k}, v{F + 4 + k}")
            p("s_waitcnt lgkmcnt(0)")
            for k in range(4):
                p(f"v_add_f32 v{F + 8 + k}, v{F + 8 + k}, v{F + 12 + k}")
            for k in range(4):
                p(f"v_add_f32 v{F + k}, v{F + k}, v{F + 8 + k}")
            for k in range(4):
                p(f"v_exp_f32_e64 v{e + k}, -v{F + k}")
            for k in range(4):
                p(f"v_mul_f32 v{s + k}, v{s + k}, v{F + k}")
            for k in range(4):
                p(f"v_add_f32 v{e + k}, 1.0, v{e + k}")
            for k in range(4):
                p(f"v_rcp_f32 v{e + k}, v{e + k}")
            p("s_nop 0")
            for k in range(4):
                p(f"v_fmac_f32 v{x + k}, v{s + k}, v{e + k}")
        else:
            p("s_waitcnt lgkmcnt(2)")
            for h in (0, 2):
                p(f"v_pk_add_f32 {vr(F + h, 2)}, {vr(F + h, 2)}, {vr(F + 4 + h, 2)}")
            p("s_waitcnt lgkmcnt(0)")
            for h in (0, 2):
                p(f"v_pk_add_f32 {vr(F + 8 + h, 2)}, {vr(F + 8 + h, 2)}, {vr(F + 12 + h, 2)}")
            for h in (0, 2):
                p(f"v_pk_add_f32 {vr(F + h, 2)}, {vr(F + h, 2)}, {vr(F + 8 + h, 2)}")
            for k in range(4):
                p(f"v_exp_f32_e64 v{e + k}, -v{F + k}")
            for h in (0, 2):
                p(f"v_pk_mul_f32 {vr(s + h, 2)}, {vr(s + h, 2)}, {vr(F + h, 2)}")
            for h in (0, 2):
                p(f"v_pk_add_f32 {vr(e + h, 2)}, {vr(e + h, 2)}, 1.0 op_sel_hi:[1,0]")
            for k in range(4):
                p(f"v_rcp_f32 v{e + k}, v{e + k}")
            for h in (0, 2):
                p(f"v_pk_fma_f32 {vr(x + h, 2)}, {vr(s + h, 2)}, {vr(e + h, 2)}, {vr(x + h, 2)}")
        p(f"buffer_store_dwordx4 {vr(x, 4)}, v{fA + 3}, s[{S_W}:{S_W + 3}], s{sKX} offen {'sc1' if tb < 4 - p.opt.get('op', 0) else p.opt.get('of', '')}")
        if tb < 3:
            p(f"s_add_u32 s{sKX}, s{sKX}, 8192")


def finish(p):
    p("L_fin:")
    if p.opt.get("stamps"):
        p.stamp(8)
        p("s_waitcnt vmcnt(0)")
        p.stamp(9)
        if "probe" in p.opt:
            p(f"""
            s_lshl_b32 s{sT0}, 1, s{sW}
            s_and_b32 s{sT0}, s{sT0}, {p.opt.get('pw', 255)}
            s_cmp_eq_u32 s{sT0}, 0
            s_cbranch_scc1 L_end
            s_add_u32 s{sT0}, s{STAMP_REGS[p.opt['probe']]}, 5000
            L_probe:
            s_memrealtime s[34:35]
            s_waitcnt lgkmcnt(0)
            s_sub_u32 s{sT1}, s34, s{sT0}
            s_cmp_lt_i32 s{sT1}, 0
            s_cbranch_scc1 L_probe
            s_branch L_end
            """)
        p(f"""
        s_mov_b64 exec, 1
        s_lshl3_add_u32 s{sT0}, s2, s{sW}
        s_lshl_b32 s{sT0}, s{sT0}, 6
        s_add_u32 s{sT0}, s{sT0}, {WS_STAMP}
        """)
        for i in range(16):
            p(f"v_mov_b32 v8, s{STAMP_REGS[i]}\nbuffer_store_dword v8, off, s[{S_WS}:{S_WS + 3}], s{sT0} offset:{4 * i}")
    p("s_endpgm")
    p.l += p.ool
    p("L_end:\ns_endpgm")


def build(opt):
    p = P(opt)
    entry(p)
    st0 = p.save()
    y_prologue(p)
    y_pass_s(p)
    y_window(p)
    st = y_pass_m(p)
    y_ph2(p, st)
    p.restore(st0)
    x_pass_s(p)
    x_pass_m(p)
    x_epilogue(p)
    finish(p)
    L = p.l
    iy, ix0, ix1 = L.index("@YCUT"), L.index("L_X:"), L.index("@XCUT")
    if opt.get("lay", 1):
        L = L[:iy] + ["    s_branch L_Y2"] + L[ix0:ix1] + ["    s_branch L_X2", "L_Y2:"] + L[iy + 1:ix0] + ["L_X2:"] + L[ix1 + 1:]
    else:
        L = [x for x in L if not x.startswith("@")]
    p.l = L
    t = HEAD + f"; @launch grid=(256,1,1) block=(512,1,1) lds={LDS_BYTES}\n" + '.amdgcn_target "amdgcn-amd-amdhsa--gfx950"\n'
    t += kernel_text(KN + "_kernel", p.text(), vgpr=256, sgpr=102, accum=256)
    return t


if __name__ == "__main__":
    out = sys.argv[1]
    opt = {}
    for a in sys.argv[2:]:
        k, v = a.split("=")
        opt[k] = int(v) if v.lstrip("-").isdigit() else v
    open(out, "w").write(build(opt))
```

```python
import sys
from gen import HEAD, KN, kernel_text

WS_STATS = 4096
WS_CARRY = 64 << 10
WS_FLAGS = 1 << 20
WS_HID = 2 << 20
WS_STAMP = 200 << 20
WS_BYTES = 0x10000000
MISC, XR, BR, WR, CR, PKR = 0, 8192, 139264, 8192, 0, 65536
L_M, L_R, L_MS, L_EXT, L_S = MISC, MISC + 512, MISC + 1024, MISC + 2048, MISC + 3072
LDS_BYTES = 163840
LOG2E = 0x3fb8aa3b
LN2 = 0x3f317218

S_X, S_B, S_W, S_WS = 4, 8, 12, 16
sT0, sT1, sT2, sT3 = 20, 21, 22, 23
sW, sXCD, sJ, sMT, sNT, sL0, sC0, sM2, sN2, sV = 24, 25, 26, 27, 28, 29, 30, 31, 32, 33
pX, pLRE, pLIM, pBRE, pBIM, pCRE, pCIM, pDT, pD, pW1, pB1, pW2, pOUT, pWS = 36, 38, 40, 42, 44, 46, 48, 50, 52, 56, 58, 60, 62, 66
sKX, sKB, sKW, sBX, sBB, sBW, sMX, sMB, sMASK, sSPIN = 68, 69, 70, 71, 72, 73, 74, 75, 76, 77
sUN = 78
sBUF, sHID, sFLG, sCI, sMH, sMW, sG0 = 85, 86, 87, 88, 89, 90, 91
STAMP_REGS = list(range(92, 102)) + [3, 54, 55, 64, 65, 0]
SPIN_MAX = 400000
NAMES_Y = ["-", "stpub", "G0", "Send", "G8", "G17", "gath", "hst", "fin", "end", "GC", "wiss", "flh", "ydone", "Gy", "T3"]
NAMES_X = ["-", "dma0", "c0", "w1iss", "G8", "Mend", "mish", "flB", "-", "end", "GC", "staged", "go", "lastmf", "gy", "i37"]
ORD = [0, 1, 2, 3, 4, 5, 6, 7, 10, 11, 12, 14, 15, 13, 8, 9]


class P:
    def __init__(self, opt):
        self.l = []
        self.vm = []
        self.done = -1
        self.opt = opt
        self.nlab = 0
        self.ool = []
        self.fs = opt.get("fs", 128)

    def __call__(self, s):
        for x in s.strip("\n").split("\n"):
            x = x.strip()
            if not x:
                continue
            self.l.append(x if x.endswith(":") else "    " + x)

    def vmem(self, s, tag=None):
        self(s)
        self.vm.append(tag)

    def last(self, tag):
        return max(i for i, t in enumerate(self.vm) if t == tag)

    def wait_vm(self, tag):
        idx = self.last(tag)
        if idx <= self.done:
            return
        n = len(self.vm) - 1 - idx
        assert n <= 63, n
        self(f"s_waitcnt vmcnt({n})")
        self.done = idx

    def save(self):
        return (list(self.vm), self.done)

    def restore(self, st):
        self.vm, self.done = list(st[0]), st[1]

    def label(self, base):
        self.nlab += 1
        return f"L_{base}_{self.nlab}"

    def stamp(self, i, group=0):
        if self.opt.get("stamps") and self.opt.get("sg", 0) == group:
            op = "s_memtime" if self.opt["stamps"] == 2 else "s_memrealtime"
            self(f"{op} s[34:35]\ns_waitcnt lgkmcnt(0)\ns_mov_b32 s{STAMP_REGS[i]}, s34")

    def raw(self, i):
        if self.opt.get("stamps") and self.opt.get("sg", 0) == 4:
            self(f"s_memrealtime s[{92 + 2 * i}:{93 + 2 * i}]")

    def text(self):
        return "\n".join(self.l) + "\n"


def vr(a, n=1):
    return f"v{a}" if n == 1 else f"v[{a}:{a + n - 1}]"


def off(o):
    return f" offset:{o}" if o else ""


def srd(p, d, ptr, nbytes):
    p(f"""
    s_mov_b32 s{d}, s{ptr}
    s_mov_b32 s{d + 1}, s{ptr + 1}
    s_mov_b32 s{d + 2}, {nbytes}
    s_mov_b32 s{d + 3}, 0x00020000
    """)


def mfma(d, a, b, first=False):
    return f"v_mfma_f32_16x16x32_bf16 {vr(d, 4)}, {vr(a, 4)}, {vr(b, 4)}, {'0' if first else vr(d, 4)}"


def mfma16(d, a, b, first=False):
    return f"v_mfma_f32_16x16x16_bf16 {vr(d, 4)}, {vr(a, 2)}, {vr(b, 2)}, {'0' if first else vr(d, 4)}"


vL, vTAG, vT0, vT1, vT2, vT3, vL16, vL16B = 0, 1, 2, 3, 4, 5, 6, 7


def rowfrag_addr(p, dst):
    p(f"""
    v_and_b32 v{vT0}, 15, v{vL}
    v_bfe_u32 v{vT1}, v{vL}, 1, 3
    v_lshrrev_b32 v{vT2}, 4, v{vL}
    v_xor_b32 v{vT1}, v{vT1}, v{vT2}
    v_lshlrev_b32 v{vT1}, 4, v{vT1}
    v_lshl_add_u32 v{dst}, v{vT0}, 7, v{vT1}
    """)


def w1_tr_addr0(p, dst):
    p(f"""
    v_lshrrev_b32 v{vT0}, 4, v{vL}
    v_bfe_u32 v{vT1}, v{vL}, 2, 2
    v_lshl_add_u32 v{vT2}, v{vT0}, 3, v{vT1}
    v_lshlrev_b32 v{vT2}, 8, v{vT2}
    v_lshl_add_u32 v{vT2}, v{vT1}, 6, v{vT2}
    v_and_b32 v{vT0}, 1, v{vT0}
    v_lshl_add_u32 v{vT2}, v{vT0}, 5, v{vT2}
    v_and_b32 v{vT1}, 3, v{vL}
    v_lshl_add_u32 v{vT2}, v{vT1}, 3, v{vT2}
    v_add_u32 v{dst}, {WR}, v{vT2}
    """)


def w1_dma_setup(p, vow):
    p(f"""
    v_lshrrev_b32 v{vT0}, 4, v{vL}
    v_bfe_u32 v{vT1}, v{vL}, 1, 3
    s_and_b32 s{sT0}, s{sV}, 1
    v_lshl_or_b32 v{vT2}, v{vT0}, 1, s{sT0}
    v_xor_b32 v{vT1}, v{vT1}, v{vT2}
    v_mul_u32_u24 v{vow}, 3584, v{vT0}
    v_lshl_add_u32 v{vow}, v{vT1}, 5, v{vow}
    v_and_b32 v{vT2}, 1, v{vL}
    v_lshl_add_u32 v{vow}, v{vT2}, 4, v{vow}
    s_and_b32 s{sT1}, s{sNT}, 3
    s_cmp_eq_u32 s{sT1}, 3
    s_cselect_b32 s{sT1}, 0x40000000, 0
    v_lshrrev_b32 v{vT1}, 2, v{vT1}
    v_mul_lo_u32 v{vT1}, v{vT1}, s{sT1}
    v_add_u32 v{vow}, v{vow}, v{vT1}
    v_add_u32 v{vow + 1}, 13312, v{vow}
    s_lshl_b32 s{sBW}, s{sL0}, 7
    s_mul_i32 s{sT2}, s{sV}, {8 * 3584}
    s_add_u32 s{sBW}, s{sBW}, s{sT2}
    s_lshl_b32 s{sMW}, s{sV}, 11
    """)


def w1_dma(p, c, vow):
    L = []
    for s in range(2):
        slot = (2 * c + s) % 7

        def a(s=s, slot=slot):
            if s == 0:
                p(f"""
                s_add_u32 s{sT0}, s{sC0}, {c}
                s_and_b32 s{sT0}, s{sT0}, 7
                s_mul_i32 s{sT0}, s{sT0}, {64 * 3584}
                s_add_u32 m0, s{sMW}, {WR + slot * 8192}
                s_add_u32 s{sKW}, s{sBW}, s{sT0}
                """)
            else:
                p(f"s_add_u32 m0, s{sMW}, {WR + slot * 8192}\ns_add_u32 s{sKW}, s{sKW}, {32 * 3584}")
            p.vmem(f"buffer_load_dwordx4 v{vow}, s[{S_W}:{S_W + 3}], s{sKW} offen lds", ("w", c))
        L.append(a)
        L.append(lambda: p.vmem(f"buffer_load_dwordx4 v{vow + 1}, s[{S_W}:{S_W + 3}], s{sKW} offen offset:1024 lds", ("w", c)))
    return L


def c_dma_setup(p, vo):
    p(f"""
    v_lshrrev_b32 v{vT0}, 4, v{vL}
    v_and_b32 v{vT1}, 7, v{vL}
    v_xor_b32 v{vT0}, v{vT0}, v{vT1}
    v_lshlrev_b32 v{vT0}, 4, v{vT0}
    v_lshrrev_b32 v{vT1}, 3, v{vL}
    v_lshl_add_u32 v{vo}, v{vT1}, 10, v{vT0}
    v_xor_b32 v{vo + 1}, 64, v{vo}
    v_add_u32 v{vo + 1}, 7168, v{vo + 1}
    v_add_u32 v{vo + 2}, 14336, v{vo}
    v_add_u32 v{vo + 3}, 14336, v{vo + 1}
    """)


def make_tag(p):
    p(f"""
    s_mov_b32 s{sT0}, 0x9E3779B1
    v_mul_lo_u32 v{vTAG}, v{vTAG}, s{sT0}
    v_add_u32 v{vTAG}, 0x7F4A7C15, v{vTAG}
    """)


def retry(p, cond, test, reload):
    chk, ok, rt = p.label("chk"), p.label("ok"), p.label("retry")
    p(f"{chk}:")
    test()
    p(f"{cond} {rt}\n{ok}:")
    main, p.l = p.l, []
    p(f"""
    {rt}:
    s_sub_u32 s{sSPIN}, s{sSPIN}, 1
    s_cmp_gt_i32 s{sSPIN}, 0
    s_cbranch_scc0 {ok}
    """)
    reload()
    p(f"s_branch {chk}")
    p.ool += p.l
    p.l = main


sPF = 8


def poll_setup(p, grp_expr):
    p(f"""
    s_mul_i32 s{sT0}, s{sM2}, 12
    {grp_expr}
    s_lshl_b32 s{sT0}, s{sT0}, 7
    s_add_u32 s{sT0}, s{sT0}, {WS_FLAGS}
    s_add_u32 s42, s{pWS}, s{sT0}
    s_addc_u32 s43, s{pWS + 1}, 0
    v_readfirstlane_b32 s40, v{vTAG}
    v_readfirstlane_b32 s41, v{vTAG}
    """)


def poll_issue(p, o_, sPF=sPF):
    p(f"s_load_dwordx8 s[{sPF}:{sPF + 7}], s[42:43], {o_} glc")


def poll_check(p, o_, sPF=sPF):
    def test():
        p("s_waitcnt lgkmcnt(0)")
        for k in range(0, 8, 2):
            p(f"s_xor_b64 s[{sPF + k}:{sPF + k + 1}], s[{sPF + k}:{sPF + k + 1}], s[40:41]")
        p(f"""
        s_or_b64 s[{sPF}:{sPF + 1}], s[{sPF}:{sPF + 1}], s[{sPF + 2}:{sPF + 3}]
        s_or_b64 s[{sPF + 4}:{sPF + 5}], s[{sPF + 4}:{sPF + 5}], s[{sPF + 6}:{sPF + 7}]
        s_or_b64 s[{sPF}:{sPF + 1}], s[{sPF}:{sPF + 1}], s[{sPF + 4}:{sPF + 5}]
        """)
    retry(p, "s_cbranch_scc1", test, lambda: poll_issue(p, o_, sPF))


def delay_until(p, us):
    assert p.opt.get("stamps")
    lab = p.label("dly")
    p(f"""
    s_waitcnt vmcnt(0)
    s_add_u32 s{sT0}, s100, {int(us * 100)}
    {lab}:
    s_memrealtime s[34:35]
    s_waitcnt lgkmcnt(0)
    s_sub_u32 s{sT1}, s34, s{sT0}
    s_cmp_lt_i32 s{sT1}, 0
    s_cbranch_scc1 {lab}
    """)


def flag_store(p, sreg, add):
    p(f"s_add_u32 s{sT0}, s{sreg}, {add}\ns_mov_b64 exec, 1")
    p.vmem(f"buffer_store_dword v{vTAG}, off, s[{S_WS}:{S_WS + 3}], s{sT0} sc1", "flag")
    p("s_mov_b64 exec, -1")


def cmul(p, d, a, b, add=None):
    if add is None:
        p(f"v_pk_mul_f32 {vr(d, 2)}, {vr(a, 2)}, {vr(b, 2)} op_sel_hi:[0,1]")
    else:
        p(f"v_pk_fma_f32 {vr(d, 2)}, {vr(a, 2)}, {vr(b, 2)}, {vr(add, 2)} op_sel_hi:[0,1,1]")
    p(f"v_pk_fma_f32 {vr(d, 2)}, {vr(a, 2)}, {vr(b, 2)}, {vr(d, 2)} op_sel:[1,1,0] op_sel_hi:[1,0,1] neg_lo:[0,1,0]")


def entry(p):
    o = p.opt
    p(f"""
    s_load_dwordx16 s[36:51], s[0:1], 0
    s_load_dwordx16 s[52:67], s[0:1], 64
    s_getpc_b64 s[34:35]
    L_pc:
    s_cmp_ge_u32 s2, 256
    s_cbranch_scc1 L_end
    v_lshrrev_b32 v{vT0}, 6, v0
    s_lshr_b32 s{sJ}, s2, 3
    v_and_b32 v{vL}, 63, v0
    v_readfirstlane_b32 s{sW}, v{vT0}
    v_lshl_add_u32 v{vT0}, s{sJ}, 3, v{vT0}
    v_lshlrev_b32 v{vT0}, 7, v{vT0}
    v_min_u32 v{vT0}, L_end-L_pc, v{vT0}
    """)
    p.vmem(f"global_load_dword v255, v{vT0}, s[34:35]", "pf")
    if o.get("stamps"):
        p(("s_memtime" if o["stamps"] == 2 else "s_memrealtime") + " s[92:93]")
        if o.get("sg", 0) != 4:
            p("s_memrealtime s[100:101]")
    p(f"s_and_b32 s{sXCD}, s2, 7")
    if o.get("part", 24) == 24:
        p(f"""
        s_and_b32 s{sT0}, s{sJ}, 7
        s_lshr_b32 s{sT1}, s{sJ}, 3
        s_lshr_b32 s{sMT}, s{sXCD}, 2
        s_lshl3_add_u32 s{sMT}, s{sMT}, s{sT0}
        s_and_b32 s{sT2}, s{sXCD}, 3
        s_lshl2_add_u32 s{sNT}, s{sT2}, s{sT1}
        """)
    else:
        p(f"""
        s_and_b32 s{sT0}, s{sJ}, 3
        s_lshr_b32 s{sT1}, s{sJ}, 2
        s_lshr_b32 s{sMT}, s{sXCD}, 1
        s_lshl2_add_u32 s{sMT}, s{sMT}, s{sT0}
        s_and_b32 s{sT2}, s{sXCD}, 1
        s_lshl3_add_u32 s{sNT}, s{sT2}, s{sT1}
        """)
    rm, rn, rx, ry = o.get("rm", 1), o.get("rn", 2), o.get("rx", 1), o.get("ry", 0)
    p(f"""
    s_mul_i32 s{sC0}, s{sT0}, {rm}
    s_mul_i32 s{sT1}, s{sT1}, {rn}
    s_add_u32 s{sC0}, s{sC0}, s{sT1}
    s_mul_i32 s{sT1}, s{sXCD}, {rx}
    s_add_u32 s{sC0}, s{sC0}, s{sT1}
    """)
    if ry:
        p(f"s_lshr_b32 s{sT1}, s{sXCD}, 2\ns_mul_i32 s{sT1}, s{sT1}, {ry}\ns_add_u32 s{sC0}, s{sC0}, s{sT1}")
    p(f"""
    s_and_b32 s{sV}, s{sW}, 3
    s_lshr_b32 s{sMH}, s{sV}, 1
    s_cmp_ge_u32 s{sW}, 4
    s_cbranch_scc1 L_X
    """)


def late_ids(p):
    p(f"""
    s_lshr_b32 s{sT0}, s{sNT}, 2
    s_lshl_b32 s{sL0}, s{sNT}, 1
    s_sub_u32 s{sL0}, s{sL0}, s{sT0}
    """)
    if p.opt.get("part2", 81) == 81:
        p(f"""
        s_and_b32 s{sFLG}, s{sJ}, 3
        s_lshl2_add_u32 s{sM2}, s{sXCD}, s{sFLG}
        s_lshr_b32 s{sN2}, s{sJ}, 2
        s_xor_b32 s{sN2}, s{sN2}, {p.opt.get('nx', 5)}
        """)
    else:
        p(f"""
        s_and_b32 s{sFLG}, s{sJ}, 7
        s_lshr_b32 s{sT0}, s{sXCD}, 1
        s_lshl3_add_u32 s{sM2}, s{sT0}, s{sFLG}
        s_and_b32 s{sT0}, s{sXCD}, 1
        s_lshr_b32 s{sN2}, s{sJ}, 3
        s_lshl2_add_u32 s{sN2}, s{sT0}, s{sN2}
        """)
    p(f"""
    s_mov_b32 s{sSPIN}, {SPIN_MAX}
    s_lshl1_add_u32 s{sCI}, s{sMT}, s{sMH}
    s_mov_b32 s{sMASK}, 0xffff0000
    s_mul_i32 s{sFLG}, s{sFLG}, {p.opt.get('rs2', 0)}
    s_mul_i32 s{sT0}, s{sXCD}, {p.opt.get('rx2', 1)}
    s_add_u32 s{sFLG}, s{sFLG}, s{sT0}
    s_add_u32 s{sG0}, s{sFLG}, {('s%d' % sN2) if p.opt.get('rot2', 1) else 0}
    s_and_b32 s{sG0}, s{sG0}, 1
    s_mul_i32 s{sHID}, s{sM2}, {352 * 1024}
    s_add_u32 s{sHID}, s{sHID}, {WS_HID}
    v_lshlrev_b32 v{vL16}, 4, v{vL}
    v_add_u32 v{vL16B}, 4096, v{vL16}
    """)


vRING, NRING, vACC2, vB2 = 8, 13, 64, 128
vPW = 60


def ph2_loop(p, items, hooks_pre, hooks_post, side, ramp, after_ramp=None, NRING=NRING, depth=None, tail=None):
    n = len(items)

    def load(g):
        if g in hooks_pre:
            hooks_pre[g]()
        sreg, second, tb, _, _ = items[g]
        r = vRING + 4 * (g % NRING)
        p.vmem(f"buffer_load_dwordx4 {vr(r, 4)}, v{vL16B if second else vL16}, s[{S_WS}:{S_WS + 3}], s{sreg} offen{off(1024 * (tb ^ second))} sc1", ("a", g))
    depth = depth or p.opt.get("depth", 10)
    assert depth < NRING
    issued = 0
    for g in range(ramp):
        load(g)
        issued += 1
    if after_ramp:
        after_ramp()
    nreg = n if tail is None else tail[0]
    for g in range(nreg):
        _, _, tb, b2, first = items[g]
        p.wait_vm(("a", g))
        r = vRING + 4 * (g % NRING)
        sd = side.get(g, [])
        for db in range(4):
            p(mfma(vACC2 + 16 * tb + 4 * db, b2 + 4 * db, r, first))
            if db in (0, 2) and issued < n and issued <= g + depth:
                load(issued)
                issued += 1
            if db >= 1:
                k = -(-len(sd) // (4 - db))
                for x in sd[:k]:
                    p(x)
                sd = sd[k:]
        if g in hooks_post:
            hooks_post[g]()
    if tail is None:
        return
    _, ts = tail
    pend = None
    for g0 in range(nreg, n, ts):
        tb = items[g0][2]
        W = pw_list(tb)
        for db in range(4):
            for k in range(ts):
                g = g0 + k
                if db == 0:
                    p.wait_vm(("a", g))
                p(mfma(vACC2 + 16 * tb + 4 * db, items[g][3] + 4 * db, vRING + 4 * (g % NRING), False))
                free = g if db == 3 else g0 - 1
                if (k & 1 or db == 3) and issued < n and issued - NRING < free:
                    load(issued)
                    issued += 1
                if k == ts - 1 and pend is not None:
                    p("s_nop 1" if db else "s_nop 0")
                    p(pend)
                    pend = None
                if db == 1 and k == 2 and g0 > nreg:
                    p("s_waitcnt lgkmcnt(0)\ns_barrier")
                for x in side.get((g0, db, k), []):
                    p(x)
            pend = W[db]
    p.stamp(13)
    p("s_nop 7")
    p(pend)
    p("s_waitcnt lgkmcnt(0)\ns_barrier")


def spread(side, L, start, per):
    for i in range(0, len(L), per):
        side.setdefault(start + i // per, []).extend(L[i:i + per])


def partial_addr():
    return f"""v_lshrrev_b32 v{vT0}, 4, v{vL}
    v_and_b32 v{vT1}, 15, v{vL}
    v_xor_b32 v{vT1}, v{vT1}, v{vT0}
    v_lshlrev_b32 v{vT1}, 4, v{vT1}
    v_lshl_add_u32 v{vT1}, v{vT0}, 8, v{vT1}
    v_add_u32 v{vPW}, s{sBUF}, v{vT1}
    v_xor_b32 v{vPW + 1}, 64, v{vPW}
    v_xor_b32 v{vPW + 2}, 128, v{vPW}
    v_xor_b32 v{vPW + 3}, 192, v{vPW}""".split("\n")


def pw_list(tb):
    o_ = 32768 * (tb >> 1) + 4096 * (tb & 1)
    return [f"ds_write_b128 v{vPW + db}, {vr(vACC2 + 16 * tb + 4 * db, 4)} offset:{o_ + 1024 * db}" for db in range(4)]


def partial_write(p, tb):
    for x in pw_list(tb):
        p(x)


yAX, yAB, yAS = 248, 250, 252
yOW = 8
yCW, yR2 = 14, 60
yC, yL, yL16, yQ16, yQ64, yL256, yPQ = 16, 18, 20, 22, 24, 26, 28
yONE, yB1, ySEL = 32, 30, 36
yCS = 40
yCF = 96
yRE, yIM = 64, 80
yFR = 128
yM, yR = 176, 192
yGD = 96
yTA, yTB, yG0, yG1 = 48, 50, 52, 54
yL64, yQM, yGD2, yGA, yNL, ySA = 30, 126, 96, 118, 38, 122


def half_reduce(p, a, t):
    for r in (8, 4, 2, 1):
        p(f"s_nop 1\nv_add_f32_dpp v{a}, v{a}, v{a} row_ror:{r} row_mask:0xf bank_mask:0xf")
    p(f"""
    v_mov_b32 v{t}, v{a}
    s_nop 1
    v_permlane16_swap_b32 v{a}, v{t}
    s_nop 1
    v_add_f32 v{a}, v{a}, v{t}
    """)


def y_prologue(p):
    D = 208
    PR = 244
    p.raw(1)
    p(f"""
    v_and_b32 v{vT0}, 31, v{vL}
    v_lshrrev_b32 v{vT1}, 5, v{vL}
    v_lshlrev_b32 v{vT2}, 4, v{vT0}
    v_lshl_add_u32 v{vT2}, v{vT1}, 10, v{vT2}
    s_lshl4_add_u32 s{sT0}, s{sMT}, s{sNT}
    s_lshl2_add_u32 s{sT0}, s{sT0}, s{sW}
    s_lshl_b32 s{sKX}, s{sT0}, 11
    s_lshl_b32 s{sKB}, s{sT0}, 4
    s_waitcnt lgkmcnt(0)
    """)
    srd(p, S_X, pX, 2048 * 1024)
    p.vmem(f"buffer_load_dwordx4 {vr(D, 4)}, v{vT2}, s[{S_X}:{S_X + 3}], s{sKX} offen", "xr")
    p.vmem(f"buffer_load_dwordx4 {vr(D + 4, 4)}, v{vT2}, s[{S_X}:{S_X + 3}], s{sKX} offen offset:512", "xr")
    p.raw(2)
    srd(p, S_WS, pWS, WS_BYTES)
    p.vmem(f"buffer_load_dword v{vTAG}, off, s[{S_WS}:{S_WS + 3}], 0 sc1", "xr")
    p.l.append("@YCUT")
    late_ids(p)
    p(f"""
    s_add_u32 s{sKB}, s{sKB}, {WS_STATS}
    v_and_b32 v{vT0}, 15, v{vL}
    s_and_b32 s{sT1}, s{sV}, 1
    s_lshl1_add_u32 s{sT0}, s{sNT}, s{sT1}
    s_lshl_b32 s{sT0}, s{sT0}, 4
    v_add_lshl_u32 v{vT2}, v{vT0}, s{sT0}, 1
    """)
    p.vmem(f"global_load_ushort v{PR}, v{vT2}, s[{pLRE}:{pLRE + 1}]", "par")
    p.vmem(f"global_load_ushort v{PR + 1}, v{vT2}, s[{pLIM}:{pLIM + 1}]", "par")
    p.vmem(f"global_load_ushort v{PR + 2}, v{vT2}, s[{pDT}:{pDT + 1}]", "par")
    rowfrag_addr(p, yAX)
    p(f"""
    s_lshl_b32 s{sT0}, s{sT1}, 11
    s_add_u32 s{sT0}, s{sT0}, {BR}
    v_add_u32 v{yAB}, s{sT0}, v{yAX}
    s_lshl_b32 s{sT0}, s{sMH}, 13
    s_add_u32 s{sT0}, s{sT0}, {XR}
    v_add_u32 v{yAX}, s{sT0}, v{yAX}
    v_xor_b32 v{yAX + 1}, 64, v{yAX}
    v_xor_b32 v{yAB + 1}, 64, v{yAB}
    """)
    for k in range(4):
        p(f"v_mov_b32 v{yONE + k}, 0x3f803f80")
    p(f"""
    v_and_b32 v{vT0}, 15, v{vL}
    v_lshrrev_b32 v{vT1}, 4, v{vL}
    v_lshlrev_b32 v{vT1}, 2, v{vT1}
    v_sub_u32 v{vT0}, v{vT0}, v{vT1}
    v_mov_b32 v{vT1}, 0x3f80
    v_mov_b32 v{vT2}, 0x3f800000
    """)
    for dw in range(2):
        p(f"""
        v_cmp_eq_u32 vcc, {2 * dw}, v{vT0}
        v_cmp_eq_u32 s[{sT0}:{sT1}], {2 * dw + 1}, v{vT0}
        s_nop 0
        v_cndmask_b32 v{ySEL + dw}, 0, v{vT1}, vcc
        v_cndmask_b32 v{ySEL + dw}, v{ySEL + dw}, v{vT2}, s[{sT0}:{sT1}]
        """)
    p(f"""
    v_lshrrev_b32 v{vT1}, 4, v{vL}
    s_lshl_b32 s{sT0}, s{sMH}, 8
    s_add_u32 s{sT0}, s{sT0}, {L_M}
    v_lshl_add_u32 v{yAS}, v{vT1}, 6, s{sT0}
    """)
    y_m_setup(p)
    if p.opt.get("pt", 1):
        p(f"""
        s_add_u32 s38, s{pWS}, s{sKB}
        s_addc_u32 s39, s{pWS + 1}, 0
        s_load_dword s58, s[38:39], 0 {'glc' if p.opt.get('ptg', 1) else ''}
        s_mul_i32 s{sT0}, s{sCI}, 12
        s_lshr_b32 s{sT1}, s{sNT}, 2
        s_add_u32 s{sT0}, s{sT0}, s{sT1}
        s_lshl_b32 s{sT0}, s{sT0}, 7
        s_add_u32 s{sT0}, s{sT0}, {WS_FLAGS}
        s_add_u32 s38, s{pWS}, s{sT0}
        s_addc_u32 s39, s{pWS + 1}, 0
        s_load_dword s58, s[38:39], 0 {'glc' if p.opt.get('ptg', 1) else ''}
        """)
    p.raw(3)
    p.wait_vm("xr")
    p.raw(4)
    make_tag(p)
    F = D + 8
    for k in range(8):
        p(f"v_lshlrev_b32 v{F + 2 * k}, 16, v{D + k}\nv_and_b32 v{F + 2 * k + 1}, s{sMASK}, v{D + k}")
    A = D + 24
    p(f"v_pk_add_f32 {vr(A, 2)}, {vr(F, 2)}, {vr(F + 2, 2)}")
    for k in range(2, 8):
        p(f"v_pk_add_f32 {vr(A, 2)}, {vr(A, 2)}, {vr(F + 2 * k, 2)}")
    p(f"v_add_f32 v{A}, v{A}, v{A + 1}")
    half_reduce(p, A, A + 1)
    p(f"v_mul_f32 v{A}, 0x3b000000, v{A}")
    for k in range(8):
        p(f"v_pk_add_f32 {vr(F + 2 * k, 2)}, {vr(F + 2 * k, 2)}, {vr(A, 2)} op_sel_hi:[1,0] neg_lo:[0,1] neg_hi:[0,1]")
    p(f"v_pk_mul_f32 {vr(A + 2, 2)}, {vr(F, 2)}, {vr(F, 2)}")
    for k in range(1, 8):
        p(f"v_pk_fma_f32 {vr(A + 2, 2)}, {vr(F + 2 * k, 2)}, {vr(F + 2 * k, 2)}, {vr(A + 2, 2)}")
    p(f"v_add_f32 v{A + 2}, v{A + 2}, v{A + 3}")
    half_reduce(p, A + 2, A + 3)
    p(f"""
    v_mul_f32 v{A + 2}, 0x3b000000, v{A + 2}
    v_cvt_pk_bf16_f32 v{A + 2}, v{A + 2}, v{A + 2}
    v_and_b32 v{A + 2}, s{sMASK}, v{A + 2}
    v_add_f32 v{A + 2}, 0x3727c5ac, v{A + 2}
    v_cvt_pk_bf16_f32 v{A + 2}, v{A + 2}, v{A + 2}
    v_and_b32 v{A + 2}, s{sMASK}, v{A + 2}
    v_sqrt_f32 v{A + 2}, v{A + 2}
    v_lshrrev_b32 v{vT1}, 5, v{vL}
    v_cvt_pk_bf16_f32 v{A}, v{A}, v{A + 2}
    v_mov_b32 v{A + 1}, v{vTAG}
    v_lshlrev_b32 v{vT1}, 3, v{vT1}
    s_mov_b32 exec_lo, 1
    s_mov_b32 exec_hi, 1
    """)
    p.vmem(f"buffer_store_dwordx2 {vr(A, 2)}, v{vT1}, s[{S_WS}:{S_WS + 3}], s{sKB} offen sc1", "stst")
    p("s_mov_b64 exec, -1")
    p.stamp(1)


def y_consts(p):
    PR, t = 244, 208
    main, p.l = p.l, []
    p(f"v_mov_b32 v58, v{vTAG}\nv_mov_b32 v59, v{vTAG}")
    p(f"""
    v_lshlrev_b32 v{PR}, 16, v{PR}
    v_lshlrev_b32 v{PR + 1}, 16, v{PR + 1}
    v_lshlrev_b32 v{PR + 2}, 16, v{PR + 2}
    v_mul_f32 v{PR + 2}, {LOG2E}, v{PR + 2}
    v_exp_f32 v{PR + 2}, v{PR + 2}
    s_nop 0
    v_cvt_pk_bf16_f32 v{PR + 2}, v{PR + 2}, v{PR + 2}
    v_and_b32 v{PR + 2}, s{sMASK}, v{PR + 2}
    v_mul_f32 v{t}, v{PR + 2}, v{PR}
    v_mul_f32 v{t + 1}, v{PR + 2}, v{PR + 1}
    v_mul_f32 v{t}, {LOG2E}, v{t}
    v_mul_f32 v{t + 1}, 0.15915494, v{t + 1}
    v_exp_f32 v{t}, v{t}
    v_rndne_f32 v{t + 2}, v{t + 1}
    v_sub_f32 v{t + 1}, v{t + 1}, v{t + 2}
    v_cos_f32 v{t + 2}, v{t + 1}
    v_sin_f32 v{t + 3}, v{t + 1}
    v_mul_f32 v{t + 4}, v{PR}, v{PR}
    v_fmac_f32 v{t + 4}, v{PR + 1}, v{PR + 1}
    v_rcp_f32 v{t + 4}, v{t + 4}
    v_mul_f32 v{yL}, v{t}, v{t + 2}
    v_mul_f32 v{t + 3}, v{t}, v{t + 3}
    v_sub_f32 v{yL + 1}, 0, v{t + 3}
    v_add_f32 v{t + 2}, -1.0, v{yL}
    v_add_f32 v{t + 4}, v{t + 4}, v{t + 4}
    v_mul_f32 v{yC}, v{t + 2}, v{PR}
    v_fmac_f32 v{yC}, v{t + 3}, v{PR + 1}
    v_mul_f32 v{yC + 1}, v{t + 3}, v{PR}
    v_fma_f32 v{yC + 1}, -v{t + 2}, v{PR + 1}, v{yC + 1}
    v_mul_f32 v{yC}, v{yC}, v{t + 4}
    v_mul_f32 v{yC + 1}, v{yC + 1}, v{t + 4}
    v_and_b32 v{vT0}, 16, v{vL}
    v_cmp_ne_u32 s[42:43], 0, v{vT0}
    v_cmp_le_u32 s[44:45], 32, v{vL}
    """)
    a, b, c, d = t + 6, t + 8, t + 10, t + 12
    cmul(p, a, yL, yL)
    cmul(p, b, a, a)
    cmul(p, a, b, b)
    cmul(p, yL16, a, a)
    cmul(p, a, yL16, yL16)

    def qpow(dst, p1, p2):
        p(f"""
        v_cndmask_b32 v{c}, 1.0, v{p1}, s[42:43]
        v_cndmask_b32 v{c + 1}, 0, v{p1 + 1}, s[42:43]
        v_cndmask_b32 v{d}, 1.0, v{p2}, s[44:45]
        v_cndmask_b32 v{d + 1}, 0, v{p2 + 1}, s[44:45]
        """)
        cmul(p, dst, c, d)
    qpow(yQ16, yL16, a)
    cmul(p, yL64, a, a)
    p(f"""
    s_cmp_eq_u32 s{sMH}, 0
    s_cselect_b64 vcc, -1, 0
    s_cselect_b32 s59, 0, 1.0
    v_cndmask_b32_e64 v{c}, v{yL64}, 1.0, vcc
    v_cndmask_b32_e64 v{c + 1}, v{yL64 + 1}, 0, vcc
    """)
    cmul(p, yQM, c, yQ16)
    cmul(p, a, yL64, yL64)
    cmul(p, b, a, a)
    qpow(yQ64, a, b)
    cmul(p, yL256, b, b)
    p(f"""
    v_sub_f32 v{yNL}, 0, v{yL + 1}
    v_sub_f32 v{yNL + 1}, 0, v{yL256 + 1}
    """)
    L, p.l = p.l, main
    return L


def y_pass_s(p):
    def reads(c, s, st):
        b = yFR + 24 * st
        G = [[f"ds_read_b128 {vr(b + 16 + 4 * k, 4)}, v{yAB + s} offset:{(c % 3) * 8192 + k * 4096}" for k in range(2)]]
        G += [[f"ds_read_b128 {vr(b + 4 * tb, 4)}, v{yAX + s} offset:{(c & 3) * 16384 + tb * 2048}"] for tb in range(4)]
        return G
    p("s_waitcnt lgkmcnt(0)\ns_barrier")
    p.stamp(2)
    issued, mark = 0, {}
    for g, L in enumerate(reads(0, 0, 0)):
        for x in L:
            p(x)
            issued += 1
        mark[(0, g)] = issued
    K = y_consts(p)
    nk = -(-len(K) // p.opt.get("kn", 5))
    for n in range(16):
        c, s = divmod(n, 2)
        st = n & 1
        b = yFR + 24 * st
        M = [[mfma(yCS, yONE, b + 16, n == 0), mfma(yCS + 4, yONE, b + 20, n == 0)]]
        M += [[mfma(yRE + 4 * tb, b + 4 * tb, b + 16, n == 0), mfma(yIM + 4 * tb, b + 4 * tb, b + 20, n == 0)] for tb in range(4)]
        if n < 15:
            R = reads((n + 1) >> 1, (n + 1) & 1, st ^ 1)
        else:
            R = [[f"ds_read_b128 {vr(yM + 4 * tb, 4)}, v{yAS} offset:{16 * tb}", f"ds_read_b128 {vr(yR + 4 * tb, 4)}, v{yAS} offset:{512 + 16 * tb}"] for tb in range(4)] + [[]]
        for g in range(5):
            p(f"s_waitcnt lgkmcnt({issued - mark[(n, g)]})")
            p(M[g][0])
            if g == 0 and s == 1 and c < 7:
                p(M[g][1])
                if K:
                    p.wait_vm("par")
                for x in K[:nk]:
                    p(x)
                K = K[nk:]
                p("s_barrier")
            if g == 0 and n in (7, 8):
                p(f"v_add_u32 v{yAX + ((n + 1) & 1)}, 65536, v{yAX + ((n + 1) & 1)}")
            for i, x in enumerate(R[g]):
                p(x)
                issued += 1
                if i == 0 and not (g == 0 and s == 1 and c < 7):
                    p(M[g][1])
            if not R[g]:
                p(M[g][1])
            mark[(n + 1, g)] = issued
    p("s_waitcnt lgkmcnt(0)")
    p.stamp(3)


def yU(tau):
    tb, i = divmod(tau, 4)
    return (yRE if i % 2 == 0 else yIM) + 4 * tb + (i & ~1)


def y_window(p):
    g, gn = yG0, yG1
    p("s_nop 1")
    if p.opt.get("al", 1):
        p(".p2align 3")
    for tau in range(0, 16, 2):
        a, b = yRE + tau, yIM + tau
        p(f"""
        v_pk_fma_f32 {vr(yTA, 2)}, {vr(yM + tau, 2)}, {vr(yCS, 2)}, {vr(a, 2)} neg_lo:[1,0,0] neg_hi:[1,0,0]
        v_pk_fma_f32 {vr(yTB, 2)}, {vr(yM + tau, 2)}, {vr(yCS + 4, 2)}, {vr(b, 2)} neg_lo:[1,0,0] neg_hi:[1,0,0]
        v_pk_mul_f32 {vr(yTA, 2)}, {vr(yTA, 2)}, {vr(yR + tau, 2)}
        v_pk_mul_f32 {vr(yTB, 2)}, {vr(yTB, 2)}, {vr(yR + tau, 2)}
        v_pk_mul_f32 {vr(a, 2)}, {vr(yTA, 2)}, {vr(yC, 2)} op_sel_hi:[0,1] neg_hi:[0,1]
        v_pk_mul_f32 {vr(b, 2)}, {vr(yTA, 2)}, {vr(yC, 2)} op_sel:[1,0] op_sel_hi:[1,1] neg_hi:[0,1]
        v_pk_fma_f32 {vr(a, 2)}, {vr(yTB, 2)}, {vr(yC, 2)}, {vr(a, 2)} op_sel:[0,1,0] op_sel_hi:[0,0,1] neg_lo:[0,1,0] neg_hi:[0,1,0]
        v_pk_fma_f32 {vr(b, 2)}, {vr(yTB, 2)}, {vr(yC, 2)}, {vr(b, 2)} op_sel:[1,1,0] op_sel_hi:[1,0,1] neg_lo:[0,1,0] neg_hi:[0,1,0]
        """)
        if tau == 0:
            cmul(p, g, yU(0), yL, yU(1))
        else:
            cmul(p, gn, g, yL, yU(tau))
            cmul(p, g, gn, yL, yU(tau + 1))
    GR = 56
    p(f"""
    v_mov_b32 v{gn}, v{g}
    v_mov_b32 v{gn + 1}, v{g + 1}
    s_nop 1
    v_permlane16_swap_b32 v{g}, v{gn}
    v_permlane16_swap_b32 v{g + 1}, v{gn + 1}
    v_mov_b32 v{yTA}, v{g}
    v_mov_b32 v{yTA + 1}, v{g + 1}
    v_mov_b32 v{yTB}, v{gn}
    v_mov_b32 v{yTB + 1}, v{gn + 1}
    v_permlane32_swap_b32 v{g}, v{yTA}
    v_permlane32_swap_b32 v{g + 1}, v{yTA + 1}
    v_permlane32_swap_b32 v{gn}, v{yTB}
    v_permlane32_swap_b32 v{gn + 1}, v{yTB + 1}
    s_nop 0
    """)
    cmul(p, gn, g, yL16, gn)
    cmul(p, yTA, gn, yL16, yTA)
    cmul(p, GR, yTA, yL16, yTB)
    p(f"ds_write_b64 v{ySA}, {vr(GR, 2)}")
    for k in range(2):
        p(f"""
        v_cndmask_b32 v{g + k}, 0, v{g + k}, s[42:43]
        v_cndmask_b32 v{gn + k}, v{gn + k}, v{yTA + k}, s[42:43]
        v_cndmask_b32 v{yPQ + k}, v{g + k}, v{gn + k}, s[44:45]
        """)
    p("s_waitcnt lgkmcnt(0)\ns_barrier")
    p.stamp(4)
    p.stamp(1, 1)
    p.stamp(1, 2)
    p(f"ds_read_b64 {vr(yTA, 2)}, v{ySA + 1}")


def y_publish(p):
    GR = 56
    p(f"""
    s_waitcnt lgkmcnt(0)
    v_mul_f32 v{yTA}, s59, v{yTA}
    v_mul_f32 v{yTA + 1}, s59, v{yTA + 1}
    v_mul_f32 v{GR}, s59, v{GR}
    v_mul_f32 v{GR + 1}, s59, v{GR + 1}
    v_fmac_f32 v{GR}, v{yTA}, v{yL64}
    v_fmac_f32 v{GR + 1}, v{yTA}, v{yL64 + 1}
    v_fma_f32 v{GR}, -v{yTA + 1}, v{yL64 + 1}, v{GR}
    v_fmac_f32 v{GR + 1}, v{yTA + 1}, v{yL64}
    s_mov_b64 exec, 0xffff
    """)
    p.vmem(f"buffer_store_dwordx4 {vr(GR, 4)}, v{ySA + 2}, s[{S_WS}:{S_WS + 3}], s{sMB} offen sc1", "S")
    p(f"""
    s_mov_b64 exec, -1
    v_fmac_f32 v{yPQ}, v{yTA}, v{yQ16}
    v_fmac_f32 v{yPQ + 1}, v{yTA}, v{yQ16 + 1}
    v_fma_f32 v{yPQ}, -v{yTA + 1}, v{yQ16 + 1}, v{yPQ}
    v_fmac_f32 v{yPQ + 1}, v{yTA + 1}, v{yQ16}
    """)


class Rebase:
    def __init__(self, reg, base):
        self.reg, self.base = reg, base

    def at(self, q):
        d = 32768 * q - self.base
        if d in (0, 32768):
            return [], d
        self.base += d
        op, d = ("v_add_u32", d) if d > 0 else ("v_subrev_u32", -d)
        return [f"{op} v{self.reg + k}, {d}, v{self.reg + k}" for k in range(4)], 0


def with_pre(pre, L):
    if pre:
        L[0] = "\n".join(pre) + "\n" + L[0]
    return L


def w2_unit_head(p, slot):
    p(f"s_lshl_b32 s{sKB}, s{sUN + slot}, 16\ns_add_u32 s{sKB}, s{sKB}, s{sBB}")


yOC, yO2 = 10, 32


class Stage:
    ORDERS = {0: "C2 C3 C4 C2 W3 W4 W2 W0 W1",
              1: "C2 W3 W4 C2 W2 C0 C1 W0 W1",
              2: "W3 W4 W2 C0 C1 C0 C1 W0 W1",
              3: "C2 C4 W3 W4 W2 C0 C1 W0 W1",
              4: "C2 W3 C4 C2 W4 W2 C0 W0 W1",
              5: "C2 C4 W3 C2 W4 C2 W2 W0 W1",
              6: "C2 C4 W3 W4 C2 W2 C0 W0 W1"}

    def __init__(self, p):
        self.p = p
        self.todo, n, last, self.cq = [], {"C": 0, "W": 0}, {}, []
        for x in self.ORDERS[p.opt.get("seq", 0)].split():
            kind, q = x[0], int(x[1])
            self.todo.append((kind, n[kind], q, last.get(q, -1)))
            if kind == "C":
                last[q] = n[kind]
                self.cq.append(q)
            n[kind] += 1
        self.cur, self.k = None, 0
        self.read = 0
        self.full = set()
        self.late = False
        self.rb = Rebase(yR2, 65536)

    def pick(self):
        if self.cur is None:
            for u in self.todo:
                if (u[2] >= 2 or self.late) and self.read > u[3]:
                    self.cur, self.k = u, 0
                    self.todo.remove(u)
                    break
        return self.cur

    def left(self):
        return 8 * len(self.todo) + (8 - self.k if self.cur else 0)

    def done(self):
        return not self.todo and self.cur is None

    def dma(self, need_m0=True):
        p = self.p
        if self.pick() is None:
            return False
        kind, u, q, _ = self.cur
        k = self.k
        if need_m0 or k % 4 == 0:
            p(f"s_add_u32 m0, s{sBUF}, {32768 * q + 4096 * (k // 4)}")
            if k % 4:
                p("s_nop 0")
        if k == 0 and kind == "W":
            w2_unit_head(p, u)
        if k == 0 and kind == "C":
            ptr = pCIM if u & 1 else pCRE
            p(f"s_mov_b32 s{S_X}, s{ptr}\ns_mov_b32 s{S_X + 1}, s{ptr + 1}\ns_xor_b32 s{sKB}, s{sKX}, {128 * (u >> 1)}")
        if k == 4:
            p(f"s_add_u32 s{sKB}, s{sKB}, 32768")
        vo, sr = (yOC, S_X) if kind == "C" else (yO2, S_B)
        p.vmem(f"buffer_load_dwordx4 v{vo + k % 4}, s[{sr}:{sr + 3}], s{sKB} offen{off(1024 * (k % 4))} lds", (kind, u) if kind == "C" else "W")
        self.k += 1
        if self.k == 8:
            self.full.add((kind, u))
            self.cur = None
        return True

    def reads(self, u):
        pre, imm = self.rb.at(self.cq[u])
        if pre and self.late and self.p.opt.get("yp", 1):
            pre = ["s_setprio 3"] + pre + ["s_setprio 0"]
        return with_pre(pre, [f"ds_read_b64 {vr(vB2 + 64 * (u >> 1) + 16 * j + 4 * db + 2 * (u & 1), 2)}, v{yR2 + j} offset:{imm + 2048 * db}"
                              for j in range(4) for db in range(4)])

    def read_next(self):
        self.p.wait_vm(("C", self.read))
        for x in self.reads(self.read):
            self.p(x)
        self.p("s_waitcnt lgkmcnt(0)")
        self.read += 1


def w2_dma_setup(p, vo):
    p(f"""
    v_lshrrev_b32 v{vT0}, 4, v{vL}
    v_and_b32 v{vT1}, 7, v{vL}
    v_lshlrev_b32 v{vT0}, 1, v{vT0}
    v_xor_b32 v{vT0}, v{vT0}, v{vT1}
    v_lshlrev_b32 v{vT0}, 4, v{vT0}
    v_lshrrev_b32 v{vT1}, 3, v{vL}
    v_lshl_add_u32 v{vo}, v{vT1}, 10, v{vT0}
    v_add_u32 v{vo + 1}, 7168, v{vo}
    v_add_u32 v{vo + 2}, 14336, v{vo}
    v_add_u32 v{vo + 3}, 21504, v{vo}
    """)


def y_m_setup(p):
    p(f"""
    s_lshl_b32 s{sBUF}, s{sV}, 13
    s_add_u32 s{sT0}, s{sBUF}, 65536
    v_and_b32 v{vT0}, 15, v{vL}
    v_bfe_u32 v{vT1}, v{vL}, 1, 3
    v_lshrrev_b32 v{vT2}, 5, v{vL}
    v_xor_b32 v{vT1}, v{vT1}, v{vT2}
    v_lshlrev_b32 v{vT1}, 4, v{vT1}
    v_lshl_add_u32 v{vT0}, v{vT0}, 7, v{vT1}
    v_bfe_u32 v{vT1}, v{vL}, 4, 1
    v_lshl_add_u32 v{vT0}, v{vT1}, 3, v{vT0}
    v_add_u32 v{yR2}, s{sT0}, v{vT0}
    v_xor_b32 v{yR2 + 1}, 32, v{yR2}
    v_xor_b32 v{yR2 + 2}, 64, v{yR2}
    v_xor_b32 v{yR2 + 3}, 96, v{yR2}
    s_lshl_b32 s{sBB}, s{sN2}, 7
    """)
    w1_dma_setup(p, yOW)
    c_dma_setup(p, yOC)
    p(f"""
    s_and_b32 s{sT1}, s{sV}, 1
    s_lshl1_add_u32 s{sMX}, s{sNT}, s{sT1}
    s_lshl_b32 s{sMB}, s{sMX}, 14
    s_add_u32 s{sMB}, s{sMB}, {WS_CARRY}
    v_lshl_add_u32 v14, s{sT1}, 10, v{vL16}
    v_xor_b32 v15, 1024, v14
    v_and_b32 v{vT0}, 15, v{vL}
    s_lshl_b32 s{sT1}, s{sT1}, 8
    s_add_u32 s{sT1}, s{sT1}, {L_S}
    v_lshl_add_u32 v{ySA + 1}, v{vT0}, 3, s{sT1}
    s_lshl_b32 s{sT1}, s{sMH}, 7
    v_add_u32 v{ySA}, s{sT1}, v{ySA + 1}
    v_lshlrev_b32 v{vT0}, 4, v{vT0}
    s_add_u32 s{sT1}, s{sMT}, 1
    s_mul_i32 s{sT1}, s{sT1}, s{sMH}
    s_lshl_b32 s{sT1}, s{sT1}, 8
    v_add_u32 v{ySA + 2}, s{sT1}, v{vT0}
    v_lshrrev_b32 v{vT1}, 4, v{vL}
    v_sub_u32 v{vT1}, s{sMT}, v{vT1}
    v_lshl_add_u32 v{vT1}, v{vT1}, 8, v{vT0}
    """)
    for j in range(4):
        p(f"v_subrev_u32 v{yGA + j}, {1024 * j}, v{vT1}\nv_max_i32 v{yGA + j}, v{yGA + j}, v{vT0}")
    y_units(p)
    srd(p, S_W, pW1, 512 * 3584)
    srd(p, S_B, pW2, 1792 * 1024)
    p(f"""
    s_mov_b32 s{S_X + 2}, {512 * 1024}
    s_lshl1_add_u32 s{sKX}, s{sV}, s{sG0}
    s_lshl_b32 s{sKX}, s{sKX}, 7
    s_lshl_b32 s{sT1}, s{sN2}, 16
    s_add_u32 s{sKX}, s{sKX}, s{sT1}
    """)


def y_units(p, only0=None):
    r2 = p.opt.get("rot2", 1)
    p(f"""
    s_mul_i32 s{sT0}, s{sV}, 7
    s_and_b32 s{sKX}, s{sM2}, 1
    s_and_b32 s{sT1}, s{sN2}, {1 if r2 else 0}
    s_lshl1_add_u32 s{sT2}, s{sT1}, s{sFLG}
    """)
    for i in range(4):
        p(f"""
        s_add_u32 s{sT3}, s{sT2}, {i}
        s_and_b32 s{sT3}, s{sT3}, 3
        s_lshl1_add_u32 s{sT3}, s{sT3}, s{sKX}
        s_min_u32 s{sT3}, s{sT3}, 6
        s_add_u32 s{sUN + i if only0 is None else only0}, s{sT3}, s{sT0}
        """)
        if only0 is not None:
            return
    p(f"""
    s_add_u32 s{sT1}, s{sT1}, s{sFLG}
    s_mul_i32 s{sT2}, s{sT1}, 86
    s_lshr_b32 s{sT2}, s{sT2}, 8
    s_mul_i32 s{sT2}, s{sT2}, 3
    s_sub_u32 s{sT1}, s{sT1}, s{sT2}
    s_add_u32 s{sT0}, s{sT0}, 1
    s_sub_u32 s{sT0}, s{sT0}, s{sKX}
    """)
    for i in range(3):
        p(f"""
        s_lshl1_add_u32 s{sUN + 4 + i}, s{sT1}, s{sT0}
        s_add_u32 s{sT1}, s{sT1}, 1
        s_cmp_eq_u32 s{sT1}, 3
        s_cselect_b32 s{sT1}, 0, s{sT1}
        """)


def gather_list(p, track):
    L = []
    for j in range(3, -1, -1):
        def f(j=j):
            s = f"buffer_load_dwordx4 {vr(yGD2 + 4 * j, 4)}, v{yGA + j}, s[{S_WS}:{S_WS + 3}], s{sMB} offen sc1"
            p.vmem(s, "G") if track else p(s)
        L.append(f)
    return L


def cmac(d, a, b, nb):
    return [f"v_fmac_f32 v{d}, v{a}, v{b}", f"v_fmac_f32 v{d + 1}, v{a}, v{b + 1}",
            f"v_fmac_f32 v{d}, v{a + 1}, v{nb}", f"v_fmac_f32 v{d + 1}, v{a + 1}, v{b}"]


def h_work(p):
    W = []

    def check():
        p.wait_vm("G")

        def test():
            p(f"v_xor_b32 v{vT3}, v{yGD2 + 14}, v{vTAG}")
            for j in range(2, -1, -1):
                p(f"v_bitop3_b32 v{vT3}, v{yGD2 + 4 * j + 2}, v{vTAG}, v{vT3} bitop3:0xbe")
            p(f"v_cmp_ne_u32 vcc, 0, v{vT3}\ns_nop 4")

        def reload():
            for f in gather_list(p, False):
                f()
            p("s_waitcnt vmcnt(0)")
        retry(p, "s_cbranch_vccnz", test, reload)
        p.stamp(6)
    W.append(check)
    for j in range(2, -1, -1):
        W += cmac(yGD2 + 4 * j, yGD2 + 4 * (j + 1), yL256, yNL + 1)
    g = yGD2
    W += [f"v_mul_f32 v{yTA}, v{g}, v{yQ64}", f"v_mul_f32 v{yTA + 1}, v{g}, v{yQ64 + 1}",
          f"v_fma_f32 v{yTA}, -v{g + 1}, v{yQ64 + 1}, v{yTA}", f"v_fmac_f32 v{yTA + 1}, v{g + 1}, v{yQ64}"]
    for sw in ("v_permlane16_swap_b32", "v_permlane32_swap_b32"):
        W.append(f"""
        v_mov_b32 v{yTB}, v{yTA}
        v_mov_b32 v{yTB + 1}, v{yTA + 1}
        s_nop 1
        {sw} v{yTA}, v{yTB}
        {sw} v{yTA + 1}, v{yTB + 1}
        s_nop 1
        v_add_f32 v{yTA}, v{yTA}, v{yTB}
        v_add_f32 v{yTA + 1}, v{yTA + 1}, v{yTB + 1}
        """)
        W += [""] * 5
    W += [f"v_fmac_f32 v{yPQ}, v{yTA}, v{yQM}", f"v_fmac_f32 v{yPQ + 1}, v{yTA}, v{yQM + 1}",
          f"v_fma_f32 v{yPQ}, -v{yTA + 1}, v{yQM + 1}, v{yPQ}", f"v_fmac_f32 v{yPQ + 1}, v{yTA + 1}, v{yQM}"]
    prev = yPQ
    PA, TD = 112, 64
    for tau in range(16):
        u = yU(tau)
        W += cmac(u, prev, yL, yNL)
        prev = u
        if tau & 1:
            tb, i = divmod(tau, 4)
            for part in range(2):
                W.append(f"v_cvt_pk_bf16_f32 v{PA + 4 * tb + 2 * part + (i >> 1)}, v{yU(tau - 1) + part}, v{u + part}")

    def transpose():
        p(f"s_mul_i32 s{sT2}, s{sCI}, 88\ns_add_u32 s{sT2}, s{sT2}, s{sMX}")
        for tb in range(4):
            for part in range(2):
                p(mfma16(TD + 8 * tb + 4 * part, PA + 4 * tb + 2 * part, ySEL, True))
        p(f"""
        s_lshl_b32 s{sBX}, s{sT2}, 12
        s_add_u32 s{sBX}, s{sBX}, {WS_HID}
        s_mul_i32 s{sT2}, s{sCI}, 12
        s_lshr_b32 s{sT3}, s{sMX}, 3
        s_add_u32 s{sT2}, s{sT2}, s{sT3}
        s_lshl_b32 s{sT2}, s{sT2}, 7
        s_and_b32 s{sMX}, s{sMX}, 7
        s_lshl2_add_u32 s{sMX}, s{sMX}, s{sT2}
        """)
    W.append(transpose)
    W += [""] * 16
    for tb in range(4):
        for k in range(4):
            W.append(f"v_cvt_pk_bf16_f32 v{PA + 4 * tb + k}, v{TD + 8 * tb + 2 * k}, v{TD + 8 * tb + 2 * k + 1}")
        W.append(lambda tb=tb: p.vmem(f"buffer_store_dwordx4 {vr(PA + 4 * tb, 4)}, v{14 + (tb & 1)}, s[{S_WS}:{S_WS + 3}], s{sBX} offen{off(2048 * (tb >> 1))} sc1", "h"))
    W.append(lambda: p.stamp(7))
    return W


def emit(p, x):
    x() if callable(x) else p(x)


def capture(p, f):
    main, p.l = p.l, []
    f()
    L, p.l = p.l, main
    return L


def y_pass_m(p):
    o = p.opt
    st = Stage(p)
    y_publish(p)
    budget = [int(x, 16) for x in str(o.get("bud", "40525588")).zfill(8)]
    gi = o.get("gi", 3)
    W = h_work(p)
    nW = len(W)
    wd = [int(x, 16) for x in str(o.get("wd", "24440")).zfill(9)]
    full = {}
    for c in range(8):
        V = []
        if 1 <= c <= 5:
            V += w1_dma(p, c + 2, yOW)
        if c == gi:
            V += gather_list(p, True)
        for k in range(budget[c]):
            V.append(lambda k=k: st.dma(k == 0))
        A = []
        if c == 0:
            A = capture(p, lambda: w2_dma_setup(p, yO2))
            if st.todo[0][0] == "W":
                for x in A:
                    p(x)
                A = []
            assert budget[0] <= 8
        if c == 1:
            A = capture(p, lambda: poll_setup(p, f"s_add_u32 s{sT0}, s{sT0}, s{sV}"))
            A = ["\n".join(A)]
        u = st.read
        rd = u < 4 and full.get(u, 99) <= c - o.get("rdl", 2)
        L = []
        if rd:
            L = [lambda u=u: p.wait_vm(("C", u))] + st.reads(u)
        late = 0
        n = -(-nW * wd[c] // sum(wd))
        if n and len(W) == nW:
            late = len(V) * o.get("late", 2) // 4
        A, W = A + W[:n], W[n:]
        slots = len(V) + 1
        l0 = len(V) // 2 if rd and full[u] == c - 1 else 0
        for k in range(slots):
            if k < len(V):
                V[k]()
            if k >= l0:
                nl = -(-len(L) // max(1, slots - 1 - k))
                for x in L[:nl]:
                    emit(p, x)
                L = L[nl:]
            if k >= late:
                na = -(-len(A) // (slots - k))
                na += na & 1
                for x in A[:na]:
                    emit(p, x)
                A = A[na:]
        if rd:
            p("s_waitcnt lgkmcnt(0)")
            st.read += 1
        for kind, uu in st.full:
            if kind == "C":
                full.setdefault(uu, c)
        if 3 <= c + 1 <= 7:
            p.wait_vm(("w", c + 1))
        if c < 7:
            p.stamp(2 + 2 * c, 1)
        p("s_barrier")
        if c < 7:
            p.stamp(3 + 2 * c, 1)
    p("s_barrier")
    p.stamp(5)
    p.stamp(1, 5)
    p.stamp(2, 5)
    for x in W:
        emit(p, x)
    return st


def y_ph2(p, st):
    o = p.opt
    st.late = True
    hf = o.get("hf", 0)
    n, first, pend, polled = 0, True, [], False
    lag = o.get("lag", 8)
    while not st.done() or st.read < 4:
        if n == hf:
            p.wait_vm("h")
            flag_store(p, sMX, WS_FLAGS)
            n += 1
        u = st.read
        if not pend and u < 4 and ("C", u) in st.full and len(p.vm) - 1 - p.last(("C", u)) >= lag:
            p.wait_vm(("C", u))
            pend = st.reads(u) + [None]
        if not polled and all(("C", k) in st.full for k in range(4)) and st.left() <= o.get("pl", 10):
            poll_issue(p, 0, 44)
            polled = True
        ok = st.dma(first)
        if ok and st.left() % 4 == 0 and st.left() <= 40:
            p.stamp(12 - st.left() // 4, 5)
        if ok:
            first = False
            n += n < hf
        elif not pend:
            st.read_next()
        k = 4 if ok else len(pend)
        for x in pend[:k]:
            if x is None:
                p("s_waitcnt lgkmcnt(0)")
                st.read += 1
            else:
                p(x)
        pend = pend[k:]
    assert n > hf and polled
    p.stamp(11)
    for pair in range(2):
        p(f"""
        s_xor_b32 s{sT0}, s{sG0}, {pair}
        s_lshl1_add_u32 s{sT0}, s{sV}, s{sT0}
        s_lshl_b32 s{sT0}, s{sT0}, 14
        s_add_u32 s{sUN + 2 * pair}, s{sT0}, s{sHID}
        s_add_u32 s{sUN + 2 * pair + 1}, s{sUN + 2 * pair}, 8192
        """)
    p(f"s_add_u32 s{sBUF}, s{sBUF}, {3 * 32768}")
    poll_check(p, 0, 44)
    p.stamp(12)
    items = []
    for step in range(8):
        for tb in range(4):
            items.append((sUN + (step >> 1), step & 1, tb, vB2 + 16 * step, step == 0))

    def after_ramp():
        p.stamp(13, 5)
        p.wait_vm("W")
        p.stamp(14, 5)
        p("s_barrier")
        p.stamp(10)
        p.stamp(15, 5)
    post = {o.get("ys", 22): lambda: p("s_barrier")}
    side = {}
    spread(side, partial_addr(), 4, 3)
    if o.get("ef"):
        final_loads(p)
        ph2_loop(p, items, {}, post, side, min(9, o.get("yramp", 8)), after_ramp, 10, 9)
    else:
        ph2_loop(p, items, {}, post, side, o.get("yramp", 8), after_ramp)
    p.stamp(13)
    if not o.get("ef"):
        final_loads(p)
    for tb in range(4):
        partial_write(p, tb)
    final(p)
    p("s_branch L_fin")


xTR = 8
xAX, xEA, xRL, xEX = 16, 18, 20, 22
xWF, NWF = 32, 6
xONE, xB1, xCS = 28, 26, 56
xOX, xOB, xOW, xSA, xST = 32, 36, 38, 40, 42
xACC, xXF = 64, 128


def x_pass_s(p):
    o = p.opt
    p("L_X:")
    if o.get("xp0"):
        p("s_setprio 2")
    p.raw(1)
    p(f"""
    v_lshrrev_b32 v{vT0}, 4, v{vL}
    v_and_b32 v{vT1}, 7, v{vL}
    v_xor_b32 v{vT1}, v{vT1}, v{vT0}
    v_lshlrev_b32 v{vT1}, 4, v{vT1}
    v_lshrrev_b32 v{vT2}, 3, v{vL}
    v_lshl_add_u32 v{xOB}, v{vT2}, 10, v{vT1}
    v_lshrrev_b32 v{vT2}, 5, v{vL}
    v_mul_u32_u24 v{vT2}, {12 * 1024}, v{vT2}
    v_add_u32 v{xOX}, v{vT2}, v{xOB}
    v_xor_b32 v{xOX + 1}, 64, v{xOX}
    v_xor_b32 v{xOB + 1}, 64, v{xOB}
    v_add_u32 v{xOX + 1}, {31 * 1024}, v{xOX + 1}
    v_add_u32 v{xOB + 1}, 7168, v{xOB + 1}
    v_add_u32 v{xOX + 2}, 2048, v{xOX}
    v_add_u32 v{xOX + 3}, 2048, v{xOX + 1}
    s_and_b32 s{sT1}, s{sV}, 1
    s_lshl1_add_u32 s{sBX}, s{sMT}, s{sMH}
    s_lshl3_add_u32 s{sBX}, s{sBX}, s{sT1}
    s_lshl_b32 s{sBX}, s{sBX}, 13
    s_lshl1_add_u32 s{sBB}, s{sNT}, s{sMH}
    s_lshl_b32 s{sBB}, s{sBB}, 14
    s_lshl_b32 s{sMX}, s{sV}, 12
    s_lshl1_add_u32 s{sMB}, s{sT1}, s{sMH}
    s_lshl_b32 s{sMB}, s{sMB}, 11
    s_cmp_eq_u32 s{sT1}, 0
    s_waitcnt lgkmcnt(0)
    s_cselect_b32 s{S_B}, s{pBRE}, s{pBIM}
    s_cselect_b32 s{S_B + 1}, s{pBRE + 1}, s{pBIM + 1}
    s_mov_b32 s{S_B + 2}, {512 * 1024}
    s_mov_b32 s{S_B + 3}, 0x00020000
    """)
    srd(p, S_X, pX, 2048 * 1024)
    p.raw(2)

    def dma_b(c):
        p(f"""
        s_add_u32 s{sT0}, s{sC0}, {c}
        s_and_b32 s{sT0}, s{sT0}, 7
        s_lshl_b32 s{sT1}, s{sT0}, 7
        s_add_u32 m0, s{sMB}, {BR + (c % 3) * 8192}
        s_add_u32 s{sKB}, s{sBB}, s{sT1}
        """)
        for i in range(2):
            p.vmem(f"buffer_load_dwordx4 v{xOB + i}, s[{S_B}:{S_B + 3}], s{sKB} offen{off(1024 * i)} lds", ("c", c))

    def dma_x(c, same=False):
        if not same:
            p(f"s_add_u32 s{sT0}, s{sC0}, {c}\ns_and_b32 s{sT0}, s{sT0}, 7\ns_lshl_b32 s{sT1}, s{sT0}, 7")
        p(f"s_add_u32 m0, s{sMX}, {XR + c * 16384}\ns_add_u32 s{sKX}, s{sBX}, s{sT1}")
        for i in range(4):
            p.vmem(f"buffer_load_dwordx4 v{xOX + i}, s[{S_X}:{S_X + 3}], s{sKX} offen{off(1024 * i)} lds", ("c", c))

    def dma(c):
        dma_b(c)
        dma_x(c, True)
    xa = o.get("xa", 0)
    pre = o.get("pre", 0)
    if pre:
        p(f"""
        s_lshl_b32 s{sT0}, s{sMT}, 10
        s_add_u32 s{sT0}, s{sT0}, s{sBB}
        v_lshlrev_b32 v{vT2}, 7, v{vL}
        s_mov_b64 exec, 0xff
        """)
        p.vmem(f"buffer_load_dword v19, v{vT2}, s[{S_B}:{S_B + 3}], s{sT0} offen", "pre")
        p("s_mov_b64 exec, -1")
    else:
        dma(0)
        p.stamp(1)
        p.raw(3)
    srd(p, S_WS, pWS, WS_BYTES)
    p.vmem(f"buffer_load_dword v{vTAG}, off, s[{S_WS}:{S_WS + 3}], 0 sc1", "epoch")
    if not pre:
        dma(1)
    if o.get("xp0"):
        p("s_setprio 0")
    p.l.append("@XCUT")
    late_ids(p)
    w1_dma_setup(p, xOW)
    srd(p, S_W, pW1, 512 * 3584)
    p(f"""
    v_and_b32 v{vT0}, 15, v{vL}
    s_lshl1_add_u32 s{sT0}, s{sL0}, s{sV}
    s_lshl_b32 s{sT0}, s{sT0}, 5
    v_add_u32 v{vT2}, s{sT0}, v{vT0}
    v_min_u32 v{vT2}, 1775, v{vT2}
    v_lshlrev_b32 v{vT2}, 1, v{vT2}
    """)
    p.vmem(f"global_load_ushort v{xB1}, v{vT2}, s[{pB1}:{pB1 + 1}]", "par")
    p.vmem(f"global_load_ushort v{xB1 + 1}, v{vT2}, s[{pB1}:{pB1 + 1}] offset:32", "par")
    for k in range(4):
        p(f"v_mov_b32 v{xONE + k}, 0x3f803f80")
    rowfrag_addr(p, xAX)
    p(f"""
    s_add_u32 s{sT0}, s{sMX}, {XR}
    v_add_u32 v{xAX}, s{sT0}, v{xAX}
    v_xor_b32 v{xAX + 1}, 64, v{xAX}
    v_and_b32 v{xSA}, 31, v{vL}
    v_lshlrev_b32 v{xSA}, 3, v{xSA}
    s_lshl2_add_u32 s{sUN}, s{sMT}, s{sV}
    s_lshl_b32 s{sUN}, s{sUN}, 8
    s_add_u32 s{sUN}, s{sUN}, {WS_STATS}
    """)
    w1_tr_addr0(p, xTR)
    p(f"s_lshl_b32 s{sT0}, s{sV}, 6\nv_xor_b32 v{xTR}, s{sT0}, v{xTR}")
    for fb in range(1, 8):
        p(f"v_xor_b32 v{xTR + fb}, {32 * fb}, v{xTR}")
    tp = o.get("tp", 0)
    tw1 = o.get("tw1", 0)

    def touch():
        p(f"""
        s_and_b32 s{sT0}, s{sV}, 1
        s_cmp_eq_u32 s{sT0}, 0
        s_cselect_b32 s{S_B}, s{pW1 if tw1 else pW2}, s{pW2}
        s_cselect_b32 s{S_B + 1}, s{(pW1 if tw1 else pW2) + 1}, s{pW2 + 1}
        s_cselect_b32 s{sT2}, s{pCRE}, s{pCIM}
        s_cselect_b32 s{sT3}, s{pCRE + 1}, s{pCIM + 1}
        s_mov_b32 s{S_B + 2}, {512 * 3584}
        s_lshl1_add_u32 s{sT0}, s2, s{sT0}
        s_cmp_lt_u32 s{sV}, 2
        s_cselect_b32 s{S_B}, s{S_B}, s{sT2}
        s_cselect_b32 s{S_B + 1}, s{S_B + 1}, s{sT3}
        s_cselect_b32 s{S_B + 2}, s{S_B + 2}, {512 * 1024}
        s_cselect_b32 s{sT0}, {'s2' if tw1 else 's%d' % sT0}, s2
        s_cselect_b32 s{sT2}, {(56 if tw1 else 28) if o.get('tm', 3) & 1 else 0}, {16 if o.get('tm', 3) & 2 else 0}
        s_mul_i32 s{sT1}, s{sT2}, s{sT0}
        v_cmp_gt_u32 vcc, s{sT2}, v{vL}
        v_add_lshl_u32 v44, v{vL}, s{sT1}, 7
        v_mov_b32 v45, 0x40000000
        v_cndmask_b32 v44, v45, v44, vcc
        """)
        p.vmem(f"buffer_load_dword v19, v44, s[{S_B}:{S_B + 3}], 0 offen", "touch")
    ld = f"buffer_load_dwordx2 {vr(xST, 2)}, v{xSA}, s[{S_WS}:{S_WS + 3}], s{sUN} offen sc1"
    if pre:
        if pre == 1:
            p.wait_vm("pre")
        elif pre == 3:
            p.wait_vm("pf")
        p.stamp(1)
        dma(0)
        dma(1)
    for c in range(8):
        if c < 7:
            p.wait_vm(("c", c))
        if c == 1:
            make_tag(p)
        if c == 7:
            p.wait_vm("st")
            retry(p, "s_cbranch_vccnz", lambda: p(f"v_cmp_ne_u32 vcc, v{xST + 1}, v{vTAG}\ns_nop 4"),
                  lambda: p(f"{ld}\ns_waitcnt vmcnt(0)"))
            p(f"""
            v_and_b32 v{vT0}, s{sMASK}, v{xST}
            v_rcp_f32 v{vT0}, v{vT0}
            v_lshrrev_b32 v{vT1}, 1, v{xSA}
            s_lshl_b32 s{sT0}, s{sV}, 7
            s_add_u32 s{sT0}, s{sT0}, {L_M}
            v_add_u32 v{vT1}, s{sT0}, v{vT1}
            v_lshlrev_b32 v{vT2}, 16, v{xST}
            ds_write_b32 v{vT1}, v{xST} offset:1024
            ds_write_b32 v{vT1}, v{vT0} offset:512
            ds_write_b32 v{vT1}, v{vT2}
            """)
            p.wait_vm(("c", c))
        if c in (o.get("lw", 6 - xa), 7):
            p("s_waitcnt lgkmcnt(0)")
        if c == 0:
            p.stamp(2)
            p.raw(4)
        if c > 0:
            p.stamp(2 * c, 3)
        p("s_barrier")
        p.stamp(2 * c + 1, 3)
        if c == 5:
            p.vmem(ld, "st")
        if not xa:
            if c + 2 < 8:
                dma(c + 2)
        else:
            if c == 0:
                dma(2)
            elif c + 2 < 8:
                dma_b(c + 2)
            if c + 3 < 8:
                dma_x(c + 3)
        if c == 4:
            p(f"v_add_u32 v{xAX}, 65536, v{xAX}\nv_add_u32 v{xAX + 1}, 65536, v{xAX + 1}")
        for s in range(2):
            for t in range(2):
                p(f"ds_read_b128 {vr(xXF + 16 * c + 8 * s + 4 * t, 4)}, v{xAX + s} offset:{(c & 3) * 16384 + t * 2048}")
        if c >= 6 - xa:
            for cc in ([c - 5] if xa else [0] if c == 6 else [1, 2]):
                for f in w1_dma(p, cc, xOW):
                    f()
                if (tp, cc) in ((2, 0), (4, 1), (3, 2)):
                    touch()
        if c == 5 and tp == 1:
            touch()
        if o.get("pt", 1) and c == 1:
            p(f"""
            s_mul_i32 s{sT0}, s{sCI}, 6
            s_lshr_b32 s{sT1}, s{sNT}, 2
            s_add_u32 s{sT0}, s{sT0}, s{sT1}
            s_lshl_b32 s{sT0}, s{sT0}, 8
            s_add_u32 s{sT0}, s{sT0}, {WS_FLAGS + 512}
            s_add_u32 s42, s{pWS}, s{sT0}
            s_addc_u32 s43, s{pWS + 1}, 0
            s_load_dword s84, s[42:43], 0 {'glc' if o.get('ptg', 1) else ''}
            s_load_dword s84, s[42:43], 128 {'glc' if o.get('ptg', 1) else ''}
            """)
    p.stamp(3)
    p(f"""
    v_bfe_u32 v{vT0}, v{vL}, 2, 2
    v_and_b32 v{vT1}, 3, v{vL}
    v_lshl_add_u32 v{vT0}, v{vT0}, 4, v{vT1}
    s_and_b32 s{sT1}, s{sV}, 1
    s_lshl3_add_u32 s{sT0}, s{sMH}, s{sT1}
    s_lshl_b32 s{sT0}, s{sT0}, 5
    s_add_u32 s{sT0}, s{sT0}, {L_M}
    v_lshl_add_u32 v{vT0}, v{vT0}, 2, s{sT0}
    ds_read_b32 v{xEX + 1}, v{vT0} offset:1024
    ds_read_b32 v{xEX + 3}, v{vT0} offset:{1024 + 16}
    ds_read_b32 v{xRL}, v{vT0} offset:512
    ds_read_b32 v{xRL + 1}, v{vT0} offset:{512 + 16}
    v_and_b32 v{xEA}, 15, v{vL}
    v_lshlrev_b32 v{xEA}, 3, v{xEA}
    s_lshl_b32 s{sT0}, s{sV}, 8
    s_add_u32 s{sT0}, s{sT0}, {L_EXT}
    v_add_u32 v{xEA}, s{sT0}, v{xEA}
    v_cmp_gt_u32 vcc, 16, v{vL}
    s_mov_b32 s{sT2}, 0x01000100
    s_waitcnt lgkmcnt(0)
    """)
    for t in range(2):
        e = xEX + 2 * t
        p(f"""
        v_perm_b32 v{e}, v{e + 1}, v{e + 1}, s{sT2}
        v_xor_b32 v{e}, 0x80008000, v{e}
        v_lshrrev_b32 v{e + 1}, 16, v{e + 1}
        v_cndmask_b32 v{e}, 0, v{e}, vcc
        v_cndmask_b32 v{e + 1}, 0, v{e + 1}, vcc
        v_mul_f32 v{xRL + t}, {LOG2E}, v{xRL + t}
        """)
    p.wait_vm(("w", 0))
    p("s_waitcnt lgkmcnt(0)\ns_barrier")
    p.stamp(4)


def x_pass_m(p):
    PD = 4
    WE = p.opt.get("we", 1)

    def reads(n):
        if n >= 128:
            return []
        c, s, fb = n >> 4, (n >> 3) & 1, n & 7
        slot = (2 * c + s) % 7
        return [f"ds_read_b64_tr_b16 {vr(xWF + 4 * (n % NWF) + 2 * e, 2)}, v{xTR + fb} offset:{8192 * slot + 1024 * e}" for e in range(2)]
    nissued = 0
    for n in range(PD):
        for x in reads(n):
            p(x)
            nissued += 1
    for n in range(128):
        c, s, fb = n >> 4, (n >> 3) & 1, n & 7
        if n % WE == 0 and n < 126:
            p(f"s_waitcnt lgkmcnt({nissued - 2 * (n + WE)})")
        R = reads(n + PD)
        bar = (n & 15) == 16 - PD and c < 7
        w = xWF + 4 * (n % NWF)
        if n == 126:
            p("s_waitcnt lgkmcnt(0)")
        for t in range(2):
            p(mfma(xACC + 8 * fb + 4 * t, w, xXF + 16 * c + 8 * s + 4 * t, n < 8))
            if bar and t == 0:
                if c < 2:
                    p.wait_vm(("w", c + 1))
                p("s_barrier")
            if n == 126 and t == 0:
                p("s_barrier")
            if n >= 126:
                k = 2 * (n - 126) + t
                for i in range(2):
                    p(f"ds_read_b64 {vr(xXF + 2 * (2 * k + i), 2)}, v{xTR + k} offset:{128 * i}")
            if R:
                p(R[t])
                nissued += 1
        if fb < 2:
            p(mfma(xCS + 4 * fb, xONE, w, n < 8))
        if n in (123, 124):
            k = n - 123
            a = xCS + 4 * k
            p(f"""
            v_and_b32 v{a + 1}, s{sMASK}, v{a}
            v_sub_f32 v{a}, v{a}, v{a + 1}
            v_cvt_pk_bf16_f32 v{a}, v{a + 1}, v{a}
            v_mov_b32 v{a + 1}, v{xB1 + k}
            ds_write_b64 v{xEA}, {vr(a, 2)} offset:{128 * k}
            """)
            nissued += 1
        if n == 125:
            p(f"v_mov_b32 v{xTR}, v{xEA}")
            for k in range(1, 4):
                p(f"v_xor_b32 v{xTR + k}, {256 * k}, v{xEA}")
    p("s_waitcnt lgkmcnt(0)\ns_barrier")
    p.stamp(1, 5)
    for fb in range(8):
        for t in range(2):
            p(mfma16(xACC + 8 * fb + 4 * t, xXF + 2 * fb, xEX + 2 * t))
    p.stamp(5)
    p.stamp(2, 5)


def mish4(p, a, t, pk, tmp):
    sel = "op_sel_hi:[1,0]" if t == 0 else "op_sel:[0,1] op_sel_hi:[1,1]"
    e, u = tmp, tmp + 4
    p(f"""
    v_pk_mul_f32 {vr(a, 2)}, {vr(a, 2)}, {vr(xRL, 2)} {sel}
    v_pk_mul_f32 {vr(a + 2, 2)}, {vr(a + 2, 2)}, {vr(xRL, 2)} {sel}
    v_exp_f32 v{e}, v{a}
    v_exp_f32 v{e + 1}, v{a + 1}
    v_exp_f32 v{e + 2}, v{a + 2}
    v_exp_f32 v{e + 3}, v{a + 3}
    v_pk_fma_f32 {vr(u, 2)}, {vr(e, 2)}, 0.5, 1.0 op_sel_hi:[1,0,0]
    v_pk_fma_f32 {vr(u + 2, 2)}, {vr(e + 2, 2)}, 0.5, 1.0 op_sel_hi:[1,0,0]
    v_pk_fma_f32 {vr(u, 2)}, {vr(e, 2)}, {vr(u, 2)}, 1.0 op_sel_hi:[1,1,0]
    v_pk_fma_f32 {vr(u + 2, 2)}, {vr(e + 2, 2)}, {vr(u + 2, 2)}, 1.0 op_sel_hi:[1,1,0]
    v_rcp_f32 v{u}, v{u}
    v_rcp_f32 v{u + 1}, v{u + 1}
    v_rcp_f32 v{u + 2}, v{u + 2}
    v_rcp_f32 v{u + 3}, v{u + 3}
    v_pk_fma_f32 {vr(a, 2)}, {vr(a, 2)}, {vr(u, 2)}, {vr(a, 2)} neg_lo:[1,0,0] neg_hi:[1,0,0]
    v_pk_fma_f32 {vr(a + 2, 2)}, {vr(a + 2, 2)}, {vr(u + 2, 2)}, {vr(a + 2, 2)} neg_lo:[1,0,0] neg_hi:[1,0,0]
    v_cvt_pk_bf16_f32 v{pk}, v{a}, v{a + 1}
    v_cvt_pk_bf16_f32 v{pk + 1}, v{a + 2}, v{a + 3}
    """)


def x_epilogue(p):
    PK, TMP, VO = 192, 228, 224
    p(f"""
    s_mul_i32 s{sT0}, s{sCI}, 44
    s_add_u32 s{sT0}, s{sT0}, s{sL0}
    s_add_u32 s{sT0}, s{sT0}, s{sMH}
    s_add_u32 s{sT0}, s{sT0}, 16
    s_and_b32 s{sT1}, s{sV}, 1
    s_lshl2_add_u32 s{sBX}, s{sT0}, s{sT1}
    s_lshl_b32 s{sBX}, s{sBX}, 11
    s_add_u32 s{sBX}, s{sBX}, {WS_HID}
    s_mul_i32 s{sT2}, s{sT1}, 5120
    v_add_u32 v{VO}, s{sT2}, v{vL16}
    v_xor_b32 v{VO + 1}, 1024, v{VO}
    v_xor_b32 v{VO + 2}, 5120, v{VO}
    v_xor_b32 v{VO + 3}, 4096, v{VO}
    s_mul_i32 s{sT2}, s{sCI}, 6
    s_lshr_b32 s{sT3}, s{sNT}, 2
    s_add_u32 s{sT2}, s{sT2}, s{sT3}
    s_add_u32 s{sT2}, s{sT2}, 2
    s_lshl_b32 s{sT2}, s{sT2}, 8
    s_and_b32 s{sT3}, s{sNT}, 3
    s_lshl1_add_u32 s{sKW}, s{sT3}, s{sMH}
    s_lshl1_add_u32 s{sT3}, s{sT3}, s{sT1}
    s_lshl2_add_u32 s{sMB}, s{sT3}, s{sT2}
    """)
    if p.opt.get("xprio"):
        p(f"s_setprio {p.opt['xprio']}")
    p(f"s_lshl_b32 s{sT0}, s{sMH}, 14\ns_add_u32 s{sMX}, s{sBX}, 8192\ns_sub_u32 s{sMX}, s{sMX}, s{sT0}")

    def store(u, s, t):
        p.vmem(f"buffer_store_dwordx4 {vr(PK + 4 * (4 * u + 2 * s + t), 4)}, v{VO + 2 * s + t}, s[{S_WS}:{S_WS + 3}], s{sMX if u else sBX} offen sc1", ("act", u))

    def guarded(u, body):
        join = p.label("join")
        p(f"s_cmp_eq_u32 s{sKW}, {7 - u}\ns_cbranch_scc1 {join}")
        body()
        p(f"{join}:")

    def frags(u, L):
        def body():
            for s, t in L:
                pk = PK + 4 * (4 * u + 2 * s + t)
                for e in range(2):
                    mish4(p, xACC + 8 * (4 * u + 2 * s + e) + 4 * t, t, pk + 2 * e, TMP)
                store(u, s, t)
                p.stamp(3 + 4 * u + 2 * s + t, 5)
        if L:
            if p.opt.get("al", 1):
                p(".p2align 3")
            guarded(u, body)
    ST = [(0, 0), (0, 1), (1, 0), (1, 1)]
    frags(0, ST)
    frags(1, ST)
    p.stamp(6)
    o = p.opt
    fa = o.get("fa", 1)

    def flag(u):
        p.wait_vm(("act", u))
        if u == 0:
            lt, hv = p.label("light"), p.label("heavy")
            p(f"s_cmp_ge_u32 s{sKW}, 6\ns_cbranch_scc1 {lt}\n{hv}:")
            p.ool += [f"{lt}:", f"    s_waitcnt vmcnt({len(p.vm) - 1 - p.last(('act', 1))})", f"    s_branch {hv}"]
        flag_store(p, sMB, WS_FLAGS + 128 * u)
        p.stamp(11 + u, 5)
        if u == 1:
            p.stamp(7)
    RA, CV = 60, 64
    p(f"""
    s_lshl_b32 s{sBUF}, s{sV}, 13
    s_add_u32 s{sT0}, s{sBUF}, {3 * 32768}
    v_lshrrev_b32 v{vT0}, 2, v{vL}
    v_bfe_u32 v{vT1}, v{vL}, 3, 2
    v_lshlrev_b32 v{vT0}, 7, v{vT0}
    v_lshl_add_u32 v{vT0}, v{vT1}, 5, v{vT0}
    v_and_b32 v{vT1}, 3, v{vL}
    v_lshl_add_u32 v{vT0}, v{vT1}, 3, v{vT0}
    v_add_u32 v{RA}, s{sT0}, v{vT0}
    v_xor_b32 v{RA + 1}, 32, v{RA}
    v_xor_b32 v{RA + 2}, 64, v{RA}
    v_xor_b32 v{RA + 3}, 96, v{RA}
    s_lshl_b32 s{sBB}, s{sN2}, 7
    """)
    w2_dma_setup(p, CV)
    y_units(p)
    srd(p, S_X, pW2, 1792 * 1024)
    poll_setup(p, f"s_lshl1_add_u32 s{sT0}, s{sV}, s{sT0}\ns_add_u32 s{sT0}, s{sT0}, 4")
    for u in range(fa):
        flag(u)
    p(f"s_setprio {o.get('xprio2', 0)}\ns_barrier")
    p.stamp(10)
    rb = Rebase(RA, 3 * 32768)
    QW = [3, 4, 2, 0, 1, 0, 2]

    def reads(u):
        pre, imm = rb.at(QW[u])
        dst = vB2 + 32 * (u % 4)
        return with_pre(pre, [f"ds_read_b64_tr_b16 {vr(dst + 16 * s + 4 * db + 2 * e, 2)}, v{RA + db} offset:{imm + 4096 * s + 2048 * e}"
                              for s in range(2) for db in range(4) for e in range(2)])
    for u in range(4):
        for x in reads(u):
            p(x)
    for u in range(fa, 2):
        flag(u)
    p("s_waitcnt lgkmcnt(0)")
    if o.get("xs", -2) == -3:
        p("s_barrier")
    poll_issue(p, 0)
    for u in (5, 6):
        for h in range(2):
            p(f"s_add_u32 m0, s{sBUF}, {32768 * QW[u] + 4096 * h}")
            if h == 0:
                w2_unit_head(p, u)
            else:
                p(f"s_add_u32 s{sKB}, s{sKB}, 32768")
            for k in range(4):
                p.vmem(f"buffer_load_dwordx4 v{CV + k}, s[{S_X}:{S_X + 3}], s{sKB} offen{off(1024 * k)} lds", "W")
    p(f"s_add_u32 s{sT1}, s{sHID}, {32 * 4096}")
    for i in range(7):
        p(f"s_lshl_b32 s{sUN + i}, s{sUN + i}, 13\ns_add_u32 s{sUN + i}, s{sUN + i}, s{sT1}")
    p.stamp(11)
    pb = o.get("pb", 0)
    xs = o.get("xs", -2)
    if pb == 0:
        poll_check(p, 0)
    if xs == -2:
        p("s_barrier")
    if pb == 1:
        poll_check(p, 0)
    p.stamp(12)
    items = []

    def b2(step):
        return vB2 + 32 * ((step >> 1) % 4) + 16 * (step & 1)
    ts = 6
    for step in range(14 - ts):
        for tb in range(4):
            items.append((sUN + (step >> 1), step & 1, tb, b2(step), step == 0))
    for tb in range(4):
        for step in range(14 - ts, 14):
            items.append((sUN + (step >> 1), step & 1, tb, b2(step), False))
    pre, post, side = {}, {}, {}
    pre[32 - 10] = lambda: poll_issue(p, 128)
    pre[32] = lambda: poll_check(p, 128)
    for u in range(4, 7):
        R = reads(u)
        spread(side, R[:8], 8 * (u - 4) + 5, 2)
        spread(side, R[8:], 8 * (u - 4) + 9, 2)
    side.setdefault(31, []).append("s_waitcnt lgkmcnt(0)")
    spread(side, partial_addr(), 32, 3)
    post[o.get("gy", 28)] = lambda: (p.stamp(14), p("s_barrier"))
    post[37] = lambda: p.stamp(15)
    if xs >= 0:
        post[xs] = lambda: p("s_barrier")
    ar = (lambda: p("s_barrier")) if xs == -1 else None
    wp = o.get("wp", 2)
    for tb in range(3):
        i0 = 56 - ts * (3 - tb)
        spread(side, pw_list(tb), i0 + 1, wp)
        post[i0 + 1 + 4 // wp] = lambda: p("s_waitcnt lgkmcnt(0)\ns_barrier")

    def last():
        p.stamp(13)
        p("s_nop 4")
        partial_write(p, 3)
        p("s_waitcnt lgkmcnt(0)\ns_barrier")
    post[55] = last
    if o.get("dbm"):
        g0 = 56 - ts
        W2 = pw_list(2)
        side[(g0, 0, 4)] = W2[0:1]
        side[(g0, 0, 5)] = W2[1:2]
        side[(g0, 1, 0)] = W2[2:3]
        side[(g0, 1, 1)] = W2[3:4]
        side[(g0, 1, 4)] = ["s_waitcnt lgkmcnt(0)", "s_barrier"]
        ph2_loop(p, items, pre, post, side, o.get('ramp', 5), ar, tail=(g0, ts))
    else:
        ph2_loop(p, items, pre, post, side, o.get('ramp', 5), ar)
    p(f"""
    s_lshl3_add_u32 s{sT0}, s{sN2}, s{sV}
    s_lshl_b32 s{sT0}, s{sT0}, 5
    s_add_u32 s{sT0}, s{sT0}, s{sM2}
    s_cmp_lg_u32 s{sT0}, 31
    s_cbranch_scc1 L_fin
    s_mov_b64 exec, 1
    buffer_store_dword v{vTAG}, off, s[{S_WS}:{S_WS + 3}], 0 sc1
    """)


fA = 142


def fin_regs(p):
    return (48, 56, vT2) if p.opt.get("ef") else (128, 136, 140)


def final_loads(p):
    fX, fS, fD = fin_regs(p)
    A = 64 if p.opt.get("ef") else 148
    srd(p, S_X, pX, 2048 * 1024)
    srd(p, S_W, pOUT, 2048 * 2048)
    p(f"""
    s_lshl2_add_u32 s{sT0}, s{sM2}, s{sV}
    s_lshl_b32 s{sKX}, s{sT0}, 14
    s_lshl_b32 s{sT1}, s{sN2}, 7
    s_add_u32 s{sKX}, s{sKX}, s{sT1}
    s_lshl_b32 s{sT0}, s{sT0}, 7
    s_add_u32 s{sT0}, s{sT0}, {WS_STATS}
    v_lshrrev_b32 v{A}, 4, v{vL}
    v_and_b32 v{A + 1}, 15, v{vL}
    v_lshlrev_b32 v{A + 2}, 3, v{A + 1}
    v_lshl_add_u32 v{A + 3}, v{A}, 10, v{A + 2}
    v_lshlrev_b32 v{A}, 3, v{A}
    v_add_u32 v{A + 2}, s{sT1}, v{A + 2}
    s_mov_b32 s{sKB}, s{sKX}
    """)
    for tb in range(4):
        p.vmem(f"buffer_load_dwordx2 {vr(fX + 2 * tb, 2)}, v{A + 3}, s[{S_X}:{S_X + 3}], s{sKB} offen", "fin")
        p.vmem(f"buffer_load_dword v{fS + tb}, v{A}, s[{S_WS}:{S_WS + 3}], s{sT0} offen{off(32 * tb)} sc1", "fin")
        if tb < 3:
            p(f"s_add_u32 s{sKB}, s{sKB}, 4096")
    p.vmem(f"global_load_dwordx2 {vr(fD, 2)}, v{A + 2}, s[{pD}:{pD + 1}]", "fin")


def final(p):
    XF, SS, DD = 160, 176, 148
    RY, RF = fA + 4, fA + 5
    fX, fS, fD = fin_regs(p)
    p.wait_vm("fin")
    p(f"""
    v_lshrrev_b32 v{fA}, 4, v{vL}
    v_and_b32 v{fA + 1}, 15, v{vL}
    v_lshlrev_b32 v{fA + 3}, 3, v{fA + 1}
    v_lshl_add_u32 v{fA + 3}, v{fA}, 10, v{fA + 3}
    s_lshl_b32 s{sT0}, s{sV}, 2
    v_add_u32 v{RF}, s{sT0}, v{fA}
    v_xor_b32 v{RF}, v{RF}, v{fA + 1}
    v_lshlrev_b32 v{RF}, 4, v{RF}
    v_lshl_add_u32 v{RF}, v{fA + 1}, 8, v{RF}
    v_add_u32 v{RY}, {3 * 32768}, v{RF}
    v_lshlrev_b32 v{fA + 3}, 1, v{fA + 3}
    s_lshl_b32 s{sKX}, s{sKX}, 1
    s_mov_b32 s{sT2}, {LN2}
    v_lshlrev_b32 v{DD}, 16, v{fD}
    v_and_b32 v{DD + 1}, s{sMASK}, v{fD}
    v_lshlrev_b32 v{DD + 2}, 16, v{fD + 1}
    v_and_b32 v{DD + 3}, s{sMASK}, v{fD + 1}
    """)
    for tb in range(4):
        x, s = XF + 4 * tb, SS + 4 * tb
        p(f"""
        v_and_b32 v153, s{sMASK}, v{fS + tb}
        v_rcp_f32 v153, v153
        v_lshlrev_b32 v152, 16, v{fS + tb}
        v_lshlrev_b32 v{x}, 16, v{fX + 2 * tb}
        v_and_b32 v{x + 1}, s{sMASK}, v{fX + 2 * tb}
        v_lshlrev_b32 v{x + 2}, 16, v{fX + 2 * tb + 1}
        v_and_b32 v{x + 3}, s{sMASK}, v{fX + 2 * tb + 1}
        """)
        for k in range(4):
            p(f"v_sub_f32 v{s + k}, v{x + k}, v152")
        for k in range(4):
            p(f"v_mul_f32 v{s + k}, v153, v{s + k}")
    p("s_waitcnt lgkmcnt(0)\ns_barrier")
    p.stamp(14)
    Y = 64
    for tb in range(4):
        for w in range(4):
            p(f"ds_read_b128 {vr(Y + 16 * tb + 4 * w, 4)}, v{RY} offset:{8192 * w + 32768 * (tb >> 1) + 4096 * (tb & 1)}")
    for tb in range(4):
        p(f"s_waitcnt lgkmcnt({12 - 4 * tb})")
        y, s = Y + 16 * tb, SS + 4 * tb
        for k in range(4):
            p(f"v_fma_f32 v{s + k}, v{s + k}, v{DD + k}, v{y + k}")
            p(f"v_add_f32 v{y + 4 + k}, v{y + 4 + k}, v{y + 8 + k}")
        for k in range(4):
            p(f"v_add_f32 v{s + k}, v{s + k}, v{y + 12 + k}")
        for k in range(4):
            p(f"v_add_f32 v{s + k}, v{s + k}, v{y + 4 + k}")
        for k in range(4):
            p(f"v_mul_f32 v{s + k}, s{sT2}, v{s + k}")
    for tb in range(4):
        F = Y + 16 * tb
        x, s = XF + 4 * tb, SS + 4 * tb
        p("s_barrier")
        if tb == 3:
            p.stamp(15)
        for w in range(4):
            p(f"ds_read_b128 {vr(F + 4 * w, 4)}, v{RF} offset:{8192 * w + 32768 * (tb >> 1) + 4096 * (tb & 1)}")
        e = F + 4
        if tb < 3:
            p("s_waitcnt lgkmcnt(2)")
            for k in range(4):
                p(f"v_add_f32 v{F + k}, v{F + k}, v{F + 4 + k}")
            p("s_waitcnt lgkmcnt(0)")
            for k in range(4):
                p(f"v_add_f32 v{F + 8 + k}, v{F + 8 + k}, v{F + 12 + k}")
            for k in range(4):
                p(f"v_add_f32 v{F + k}, v{F + k}, v{F + 8 + k}")
            for k in range(4):
                p(f"v_exp_f32_e64 v{e + k}, -v{F + k}")
            for k in range(4):
                p(f"v_mul_f32 v{s + k}, v{s + k}, v{F + k}")
            for k in range(4):
                p(f"v_add_f32 v{e + k}, 1.0, v{e + k}")
            for k in range(4):
                p(f"v_rcp_f32 v{e + k}, v{e + k}")
            p("s_nop 0")
            for k in range(4):
                p(f"v_fmac_f32 v{x + k}, v{s + k}, v{e + k}")
        else:
            p("s_waitcnt lgkmcnt(2)")
            for h in (0, 2):
                p(f"v_pk_add_f32 {vr(F + h, 2)}, {vr(F + h, 2)}, {vr(F + 4 + h, 2)}")
            p("s_waitcnt lgkmcnt(0)")
            for h in (0, 2):
                p(f"v_pk_add_f32 {vr(F + 8 + h, 2)}, {vr(F + 8 + h, 2)}, {vr(F + 12 + h, 2)}")
            for h in (0, 2):
                p(f"v_pk_add_f32 {vr(F + h, 2)}, {vr(F + h, 2)}, {vr(F + 8 + h, 2)}")
            for k in range(4):
                p(f"v_exp_f32_e64 v{e + k}, -v{F + k}")
            for h in (0, 2):
                p(f"v_pk_mul_f32 {vr(s + h, 2)}, {vr(s + h, 2)}, {vr(F + h, 2)}")
            for h in (0, 2):
                p(f"v_pk_add_f32 {vr(e + h, 2)}, {vr(e + h, 2)}, 1.0 op_sel_hi:[1,0]")
            for k in range(4):
                p(f"v_rcp_f32 v{e + k}, v{e + k}")
            for h in (0, 2):
                p(f"v_pk_fma_f32 {vr(x + h, 2)}, {vr(s + h, 2)}, {vr(e + h, 2)}, {vr(x + h, 2)}")
        p(f"buffer_store_dwordx4 {vr(x, 4)}, v{fA + 3}, s[{S_W}:{S_W + 3}], s{sKX} offen {'sc1' if tb < 4 - p.opt.get('op', 0) else p.opt.get('of', '')}")
        if tb < 3:
            p(f"s_add_u32 s{sKX}, s{sKX}, 8192")


def finish(p):
    p("L_fin:")
    if p.opt.get("stamps"):
        p.stamp(8)
        p("s_waitcnt vmcnt(0)")
        p.stamp(9)
        if "probe" in p.opt:
            p(f"""
            s_lshl_b32 s{sT0}, 1, s{sW}
            s_and_b32 s{sT0}, s{sT0}, {p.opt.get('pw', 255)}
            s_cmp_eq_u32 s{sT0}, 0
            s_cbranch_scc1 L_end
            s_add_u32 s{sT0}, s{STAMP_REGS[p.opt['probe']]}, 5000
            L_probe:
            s_memrealtime s[34:35]
            s_waitcnt lgkmcnt(0)
            s_sub_u32 s{sT1}, s34, s{sT0}
            s_cmp_lt_i32 s{sT1}, 0
            s_cbranch_scc1 L_probe
            s_branch L_end
            """)
        p(f"""
        s_mov_b64 exec, 1
        s_lshl3_add_u32 s{sT0}, s2, s{sW}
        s_lshl_b32 s{sT0}, s{sT0}, 6
        s_add_u32 s{sT0}, s{sT0}, {WS_STAMP}
        """)
        for i in range(16):
            p(f"v_mov_b32 v8, s{STAMP_REGS[i]}\nbuffer_store_dword v8, off, s[{S_WS}:{S_WS + 3}], s{sT0} offset:{4 * i}")
    p("s_endpgm")
    p.l += p.ool
    p("L_end:\ns_endpgm")


def build(opt):
    p = P(opt)
    entry(p)
    st0 = p.save()
    y_prologue(p)
    y_pass_s(p)
    y_window(p)
    st = y_pass_m(p)
    y_ph2(p, st)
    p.restore(st0)
    x_pass_s(p)
    x_pass_m(p)
    x_epilogue(p)
    finish(p)
    L = p.l
    iy, ix0, ix1 = L.index("@YCUT"), L.index("L_X:"), L.index("@XCUT")
    if opt.get("lay", 1):
        L = L[:iy] + ["    s_branch L_Y2"] + L[ix0:ix1] + ["    s_branch L_X2", "L_Y2:"] + L[iy + 1:ix0] + ["L_X2:"] + L[ix1 + 1:]
    else:
        L = [x for x in L if not x.startswith("@")]
    p.l = L
    t = HEAD + f"; @launch grid=(256,1,1) block=(512,1,1) lds={LDS_BYTES}\n" + '.amdgcn_target "amdgcn-amd-amdhsa--gfx950"\n'
    t += kernel_text(KN + "_kernel", p.text(), vgpr=256, sgpr=102, accum=256)
    return t


if __name__ == "__main__":
    out = sys.argv[1]
    opt = {}
    for a in sys.argv[2:]:
        k, v = a.split("=")
        opt[k] = int(v) if v.lstrip("-").isdigit() else v
    open(out, "w").write(build(opt))
```

```python
import sys
from gen import HEAD, KN, kernel_text

WS_STATS = 4096
WS_CARRY = 64 << 10
WS_FLAGS = 1 << 20
WS_HID = 2 << 20
WS_STAMP = 200 << 20
WS_BYTES = 0x10000000
MISC, XR, BR, WR, CR, PKR = 0, 8192, 139264, 8192, 0, 65536
L_M, L_R, L_MS, L_EXT, L_S = MISC, MISC + 512, MISC + 1024, MISC + 2048, MISC + 3072
LDS_BYTES = 163840
LOG2E = 0x3fb8aa3b
LN2 = 0x3f317218

S_X, S_B, S_W, S_WS = 4, 8, 12, 16
sT0, sT1, sT2, sT3 = 20, 21, 22, 23
sW, sXCD, sJ, sMT, sNT, sL0, sC0, sM2, sN2, sV = 24, 25, 26, 27, 28, 29, 30, 31, 32, 33
pX, pLRE, pLIM, pBRE, pBIM, pCRE, pCIM, pDT, pD, pW1, pB1, pW2, pOUT, pWS = 36, 38, 40, 42, 44, 46, 48, 50, 52, 56, 58, 60, 62, 66
sKX, sKB, sKW, sBX, sBB, sBW, sMX, sMB, sMASK, sSPIN = 68, 69, 70, 71, 72, 73, 74, 75, 76, 77
sUN = 78
sBUF, sHID, sFLG, sCI, sMH, sMW, sG0 = 85, 86, 87, 88, 89, 90, 91
STAMP_REGS = list(range(92, 102)) + [3, 54, 55, 64, 65, 0]
SPIN_MAX = 400000
NAMES_Y = ["-", "stpub", "G0", "Send", "G8", "G17", "gath", "hst", "fin", "end", "GC", "wiss", "flh", "ydone", "Gy", "T3"]
NAMES_X = ["-", "dma0", "c0", "w1iss", "G8", "Mend", "mish", "flB", "-", "end", "GC", "staged", "go", "lastmf", "gy", "i37"]
ORD = [0, 1, 2, 3, 4, 5, 6, 7, 10, 11, 12, 14, 15, 13, 8, 9]


class P:
    def __init__(self, opt):
        self.l = []
        self.vm = []
        self.done = -1
        self.opt = opt
        self.nlab = 0
        self.ool = []
        self.fs = opt.get("fs", 128)

    def __call__(self, s):
        for x in s.strip("\n").split("\n"):
            x = x.strip()
            if not x:
                continue
            self.l.append(x if x.endswith(":") else "    " + x)

    def vmem(self, s, tag=None):
        self(s)
        self.vm.append(tag)

    def last(self, tag):
        return max(i for i, t in enumerate(self.vm) if t == tag)

    def wait_vm(self, tag):
        idx = self.last(tag)
        if idx <= self.done:
            return
        n = len(self.vm) - 1 - idx
        assert n <= 63, n
        self(f"s_waitcnt vmcnt({n})")
        self.done = idx

    def save(self):
        return (list(self.vm), self.done)

    def restore(self, st):
        self.vm, self.done = list(st[0]), st[1]

    def label(self, base):
        self.nlab += 1
        return f"L_{base}_{self.nlab}"

    def stamp(self, i, group=0):
        if self.opt.get("stamps") and self.opt.get("sg", 0) == group:
            op = "s_memtime" if self.opt["stamps"] == 2 else "s_memrealtime"
            self(f"{op} s[34:35]\ns_waitcnt lgkmcnt(0)\ns_mov_b32 s{STAMP_REGS[i]}, s34")

    def nt(self, key, c=0):
        return " nt" if c < self.opt.get(key, 0) else ""

    def raw(self, i):
        if self.opt.get("stamps") and self.opt.get("sg", 0) == 4:
            self(f"s_memrealtime s[{92 + 2 * i}:{93 + 2 * i}]")

    def text(self):
        return "\n".join(self.l) + "\n"


def vr(a, n=1):
    return f"v{a}" if n == 1 else f"v[{a}:{a + n - 1}]"


def off(o):
    return f" offset:{o}" if o else ""


def srd(p, d, ptr, nbytes):
    p(f"""
    s_mov_b32 s{d}, s{ptr}
    s_mov_b32 s{d + 1}, s{ptr + 1}
    s_mov_b32 s{d + 2}, {nbytes}
    s_mov_b32 s{d + 3}, 0x00020000
    """)


def mfma(d, a, b, first=False):
    return f"v_mfma_f32_16x16x32_bf16 {vr(d, 4)}, {vr(a, 4)}, {vr(b, 4)}, {'0' if first else vr(d, 4)}"


def mfma16(d, a, b, first=False):
    return f"v_mfma_f32_16x16x16_bf16 {vr(d, 4)}, {vr(a, 2)}, {vr(b, 2)}, {'0' if first else vr(d, 4)}"


vL, vTAG, vT0, vT1, vT2, vT3, vL16, vL16B = 0, 1, 2, 3, 4, 5, 6, 7


def rowfrag_addr(p, dst):
    p(f"""
    v_and_b32 v{vT0}, 15, v{vL}
    v_bfe_u32 v{vT1}, v{vL}, 1, 3
    v_lshrrev_b32 v{vT2}, 4, v{vL}
    v_xor_b32 v{vT1}, v{vT1}, v{vT2}
    v_lshlrev_b32 v{vT1}, 4, v{vT1}
    v_lshl_add_u32 v{dst}, v{vT0}, 7, v{vT1}
    """)


def w1_tr_addr0(p, dst):
    p(f"""
    v_lshrrev_b32 v{vT0}, 4, v{vL}
    v_bfe_u32 v{vT1}, v{vL}, 2, 2
    v_lshl_add_u32 v{vT2}, v{vT0}, 3, v{vT1}
    v_lshlrev_b32 v{vT2}, 8, v{vT2}
    v_lshl_add_u32 v{vT2}, v{vT1}, 6, v{vT2}
    v_and_b32 v{vT0}, 1, v{vT0}
    v_lshl_add_u32 v{vT2}, v{vT0}, 5, v{vT2}
    v_and_b32 v{vT1}, 3, v{vL}
    v_lshl_add_u32 v{vT2}, v{vT1}, 3, v{vT2}
    v_add_u32 v{dst}, {WR}, v{vT2}
    """)


def w1_dma_setup(p, vow):
    p(f"""
    v_lshrrev_b32 v{vT0}, 4, v{vL}
    v_bfe_u32 v{vT1}, v{vL}, 1, 3
    s_and_b32 s{sT0}, s{sV}, 1
    v_lshl_or_b32 v{vT2}, v{vT0}, 1, s{sT0}
    v_xor_b32 v{vT1}, v{vT1}, v{vT2}
    v_mul_u32_u24 v{vow}, 3584, v{vT0}
    v_lshl_add_u32 v{vow}, v{vT1}, 5, v{vow}
    v_and_b32 v{vT2}, 1, v{vL}
    v_lshl_add_u32 v{vow}, v{vT2}, 4, v{vow}
    s_and_b32 s{sT1}, s{sNT}, 3
    s_cmp_eq_u32 s{sT1}, 3
    s_cselect_b32 s{sT1}, 0x40000000, 0
    v_lshrrev_b32 v{vT1}, 2, v{vT1}
    v_mul_lo_u32 v{vT1}, v{vT1}, s{sT1}
    v_add_u32 v{vow}, v{vow}, v{vT1}
    v_add_u32 v{vow + 1}, 13312, v{vow}
    s_lshl_b32 s{sBW}, s{sL0}, 7
    s_mul_i32 s{sT2}, s{sV}, {8 * 3584}
    s_add_u32 s{sBW}, s{sBW}, s{sT2}
    s_lshl_b32 s{sMW}, s{sV}, 11
    """)


def w1_dma(p, c, vow):
    L = []
    for s in range(2):
        slot = (2 * c + s) % 7

        def a(s=s, slot=slot):
            if s == 0:
                p(f"""
                s_add_u32 s{sT0}, s{sC0}, {c}
                s_and_b32 s{sT0}, s{sT0}, 7
                s_mul_i32 s{sT0}, s{sT0}, {64 * 3584}
                s_add_u32 m0, s{sMW}, {WR + slot * 8192}
                s_add_u32 s{sKW}, s{sBW}, s{sT0}
                """)
            else:
                p(f"s_add_u32 m0, s{sMW}, {WR + slot * 8192}\ns_add_u32 s{sKW}, s{sKW}, {32 * 3584}")
            p.vmem(f"buffer_load_dwordx4 v{vow}, s[{S_W}:{S_W + 3}], s{sKW} offen{p.nt('ntw', c)} lds", ("w", c))
        L.append(a)
        L.append(lambda: p.vmem(f"buffer_load_dwordx4 v{vow + 1}, s[{S_W}:{S_W + 3}], s{sKW} offen offset:1024{p.nt('ntw', c)} lds", ("w", c)))
    return L


def c_dma_setup(p, vo):
    p(f"""
    v_lshrrev_b32 v{vT0}, 4, v{vL}
    v_and_b32 v{vT1}, 7, v{vL}
    v_xor_b32 v{vT0}, v{vT0}, v{vT1}
    v_lshlrev_b32 v{vT0}, 4, v{vT0}
    v_lshrrev_b32 v{vT1}, 3, v{vL}
    v_lshl_add_u32 v{vo}, v{vT1}, 10, v{vT0}
    v_xor_b32 v{vo + 1}, 64, v{vo}
    v_add_u32 v{vo + 1}, 7168, v{vo + 1}
    v_add_u32 v{vo + 2}, 14336, v{vo}
    v_add_u32 v{vo + 3}, 14336, v{vo + 1}
    """)


def make_tag(p):
    p(f"""
    s_mov_b32 s{sT0}, 0x9E3779B1
    v_mul_lo_u32 v{vTAG}, v{vTAG}, s{sT0}
    v_add_u32 v{vTAG}, 0x7F4A7C15, v{vTAG}
    """)


def retry(p, cond, test, reload):
    chk, ok, rt = p.label("chk"), p.label("ok"), p.label("retry")
    p(f"{chk}:")
    test()
    p(f"{cond} {rt}\n{ok}:")
    main, p.l = p.l, []
    p(f"""
    {rt}:
    s_sub_u32 s{sSPIN}, s{sSPIN}, 1
    s_cmp_gt_i32 s{sSPIN}, 0
    s_cbranch_scc0 {ok}
    """)
    reload()
    p(f"s_branch {chk}")
    p.ool += p.l
    p.l = main


sPF = 8


def poll_setup(p, grp_expr):
    p(f"""
    s_mul_i32 s{sT0}, s{sM2}, 12
    {grp_expr}
    s_lshl_b32 s{sT0}, s{sT0}, 7
    s_add_u32 s{sT0}, s{sT0}, {WS_FLAGS}
    s_add_u32 s42, s{pWS}, s{sT0}
    s_addc_u32 s43, s{pWS + 1}, 0
    v_readfirstlane_b32 s40, v{vTAG}
    v_readfirstlane_b32 s41, v{vTAG}
    """)


def poll_issue(p, o_, sPF=sPF):
    p(f"s_load_dwordx8 s[{sPF}:{sPF + 7}], s[42:43], {o_} glc")


def poll_check(p, o_, sPF=sPF):
    def test():
        p("s_waitcnt lgkmcnt(0)")
        for k in range(0, 8, 2):
            p(f"s_xor_b64 s[{sPF + k}:{sPF + k + 1}], s[{sPF + k}:{sPF + k + 1}], s[40:41]")
        p(f"""
        s_or_b64 s[{sPF}:{sPF + 1}], s[{sPF}:{sPF + 1}], s[{sPF + 2}:{sPF + 3}]
        s_or_b64 s[{sPF + 4}:{sPF + 5}], s[{sPF + 4}:{sPF + 5}], s[{sPF + 6}:{sPF + 7}]
        s_or_b64 s[{sPF}:{sPF + 1}], s[{sPF}:{sPF + 1}], s[{sPF + 4}:{sPF + 5}]
        """)
    retry(p, "s_cbranch_scc1", test, lambda: poll_issue(p, o_, sPF))


def delay_until(p, us):
    assert p.opt.get("stamps")
    lab = p.label("dly")
    p(f"""
    s_waitcnt vmcnt(0)
    s_add_u32 s{sT0}, s100, {int(us * 100)}
    {lab}:
    s_memrealtime s[34:35]
    s_waitcnt lgkmcnt(0)
    s_sub_u32 s{sT1}, s34, s{sT0}
    s_cmp_lt_i32 s{sT1}, 0
    s_cbranch_scc1 {lab}
    """)


def flag_store(p, sreg, add):
    p(f"s_add_u32 s{sT0}, s{sreg}, {add}\ns_mov_b64 exec, 1")
    p.vmem(f"buffer_store_dword v{vTAG}, off, s[{S_WS}:{S_WS + 3}], s{sT0} sc1", "flag")
    p("s_mov_b64 exec, -1")


def cmul(p, d, a, b, add=None):
    if add is None:
        p(f"v_pk_mul_f32 {vr(d, 2)}, {vr(a, 2)}, {vr(b, 2)} op_sel_hi:[0,1]")
    else:
        p(f"v_pk_fma_f32 {vr(d, 2)}, {vr(a, 2)}, {vr(b, 2)}, {vr(add, 2)} op_sel_hi:[0,1,1]")
    p(f"v_pk_fma_f32 {vr(d, 2)}, {vr(a, 2)}, {vr(b, 2)}, {vr(d, 2)} op_sel:[1,1,0] op_sel_hi:[1,0,1] neg_lo:[0,1,0]")


def entry(p):
    o = p.opt
    p(f"""
    s_load_dwordx16 s[36:51], s[0:1], 0
    s_load_dwordx16 s[52:67], s[0:1], 64
    s_getpc_b64 s[34:35]
    L_pc:
    s_cmp_ge_u32 s2, 256
    s_cbranch_scc1 L_end
    v_lshrrev_b32 v{vT0}, 6, v0
    s_lshr_b32 s{sJ}, s2, 3
    v_and_b32 v{vL}, 63, v0
    v_readfirstlane_b32 s{sW}, v{vT0}
    v_lshl_add_u32 v{vT0}, s{sJ}, 3, v{vT0}
    v_lshlrev_b32 v{vT0}, 7, v{vT0}
    v_min_u32 v{vT0}, L_end-L_pc, v{vT0}
    """)
    p.vmem(f"global_load_dword v255, v{vT0}, s[34:35]", "pf")
    if o.get("stamps"):
        p(("s_memtime" if o["stamps"] == 2 else "s_memrealtime") + " s[92:93]")
        if o.get("sg", 0) != 4:
            p("s_memrealtime s[100:101]")
    p(f"s_and_b32 s{sXCD}, s2, 7")
    if o.get("part", 24) == 24:
        p(f"""
        s_and_b32 s{sT0}, s{sJ}, 7
        s_lshr_b32 s{sT1}, s{sJ}, 3
        s_lshr_b32 s{sMT}, s{sXCD}, 2
        s_lshl3_add_u32 s{sMT}, s{sMT}, s{sT0}
        s_and_b32 s{sT2}, s{sXCD}, 3
        s_lshl2_add_u32 s{sNT}, s{sT2}, s{sT1}
        """)
    else:
        p(f"""
        s_and_b32 s{sT0}, s{sJ}, 3
        s_lshr_b32 s{sT1}, s{sJ}, 2
        s_lshr_b32 s{sMT}, s{sXCD}, 1
        s_lshl2_add_u32 s{sMT}, s{sMT}, s{sT0}
        s_and_b32 s{sT2}, s{sXCD}, 1
        s_lshl3_add_u32 s{sNT}, s{sT2}, s{sT1}
        """)
    rm, rn, rx, ry = o.get("rm", 1), o.get("rn", 2), o.get("rx", 1), o.get("ry", 0)
    p(f"""
    s_mul_i32 s{sC0}, s{sT0}, {rm}
    s_mul_i32 s{sT1}, s{sT1}, {rn}
    s_add_u32 s{sC0}, s{sC0}, s{sT1}
    s_mul_i32 s{sT1}, s{sXCD}, {rx}
    s_add_u32 s{sC0}, s{sC0}, s{sT1}
    """)
    if ry:
        p(f"s_lshr_b32 s{sT1}, s{sXCD}, 2\ns_mul_i32 s{sT1}, s{sT1}, {ry}\ns_add_u32 s{sC0}, s{sC0}, s{sT1}")
    p(f"""
    s_and_b32 s{sV}, s{sW}, 3
    s_lshr_b32 s{sMH}, s{sV}, 1
    s_cmp_ge_u32 s{sW}, 4
    s_cbranch_scc1 L_X
    """)


def late_ids(p):
    p(f"""
    s_lshr_b32 s{sT0}, s{sNT}, 2
    s_lshl_b32 s{sL0}, s{sNT}, 1
    s_sub_u32 s{sL0}, s{sL0}, s{sT0}
    """)
    if p.opt.get("part2", 81) == 81:
        p(f"""
        s_and_b32 s{sFLG}, s{sJ}, 3
        s_lshl2_add_u32 s{sM2}, s{sXCD}, s{sFLG}
        s_lshr_b32 s{sN2}, s{sJ}, 2
        s_xor_b32 s{sN2}, s{sN2}, {p.opt.get('nx', 5)}
        """)
    else:
        p(f"""
        s_and_b32 s{sFLG}, s{sJ}, 7
        s_lshr_b32 s{sT0}, s{sXCD}, 1
        s_lshl3_add_u32 s{sM2}, s{sT0}, s{sFLG}
        s_and_b32 s{sT0}, s{sXCD}, 1
        s_lshr_b32 s{sN2}, s{sJ}, 3
        s_lshl2_add_u32 s{sN2}, s{sT0}, s{sN2}
        """)
    p(f"""
    s_mov_b32 s{sSPIN}, {SPIN_MAX}
    s_lshl1_add_u32 s{sCI}, s{sMT}, s{sMH}
    s_mov_b32 s{sMASK}, 0xffff0000
    s_mul_i32 s{sFLG}, s{sFLG}, {p.opt.get('rs2', 0)}
    s_mul_i32 s{sT0}, s{sXCD}, {p.opt.get('rx2', 1)}
    s_add_u32 s{sFLG}, s{sFLG}, s{sT0}
    s_add_u32 s{sG0}, s{sFLG}, {('s%d' % sN2) if p.opt.get('rot2', 1) else 0}
    s_and_b32 s{sG0}, s{sG0}, 1
    s_mul_i32 s{sHID}, s{sM2}, {352 * 1024}
    s_add_u32 s{sHID}, s{sHID}, {WS_HID}
    v_lshlrev_b32 v{vL16}, 4, v{vL}
    v_add_u32 v{vL16B}, 4096, v{vL16}
    """)


vRING, NRING, vACC2, vB2 = 8, 12, 64, 128
vPW = 60


def ph2_loop(p, items, hooks_pre, hooks_post, side, ramp, after_ramp=None, NRING=NRING, depth=None, tail=None):
    n = len(items)

    def load(g):
        if g in hooks_pre:
            hooks_pre[g]()
        sreg, second, tb, _, _ = items[g]
        r = vRING + 4 * (g % NRING)
        p.vmem(f"buffer_load_dwordx4 {vr(r, 4)}, v{vL16B if second else vL16}, s[{S_WS}:{S_WS + 3}], s{sreg} offen{off(1024 * (tb ^ second))} sc1", ("a", g))
    depth = depth or p.opt.get("depth", 10)
    assert depth < NRING
    issued = 0
    for g in range(ramp):
        load(g)
        issued += 1
    if after_ramp:
        after_ramp()
    p.stamp(1, 6)
    nreg = n if tail is None else tail[0]
    if p.opt.get("g2", 1):
        for g in range(0, nreg, 2):
            tb = items[g][2]
            assert items[g + 1][2] == tb
            sd = side.get(g, []) + side.get(g + 1, [])
            for i in range(8):
                db, k = divmod(i, 2)
                if db == 0:
                    p.wait_vm(("a", g + k))
                p(mfma(vACC2 + 16 * tb + 4 * db, items[g + k][3] + 4 * db, vRING + 4 * ((g + k) % NRING), items[g + k][4]))
                if k == 1 and issued < n and issued <= g + depth + (db >= 2):
                    assert issued - NRING < g
                    load(issued)
                    issued += 1
                elif i >= 2:
                    m = -(-len(sd) // (8 - i))
                    for x in sd[:m]:
                        x() if callable(x) else p(x)
                    sd = sd[m:]
            for x in sd:
                x() if callable(x) else p(x)
            for k in range(2):
                if g + k in hooks_post:
                    hooks_post[g + k]()
            if g % 4 == 2:
                p.stamp(2 + g // 4, 6)
    for g in range(0 if p.opt.get("g2", 1) else nreg):
        _, _, tb, b2, first = items[g]
        p.wait_vm(("a", g))
        r = vRING + 4 * (g % NRING)
        sd = side.get(g, [])
        for db in range(4):
            p(mfma(vACC2 + 16 * tb + 4 * db, b2 + 4 * db, r, first))
            if db in (0, 2) and issued < n and issued <= g + depth:
                load(issued)
                issued += 1
            if db >= 1:
                k = -(-len(sd) // (4 - db))
                for x in sd[:k]:
                    x() if callable(x) else p(x)
                sd = sd[k:]
        if g in hooks_post:
            hooks_post[g]()
        if g % 4 == 3:
            p.stamp(2 + g // 4, 6)
    if tail is None:
        return
    _, ts = tail
    pend = None
    for g0 in range(nreg, n, ts):
        tb = items[g0][2]
        W = pw_list(tb)
        for db in range(4):
            for k in range(ts):
                g = g0 + k
                if db == 0:
                    p.wait_vm(("a", g))
                p(mfma(vACC2 + 16 * tb + 4 * db, items[g][3] + 4 * db, vRING + 4 * (g % NRING), False))
                free = g if db == 3 else g0 - 1
                if (k & 1 or db == 3) and issued < n and issued - NRING < free:
                    load(issued)
                    issued += 1
                if k == ts - 1 and pend is not None:
                    p("s_nop 1" if db else "s_nop 0")
                    p(pend)
                    pend = None
                if db == 1 and k == 2 and g0 > nreg:
                    p("s_waitcnt lgkmcnt(0)\ns_barrier")
                for x in side.get((g0, db, k), []):
                    p(x)
            pend = W[db]
    p.stamp(13)
    p("s_nop 7")
    p(pend)
    p("s_waitcnt lgkmcnt(0)\ns_barrier")


def order(p, nsteps):
    if p.opt.get("g2", 1):
        return [(2 * u + s, tb) for u in range(nsteps // 2) for tb in range(4) for s in range(2)]
    return [(step, tb) for step in range(nsteps) for tb in range(4)]


def spread(side, L, start, per):
    for i in range(0, len(L), per):
        side.setdefault(start + i // per, []).extend(L[i:i + per])


def partial_addr():
    return f"""v_lshrrev_b32 v{vT0}, 4, v{vL}
    v_and_b32 v{vT1}, 15, v{vL}
    v_xor_b32 v{vT1}, v{vT1}, v{vT0}
    v_lshlrev_b32 v{vT1}, 4, v{vT1}
    v_lshl_add_u32 v{vT1}, v{vT0}, 8, v{vT1}
    v_add_u32 v{vPW}, s{sBUF}, v{vT1}
    v_xor_b32 v{vPW + 1}, 64, v{vPW}
    v_xor_b32 v{vPW + 2}, 128, v{vPW}
    v_xor_b32 v{vPW + 3}, 192, v{vPW}""".split("\n")


def pw_list(tb):
    o_ = 32768 * (tb >> 1) + 4096 * (tb & 1)
    return [f"ds_write_b128 v{vPW + db}, {vr(vACC2 + 16 * tb + 4 * db, 4)} offset:{o_ + 1024 * db}" for db in range(4)]


def partial_write(p, tb):
    for x in pw_list(tb):
        p(x)


yAX, yAB, yAS = 248, 250, 252
yOW = 8
yCW, yR2 = 14, 60
yC, yL, yL16, yQ16, yQ64, yL256, yPQ = 16, 18, 20, 22, 24, 26, 28
yONE, yB1, ySEL = 32, 30, 36
yCS = 40
yCF = 96
yRE, yIM = 64, 80
yFR = 128
yM, yR = 176, 192
yGD = 96
yTA, yTB, yG0, yG1 = 48, 50, 52, 54
yL64, yQM, yGD2, yGA, yNL, ySA = 30, 126, 96, 118, 38, 122


def half_reduce(p, a, t):
    for r in (8, 4, 2, 1):
        p(f"s_nop 1\nv_add_f32_dpp v{a}, v{a}, v{a} row_ror:{r} row_mask:0xf bank_mask:0xf")
    p(f"""
    v_mov_b32 v{t}, v{a}
    s_nop 1
    v_permlane16_swap_b32 v{a}, v{t}
    s_nop 1
    v_add_f32 v{a}, v{a}, v{t}
    """)


def y_prologue(p):
    D = 208
    PR = 244
    p.raw(1)
    p(f"""
    v_and_b32 v{vT0}, 31, v{vL}
    v_lshrrev_b32 v{vT1}, 5, v{vL}
    v_lshlrev_b32 v{vT2}, 4, v{vT0}
    v_lshl_add_u32 v{vT2}, v{vT1}, 10, v{vT2}
    s_lshl4_add_u32 s{sT0}, s{sMT}, s{sNT}
    s_lshl2_add_u32 s{sT0}, s{sT0}, s{sW}
    s_lshl_b32 s{sKX}, s{sT0}, 11
    s_lshl_b32 s{sKB}, s{sT0}, 4
    s_waitcnt lgkmcnt(0)
    """)
    srd(p, S_X, pX, 2048 * 1024)
    p.vmem(f"buffer_load_dwordx4 {vr(D, 4)}, v{vT2}, s[{S_X}:{S_X + 3}], s{sKX} offen{p.nt('ntr')}", "xr")
    p.vmem(f"buffer_load_dwordx4 {vr(D + 4, 4)}, v{vT2}, s[{S_X}:{S_X + 3}], s{sKX} offen offset:512{p.nt('ntr')}", "xr")
    p.raw(2)
    srd(p, S_WS, pWS, WS_BYTES)
    p.vmem(f"buffer_load_dword v{vTAG}, off, s[{S_WS}:{S_WS + 3}], 0 sc1", "xr")
    p.l.append("@YCUT")
    late_ids(p)
    p(f"""
    s_add_u32 s{sKB}, s{sKB}, {WS_STATS}
    v_and_b32 v{vT0}, 15, v{vL}
    s_and_b32 s{sT1}, s{sV}, 1
    s_lshl1_add_u32 s{sT0}, s{sNT}, s{sT1}
    s_lshl_b32 s{sT0}, s{sT0}, 4
    v_add_lshl_u32 v{vT2}, v{vT0}, s{sT0}, 1
    """)
    p.vmem(f"global_load_ushort v{PR}, v{vT2}, s[{pLRE}:{pLRE + 1}]", "par")
    p.vmem(f"global_load_ushort v{PR + 1}, v{vT2}, s[{pLIM}:{pLIM + 1}]", "par")
    p.vmem(f"global_load_ushort v{PR + 2}, v{vT2}, s[{pDT}:{pDT + 1}]", "par")
    if p.opt.get("dt", 1):
        p(f"s_lshl_b32 s{sT0}, s{sN2}, 7\nv_mov_b32 v{vT2}, s{sT0}")
        p.vmem(f"global_load_dword v254, v{vT2}, s[{pD}:{pD + 1}]", "par")
    if p.opt.get("pt", 1) == 2:
        p(f"""
        s_mul_i32 s{sT0}, s{sCI}, 12
        s_lshr_b32 s{sT2}, s{sNT}, 2
        s_add_u32 s{sT0}, s{sT0}, s{sT2}
        s_add_u32 s{sT0}, s{sT0}, {WS_FLAGS // 128}
        s_add_u32 s{sT2}, s{sT2}, s{sT0}
        s_add_u32 s{sT2}, s{sT2}, 2
        s_lshl_b32 s{sT0}, s{sT0}, 7
        v_add_lshl_u32 v{vT2}, v{vL}, s{sT2}, 7
        s_mov_b64 exec, 2
        v_mov_b32 v{vT2}, s{sT0}
        s_mov_b64 exec, 1
        v_mov_b32 v{vT2}, s{sKB}
        s_mov_b64 exec, 15
        """)
        p.vmem(f"buffer_load_dword v254, v{vT2}, s[{S_WS}:{S_WS + 3}], 0 offen", "par")
        p("s_mov_b64 exec, -1")
    tw = p.opt.get("tw", 0)
    if tw:
        p(f"""
        s_mul_i32 s{sT0}, s{sCI}, {352 * 1024}
        s_add_u32 s{sT0}, s{sT0}, {WS_HID}
        s_cmp_eq_u32 s{sT1}, 0
        s_cselect_b32 s{sT0}, s{sT0}, s{sHID}
        v_mul_u32_u24 v{vT2}, {352 * 1024 // (tw & 15) - 128}, v{vL}
        s_mov_b64 exec, {(2 << (tw & 15)) - 1}
        """)
        p.vmem(f"buffer_load_dword v254, v{vT2}, s[{S_WS}:{S_WS + 3}], s{sT0} offen", "par")
        if tw & 16:
            p(f"""
            s_lshl2_add_u32 s{sT0}, s{sM2}, s{sV}
            s_lshl_b32 s{sT0}, s{sT0}, 15
            v_mov_b32 v{vT2}, s{sT0}
            s_mov_b64 exec, 1
            """)
            p.vmem(f"global_load_dword v254, v{vT2}, s[{pOUT}:{pOUT + 1}]", "par")
        p("s_mov_b64 exec, -1")
    rowfrag_addr(p, yAX)
    p(f"""
    s_lshl_b32 s{sT0}, s{sT1}, 11
    s_add_u32 s{sT0}, s{sT0}, {BR}
    v_add_u32 v{yAB}, s{sT0}, v{yAX}
    s_lshl_b32 s{sT0}, s{sMH}, 13
    s_add_u32 s{sT0}, s{sT0}, {XR}
    v_add_u32 v{yAX}, s{sT0}, v{yAX}
    v_xor_b32 v{yAX + 1}, 64, v{yAX}
    v_xor_b32 v{yAB + 1}, 64, v{yAB}
    """)
    for k in range(4):
        p(f"v_mov_b32 v{yONE + k}, 0x3f803f80")
    p(f"""
    v_and_b32 v{vT0}, 15, v{vL}
    v_lshrrev_b32 v{vT1}, 4, v{vL}
    v_lshlrev_b32 v{vT1}, 2, v{vT1}
    v_sub_u32 v{vT0}, v{vT0}, v{vT1}
    v_mov_b32 v{vT1}, 0x3f80
    v_mov_b32 v{vT2}, 0x3f800000
    """)
    for dw in range(2):
        p(f"""
        v_cmp_eq_u32 vcc, {2 * dw}, v{vT0}
        v_cmp_eq_u32 s[{sT0}:{sT1}], {2 * dw + 1}, v{vT0}
        s_nop 0
        v_cndmask_b32 v{ySEL + dw}, 0, v{vT1}, vcc
        v_cndmask_b32 v{ySEL + dw}, v{ySEL + dw}, v{vT2}, s[{sT0}:{sT1}]
        """)
    p(f"""
    v_lshrrev_b32 v{vT1}, 4, v{vL}
    s_lshl_b32 s{sT0}, s{sMH}, 8
    s_add_u32 s{sT0}, s{sT0}, {L_M}
    v_lshl_add_u32 v{yAS}, v{vT1}, 6, s{sT0}
    """)
    y_m_setup(p)
    if p.opt.get("pt", 1) == 1:
        p(f"""
        s_add_u32 s38, s{pWS}, s{sKB}
        s_addc_u32 s39, s{pWS + 1}, 0
        s_load_dword s58, s[38:39], 0 {'glc' if p.opt.get('ptg', 1) else ''}
        s_mul_i32 s{sT0}, s{sCI}, 12
        s_lshr_b32 s{sT1}, s{sNT}, 2
        s_add_u32 s{sT0}, s{sT0}, s{sT1}
        s_lshl_b32 s{sT0}, s{sT0}, 7
        s_add_u32 s{sT0}, s{sT0}, {WS_FLAGS}
        s_add_u32 s38, s{pWS}, s{sT0}
        s_addc_u32 s39, s{pWS + 1}, 0
        s_load_dword s58, s[38:39], 0 {'glc' if p.opt.get('ptg', 1) else ''}
        """)
    p.raw(3)
    p.wait_vm("xr")
    p.raw(4)
    make_tag(p)
    F = D + 8
    for k in range(8):
        p(f"v_lshlrev_b32 v{F + 2 * k}, 16, v{D + k}\nv_and_b32 v{F + 2 * k + 1}, s{sMASK}, v{D + k}")
    A = D + 24
    p(f"v_pk_add_f32 {vr(A, 2)}, {vr(F, 2)}, {vr(F + 2, 2)}")
    for k in range(2, 8):
        p(f"v_pk_add_f32 {vr(A, 2)}, {vr(A, 2)}, {vr(F + 2 * k, 2)}")
    p(f"v_add_f32 v{A}, v{A}, v{A + 1}")
    half_reduce(p, A, A + 1)
    p(f"v_mul_f32 v{A}, 0x3b000000, v{A}")
    for k in range(8):
        p(f"v_pk_add_f32 {vr(F + 2 * k, 2)}, {vr(F + 2 * k, 2)}, {vr(A, 2)} op_sel_hi:[1,0] neg_lo:[0,1] neg_hi:[0,1]")
    p(f"v_pk_mul_f32 {vr(A + 2, 2)}, {vr(F, 2)}, {vr(F, 2)}")
    for k in range(1, 8):
        p(f"v_pk_fma_f32 {vr(A + 2, 2)}, {vr(F + 2 * k, 2)}, {vr(F + 2 * k, 2)}, {vr(A + 2, 2)}")
    p(f"v_add_f32 v{A + 2}, v{A + 2}, v{A + 3}")
    half_reduce(p, A + 2, A + 3)
    p(f"""
    v_mul_f32 v{A + 2}, 0x3b000000, v{A + 2}
    v_cvt_pk_bf16_f32 v{A + 2}, v{A + 2}, v{A + 2}
    v_and_b32 v{A + 2}, s{sMASK}, v{A + 2}
    v_add_f32 v{A + 2}, 0x3727c5ac, v{A + 2}
    v_cvt_pk_bf16_f32 v{A + 2}, v{A + 2}, v{A + 2}
    v_and_b32 v{A + 2}, s{sMASK}, v{A + 2}
    v_sqrt_f32 v{A + 2}, v{A + 2}
    v_lshrrev_b32 v{vT1}, 5, v{vL}
    v_cvt_pk_bf16_f32 v{A}, v{A}, v{A + 2}
    v_mov_b32 v{A + 1}, v{vTAG}
    v_lshlrev_b32 v{vT1}, 3, v{vT1}
    s_mov_b32 exec_lo, 1
    s_mov_b32 exec_hi, 1
    """)
    p.vmem(f"buffer_store_dwordx2 {vr(A, 2)}, v{vT1}, s[{S_WS}:{S_WS + 3}], s{sKB} offen sc1", "stst")
    p("s_mov_b64 exec, -1")
    p.stamp(1)


def y_consts(p):
    PR, t = 244, 208
    main, p.l = p.l, []
    p(f"v_mov_b32 v58, v{vTAG}\nv_mov_b32 v59, v{vTAG}")
    p(f"""
    v_lshlrev_b32 v{PR}, 16, v{PR}
    v_lshlrev_b32 v{PR + 1}, 16, v{PR + 1}
    v_lshlrev_b32 v{PR + 2}, 16, v{PR + 2}
    v_mul_f32 v{PR + 2}, {LOG2E}, v{PR + 2}
    v_exp_f32 v{PR + 2}, v{PR + 2}
    s_nop 0
    v_cvt_pk_bf16_f32 v{PR + 2}, v{PR + 2}, v{PR + 2}
    v_and_b32 v{PR + 2}, s{sMASK}, v{PR + 2}
    v_mul_f32 v{t}, v{PR + 2}, v{PR}
    v_mul_f32 v{t + 1}, v{PR + 2}, v{PR + 1}
    v_mul_f32 v{t}, {LOG2E}, v{t}
    v_mul_f32 v{t + 1}, 0.15915494, v{t + 1}
    v_exp_f32 v{t}, v{t}
    v_rndne_f32 v{t + 2}, v{t + 1}
    v_sub_f32 v{t + 1}, v{t + 1}, v{t + 2}
    v_cos_f32 v{t + 2}, v{t + 1}
    v_sin_f32 v{t + 3}, v{t + 1}
    v_mul_f32 v{t + 4}, v{PR}, v{PR}
    v_fmac_f32 v{t + 4}, v{PR + 1}, v{PR + 1}
    v_rcp_f32 v{t + 4}, v{t + 4}
    v_mul_f32 v{yL}, v{t}, v{t + 2}
    v_mul_f32 v{t + 3}, v{t}, v{t + 3}
    v_sub_f32 v{yL + 1}, 0, v{t + 3}
    v_add_f32 v{t + 2}, -1.0, v{yL}
    v_add_f32 v{t + 4}, v{t + 4}, v{t + 4}
    v_mul_f32 v{yC}, v{t + 2}, v{PR}
    v_fmac_f32 v{yC}, v{t + 3}, v{PR + 1}
    v_mul_f32 v{yC + 1}, v{t + 3}, v{PR}
    v_fma_f32 v{yC + 1}, -v{t + 2}, v{PR + 1}, v{yC + 1}
    v_mul_f32 v{yC}, v{yC}, v{t + 4}
    v_mul_f32 v{yC + 1}, v{yC + 1}, v{t + 4}
    v_and_b32 v{vT0}, 16, v{vL}
    v_cmp_ne_u32 s[42:43], 0, v{vT0}
    v_cmp_le_u32 s[44:45], 32, v{vL}
    """)
    a, b, c, d = t + 6, t + 8, t + 10, t + 12
    cmul(p, a, yL, yL)
    cmul(p, b, a, a)
    cmul(p, a, b, b)
    cmul(p, yL16, a, a)
    cmul(p, a, yL16, yL16)

    def qpow(dst, p1, p2):
        p(f"""
        v_cndmask_b32 v{c}, 1.0, v{p1}, s[42:43]
        v_cndmask_b32 v{c + 1}, 0, v{p1 + 1}, s[42:43]
        v_cndmask_b32 v{d}, 1.0, v{p2}, s[44:45]
        v_cndmask_b32 v{d + 1}, 0, v{p2 + 1}, s[44:45]
        """)
        cmul(p, dst, c, d)
    qpow(yQ16, yL16, a)
    cmul(p, yL64, a, a)
    p(f"""
    s_cmp_eq_u32 s{sMH}, 0
    s_cselect_b64 vcc, -1, 0
    s_cselect_b32 s59, 0, 1.0
    v_cndmask_b32_e64 v{c}, v{yL64}, 1.0, vcc
    v_cndmask_b32_e64 v{c + 1}, v{yL64 + 1}, 0, vcc
    """)
    cmul(p, yQM, c, yQ16)
    cmul(p, a, yL64, yL64)
    cmul(p, b, a, a)
    qpow(yQ64, a, b)
    cmul(p, yL256, b, b)
    p(f"""
    v_sub_f32 v{yNL}, 0, v{yL + 1}
    v_sub_f32 v{yNL + 1}, 0, v{yL256 + 1}
    """)
    L, p.l = p.l, main
    return L


def y_pass_s(p):
    def reads(c, s, st):
        b = yFR + 24 * st
        G = [[f"ds_read_b128 {vr(b + 16 + 4 * k, 4)}, v{yAB + s} offset:{(c % 3) * 8192 + k * 4096}" for k in range(2)]]
        G += [[f"ds_read_b128 {vr(b + 4 * tb, 4)}, v{yAX + s} offset:{(c & 3) * 16384 + tb * 2048}"] for tb in range(4)]
        return G
    p("s_waitcnt lgkmcnt(0)\ns_barrier")
    p.stamp(2)
    issued, mark = 0, {}
    for g, L in enumerate(reads(0, 0, 0)):
        for x in L:
            p(x)
            issued += 1
        mark[(0, g)] = issued
    K = y_consts(p)
    nk = -(-len(K) // p.opt.get("kn", 5))
    for n in range(16):
        c, s = divmod(n, 2)
        st = n & 1
        b = yFR + 24 * st
        M = [[mfma(yCS, yONE, b + 16, n == 0), mfma(yCS + 4, yONE, b + 20, n == 0)]]
        M += [[mfma(yRE + 4 * tb, b + 4 * tb, b + 16, n == 0), mfma(yIM + 4 * tb, b + 4 * tb, b + 20, n == 0)] for tb in range(4)]
        if n < 15:
            R = reads((n + 1) >> 1, (n + 1) & 1, st ^ 1)
        else:
            R = [[f"ds_read_b128 {vr(yM + 4 * tb, 4)}, v{yAS} offset:{16 * tb}", f"ds_read_b128 {vr(yR + 4 * tb, 4)}, v{yAS} offset:{512 + 16 * tb}"] for tb in range(4)] + [[]]
        for g in range(5):
            p(f"s_waitcnt lgkmcnt({issued - mark[(n, g)]})")
            p(M[g][0])
            if g == 0 and s == 1 and c < 7:
                p(M[g][1])
                if K and c >= p.opt.get("k0", 0):
                    p.wait_vm("par")
                    for x in K[:nk]:
                        p(x)
                    K = K[nk:]
                p("s_barrier")
            if g == 0 and n in (7, 8):
                p(f"v_add_u32 v{yAX + ((n + 1) & 1)}, 65536, v{yAX + ((n + 1) & 1)}")
            for i, x in enumerate(R[g]):
                p(x)
                issued += 1
                if i == 0 and not (g == 0 and s == 1 and c < 7):
                    p(M[g][1])
            if not R[g]:
                p(M[g][1])
            mark[(n + 1, g)] = issued
    assert not K
    p("s_waitcnt lgkmcnt(0)")
    p.stamp(3)


def yU(tau):
    tb, i = divmod(tau, 4)
    return (yRE if i % 2 == 0 else yIM) + 4 * tb + (i & ~1)


def y_window(p):
    g, gn = yG0, yG1
    p("s_nop 1")
    if p.opt.get("al", 1):
        p(".p2align 3")
    for tau in range(0, 16, 2):
        a, b = yRE + tau, yIM + tau
        p(f"""
        v_pk_fma_f32 {vr(yTA, 2)}, {vr(yM + tau, 2)}, {vr(yCS, 2)}, {vr(a, 2)} neg_lo:[1,0,0] neg_hi:[1,0,0]
        v_pk_fma_f32 {vr(yTB, 2)}, {vr(yM + tau, 2)}, {vr(yCS + 4, 2)}, {vr(b, 2)} neg_lo:[1,0,0] neg_hi:[1,0,0]
        v_pk_mul_f32 {vr(yTA, 2)}, {vr(yTA, 2)}, {vr(yR + tau, 2)}
        v_pk_mul_f32 {vr(yTB, 2)}, {vr(yTB, 2)}, {vr(yR + tau, 2)}
        v_pk_mul_f32 {vr(a, 2)}, {vr(yTA, 2)}, {vr(yC, 2)} op_sel_hi:[0,1] neg_hi:[0,1]
        v_pk_mul_f32 {vr(b, 2)}, {vr(yTA, 2)}, {vr(yC, 2)} op_sel:[1,0] op_sel_hi:[1,1] neg_hi:[0,1]
        v_pk_fma_f32 {vr(a, 2)}, {vr(yTB, 2)}, {vr(yC, 2)}, {vr(a, 2)} op_sel:[0,1,0] op_sel_hi:[0,0,1] neg_lo:[0,1,0] neg_hi:[0,1,0]
        v_pk_fma_f32 {vr(b, 2)}, {vr(yTB, 2)}, {vr(yC, 2)}, {vr(b, 2)} op_sel:[1,1,0] op_sel_hi:[1,0,1] neg_lo:[0,1,0] neg_hi:[0,1,0]
        """)
        if tau == 0:
            cmul(p, g, yU(0), yL, yU(1))
        else:
            cmul(p, gn, g, yL, yU(tau))
            cmul(p, g, gn, yL, yU(tau + 1))
    GR = 56
    p(f"""
    v_mov_b32 v{gn}, v{g}
    v_mov_b32 v{gn + 1}, v{g + 1}
    s_nop 1
    v_permlane16_swap_b32 v{g}, v{gn}
    v_permlane16_swap_b32 v{g + 1}, v{gn + 1}
    v_mov_b32 v{yTA}, v{g}
    v_mov_b32 v{yTA + 1}, v{g + 1}
    v_mov_b32 v{yTB}, v{gn}
    v_mov_b32 v{yTB + 1}, v{gn + 1}
    v_permlane32_swap_b32 v{g}, v{yTA}
    v_permlane32_swap_b32 v{g + 1}, v{yTA + 1}
    v_permlane32_swap_b32 v{gn}, v{yTB}
    v_permlane32_swap_b32 v{gn + 1}, v{yTB + 1}
    s_nop 0
    """)
    cmul(p, gn, g, yL16, gn)
    cmul(p, yTA, gn, yL16, yTA)
    cmul(p, GR, yTA, yL16, yTB)
    p(f"ds_write_b64 v{ySA}, {vr(GR, 2)}")
    for k in range(2):
        p(f"""
        v_cndmask_b32 v{g + k}, 0, v{g + k}, s[42:43]
        v_cndmask_b32 v{gn + k}, v{gn + k}, v{yTA + k}, s[42:43]
        v_cndmask_b32 v{yPQ + k}, v{g + k}, v{gn + k}, s[44:45]
        """)
    p("s_waitcnt lgkmcnt(0)\ns_barrier")
    p.stamp(4)
    p.stamp(1, 1)
    p.stamp(1, 2)
    p(f"ds_read_b64 {vr(yTA, 2)}, v{ySA + 1}")


def y_publish(p):
    GR = 56
    p(f"""
    s_waitcnt lgkmcnt(0)
    v_mul_f32 v{yTA}, s59, v{yTA}
    v_mul_f32 v{yTA + 1}, s59, v{yTA + 1}
    v_mul_f32 v{GR}, s59, v{GR}
    v_mul_f32 v{GR + 1}, s59, v{GR + 1}
    v_fmac_f32 v{GR}, v{yTA}, v{yL64}
    v_fmac_f32 v{GR + 1}, v{yTA}, v{yL64 + 1}
    v_fma_f32 v{GR}, -v{yTA + 1}, v{yL64 + 1}, v{GR}
    v_fmac_f32 v{GR + 1}, v{yTA + 1}, v{yL64}
    s_mov_b64 exec, 0xffff
    """)
    p.vmem(f"buffer_store_dwordx4 {vr(GR, 4)}, v{ySA + 2}, s[{S_WS}:{S_WS + 3}], s{sMB} offen sc1", "S")
    p(f"""
    s_mov_b64 exec, -1
    v_fmac_f32 v{yPQ}, v{yTA}, v{yQ16}
    v_fmac_f32 v{yPQ + 1}, v{yTA}, v{yQ16 + 1}
    v_fma_f32 v{yPQ}, -v{yTA + 1}, v{yQ16 + 1}, v{yPQ}
    v_fmac_f32 v{yPQ + 1}, v{yTA + 1}, v{yQ16}
    """)


class Rebase:
    def __init__(self, reg, base):
        self.reg, self.base = reg, base

    def at(self, q):
        d = 32768 * q - self.base
        if d in (0, 32768):
            return [], d
        self.base += d
        op, d = ("v_add_u32", d) if d > 0 else ("v_subrev_u32", -d)
        return [f"{op} v{self.reg + k}, {d}, v{self.reg + k}" for k in range(4)], 0


def with_pre(pre, L):
    if pre:
        L[0] = "\n".join(pre) + "\n" + L[0]
    return L


def w2_unit_head(p, slot):
    p(f"s_lshl_b32 s{sKB}, s{sUN + slot}, 16\ns_add_u32 s{sKB}, s{sKB}, s{sBB}")


yOC, yO2 = 10, 32


class Stage:
    ORDERS = {0: "C2 C3 C4 C2 W3 W4 W2 W0 W1",
              1: "C2 W3 W4 C2 W2 C0 C1 W0 W1",
              2: "W3 W4 W2 C0 C1 C0 C1 W0 W1",
              3: "C2 C4 W3 W4 W2 C0 C1 W0 W1",
              4: "C2 W3 C4 C2 W4 W2 C0 W0 W1",
              5: "C2 C4 W3 C2 W4 C2 W2 W0 W1",
              6: "C2 C4 W3 W4 C2 W2 C0 W0 W1"}

    def __init__(self, p):
        self.p = p
        self.todo, n, last, self.cq = [], {"C": 0, "W": 0}, {}, []
        for x in self.ORDERS[p.opt.get("seq", 0)].split():
            kind, q = x[0], int(x[1])
            self.todo.append((kind, n[kind], q, last.get(q, -1)))
            if kind == "C":
                last[q] = n[kind]
                self.cq.append(q)
            n[kind] += 1
        self.cur, self.k = None, 0
        self.read = 0
        self.full = set()
        self.late = False
        self.rb = Rebase(yR2, 65536)

    def pick(self):
        if self.cur is None:
            for u in self.todo:
                if (u[2] >= 2 or self.late) and self.read > u[3]:
                    self.cur, self.k = u, 0
                    self.todo.remove(u)
                    break
        return self.cur

    def left(self):
        return 8 * len(self.todo) + (8 - self.k if self.cur else 0)

    def done(self):
        return not self.todo and self.cur is None

    def dma(self, need_m0=True):
        p = self.p
        if self.pick() is None:
            return False
        kind, u, q, _ = self.cur
        k = self.k
        if need_m0 or k % 4 == 0:
            p(f"s_add_u32 m0, s{sBUF}, {32768 * q + 4096 * (k // 4)}")
            if k % 4:
                p("s_nop 0")
        if k == 0 and kind == "W":
            w2_unit_head(p, u)
        if k == 0 and kind == "C":
            ptr = pCIM if u & 1 else pCRE
            p(f"s_mov_b32 s{S_X}, s{ptr}\ns_mov_b32 s{S_X + 1}, s{ptr + 1}\ns_xor_b32 s{sKB}, s{sKX}, {128 * (u >> 1)}")
        if k == 4:
            p(f"s_add_u32 s{sKB}, s{sKB}, 32768")
        vo, sr = (yOC, S_X) if kind == "C" else (yO2, S_B)
        p.vmem(f"buffer_load_dwordx4 v{vo + k % 4}, s[{sr}:{sr + 3}], s{sKB} offen{off(1024 * (k % 4))} lds", (kind, u) if kind == "C" else "W")
        self.k += 1
        if self.k == 8:
            self.full.add((kind, u))
            self.cur = None
        return True

    def reads(self, u):
        pre, imm = self.rb.at(self.cq[u])
        if pre and self.late and self.p.opt.get("yp", 1):
            pre = ["s_setprio 3"] + pre + ["s_setprio 0"]
        return with_pre(pre, [f"ds_read_b64 {vr(vB2 + 64 * (u >> 1) + 16 * j + 4 * db + 2 * (u & 1), 2)}, v{yR2 + j} offset:{imm + 2048 * db}"
                              for j in range(4) for db in range(4)])

    def read_next(self):
        self.p.wait_vm(("C", self.read))
        for x in self.reads(self.read):
            self.p(x)
        self.p("s_waitcnt lgkmcnt(0)")
        self.read += 1


def w2_dma_setup(p, vo):
    p(f"""
    v_lshrrev_b32 v{vT0}, 4, v{vL}
    v_and_b32 v{vT1}, 7, v{vL}
    v_lshlrev_b32 v{vT0}, 1, v{vT0}
    v_xor_b32 v{vT0}, v{vT0}, v{vT1}
    v_lshlrev_b32 v{vT0}, 4, v{vT0}
    v_lshrrev_b32 v{vT1}, 3, v{vL}
    v_lshl_add_u32 v{vo}, v{vT1}, 10, v{vT0}
    v_add_u32 v{vo + 1}, 7168, v{vo}
    v_add_u32 v{vo + 2}, 14336, v{vo}
    v_add_u32 v{vo + 3}, 21504, v{vo}
    """)


def y_m_setup(p):
    p(f"""
    s_lshl_b32 s{sBUF}, s{sV}, 13
    s_add_u32 s{sT0}, s{sBUF}, 65536
    v_and_b32 v{vT0}, 15, v{vL}
    v_bfe_u32 v{vT1}, v{vL}, 1, 3
    v_lshrrev_b32 v{vT2}, 5, v{vL}
    v_xor_b32 v{vT1}, v{vT1}, v{vT2}
    v_lshlrev_b32 v{vT1}, 4, v{vT1}
    v_lshl_add_u32 v{vT0}, v{vT0}, 7, v{vT1}
    v_bfe_u32 v{vT1}, v{vL}, 4, 1
    v_lshl_add_u32 v{vT0}, v{vT1}, 3, v{vT0}
    v_add_u32 v{yR2}, s{sT0}, v{vT0}
    v_xor_b32 v{yR2 + 1}, 32, v{yR2}
    v_xor_b32 v{yR2 + 2}, 64, v{yR2}
    v_xor_b32 v{yR2 + 3}, 96, v{yR2}
    s_lshl_b32 s{sBB}, s{sN2}, 7
    """)
    w1_dma_setup(p, yOW)
    c_dma_setup(p, yOC)
    p(f"""
    s_and_b32 s{sT1}, s{sV}, 1
    s_lshl1_add_u32 s{sMX}, s{sNT}, s{sT1}
    s_lshl_b32 s{sMB}, s{sMX}, 14
    s_add_u32 s{sMB}, s{sMB}, {WS_CARRY}
    v_lshl_add_u32 v14, s{sT1}, 10, v{vL16}
    v_xor_b32 v15, 1024, v14
    v_and_b32 v{vT0}, 15, v{vL}
    s_lshl_b32 s{sT1}, s{sT1}, 8
    s_add_u32 s{sT1}, s{sT1}, {L_S}
    v_lshl_add_u32 v{ySA + 1}, v{vT0}, 3, s{sT1}
    s_lshl_b32 s{sT1}, s{sMH}, 7
    v_add_u32 v{ySA}, s{sT1}, v{ySA + 1}
    v_lshlrev_b32 v{vT0}, 4, v{vT0}
    s_add_u32 s{sT1}, s{sMT}, 1
    s_mul_i32 s{sT1}, s{sT1}, s{sMH}
    s_lshl_b32 s{sT1}, s{sT1}, 8
    v_add_u32 v{ySA + 2}, s{sT1}, v{vT0}
    v_lshrrev_b32 v{vT1}, 4, v{vL}
    v_sub_u32 v{vT1}, s{sMT}, v{vT1}
    v_lshl_add_u32 v{vT1}, v{vT1}, 8, v{vT0}
    """)
    for j in range(4):
        p(f"v_subrev_u32 v{yGA + j}, {1024 * j}, v{vT1}\nv_max_i32 v{yGA + j}, v{yGA + j}, v{vT0}")
    y_units(p)
    srd(p, S_W, pW1, 512 * 3584)
    srd(p, S_B, pW2, 1792 * 1024)
    p(f"""
    s_mov_b32 s{S_X + 2}, {512 * 1024}
    s_lshl1_add_u32 s{sKX}, s{sV}, s{sG0}
    s_lshl_b32 s{sKX}, s{sKX}, 7
    s_lshl_b32 s{sT1}, s{sN2}, 16
    s_add_u32 s{sKX}, s{sKX}, s{sT1}
    """)


def y_units(p, only0=None):
    r2 = p.opt.get("rot2", 1)
    p(f"""
    s_mul_i32 s{sT0}, s{sV}, 7
    s_and_b32 s{sKX}, s{sM2}, 1
    s_and_b32 s{sT1}, s{sN2}, {1 if r2 else 0}
    s_lshl1_add_u32 s{sT2}, s{sT1}, s{sFLG}
    """)
    for i in range(4):
        p(f"""
        s_add_u32 s{sT3}, s{sT2}, {i}
        s_and_b32 s{sT3}, s{sT3}, 3
        s_lshl1_add_u32 s{sT3}, s{sT3}, s{sKX}
        s_min_u32 s{sT3}, s{sT3}, 6
        s_add_u32 s{sUN + i if only0 is None else only0}, s{sT3}, s{sT0}
        """)
        if only0 is not None:
            return
    p(f"""
    s_add_u32 s{sT1}, s{sT1}, s{sFLG}
    s_mul_i32 s{sT2}, s{sT1}, 86
    s_lshr_b32 s{sT2}, s{sT2}, 8
    s_mul_i32 s{sT2}, s{sT2}, 3
    s_sub_u32 s{sT1}, s{sT1}, s{sT2}
    s_add_u32 s{sT0}, s{sT0}, 1
    s_sub_u32 s{sT0}, s{sT0}, s{sKX}
    """)
    for i in range(3):
        p(f"""
        s_lshl1_add_u32 s{sUN + 4 + i}, s{sT1}, s{sT0}
        s_add_u32 s{sT1}, s{sT1}, 1
        s_cmp_eq_u32 s{sT1}, 3
        s_cselect_b32 s{sT1}, 0, s{sT1}
        """)


def gather_list(p, track):
    L = []
    for j in range(3, -1, -1):
        def f(j=j):
            s = f"buffer_load_dwordx4 {vr(yGD2 + 4 * j, 4)}, v{yGA + j}, s[{S_WS}:{S_WS + 3}], s{sMB} offen sc1"
            p.vmem(s, "G") if track else p(s)
        L.append(f)
    return L


def cmac(d, a, b, nb):
    return [f"v_fmac_f32 v{d}, v{a}, v{b}", f"v_fmac_f32 v{d + 1}, v{a}, v{b + 1}",
            f"v_fmac_f32 v{d}, v{a + 1}, v{nb}", f"v_fmac_f32 v{d + 1}, v{a + 1}, v{b}"]


def h_work(p):
    W = []

    def check():
        p.wait_vm("G")

        def test():
            p(f"v_xor_b32 v{vT3}, v{yGD2 + 14}, v{vTAG}")
            for j in range(2, -1, -1):
                p(f"v_bitop3_b32 v{vT3}, v{yGD2 + 4 * j + 2}, v{vTAG}, v{vT3} bitop3:0xbe")
            p(f"v_cmp_ne_u32 vcc, 0, v{vT3}\ns_nop 4")

        def reload():
            for f in gather_list(p, False):
                f()
            p("s_waitcnt vmcnt(0)")
        retry(p, "s_cbranch_vccnz", test, reload)
        p.stamp(6)
    W.append(check)
    for j in range(2, -1, -1):
        W += cmac(yGD2 + 4 * j, yGD2 + 4 * (j + 1), yL256, yNL + 1)
    g = yGD2
    W += [f"v_mul_f32 v{yTA}, v{g}, v{yQ64}", f"v_mul_f32 v{yTA + 1}, v{g}, v{yQ64 + 1}",
          f"v_fma_f32 v{yTA}, -v{g + 1}, v{yQ64 + 1}, v{yTA}", f"v_fmac_f32 v{yTA + 1}, v{g + 1}, v{yQ64}"]
    for sw in ("v_permlane16_swap_b32", "v_permlane32_swap_b32"):
        W.append(f"""
        v_mov_b32 v{yTB}, v{yTA}
        v_mov_b32 v{yTB + 1}, v{yTA + 1}
        s_nop 1
        {sw} v{yTA}, v{yTB}
        {sw} v{yTA + 1}, v{yTB + 1}
        s_nop 1
        v_add_f32 v{yTA}, v{yTA}, v{yTB}
        v_add_f32 v{yTA + 1}, v{yTA + 1}, v{yTB + 1}
        """)
        W += [""] * 5
    W += [f"v_fmac_f32 v{yPQ}, v{yTA}, v{yQM}", f"v_fmac_f32 v{yPQ + 1}, v{yTA}, v{yQM + 1}",
          f"v_fma_f32 v{yPQ}, -v{yTA + 1}, v{yQM + 1}, v{yPQ}", f"v_fmac_f32 v{yPQ + 1}, v{yTA + 1}, v{yQM}"]
    prev = yPQ
    PA, TD = 112, 64
    for tau in range(16):
        u = yU(tau)
        W += cmac(u, prev, yL, yNL)
        prev = u
        if tau & 1:
            tb, i = divmod(tau, 4)
            for part in range(2):
                W.append(f"v_cvt_pk_bf16_f32 v{PA + 4 * tb + 2 * part + (i >> 1)}, v{yU(tau - 1) + part}, v{u + part}")

    def transpose():
        p(f"s_mul_i32 s{sT2}, s{sCI}, 88\ns_add_u32 s{sT2}, s{sT2}, s{sMX}")
        for tb in range(4):
            for part in range(2):
                p(mfma16(TD + 8 * tb + 4 * part, PA + 4 * tb + 2 * part, ySEL, True))
        p(f"""
        s_lshl_b32 s{sBX}, s{sT2}, 12
        s_add_u32 s{sBX}, s{sBX}, {WS_HID}
        s_mul_i32 s{sT2}, s{sCI}, 12
        s_lshr_b32 s{sT3}, s{sMX}, 3
        s_add_u32 s{sT2}, s{sT2}, s{sT3}
        s_lshl_b32 s{sT2}, s{sT2}, 7
        s_and_b32 s{sMX}, s{sMX}, 7
        s_lshl2_add_u32 s{sMX}, s{sMX}, s{sT2}
        """)
    W.append(transpose)
    W += [""] * 16
    for tb in range(4):
        for k in range(4):
            W.append(f"v_cvt_pk_bf16_f32 v{PA + 4 * tb + k}, v{TD + 8 * tb + 2 * k}, v{TD + 8 * tb + 2 * k + 1}")
        W.append(lambda tb=tb: p.vmem(f"buffer_store_dwordx4 {vr(PA + 4 * tb, 4)}, v{14 + (tb & 1)}, s[{S_WS}:{S_WS + 3}], s{sBX} offen{off(2048 * (tb >> 1))} sc1", "h"))
    W.append(lambda: p.stamp(7))
    return W


def emit(p, x):
    x() if callable(x) else p(x)


def capture(p, f):
    main, p.l = p.l, []
    f()
    L, p.l = p.l, main
    return L


def y_pass_m(p):
    o = p.opt
    st = Stage(p)
    y_publish(p)
    budget = [int(x, 16) for x in str(o.get("bud", "40525588")).zfill(8)]
    gi = o.get("gi", 3)
    W = h_work(p)
    nW = len(W)
    wd = [int(x, 16) for x in str(o.get("wd", "24440")).zfill(9)]
    full = {}
    for c in range(8):
        V = []
        if 1 <= c <= 5:
            V += w1_dma(p, c + 2, yOW)
        if c == gi:
            V += gather_list(p, True)
        for k in range(budget[c]):
            V.append(lambda k=k: st.dma(k == 0))
        A = []
        if c == 0:
            A = capture(p, lambda: w2_dma_setup(p, yO2))
            if st.todo[0][0] == "W":
                for x in A:
                    p(x)
                A = []
            assert budget[0] <= 8
        if c == 1:
            A = capture(p, lambda: poll_setup(p, f"s_add_u32 s{sT0}, s{sT0}, s{sV}"))
            A = ["\n".join(A)]
        u = st.read
        rd = u < 4 and full.get(u, 99) <= c - o.get("rdl", 2)
        L = []
        if rd:
            L = [lambda u=u: p.wait_vm(("C", u))] + st.reads(u)
        late = 0
        n = -(-nW * wd[c] // sum(wd))
        if n and len(W) == nW:
            late = len(V) * o.get("late", 2) // 4
        A, W = A + W[:n], W[n:]
        slots = len(V) + 1
        l0 = len(V) // 2 if rd and full[u] == c - 1 else 0
        for k in range(slots):
            if k < len(V):
                V[k]()
            if k >= l0:
                nl = -(-len(L) // max(1, slots - 1 - k))
                for x in L[:nl]:
                    emit(p, x)
                L = L[nl:]
            if k >= late:
                na = -(-len(A) // (slots - k))
                na += na & 1
                for x in A[:na]:
                    emit(p, x)
                A = A[na:]
        if rd:
            p("s_waitcnt lgkmcnt(0)")
            st.read += 1
        for kind, uu in st.full:
            if kind == "C":
                full.setdefault(uu, c)
        if 3 <= c + 1 <= 7:
            p.wait_vm(("w", c + 1))
        if c < 7:
            p.stamp(2 + 2 * c, 1)
        p("s_barrier")
        if c < 7:
            p.stamp(3 + 2 * c, 1)
    if o.get("hx"):
        assert not W
        p.wait_vm("h")
    p("s_barrier")
    p.stamp(5)
    p.stamp(1, 5)
    p.stamp(2, 5)
    for x in W:
        emit(p, x)
    return st


def y_ph2(p, st):
    o = p.opt
    st.late = True
    hf = o.get("hf", 0)
    n, first, pend, polled, nd = 0, True, [], False, 0
    lag = o.get("lag", 8)
    while not st.done() or st.read < 4:
        if n == hf:
            if not o.get("hx"):
                p.wait_vm("h")
                flag_store(p, sMX, WS_FLAGS)
            n += 1
        u = st.read
        if not pend and u < 4 and ("C", u) in st.full and len(p.vm) - 1 - p.last(("C", u)) >= lag:
            p.wait_vm(("C", u))
            pend = st.reads(u) + [None]
        if not polled and all(("C", k) in st.full for k in range(4)) and st.left() <= o.get("pl", 10):
            poll_issue(p, 0, 44)
            polled = True
        ok = st.dma(first)
        if ok and st.left() % 4 == 0 and st.left() <= 40:
            p.stamp(12 - st.left() // 4, 5)
        if ok:
            first = False
            n += n < hf
            nd += 1
            yt = o.get("yt", 0)
            if yt and nd > yt and nd <= o.get("ytn", 99):
                p(f"s_waitcnt vmcnt({yt})")
                p.done = max(p.done, len(p.vm) - 1 - yt)
        elif not pend:
            st.read_next()
        k = 4 if ok else len(pend)
        for x in pend[:k]:
            if x is None:
                p("s_waitcnt lgkmcnt(0)")
                st.read += 1
            else:
                p(x)
        pend = pend[k:]
    assert n > hf and polled
    p.stamp(11)
    for pair in range(2):
        p(f"""
        s_xor_b32 s{sT0}, s{sG0}, {pair}
        s_lshl1_add_u32 s{sT0}, s{sV}, s{sT0}
        s_lshl_b32 s{sT0}, s{sT0}, 14
        s_add_u32 s{sUN + 2 * pair}, s{sT0}, s{sHID}
        s_add_u32 s{sUN + 2 * pair + 1}, s{sUN + 2 * pair}, 8192
        """)
    p(f"s_add_u32 s{sBUF}, s{sBUF}, {3 * 32768}")
    poll_check(p, 0, 44)
    p.stamp(12)
    items = []
    for step, tb in order(p, 8):
        items.append((sUN + (step >> 1), step & 1, tb, vB2 + 16 * step, step == 0))

    def after_ramp():
        p.stamp(13, 5)
        p.wait_vm("W")
        p.stamp(14, 5)
        p("s_barrier")
        p.stamp(10)
        p.stamp(15, 5)
    post = {o.get("ys", 22): lambda: p("s_barrier")}
    side = {}
    spread(side, partial_addr(), 4, 3)
    if o.get("ef"):
        final_loads(p)
        ph2_loop(p, items, {}, post, side, min(9, o.get("yramp", 8)), after_ramp, 10, 9)
    else:
        ph2_loop(p, items, {}, post, side, o.get("yramp", 8), after_ramp, 13, o.get("yd", 10))
    p.stamp(13)
    if not o.get("ef"):
        final_loads(p)
    for tb in range(4):
        partial_write(p, tb)
    final(p)
    p("s_branch L_fin")


xTR = 8
xAX, xEA, xRL, xEX = 16, 18, 20, 22
xWF, NWF = 32, 6
xONE, xB1, xCS = 28, 26, 56
xOX, xOB, xOW, xSA, xST = 32, 36, 38, 40, 42
xACC, xXF = 64, 128


def x_pass_s(p):
    o = p.opt
    p("L_X:")
    if o.get("xp0"):
        p("s_setprio 2")
    p.raw(1)
    p(f"""
    v_lshrrev_b32 v{vT0}, 4, v{vL}
    v_and_b32 v{vT1}, 7, v{vL}
    v_xor_b32 v{vT1}, v{vT1}, v{vT0}
    v_lshlrev_b32 v{vT1}, 4, v{vT1}
    v_lshrrev_b32 v{vT2}, 3, v{vL}
    v_lshl_add_u32 v{xOB}, v{vT2}, 10, v{vT1}
    v_lshrrev_b32 v{vT2}, 5, v{vL}
    v_mul_u32_u24 v{vT2}, {12 * 1024}, v{vT2}
    v_add_u32 v{xOX}, v{vT2}, v{xOB}
    v_xor_b32 v{xOX + 1}, 64, v{xOX}
    v_xor_b32 v{xOB + 1}, 64, v{xOB}
    v_add_u32 v{xOX + 1}, {31 * 1024}, v{xOX + 1}
    v_add_u32 v{xOB + 1}, 7168, v{xOB + 1}
    v_add_u32 v{xOX + 2}, 2048, v{xOX}
    v_add_u32 v{xOX + 3}, 2048, v{xOX + 1}
    s_and_b32 s{sT1}, s{sV}, 1
    s_lshl1_add_u32 s{sBX}, s{sMT}, s{sMH}
    s_lshl3_add_u32 s{sBX}, s{sBX}, s{sT1}
    s_lshl_b32 s{sBX}, s{sBX}, 13
    s_lshl1_add_u32 s{sBB}, s{sNT}, s{sMH}
    s_lshl_b32 s{sBB}, s{sBB}, 14
    s_lshl_b32 s{sMX}, s{sV}, 12
    s_lshl1_add_u32 s{sMB}, s{sT1}, s{sMH}
    s_lshl_b32 s{sMB}, s{sMB}, 11
    s_cmp_eq_u32 s{sT1}, 0
    s_waitcnt lgkmcnt(0)
    s_cselect_b32 s{S_B}, s{pBRE}, s{pBIM}
    s_cselect_b32 s{S_B + 1}, s{pBRE + 1}, s{pBIM + 1}
    s_mov_b32 s{S_B + 2}, {512 * 1024}
    s_mov_b32 s{S_B + 3}, 0x00020000
    """)
    srd(p, S_X, pX, 2048 * 1024)
    p.raw(2)

    def dma_b(c):
        p(f"""
        s_add_u32 s{sT0}, s{sC0}, {c}
        s_and_b32 s{sT0}, s{sT0}, 7
        s_lshl_b32 s{sT1}, s{sT0}, 7
        s_add_u32 m0, s{sMB}, {BR + (c % 3) * 8192}
        s_add_u32 s{sKB}, s{sBB}, s{sT1}
        """)
        for i in range(2):
            p.vmem(f"buffer_load_dwordx4 v{xOB + i}, s[{S_B}:{S_B + 3}], s{sKB} offen{off(1024 * i)}{p.nt('ntb', c)} lds", ("c", c))

    def dma_x(c, same=False):
        if not same:
            p(f"s_add_u32 s{sT0}, s{sC0}, {c}\ns_and_b32 s{sT0}, s{sT0}, 7\ns_lshl_b32 s{sT1}, s{sT0}, 7")
        p(f"s_add_u32 m0, s{sMX}, {XR + c * 16384}\ns_add_u32 s{sKX}, s{sBX}, s{sT1}")
        for i in range(4):
            p.vmem(f"buffer_load_dwordx4 v{xOX + i}, s[{S_X}:{S_X + 3}], s{sKX} offen{off(1024 * i)}{p.nt('ntx', c)} lds", ("c", c))

    def dma(c):
        dma_b(c)
        dma_x(c, True)
    xa = o.get("xa", 0)
    pre = o.get("pre", 0)
    if pre:
        p(f"""
        s_lshl_b32 s{sT0}, s{sMT}, 10
        s_add_u32 s{sT0}, s{sT0}, s{sBB}
        v_lshlrev_b32 v{vT2}, 7, v{vL}
        s_mov_b64 exec, 0xff
        """)
        p.vmem(f"buffer_load_dword v19, v{vT2}, s[{S_B}:{S_B + 3}], s{sT0} offen", "pre")
        p("s_mov_b64 exec, -1")
    else:
        dma(0)
        p.stamp(1)
        p.raw(3)
    srd(p, S_WS, pWS, WS_BYTES)
    p.vmem(f"buffer_load_dword v{vTAG}, off, s[{S_WS}:{S_WS + 3}], 0 sc1", "epoch")
    if not pre:
        dma(1)
    if o.get("xp0"):
        p("s_setprio 0")
    p.l.append("@XCUT")
    late_ids(p)
    w1_dma_setup(p, xOW)
    srd(p, S_W, pW1, 512 * 3584)
    p(f"""
    v_and_b32 v{vT0}, 15, v{vL}
    s_lshl1_add_u32 s{sT0}, s{sL0}, s{sV}
    s_lshl_b32 s{sT0}, s{sT0}, 5
    v_add_u32 v{vT2}, s{sT0}, v{vT0}
    v_min_u32 v{vT2}, 1775, v{vT2}
    v_lshlrev_b32 v{vT2}, 1, v{vT2}
    """)
    p.vmem(f"global_load_ushort v{xB1}, v{vT2}, s[{pB1}:{pB1 + 1}]", "par")
    p.vmem(f"global_load_ushort v{xB1 + 1}, v{vT2}, s[{pB1}:{pB1 + 1}] offset:32", "par")
    for k in range(4):
        p(f"v_mov_b32 v{xONE + k}, 0x3f803f80")
    rowfrag_addr(p, xAX)
    p(f"""
    s_add_u32 s{sT0}, s{sMX}, {XR}
    v_add_u32 v{xAX}, s{sT0}, v{xAX}
    v_xor_b32 v{xAX + 1}, 64, v{xAX}
    v_and_b32 v{xSA}, 31, v{vL}
    v_lshlrev_b32 v{xSA}, 3, v{xSA}
    s_lshl2_add_u32 s{sUN}, s{sMT}, s{sV}
    s_lshl_b32 s{sUN}, s{sUN}, 8
    s_add_u32 s{sUN}, s{sUN}, {WS_STATS}
    """)
    w1_tr_addr0(p, xTR)
    p(f"s_lshl_b32 s{sT0}, s{sV}, 6\nv_xor_b32 v{xTR}, s{sT0}, v{xTR}")
    for fb in range(1, 8):
        p(f"v_xor_b32 v{xTR + fb}, {32 * fb}, v{xTR}")
    tp = o.get("tp", 0)
    tw1 = o.get("tw1", 0)

    def touch():
        p(f"""
        s_and_b32 s{sT0}, s{sV}, 1
        s_cmp_eq_u32 s{sT0}, 0
        s_cselect_b32 s{S_B}, s{pW1 if tw1 else pW2}, s{pW2}
        s_cselect_b32 s{S_B + 1}, s{(pW1 if tw1 else pW2) + 1}, s{pW2 + 1}
        s_cselect_b32 s{sT2}, s{pCRE}, s{pCIM}
        s_cselect_b32 s{sT3}, s{pCRE + 1}, s{pCIM + 1}
        s_mov_b32 s{S_B + 2}, {512 * 3584}
        s_lshl1_add_u32 s{sT0}, s2, s{sT0}
        s_cmp_lt_u32 s{sV}, 2
        s_cselect_b32 s{S_B}, s{S_B}, s{sT2}
        s_cselect_b32 s{S_B + 1}, s{S_B + 1}, s{sT3}
        s_cselect_b32 s{S_B + 2}, s{S_B + 2}, {512 * 1024}
        s_cselect_b32 s{sT0}, {'s2' if tw1 else 's%d' % sT0}, s2
        s_cselect_b32 s{sT2}, {(56 if tw1 else 28) if o.get('tm', 3) & 1 else 0}, {16 if o.get('tm', 3) & 2 else 0}
        s_mul_i32 s{sT1}, s{sT2}, s{sT0}
        v_cmp_gt_u32 vcc, s{sT2}, v{vL}
        v_add_lshl_u32 v44, v{vL}, s{sT1}, 7
        """)
        if o.get("to"):
            p(f"""
            s_lshr_b32 s{sT0}, s2, 1
            s_and_b32 s{sT1}, s2, 1
            s_and_b32 s{sT2}, s{sV}, 1
            s_lshl1_add_u32 s{sT2}, s{sT0}, s{sT2}
            s_mul_i32 s{sT2}, s{sT2}, 14
            s_add_u32 s{sT2}, s{sT2}, s{sT1}
            s_lshl_b32 s{sT2}, s{sT2}, 9
            s_lshl_b32 s{sT1}, s{sT1}, 7
            s_add_u32 s{sT0}, s{sT0}, s{sT1}
            s_lshl_b32 s{sT0}, s{sT0}, 11
            s_cmp_lt_u32 s{sV}, 2
            s_cselect_b32 s{sT0}, s{sT2}, s{sT0}
            s_cselect_b32 s{sT1}, 0x3c, 0
            v_and_b32 v45, s{sT1}, v{vL}
            v_add_u32 v45, v45, v{vL}
            v_lshl_add_u32 v44, v45, 7, s{sT0}
            """)
        p(f"""
        v_mov_b32 v45, 0x40000000
        v_cndmask_b32 v44, v45, v44, vcc
        """)
        if not o.get("tg"):
            p.vmem(f"buffer_load_dword v19, v44, s[{S_B}:{S_B + 3}], 0 offen", "touch")

    def touch_part(k):
        tg, n = o["tg"], len(str(o["tq"]))
        if tg == 1:
            p(f"""
            s_mul_i32 s{sT0}, s{sJ}, {n}
            s_lshr_b32 s{sT0}, s{sT0}, 5
            s_cmp_eq_u32 s{sT0}, {k}
            s_cselect_b32 s{sT0}, 0, 0x40000000
            v_or_b32 v45, s{sT0}, v44
            """)
        elif tg == 3:
            p(f"s_cmp_eq_u32 s{sMH}, {k}\ns_cselect_b32 s{sT0}, 0, 0x40000000\nv_or_b32 v45, s{sT0}, v44")
        else:
            p(f"v_and_b32 v45, 1, v{vL}\nv_xor_b32 v45, {k}, v45\nv_lshl_or_b32 v45, v45, 30, v44")
        p.vmem(f"buffer_load_dword v19, v45, s[{S_B}:{S_B + 3}], 0 offen", "touch")
    ld = f"buffer_load_dwordx2 {vr(xST, 2)}, v{xSA}, s[{S_WS}:{S_WS + 3}], s{sUN} offen sc1"
    if pre:
        if pre == 1:
            p.wait_vm("pre")
        elif pre == 3:
            p.wait_vm("pf")
        p.stamp(1)
        dma(0)
        dma(1)
    for c in range(8):
        if c < 7:
            p.wait_vm(("c", c))
        if c == 1:
            make_tag(p)
        if c == 7:
            p.wait_vm("st")
            retry(p, "s_cbranch_vccnz", lambda: p(f"v_cmp_ne_u32 vcc, v{xST + 1}, v{vTAG}\ns_nop 4"),
                  lambda: p(f"{ld}\ns_waitcnt vmcnt(0)"))
            p(f"""
            v_and_b32 v{vT0}, s{sMASK}, v{xST}
            v_rcp_f32 v{vT0}, v{vT0}
            v_lshrrev_b32 v{vT1}, 1, v{xSA}
            s_lshl_b32 s{sT0}, s{sV}, 7
            s_add_u32 s{sT0}, s{sT0}, {L_M}
            v_add_u32 v{vT1}, s{sT0}, v{vT1}
            v_lshlrev_b32 v{vT2}, 16, v{xST}
            ds_write_b32 v{vT1}, v{xST} offset:1024
            ds_write_b32 v{vT1}, v{vT0} offset:512
            ds_write_b32 v{vT1}, v{vT2}
            """)
            p.wait_vm(("c", c))
        if c in (o.get("lw", 6 - xa), 7):
            p("s_waitcnt lgkmcnt(0)")
        if c == 0:
            p.stamp(2)
            p.raw(4)
        if c > 0:
            p.stamp(2 * c, 3)
        p("s_barrier")
        p.stamp(2 * c + 1, 3)
        if c == 5:
            p.vmem(ld, "st")
        if not xa:
            if c + 2 < 8:
                dma(c + 2)
        else:
            xr = o.get("xr", 0)
            if c <= xr and c + 2 < 8:
                dma(c + 2)
            elif c + 2 < 8:
                dma_b(c + 2)
            if c >= xr and c + 3 < 8:
                dma_x(c + 3)
        if c == 4:
            p(f"v_add_u32 v{xAX}, 65536, v{xAX}\nv_add_u32 v{xAX + 1}, 65536, v{xAX + 1}")
        for s in range(2):
            for t in range(2):
                p(f"ds_read_b128 {vr(xXF + 16 * c + 8 * s + 4 * t, 4)}, v{xAX + s} offset:{(c & 3) * 16384 + t * 2048}")
        if c >= 6 - xa:
            for cc in ([c - 5] if xa else [0] if c == 6 else [1, 2]):
                for f in w1_dma(p, cc, xOW):
                    f()
                if (tp, cc) in ((2, 0), (4, 1), (3, 2)):
                    touch()
                if o.get("tg"):
                    if cc == 0:
                        touch()
                    for k, ch in enumerate(str(o["tq"])):
                        if int(ch) - 1 == cc:
                            touch_part(k)
        if c == 5 and tp == 1:
            touch()
        if o.get("pt", 1) == 1 and c == 1:
            p(f"""
            s_mul_i32 s{sT0}, s{sCI}, 6
            s_lshr_b32 s{sT1}, s{sNT}, 2
            s_add_u32 s{sT0}, s{sT0}, s{sT1}
            s_lshl_b32 s{sT0}, s{sT0}, 8
            s_add_u32 s{sT0}, s{sT0}, {WS_FLAGS + 512}
            s_add_u32 s42, s{pWS}, s{sT0}
            s_addc_u32 s43, s{pWS + 1}, 0
            s_load_dword s84, s[42:43], 0 {'glc' if o.get('ptg', 1) else ''}
            s_load_dword s84, s[42:43], 128 {'glc' if o.get('ptg', 1) else ''}
            """)
    p.stamp(3)
    p(f"""
    v_bfe_u32 v{vT0}, v{vL}, 2, 2
    v_and_b32 v{vT1}, 3, v{vL}
    v_lshl_add_u32 v{vT0}, v{vT0}, 4, v{vT1}
    s_and_b32 s{sT1}, s{sV}, 1
    s_lshl3_add_u32 s{sT0}, s{sMH}, s{sT1}
    s_lshl_b32 s{sT0}, s{sT0}, 5
    s_add_u32 s{sT0}, s{sT0}, {L_M}
    v_lshl_add_u32 v{vT0}, v{vT0}, 2, s{sT0}
    ds_read_b32 v{xEX + 1}, v{vT0} offset:1024
    ds_read_b32 v{xEX + 3}, v{vT0} offset:{1024 + 16}
    ds_read_b32 v{xRL}, v{vT0} offset:512
    ds_read_b32 v{xRL + 1}, v{vT0} offset:{512 + 16}
    v_and_b32 v{xEA}, 15, v{vL}
    v_lshlrev_b32 v{xEA}, 3, v{xEA}
    s_lshl_b32 s{sT0}, s{sV}, 8
    s_add_u32 s{sT0}, s{sT0}, {L_EXT}
    v_add_u32 v{xEA}, s{sT0}, v{xEA}
    v_cmp_gt_u32 vcc, 16, v{vL}
    s_mov_b32 s{sT2}, 0x01000100
    s_waitcnt lgkmcnt(0)
    """)
    for t in range(2):
        e = xEX + 2 * t
        p(f"""
        v_perm_b32 v{e}, v{e + 1}, v{e + 1}, s{sT2}
        v_xor_b32 v{e}, 0x80008000, v{e}
        v_lshrrev_b32 v{e + 1}, 16, v{e + 1}
        v_cndmask_b32 v{e}, 0, v{e}, vcc
        v_cndmask_b32 v{e + 1}, 0, v{e + 1}, vcc
        v_mul_f32 v{xRL + t}, {LOG2E}, v{xRL + t}
        """)
    p.wait_vm(("w", 0))
    p("s_waitcnt lgkmcnt(0)\ns_barrier")
    p.stamp(4)


def x_pass_m(p):
    PD = 4
    WE = p.opt.get("we", 1)

    def reads(n):
        if n >= 128:
            return []
        c, s, fb = n >> 4, (n >> 3) & 1, n & 7
        slot = (2 * c + s) % 7
        return [f"ds_read_b64_tr_b16 {vr(xWF + 4 * (n % NWF) + 2 * e, 2)}, v{xTR + fb} offset:{8192 * slot + 1024 * e}" for e in range(2)]
    nissued = 0
    for n in range(PD):
        for x in reads(n):
            p(x)
            nissued += 1
    for n in range(128):
        c, s, fb = n >> 4, (n >> 3) & 1, n & 7
        if n % WE == 0 and n < 126:
            p(f"s_waitcnt lgkmcnt({nissued - 2 * (n + WE)})")
        R = reads(n + PD)
        bar = (n & 15) == 16 - PD and c < 7
        w = xWF + 4 * (n % NWF)
        if n == 126:
            p("s_waitcnt lgkmcnt(0)")
        for t in range(2):
            p(mfma(xACC + 8 * fb + 4 * t, w, xXF + 16 * c + 8 * s + 4 * t, n < 8))
            if bar and t == 0:
                if c < 2:
                    p.wait_vm(("w", c + 1))
                p("s_barrier")
            if n == 126 and t == 0:
                p("s_barrier")
            if n >= 126:
                k = 2 * (n - 126) + t
                for i in range(2):
                    p(f"ds_read_b64 {vr(xXF + 2 * (2 * k + i), 2)}, v{xTR + k} offset:{128 * i}")
            if R:
                p(R[t])
                nissued += 1
        if fb < 2:
            p(mfma(xCS + 4 * fb, xONE, w, n < 8))
        if n in (123, 124):
            k = n - 123
            a = xCS + 4 * k
            p(f"""
            v_and_b32 v{a + 1}, s{sMASK}, v{a}
            v_sub_f32 v{a}, v{a}, v{a + 1}
            v_cvt_pk_bf16_f32 v{a}, v{a + 1}, v{a}
            v_mov_b32 v{a + 1}, v{xB1 + k}
            ds_write_b64 v{xEA}, {vr(a, 2)} offset:{128 * k}
            """)
            nissued += 1
        if n == 125:
            p(f"v_mov_b32 v{xTR}, v{xEA}")
            for k in range(1, 4):
                p(f"v_xor_b32 v{xTR + k}, {256 * k}, v{xEA}")
    p("s_waitcnt lgkmcnt(0)\ns_barrier")
    p.stamp(1, 5)
    for fb in range(8):
        for t in range(2):
            p(mfma16(xACC + 8 * fb + 4 * t, xXF + 2 * fb, xEX + 2 * t))
    p.stamp(5)
    p.stamp(2, 5)


def mish4(p, a, t, pk, tmp):
    sel = "op_sel_hi:[1,0]" if t == 0 else "op_sel:[0,1] op_sel_hi:[1,1]"
    e, u = tmp, tmp + 4
    p(f"""
    v_pk_mul_f32 {vr(a, 2)}, {vr(a, 2)}, {vr(xRL, 2)} {sel}
    v_pk_mul_f32 {vr(a + 2, 2)}, {vr(a + 2, 2)}, {vr(xRL, 2)} {sel}
    v_exp_f32 v{e}, v{a}
    v_exp_f32 v{e + 1}, v{a + 1}
    v_exp_f32 v{e + 2}, v{a + 2}
    v_exp_f32 v{e + 3}, v{a + 3}
    v_pk_fma_f32 {vr(u, 2)}, {vr(e, 2)}, 0.5, 1.0 op_sel_hi:[1,0,0]
    v_pk_fma_f32 {vr(u + 2, 2)}, {vr(e + 2, 2)}, 0.5, 1.0 op_sel_hi:[1,0,0]
    v_pk_fma_f32 {vr(u, 2)}, {vr(e, 2)}, {vr(u, 2)}, 1.0 op_sel_hi:[1,1,0]
    v_pk_fma_f32 {vr(u + 2, 2)}, {vr(e + 2, 2)}, {vr(u + 2, 2)}, 1.0 op_sel_hi:[1,1,0]
    v_rcp_f32 v{u}, v{u}
    v_rcp_f32 v{u + 1}, v{u + 1}
    v_rcp_f32 v{u + 2}, v{u + 2}
    v_rcp_f32 v{u + 3}, v{u + 3}
    v_pk_fma_f32 {vr(a, 2)}, {vr(a, 2)}, {vr(u, 2)}, {vr(a, 2)} neg_lo:[1,0,0] neg_hi:[1,0,0]
    v_pk_fma_f32 {vr(a + 2, 2)}, {vr(a + 2, 2)}, {vr(u + 2, 2)}, {vr(a + 2, 2)} neg_lo:[1,0,0] neg_hi:[1,0,0]
    v_cvt_pk_bf16_f32 v{pk}, v{a}, v{a + 1}
    v_cvt_pk_bf16_f32 v{pk + 1}, v{a + 2}, v{a + 3}
    """)


def x_epilogue(p):
    PK, TMP, VO = 192, 228, 224
    p(f"""
    s_mul_i32 s{sT0}, s{sCI}, 44
    s_add_u32 s{sT0}, s{sT0}, s{sL0}
    s_add_u32 s{sT0}, s{sT0}, s{sMH}
    s_add_u32 s{sT0}, s{sT0}, 16
    s_and_b32 s{sT1}, s{sV}, 1
    s_lshl2_add_u32 s{sBX}, s{sT0}, s{sT1}
    s_lshl_b32 s{sBX}, s{sBX}, 11
    s_add_u32 s{sBX}, s{sBX}, {WS_HID}
    s_mul_i32 s{sT2}, s{sT1}, 5120
    v_add_u32 v{VO}, s{sT2}, v{vL16}
    v_xor_b32 v{VO + 1}, 1024, v{VO}
    v_xor_b32 v{VO + 2}, 5120, v{VO}
    v_xor_b32 v{VO + 3}, 4096, v{VO}
    s_mul_i32 s{sT2}, s{sCI}, 6
    s_lshr_b32 s{sT3}, s{sNT}, 2
    s_add_u32 s{sT2}, s{sT2}, s{sT3}
    s_add_u32 s{sT2}, s{sT2}, 2
    s_lshl_b32 s{sT2}, s{sT2}, 8
    s_and_b32 s{sT3}, s{sNT}, 3
    s_lshl1_add_u32 s{sKW}, s{sT3}, s{sMH}
    s_lshl1_add_u32 s{sT3}, s{sT3}, s{sT1}
    s_lshl2_add_u32 s{sMB}, s{sT3}, s{sT2}
    """)
    if p.opt.get("xprio"):
        p(f"s_setprio {p.opt['xprio']}")
    if p.opt.get("hx"):
        p(f"""
        s_mul_i32 s{sT2}, s{sCI}, 12
        s_lshr_b32 s{sT1}, s{sNT}, 2
        s_add_u32 s{sT2}, s{sT2}, s{sT1}
        s_lshl_b32 s{sT2}, s{sT2}, 7
        s_lshl2_add_u32 s{sT2}, s{sT3}, s{sT2}
        """)
        flag_store(p, sT2, WS_FLAGS)
    p(f"s_lshl_b32 s{sT0}, s{sMH}, 14\ns_add_u32 s{sMX}, s{sBX}, 8192\ns_sub_u32 s{sMX}, s{sMX}, s{sT0}")

    def store(u, s, t):
        p.vmem(f"buffer_store_dwordx4 {vr(PK + 4 * (4 * u + 2 * s + t), 4)}, v{VO + 2 * s + t}, s[{S_WS}:{S_WS + 3}], s{sMX if u else sBX} offen sc1", ("act", u))

    def guarded(u, body):
        join = p.label("join")
        p(f"s_cmp_eq_u32 s{sKW}, {7 - u}\ns_cbranch_scc1 {join}")
        body()
        p(f"{join}:")

    def frags(u, L):
        def body():
            for s, t in L:
                pk = PK + 4 * (4 * u + 2 * s + t)
                for e in range(2):
                    mish4(p, xACC + 8 * (4 * u + 2 * s + e) + 4 * t, t, pk + 2 * e, TMP)
                store(u, s, t)
                p.stamp(3 + 4 * u + 2 * s + t, 5)
        if L:
            if p.opt.get("al", 1):
                p(".p2align 3")
            guarded(u, body)
    ST = [(0, 0), (0, 1), (1, 0), (1, 1)]
    frags(0, ST)
    frags(1, ST)
    p.stamp(6)
    o = p.opt
    fa = o.get("fa", 1)

    def flag(u):
        p.wait_vm(("act", u))
        if u == 0:
            lt, hv = p.label("light"), p.label("heavy")
            p(f"s_cmp_ge_u32 s{sKW}, 6\ns_cbranch_scc1 {lt}\n{hv}:")
            p.ool += [f"{lt}:", f"    s_waitcnt vmcnt({len(p.vm) - 1 - p.last(('act', 1))})", f"    s_branch {hv}"]
        flag_store(p, sMB, WS_FLAGS + 128 * u)
        p.stamp(11 + u, 5)
        if u == 1:
            p.stamp(7)
    RA, CV = 60, (56 if o.get('wl', -1) >= 0 else 64)
    NR = 12 if o.get('wl', -1) >= 0 else 13
    p(f"""
    s_lshl_b32 s{sBUF}, s{sV}, 13
    s_add_u32 s{sT0}, s{sBUF}, {3 * 32768}
    v_lshrrev_b32 v{vT0}, 2, v{vL}
    v_bfe_u32 v{vT1}, v{vL}, 3, 2
    v_lshlrev_b32 v{vT0}, 7, v{vT0}
    v_lshl_add_u32 v{vT0}, v{vT1}, 5, v{vT0}
    v_and_b32 v{vT1}, 3, v{vL}
    v_lshl_add_u32 v{vT0}, v{vT1}, 3, v{vT0}
    v_add_u32 v{RA}, s{sT0}, v{vT0}
    v_xor_b32 v{RA + 1}, 32, v{RA}
    v_xor_b32 v{RA + 2}, 64, v{RA}
    v_xor_b32 v{RA + 3}, 96, v{RA}
    s_lshl_b32 s{sBB}, s{sN2}, 7
    """)
    w2_dma_setup(p, CV)
    y_units(p)
    srd(p, S_X, pW2, 1792 * 1024)
    poll_setup(p, f"s_lshl1_add_u32 s{sT0}, s{sV}, s{sT0}\ns_add_u32 s{sT0}, s{sT0}, 4")
    for u in range(fa):
        flag(u)
    p(f"s_setprio {o.get('xprio2', 0)}\ns_barrier")
    p.stamp(10)
    rb = Rebase(RA, 3 * 32768)
    QW = [3, 4, 2, 0, 1, 0, 2]

    def reads(u):
        pre, imm = rb.at(QW[u])
        dst = vB2 + 32 * (u % 4)
        return with_pre(pre, [f"ds_read_b64_tr_b16 {vr(dst + 16 * s + 4 * db + 2 * e, 2)}, v{RA + db} offset:{imm + 4096 * s + 2048 * e}"
                              for s in range(2) for db in range(4) for e in range(2)])
    for u in range(4):
        for x in reads(u):
            p(x)
    for u in range(fa, 2):
        flag(u)
    p("s_waitcnt lgkmcnt(0)")
    if o.get("xs", -2) == -3:
        p("s_barrier")
    poll_issue(p, 0)
    wl = o.get("wl", -1)
    WD = []
    for u in (5, 6):
        sr = sBX if u == 5 else sMX
        p(f"s_lshl_b32 s{sr}, s{sUN + u}, 16\ns_add_u32 s{sr}, s{sr}, s{sBB}")
        for h in range(2):
            for k in range(4):
                def f(u=u, h=h, k=k, sr=sr):
                    if k == 0:
                        p(f"s_add_u32 m0, s{sBUF}, {32768 * QW[u] + 4096 * h}\ns_add_u32 s{sr}, s{sr}, {32768 * h}")
                    p.vmem(f"buffer_load_dwordx4 v{CV + k}, s[{S_X}:{S_X + 3}], s{sr} offen{off(1024 * k)} lds", ("W", u))
                WD.append(f)
    nb = 16 if wl < 0 else o.get("wb", 0)
    for f in WD[:nb]:
        f()
    p(f"s_add_u32 s{sT1}, s{sHID}, {32 * 4096}")
    for i in range(7):
        p(f"s_lshl_b32 s{sUN + i}, s{sUN + i}, 13\ns_add_u32 s{sUN + i}, s{sUN + i}, s{sT1}")
    p.stamp(11)
    pb = o.get("pb", 0)
    xs = o.get("xs", -2)
    if pb == 0:
        poll_check(p, 0)
    if xs == -2:
        p("s_barrier")
    if pb == 1:
        poll_check(p, 0)
    p.stamp(12)
    items = []

    def b2(step):
        return vB2 + 32 * ((step >> 1) % 4) + 16 * (step & 1)
    ts = o.get("ts", 6)
    for step, tb in order(p, 14 - ts):
        items.append((sUN + (step >> 1), step & 1, tb, b2(step), step == 0))
    for tb in range(4):
        for step in range(14 - ts, 14):
            items.append((sUN + (step >> 1), step & 1, tb, b2(step), False))
    pre, post, side = {}, {}, {}
    iB = min(i for i, it in enumerate(items) if it[0] >= sUN + 4)
    use = {u: min(i for i, it in enumerate(items) if it[0] == sUN + u) for u in range(4, 7)}
    pre[iB - o.get('pi', 10)] = lambda: poll_issue(p, 128)
    pre[iB] = lambda: poll_check(p, 128)
    wr = o.get("wr", 1)
    spread(side, WD[nb:], max(wl, 0), wr)
    last_dma = {5: max(wl, 0) + max(0, 7 - nb) // wr if nb < 8 else -99, 6: max(wl, 0) + (15 - nb) // wr if nb < 16 else -99, 4: -99}
    prev_end, ends = 0, []
    for u in range(4, 7):
        R = reads(u)
        if u > 4:
            R = [lambda u=u: p.wait_vm(("W", u))] + R
        a = max(8 * (u - 4) + (8 if o.get('g2', 1) else 5), prev_end, last_dma[u] + o.get("wg", 10))
        lim = use[u] - 1
        per = o.get('rp', 2)
        while True:
            n1 = len(R) - 8
            b = max(8 * (u - 4) + 9, a + -(-n1 // per))
            end = b + -(-8 // per)
            if end <= lim - (6 - u) or per == 8:
                break
            per += 1
        assert end <= lim, (u, a, b, end, lim)
        spread(side, R[:n1], a, per)
        spread(side, R[n1:], b, per)
        ends.append((end, lim))
        prev_end = end
    covered = -1
    for end, lim in ends:
        if end > covered:
            side.setdefault(lim, []).append("s_waitcnt lgkmcnt(0)")
            covered = lim
    pa = max(prev_end, o.get("pa", 32))
    spread(side, partial_addr(), pa, 3)
    assert pa + 3 <= 56 - 3 * ts
    post[o.get("gy", 28)] = lambda: (p.stamp(14), p("s_barrier"))
    post[37] = lambda: p.stamp(15)
    if xs >= 0:
        post[xs] = lambda: p("s_barrier")
    ar = (lambda: p("s_barrier")) if xs == -1 else None
    wp = o.get("wp", 2)
    for tb in range(3):
        i0 = 56 - ts * (3 - tb)
        if o.get("g2", 1):
            side.setdefault(i0, []).extend(["", ""] + pw_list(tb))
            post[i0 + 3] = lambda: p("s_waitcnt lgkmcnt(0)\ns_barrier")
            continue
        if wp == 5:
            Wl = pw_list(tb)
            side.setdefault(i0, []).extend(["", "", Wl[0] + "\n" + Wl[1]])
            side.setdefault(i0 + 1, []).extend([Wl[2], Wl[3]])
            post[i0 + o.get("tb", 2)] = lambda: p("s_waitcnt lgkmcnt(0)\ns_barrier")
            continue
        spread(side, pw_list(tb), i0 + 1, wp)
        post[i0 + 4 // wp + o.get("tb", 1)] = lambda: p("s_waitcnt lgkmcnt(0)\ns_barrier")

    def last():
        p.stamp(13)
        p("s_nop 4")
        partial_write(p, 3)
        p("s_waitcnt lgkmcnt(0)\ns_barrier")
    post[55] = last
    if o.get("dbm"):
        g0 = 56 - ts
        W2 = pw_list(2)
        side[(g0, 0, 4)] = W2[0:1]
        side[(g0, 0, 5)] = W2[1:2]
        side[(g0, 1, 0)] = W2[2:3]
        side[(g0, 1, 1)] = W2[3:4]
        side[(g0, 1, 4)] = ["s_waitcnt lgkmcnt(0)", "s_barrier"]
        ph2_loop(p, items, pre, post, side, o.get('ramp', 5), ar, NR, tail=(g0, ts))
    else:
        ph2_loop(p, items, pre, post, side, o.get('ramp', 5), ar, NR)
    p(f"""
    s_lshl3_add_u32 s{sT0}, s{sN2}, s{sV}
    s_lshl_b32 s{sT0}, s{sT0}, 5
    s_add_u32 s{sT0}, s{sT0}, s{sM2}
    s_cmp_lg_u32 s{sT0}, 31
    s_cbranch_scc1 L_fin
    s_mov_b64 exec, 1
    buffer_store_dword v{vTAG}, off, s[{S_WS}:{S_WS + 3}], 0 sc1
    """)


fA = 142


def fin_regs(p):
    return (48, 56, vT2) if p.opt.get("ef") else (128, 136, 140)


def final_loads(p):
    fX, fS, fD = fin_regs(p)
    A = 64 if p.opt.get("ef") else 148
    srd(p, S_X, pX, 2048 * 1024)
    srd(p, S_W, pOUT, 2048 * 2048)
    p(f"""
    s_lshl2_add_u32 s{sT0}, s{sM2}, s{sV}
    s_lshl_b32 s{sKX}, s{sT0}, 14
    s_lshl_b32 s{sT1}, s{sN2}, 7
    s_add_u32 s{sKX}, s{sKX}, s{sT1}
    s_lshl_b32 s{sT0}, s{sT0}, 7
    s_add_u32 s{sT0}, s{sT0}, {WS_STATS}
    v_lshrrev_b32 v{A}, 4, v{vL}
    v_and_b32 v{A + 1}, 15, v{vL}
    v_lshlrev_b32 v{A + 2}, 3, v{A + 1}
    v_lshl_add_u32 v{A + 3}, v{A}, 10, v{A + 2}
    v_lshlrev_b32 v{A}, 3, v{A}
    v_add_u32 v{A + 2}, s{sT1}, v{A + 2}
    s_mov_b32 s{sKB}, s{sKX}
    """)
    for tb in range(4):
        p.vmem(f"buffer_load_dwordx2 {vr(fX + 2 * tb, 2)}, v{A + 3}, s[{S_X}:{S_X + 3}], s{sKB} offen", "fin")
        p.vmem(f"buffer_load_dword v{fS + tb}, v{A}, s[{S_WS}:{S_WS + 3}], s{sT0} offen{off(32 * tb)} sc1", "fin")
        if tb < 3:
            p(f"s_add_u32 s{sKB}, s{sKB}, 4096")
    p.vmem(f"global_load_dwordx2 {vr(fD, 2)}, v{A + 2}, s[{pD}:{pD + 1}]", "fin")


def final(p):
    XF, SS, DD = 160, 176, 148
    RY, RF = fA + 4, fA + 5
    fX, fS, fD = fin_regs(p)
    p.wait_vm("fin")
    p(f"""
    v_lshrrev_b32 v{fA}, 4, v{vL}
    v_and_b32 v{fA + 1}, 15, v{vL}
    v_lshlrev_b32 v{fA + 3}, 3, v{fA + 1}
    v_lshl_add_u32 v{fA + 3}, v{fA}, 10, v{fA + 3}
    s_lshl_b32 s{sT0}, s{sV}, 2
    v_add_u32 v{RF}, s{sT0}, v{fA}
    v_xor_b32 v{RF}, v{RF}, v{fA + 1}
    v_lshlrev_b32 v{RF}, 4, v{RF}
    v_lshl_add_u32 v{RF}, v{fA + 1}, 8, v{RF}
    v_add_u32 v{RY}, {3 * 32768}, v{RF}
    v_lshlrev_b32 v{fA + 3}, 1, v{fA + 3}
    s_lshl_b32 s{sKX}, s{sKX}, 1
    s_mov_b32 s{sT2}, {LN2}
    v_lshlrev_b32 v{DD}, 16, v{fD}
    v_and_b32 v{DD + 1}, s{sMASK}, v{fD}
    v_lshlrev_b32 v{DD + 2}, 16, v{fD + 1}
    v_and_b32 v{DD + 3}, s{sMASK}, v{fD + 1}
    """)
    for tb in range(4):
        x, s = XF + 4 * tb, SS + 4 * tb
        p(f"""
        v_and_b32 v153, s{sMASK}, v{fS + tb}
        v_rcp_f32 v153, v153
        v_lshlrev_b32 v152, 16, v{fS + tb}
        v_lshlrev_b32 v{x}, 16, v{fX + 2 * tb}
        v_and_b32 v{x + 1}, s{sMASK}, v{fX + 2 * tb}
        v_lshlrev_b32 v{x + 2}, 16, v{fX + 2 * tb + 1}
        v_and_b32 v{x + 3}, s{sMASK}, v{fX + 2 * tb + 1}
        """)
        for k in range(4):
            p(f"v_sub_f32 v{s + k}, v{x + k}, v152")
        for k in range(4):
            p(f"v_mul_f32 v{s + k}, v153, v{s + k}")
    p.stamp(10, 6)
    p("s_waitcnt lgkmcnt(0)\ns_barrier")
    p.stamp(14)
    p.stamp(11, 6)
    Y = 64
    for tb in range(4):
        for w in range(4):
            p(f"ds_read_b128 {vr(Y + 16 * tb + 4 * w, 4)}, v{RY} offset:{8192 * w + 32768 * (tb >> 1) + 4096 * (tb & 1)}")
    for tb in range(4):
        p(f"s_waitcnt lgkmcnt({12 - 4 * tb})")
        y, s = Y + 16 * tb, SS + 4 * tb
        for k in range(4):
            p(f"v_fma_f32 v{s + k}, v{s + k}, v{DD + k}, v{y + k}")
            p(f"v_add_f32 v{y + 4 + k}, v{y + 4 + k}, v{y + 8 + k}")
        for k in range(4):
            p(f"v_add_f32 v{s + k}, v{s + k}, v{y + 12 + k}")
        for k in range(4):
            p(f"v_add_f32 v{s + k}, v{s + k}, v{y + 4 + k}")
        for k in range(4):
            p(f"v_mul_f32 v{s + k}, s{sT2}, v{s + k}")
    fp = p.opt.get("fp", 0)
    deferred = []
    for tb in range(4):
        F = Y + 16 * tb
        x, s = XF + 4 * tb, SS + 4 * tb
        p.stamp(12 + tb, 6)
        p("s_barrier")
        if tb == 3:
            p.stamp(15)
        for w in range(4):
            p(f"ds_read_b128 {vr(F + 4 * w, 4)}, v{RF} offset:{8192 * w + 32768 * (tb >> 1) + 4096 * (tb & 1)}")
        p.l += deferred
        e = F + 4
        if tb < 3:
            p("s_waitcnt lgkmcnt(2)")
            for k in range(4):
                p(f"v_add_f32 v{F + k}, v{F + k}, v{F + 4 + k}")
            p("s_waitcnt lgkmcnt(0)")
            for k in range(4):
                p(f"v_add_f32 v{F + 8 + k}, v{F + 8 + k}, v{F + 12 + k}")
            for k in range(4):
                p(f"v_add_f32 v{F + k}, v{F + k}, v{F + 8 + k}")
            for k in range(4):
                p(f"v_exp_f32_e64 v{e + k}, -v{F + k}")
            for k in range(4):
                p(f"v_mul_f32 v{s + k}, v{s + k}, v{F + k}")
            for k in range(4):
                p(f"v_add_f32 v{e + k}, 1.0, v{e + k}")
            for k in range(4):
                p(f"v_rcp_f32 v{e + k}, v{e + k}")
            p("s_nop 0")
            for k in range(4):
                p(f"v_fmac_f32 v{x + k}, v{s + k}, v{e + k}")
        else:
            p("s_waitcnt lgkmcnt(2)")
            for h in (0, 2):
                p(f"v_pk_add_f32 {vr(F + h, 2)}, {vr(F + h, 2)}, {vr(F + 4 + h, 2)}")
            p("s_waitcnt lgkmcnt(0)")
            for h in (0, 2):
                p(f"v_pk_add_f32 {vr(F + 8 + h, 2)}, {vr(F + 8 + h, 2)}, {vr(F + 12 + h, 2)}")
            for h in (0, 2):
                p(f"v_pk_add_f32 {vr(F + h, 2)}, {vr(F + h, 2)}, {vr(F + 8 + h, 2)}")
            for k in range(4):
                p(f"v_exp_f32_e64 v{e + k}, -v{F + k}")
            for h in (0, 2):
                p(f"v_pk_mul_f32 {vr(s + h, 2)}, {vr(s + h, 2)}, {vr(F + h, 2)}")
            for h in (0, 2):
                p(f"v_pk_add_f32 {vr(e + h, 2)}, {vr(e + h, 2)}, 1.0 op_sel_hi:[1,0]")
            for k in range(4):
                p(f"v_rcp_f32 v{e + k}, v{e + k}")
            for h in (0, 2):
                p(f"v_pk_fma_f32 {vr(x + h, 2)}, {vr(s + h, 2)}, {vr(e + h, 2)}, {vr(x + h, 2)}")
        p(f"buffer_store_dwordx4 {vr(x, 4)}, v{fA + 3}, s[{S_W}:{S_W + 3}], s{sKX} offen {'sc1' if tb < 4 - p.opt.get('op', 0) else p.opt.get('of', '')}")
        if tb < 3:
            p(f"s_add_u32 s{sKX}, s{sKX}, 8192")
            if fp:
                deferred, p.l = p.l[-fp:], p.l[:-fp]


def finish(p):
    p("L_fin:")
    if p.opt.get("stamps"):
        p.stamp(8)
        p("s_waitcnt vmcnt(0)")
        p.stamp(9)
        p.stamp(9, 9)
        if "probe" in p.opt:
            p(f"""
            s_lshl_b32 s{sT0}, 1, s{sW}
            s_and_b32 s{sT0}, s{sT0}, {p.opt.get('pw', 255)}
            s_cmp_eq_u32 s{sT0}, 0
            s_cbranch_scc1 L_end
            s_add_u32 s{sT0}, s{STAMP_REGS[p.opt['probe']]}, 5000
            L_probe:
            s_memrealtime s[34:35]
            s_waitcnt lgkmcnt(0)
            s_sub_u32 s{sT1}, s34, s{sT0}
            s_cmp_lt_i32 s{sT1}, 0
            s_cbranch_scc1 L_probe
            s_branch L_end
            """)
        p(f"""
        s_mov_b64 exec, 1
        s_lshl3_add_u32 s{sT0}, s2, s{sW}
        s_lshl_b32 s{sT0}, s{sT0}, 6
        s_add_u32 s{sT0}, s{sT0}, {WS_STAMP}
        """)
        for i in range(16):
            p(f"v_mov_b32 v8, s{STAMP_REGS[i]}\nbuffer_store_dword v8, off, s[{S_WS}:{S_WS + 3}], s{sT0} offset:{4 * i}")
    p("s_endpgm")
    p.l += p.ool
    p("L_end:\ns_endpgm")


def build(opt):
    global WS_HID
    WS_HID = opt.get("hid", 2) << 20
    p = P(opt)
    entry(p)
    st0 = p.save()
    y_prologue(p)
    y_pass_s(p)
    y_window(p)
    st = y_pass_m(p)
    y_ph2(p, st)
    p.restore(st0)
    x_pass_s(p)
    x_pass_m(p)
    x_epilogue(p)
    finish(p)
    L = p.l
    iy, ix0, ix1 = L.index("@YCUT"), L.index("L_X:"), L.index("@XCUT")
    if opt.get("lay", 1):
        L = L[:iy] + ["    s_branch L_Y2"] + L[ix0:ix1] + ["    s_branch L_X2", "L_Y2:"] + L[iy + 1:ix0] + ["L_X2:"] + L[ix1 + 1:]
    else:
        L = [x for x in L if not x.startswith("@")]
    p.l = L
    t = HEAD + f"; @launch grid=(256,1,1) block=(512,1,1) lds={LDS_BYTES}\n" + '.amdgcn_target "amdgcn-amd-amdhsa--gfx950"\n'
    t += kernel_text(KN + "_kernel", p.text(), vgpr=256, sgpr=102, accum=256)
    return t


if __name__ == "__main__":
    out = sys.argv[1]
    opt = {}
    for a in sys.argv[2:]:
        k, v = a.split("=")
        opt[k] = int(v) if v.lstrip("-").isdigit() else v
    open(out, "w").write(build(opt))
```

```python
import sys
from gen import HEAD, KN, kernel_text

WS_STATS = 4096
WS_CARRY = 64 << 10
WS_FLAGS = 1 << 20
WS_HID = 2 << 20
WS_STAMP = 200 << 20
WS_BYTES = 0x10000000
MISC, XR, BR, WR, CR, PKR = 0, 8192, 139264, 8192, 0, 65536
L_M, L_R, L_MS, L_EXT, L_S = MISC, MISC + 512, MISC + 1024, MISC + 2048, MISC + 3072
LDS_BYTES = 163840
LOG2E = 0x3fb8aa3b
LN2 = 0x3f317218

S_X, S_B, S_W, S_WS = 4, 8, 12, 16
sT0, sT1, sT2, sT3 = 20, 21, 22, 23
sW, sXCD, sJ, sMT, sNT, sL0, sC0, sM2, sN2, sV = 24, 25, 26, 27, 28, 29, 30, 31, 32, 33
pX, pLRE, pLIM, pBRE, pBIM, pCRE, pCIM, pDT, pD, pW1, pB1, pW2, pOUT, pWS = 36, 38, 40, 42, 44, 46, 48, 50, 52, 56, 58, 60, 62, 66
sKX, sKB, sKW, sBX, sBB, sBW, sMX, sMB, sMASK, sSPIN = 68, 69, 70, 71, 72, 73, 74, 75, 76, 77
sUN = 78
sBUF, sHID, sFLG, sCI, sMH, sMW, sG0 = 85, 86, 87, 88, 89, 90, 91
STAMP_REGS = list(range(92, 102)) + [3, 54, 55, 64, 65, 0]
SPIN_MAX = 400000
NAMES_Y = ["-", "stpub", "G0", "Send", "G8", "G17", "gath", "hst", "fin", "end", "GC", "wiss", "flh", "ydone", "Gy", "T3"]
NAMES_X = ["-", "dma0", "c0", "w1iss", "G8", "Mend", "mish", "flB", "-", "end", "GC", "staged", "go", "lastmf", "gy", "i37"]
ORD = [0, 1, 2, 3, 4, 5, 6, 7, 10, 11, 12, 14, 15, 13, 8, 9]


class P:
    def __init__(self, opt):
        self.l = []
        self.vm = []
        self.done = -1
        self.opt = opt
        self.nlab = 0
        self.ool = []
        self.fs = opt.get("fs", 128)

    def __call__(self, s):
        for x in s.strip("\n").split("\n"):
            x = x.strip()
            if not x:
                continue
            self.l.append(x if x.endswith(":") else "    " + x)

    def vmem(self, s, tag=None):
        self(s)
        self.vm.append(tag)

    def last(self, tag):
        return max(i for i, t in enumerate(self.vm) if t == tag)

    def wait_vm(self, tag):
        idx = self.last(tag)
        if idx <= self.done:
            return
        n = len(self.vm) - 1 - idx
        assert n <= 63, n
        self(f"s_waitcnt vmcnt({n})")
        self.done = idx

    def save(self):
        return (list(self.vm), self.done)

    def restore(self, st):
        self.vm, self.done = list(st[0]), st[1]

    def label(self, base):
        self.nlab += 1
        return f"L_{base}_{self.nlab}"

    def stamp(self, i, group=0):
        if self.opt.get("stamps") and self.opt.get("sg", 0) == group:
            op = "s_memtime" if self.opt["stamps"] == 2 else "s_memrealtime"
            self(f"{op} s[34:35]\ns_waitcnt lgkmcnt(0)\ns_mov_b32 s{STAMP_REGS[i]}, s34")

    def nt(self, key, c=0):
        return " nt" if c < self.opt.get(key, 0) else ""

    def raw(self, i):
        if self.opt.get("stamps") and self.opt.get("sg", 0) == 4:
            self(f"s_memrealtime s[{92 + 2 * i}:{93 + 2 * i}]")

    def text(self):
        return "\n".join(self.l) + "\n"


def vr(a, n=1):
    return f"v{a}" if n == 1 else f"v[{a}:{a + n - 1}]"


def off(o):
    return f" offset:{o}" if o else ""


def srd(p, d, ptr, nbytes):
    p(f"""
    s_mov_b32 s{d}, s{ptr}
    s_mov_b32 s{d + 1}, s{ptr + 1}
    s_mov_b32 s{d + 2}, {nbytes}
    s_mov_b32 s{d + 3}, 0x00020000
    """)


def mfma(d, a, b, first=False):
    return f"v_mfma_f32_16x16x32_bf16 {vr(d, 4)}, {vr(a, 4)}, {vr(b, 4)}, {'0' if first else vr(d, 4)}"


def mfma16(d, a, b, first=False):
    return f"v_mfma_f32_16x16x16_bf16 {vr(d, 4)}, {vr(a, 2)}, {vr(b, 2)}, {'0' if first else vr(d, 4)}"


vL, vTAG, vT0, vT1, vT2, vT3, vL16, vL16B = 0, 1, 2, 3, 4, 5, 6, 7


def rowfrag_addr(p, dst):
    p(f"""
    v_and_b32 v{vT0}, 15, v{vL}
    v_bfe_u32 v{vT1}, v{vL}, 1, 3
    v_lshrrev_b32 v{vT2}, 4, v{vL}
    v_xor_b32 v{vT1}, v{vT1}, v{vT2}
    v_lshlrev_b32 v{vT1}, 4, v{vT1}
    v_lshl_add_u32 v{dst}, v{vT0}, 7, v{vT1}
    """)


def w1_tr_addr0(p, dst):
    p(f"""
    v_lshrrev_b32 v{vT0}, 4, v{vL}
    v_bfe_u32 v{vT1}, v{vL}, 2, 2
    v_lshl_add_u32 v{vT2}, v{vT0}, 3, v{vT1}
    v_lshlrev_b32 v{vT2}, 8, v{vT2}
    v_lshl_add_u32 v{vT2}, v{vT1}, 6, v{vT2}
    v_and_b32 v{vT0}, 1, v{vT0}
    v_lshl_add_u32 v{vT2}, v{vT0}, 5, v{vT2}
    v_and_b32 v{vT1}, 3, v{vL}
    v_lshl_add_u32 v{vT2}, v{vT1}, 3, v{vT2}
    v_add_u32 v{dst}, {WR}, v{vT2}
    """)


def w1_dma_setup(p, vow):
    p(f"""
    v_lshrrev_b32 v{vT0}, 4, v{vL}
    v_bfe_u32 v{vT1}, v{vL}, 1, 3
    s_and_b32 s{sT0}, s{sV}, 1
    v_lshl_or_b32 v{vT2}, v{vT0}, 1, s{sT0}
    v_xor_b32 v{vT1}, v{vT1}, v{vT2}
    v_mul_u32_u24 v{vow}, 3584, v{vT0}
    v_lshl_add_u32 v{vow}, v{vT1}, 5, v{vow}
    v_and_b32 v{vT2}, 1, v{vL}
    v_lshl_add_u32 v{vow}, v{vT2}, 4, v{vow}
    s_and_b32 s{sT1}, s{sNT}, 3
    s_cmp_eq_u32 s{sT1}, 3
    s_cselect_b32 s{sT1}, 0x40000000, 0
    v_lshrrev_b32 v{vT1}, 2, v{vT1}
    v_mul_lo_u32 v{vT1}, v{vT1}, s{sT1}
    v_add_u32 v{vow}, v{vow}, v{vT1}
    v_add_u32 v{vow + 1}, 13312, v{vow}
    s_lshl_b32 s{sBW}, s{sL0}, 7
    s_mul_i32 s{sT2}, s{sV}, {8 * 3584}
    s_add_u32 s{sBW}, s{sBW}, s{sT2}
    s_lshl_b32 s{sMW}, s{sV}, 11
    """)


def w1_dma(p, c, vow):
    L = []
    for s in range(2):
        slot = (2 * c + s) % 7

        def a(s=s, slot=slot):
            if s == 0:
                p(f"""
                s_add_u32 s{sT0}, s{sC0}, {c}
                s_and_b32 s{sT0}, s{sT0}, 7
                s_mul_i32 s{sT0}, s{sT0}, {64 * 3584}
                s_add_u32 m0, s{sMW}, {WR + slot * 8192}
                s_add_u32 s{sKW}, s{sBW}, s{sT0}
                """)
            else:
                p(f"s_add_u32 m0, s{sMW}, {WR + slot * 8192}\ns_add_u32 s{sKW}, s{sKW}, {32 * 3584}")
            p.vmem(f"buffer_load_dwordx4 v{vow}, s[{S_W}:{S_W + 3}], s{sKW} offen{p.nt('ntw', c)} lds", ("w", c))
        L.append(a)
        L.append(lambda: p.vmem(f"buffer_load_dwordx4 v{vow + 1}, s[{S_W}:{S_W + 3}], s{sKW} offen offset:1024{p.nt('ntw', c)} lds", ("w", c)))
    return L


def c_dma_setup(p, vo):
    p(f"""
    v_lshrrev_b32 v{vT0}, 4, v{vL}
    v_and_b32 v{vT1}, 7, v{vL}
    v_xor_b32 v{vT0}, v{vT0}, v{vT1}
    v_lshlrev_b32 v{vT0}, 4, v{vT0}
    v_lshrrev_b32 v{vT1}, 3, v{vL}
    v_lshl_add_u32 v{vo}, v{vT1}, 10, v{vT0}
    v_xor_b32 v{vo + 1}, 64, v{vo}
    v_add_u32 v{vo + 1}, 7168, v{vo + 1}
    v_add_u32 v{vo + 2}, 14336, v{vo}
    v_add_u32 v{vo + 3}, 14336, v{vo + 1}
    """)


def make_tag(p):
    p(f"""
    s_mov_b32 s{sT0}, 0x9E3779B1
    v_mul_lo_u32 v{vTAG}, v{vTAG}, s{sT0}
    v_add_u32 v{vTAG}, 0x7F4A7C15, v{vTAG}
    """)


def retry(p, cond, test, reload):
    chk, ok, rt = p.label("chk"), p.label("ok"), p.label("retry")
    p(f"{chk}:")
    test()
    p(f"{cond} {rt}\n{ok}:")
    main, p.l = p.l, []
    p(f"""
    {rt}:
    s_sub_u32 s{sSPIN}, s{sSPIN}, 1
    s_cmp_gt_i32 s{sSPIN}, 0
    s_cbranch_scc0 {ok}
    """)
    reload()
    p(f"s_branch {chk}")
    p.ool += p.l
    p.l = main


sPF = 8


def poll_setup(p, grp_expr):
    p(f"""
    s_mul_i32 s{sT0}, s{sM2}, 12
    {grp_expr}
    s_lshl_b32 s{sT0}, s{sT0}, 7
    s_add_u32 s{sT0}, s{sT0}, {WS_FLAGS}
    s_add_u32 s42, s{pWS}, s{sT0}
    s_addc_u32 s43, s{pWS + 1}, 0
    v_readfirstlane_b32 s40, v{vTAG}
    v_readfirstlane_b32 s41, v{vTAG}
    """)


def poll_issue(p, o_, sPF=sPF):
    p(f"s_load_dwordx8 s[{sPF}:{sPF + 7}], s[42:43], {o_} glc")


def poll_check(p, o_, sPF=sPF):
    def test():
        p("s_waitcnt lgkmcnt(0)")
        for k in range(0, 8, 2):
            p(f"s_xor_b64 s[{sPF + k}:{sPF + k + 1}], s[{sPF + k}:{sPF + k + 1}], s[40:41]")
        p(f"""
        s_or_b64 s[{sPF}:{sPF + 1}], s[{sPF}:{sPF + 1}], s[{sPF + 2}:{sPF + 3}]
        s_or_b64 s[{sPF + 4}:{sPF + 5}], s[{sPF + 4}:{sPF + 5}], s[{sPF + 6}:{sPF + 7}]
        s_or_b64 s[{sPF}:{sPF + 1}], s[{sPF}:{sPF + 1}], s[{sPF + 4}:{sPF + 5}]
        """)
    retry(p, "s_cbranch_scc1", test, lambda: poll_issue(p, o_, sPF))


def delay_until(p, us):
    assert p.opt.get("stamps")
    lab = p.label("dly")
    p(f"""
    s_waitcnt vmcnt(0)
    s_add_u32 s{sT0}, s100, {int(us * 100)}
    {lab}:
    s_memrealtime s[34:35]
    s_waitcnt lgkmcnt(0)
    s_sub_u32 s{sT1}, s34, s{sT0}
    s_cmp_lt_i32 s{sT1}, 0
    s_cbranch_scc1 {lab}
    """)


def flag_store(p, sreg, add):
    p(f"s_add_u32 s{sT0}, s{sreg}, {add}\ns_mov_b64 exec, 1")
    p.vmem(f"buffer_store_dword v{vTAG}, off, s[{S_WS}:{S_WS + 3}], s{sT0} sc1", "flag")
    p("s_mov_b64 exec, -1")


def cmul(p, d, a, b, add=None):
    if add is None:
        p(f"v_pk_mul_f32 {vr(d, 2)}, {vr(a, 2)}, {vr(b, 2)} op_sel_hi:[0,1]")
    else:
        p(f"v_pk_fma_f32 {vr(d, 2)}, {vr(a, 2)}, {vr(b, 2)}, {vr(add, 2)} op_sel_hi:[0,1,1]")
    p(f"v_pk_fma_f32 {vr(d, 2)}, {vr(a, 2)}, {vr(b, 2)}, {vr(d, 2)} op_sel:[1,1,0] op_sel_hi:[1,0,1] neg_lo:[0,1,0]")


def entry(p):
    o = p.opt
    p(f"""
    s_load_dwordx16 s[36:51], s[0:1], 0
    s_load_dwordx16 s[52:67], s[0:1], 64
    s_getpc_b64 s[34:35]
    L_pc:
    s_cmp_ge_u32 s2, 256
    s_cbranch_scc1 L_end
    v_lshrrev_b32 v{vT0}, 6, v0
    s_lshr_b32 s{sJ}, s2, 3
    v_and_b32 v{vL}, 63, v0
    v_readfirstlane_b32 s{sW}, v{vT0}
    v_lshl_add_u32 v{vT0}, s{sJ}, 3, v{vT0}
    v_lshlrev_b32 v{vT0}, 7, v{vT0}
    v_min_u32 v{vT0}, L_end-L_pc, v{vT0}
    """)
    p.vmem(f"global_load_dword v255, v{vT0}, s[34:35]", "pf")
    if o.get("stamps"):
        p(("s_memtime" if o["stamps"] == 2 else "s_memrealtime") + " s[92:93]")
        if o.get("sg", 0) != 4:
            p("s_memrealtime s[100:101]")
    p(f"s_and_b32 s{sXCD}, s2, 7")
    if o.get("part", 24) == 24:
        p(f"""
        s_and_b32 s{sT0}, s{sJ}, 7
        s_lshr_b32 s{sT1}, s{sJ}, 3
        s_lshr_b32 s{sMT}, s{sXCD}, 2
        s_lshl3_add_u32 s{sMT}, s{sMT}, s{sT0}
        s_and_b32 s{sT2}, s{sXCD}, 3
        s_lshl2_add_u32 s{sNT}, s{sT2}, s{sT1}
        """)
    else:
        p(f"""
        s_and_b32 s{sT0}, s{sJ}, 3
        s_lshr_b32 s{sT1}, s{sJ}, 2
        s_lshr_b32 s{sMT}, s{sXCD}, 1
        s_lshl2_add_u32 s{sMT}, s{sMT}, s{sT0}
        s_and_b32 s{sT2}, s{sXCD}, 1
        s_lshl3_add_u32 s{sNT}, s{sT2}, s{sT1}
        """)
    rm, rn, rx, ry = o.get("rm", 1), o.get("rn", 2), o.get("rx", 1), o.get("ry", 0)
    p(f"""
    s_mul_i32 s{sC0}, s{sT0}, {rm}
    s_mul_i32 s{sT1}, s{sT1}, {rn}
    s_add_u32 s{sC0}, s{sC0}, s{sT1}
    s_mul_i32 s{sT1}, s{sXCD}, {rx}
    s_add_u32 s{sC0}, s{sC0}, s{sT1}
    """)
    if ry:
        p(f"s_lshr_b32 s{sT1}, s{sXCD}, 2\ns_mul_i32 s{sT1}, s{sT1}, {ry}\ns_add_u32 s{sC0}, s{sC0}, s{sT1}")
    p(f"""
    s_and_b32 s{sV}, s{sW}, 3
    s_lshr_b32 s{sMH}, s{sV}, 1
    s_cmp_ge_u32 s{sW}, 4
    s_cbranch_scc1 L_X
    """)


def late_ids(p):
    p(f"""
    s_lshr_b32 s{sT0}, s{sNT}, 2
    s_lshl_b32 s{sL0}, s{sNT}, 1
    s_sub_u32 s{sL0}, s{sL0}, s{sT0}
    """)
    if p.opt.get("part2", 81) == 81:
        p(f"""
        s_and_b32 s{sFLG}, s{sJ}, 3
        s_lshl2_add_u32 s{sM2}, s{sXCD}, s{sFLG}
        s_lshr_b32 s{sN2}, s{sJ}, 2
        s_xor_b32 s{sN2}, s{sN2}, {p.opt.get('nx', 5)}
        """)
    else:
        p(f"""
        s_and_b32 s{sFLG}, s{sJ}, 7
        s_lshr_b32 s{sT0}, s{sXCD}, 1
        s_lshl3_add_u32 s{sM2}, s{sT0}, s{sFLG}
        s_and_b32 s{sT0}, s{sXCD}, 1
        s_lshr_b32 s{sN2}, s{sJ}, 3
        s_lshl2_add_u32 s{sN2}, s{sT0}, s{sN2}
        """)
    p(f"""
    s_mov_b32 s{sSPIN}, {SPIN_MAX}
    s_lshl1_add_u32 s{sCI}, s{sMT}, s{sMH}
    s_mov_b32 s{sMASK}, 0xffff0000
    s_mul_i32 s{sFLG}, s{sFLG}, {p.opt.get('rs2', 0)}
    s_mul_i32 s{sT0}, s{sXCD}, {p.opt.get('rx2', 1)}
    s_add_u32 s{sFLG}, s{sFLG}, s{sT0}
    s_add_u32 s{sG0}, s{sFLG}, {('s%d' % sN2) if p.opt.get('rot2', 1) else 0}
    s_and_b32 s{sG0}, s{sG0}, 1
    s_mul_i32 s{sHID}, s{sM2}, {352 * 1024}
    s_add_u32 s{sHID}, s{sHID}, {WS_HID}
    v_lshlrev_b32 v{vL16}, 4, v{vL}
    v_add_u32 v{vL16B}, 4096, v{vL16}
    """)


vRING, NRING, vACC2, vB2 = 8, 12, 64, 128
vPW = 60


def ph2_loop(p, items, hooks_pre, hooks_post, side, ramp, after_ramp=None, NRING=NRING, depth=None, tail=None):
    n = len(items)

    def load(g):
        if g in hooks_pre:
            hooks_pre[g]()
        sreg, second, tb, _, _ = items[g]
        r = vRING + 4 * (g % NRING)
        p.vmem(f"buffer_load_dwordx4 {vr(r, 4)}, v{vL16B if second else vL16}, s[{S_WS}:{S_WS + 3}], s{sreg} offen{off(1024 * (tb ^ second))} sc1", ("a", g))
    depth = depth or p.opt.get("depth", 10)
    assert depth < NRING
    issued = 0
    for g in range(ramp):
        load(g)
        issued += 1
    if after_ramp:
        after_ramp()
    p.stamp(1, 6)
    nreg = n if tail is None else tail[0]
    if p.opt.get("g2", 1):
        for g in range(0, nreg, 2):
            tb = items[g][2]
            assert items[g + 1][2] == tb
            sd = side.get(g, []) + side.get(g + 1, [])
            for i in range(8):
                db, k = divmod(i, 2)
                if db == 0:
                    p.wait_vm(("a", g + k))
                p(mfma(vACC2 + 16 * tb + 4 * db, items[g + k][3] + 4 * db, vRING + 4 * ((g + k) % NRING), items[g + k][4]))
                if k == 1 and issued < n and issued <= g + depth + (db >= 2):
                    assert issued - NRING < g
                    load(issued)
                    issued += 1
                elif i >= 2:
                    m = -(-len(sd) // (8 - i))
                    for x in sd[:m]:
                        x() if callable(x) else p(x)
                    sd = sd[m:]
            for x in sd:
                x() if callable(x) else p(x)
            for k in range(2):
                if g + k in hooks_post:
                    hooks_post[g + k]()
            if g % 4 == 2:
                p.stamp(2 + g // 4, 6)
    for g in range(0 if p.opt.get("g2", 1) else nreg):
        _, _, tb, b2, first = items[g]
        p.wait_vm(("a", g))
        r = vRING + 4 * (g % NRING)
        sd = side.get(g, [])
        for db in range(4):
            p(mfma(vACC2 + 16 * tb + 4 * db, b2 + 4 * db, r, first))
            if db in (0, 2) and issued < n and issued <= g + depth:
                load(issued)
                issued += 1
            if db >= 1:
                k = -(-len(sd) // (4 - db))
                for x in sd[:k]:
                    x() if callable(x) else p(x)
                sd = sd[k:]
        if g in hooks_post:
            hooks_post[g]()
        if g % 4 == 3:
            p.stamp(2 + g // 4, 6)
    if tail is None:
        return
    _, ts = tail
    pend = None
    for g0 in range(nreg, n, ts):
        tb = items[g0][2]
        W = pw_list(tb)
        for db in range(4):
            for k in range(ts):
                g = g0 + k
                if db == 0:
                    p.wait_vm(("a", g))
                p(mfma(vACC2 + 16 * tb + 4 * db, items[g][3] + 4 * db, vRING + 4 * (g % NRING), False))
                free = g if db == 3 else g0 - 1
                if (k & 1 or db == 3) and issued < n and issued - NRING < free:
                    load(issued)
                    issued += 1
                if k == ts - 1 and pend is not None:
                    p("s_nop 1" if db else "s_nop 0")
                    p(pend)
                    pend = None
                if db == 1 and k == 2 and g0 > nreg:
                    p("s_waitcnt lgkmcnt(0)\ns_barrier")
                for x in side.get((g0, db, k), []):
                    p(x)
            pend = W[db]
    p.stamp(13)
    p("s_nop 7")
    p(pend)
    p("s_waitcnt lgkmcnt(0)\ns_barrier")


def order(p, nsteps):
    if p.opt.get("g2", 1):
        return [(2 * u + s, tb) for u in range(nsteps // 2) for tb in range(4) for s in range(2)]
    return [(step, tb) for step in range(nsteps) for tb in range(4)]


def spread(side, L, start, per):
    for i in range(0, len(L), per):
        side.setdefault(start + i // per, []).extend(L[i:i + per])


def partial_addr():
    return f"""v_lshrrev_b32 v{vT0}, 4, v{vL}
    v_and_b32 v{vT1}, 15, v{vL}
    v_xor_b32 v{vT1}, v{vT1}, v{vT0}
    v_lshlrev_b32 v{vT1}, 4, v{vT1}
    v_lshl_add_u32 v{vT1}, v{vT0}, 8, v{vT1}
    v_add_u32 v{vPW}, s{sBUF}, v{vT1}
    v_xor_b32 v{vPW + 1}, 64, v{vPW}
    v_xor_b32 v{vPW + 2}, 128, v{vPW}
    v_xor_b32 v{vPW + 3}, 192, v{vPW}""".split("\n")


def pw_list(tb):
    o_ = 32768 * (tb >> 1) + 4096 * (tb & 1)
    return [f"ds_write_b128 v{vPW + db}, {vr(vACC2 + 16 * tb + 4 * db, 4)} offset:{o_ + 1024 * db}" for db in range(4)]


def partial_write(p, tb):
    for x in pw_list(tb):
        p(x)


yAX, yAB, yAS = 248, 250, 252
yOW = 8
yCW, yR2 = 14, 60
yC, yL, yL16, yQ16, yQ64, yL256, yPQ = 16, 18, 20, 22, 24, 26, 28
yONE, yB1, ySEL = 32, 30, 36
yCS = 40
yCF = 96
yRE, yIM = 64, 80
yFR = 128
yM, yR = 176, 192
yGD = 96
yTA, yTB, yG0, yG1 = 48, 50, 52, 54
yL64, yQM, yGD2, yGA, yNL, ySA = 30, 126, 96, 118, 38, 122


def half_reduce(p, a, t):
    for r in (8, 4, 2, 1):
        p(f"s_nop 1\nv_add_f32_dpp v{a}, v{a}, v{a} row_ror:{r} row_mask:0xf bank_mask:0xf")
    p(f"""
    v_mov_b32 v{t}, v{a}
    s_nop 1
    v_permlane16_swap_b32 v{a}, v{t}
    s_nop 1
    v_add_f32 v{a}, v{a}, v{t}
    """)


def y_prologue(p):
    D = 208
    PR = 244
    p.raw(1)
    p(f"""
    v_and_b32 v{vT0}, 31, v{vL}
    v_lshrrev_b32 v{vT1}, 5, v{vL}
    v_lshlrev_b32 v{vT2}, 4, v{vT0}
    v_lshl_add_u32 v{vT2}, v{vT1}, 10, v{vT2}
    s_lshl4_add_u32 s{sT0}, s{sMT}, s{sNT}
    s_lshl2_add_u32 s{sT0}, s{sT0}, s{sW}
    s_lshl_b32 s{sKX}, s{sT0}, 11
    s_lshl_b32 s{sKB}, s{sT0}, 4
    s_waitcnt lgkmcnt(0)
    """)
    srd(p, S_X, pX, 2048 * 1024)
    p.vmem(f"buffer_load_dwordx4 {vr(D, 4)}, v{vT2}, s[{S_X}:{S_X + 3}], s{sKX} offen{p.nt('ntr')}", "xr")
    p.vmem(f"buffer_load_dwordx4 {vr(D + 4, 4)}, v{vT2}, s[{S_X}:{S_X + 3}], s{sKX} offen offset:512{p.nt('ntr')}", "xr")
    p.raw(2)
    srd(p, S_WS, pWS, WS_BYTES)
    p.vmem(f"buffer_load_dword v{vTAG}, off, s[{S_WS}:{S_WS + 3}], 0 sc1", "xr")
    p.l.append("@YCUT")
    late_ids(p)
    p(f"""
    s_add_u32 s{sKB}, s{sKB}, {WS_STATS}
    v_and_b32 v{vT0}, 15, v{vL}
    s_and_b32 s{sT1}, s{sV}, 1
    s_lshl1_add_u32 s{sT0}, s{sNT}, s{sT1}
    s_lshl_b32 s{sT0}, s{sT0}, 4
    v_add_lshl_u32 v{vT2}, v{vT0}, s{sT0}, 1
    """)
    p.vmem(f"global_load_ushort v{PR}, v{vT2}, s[{pLRE}:{pLRE + 1}]", "par")
    p.vmem(f"global_load_ushort v{PR + 1}, v{vT2}, s[{pLIM}:{pLIM + 1}]", "par")
    p.vmem(f"global_load_ushort v{PR + 2}, v{vT2}, s[{pDT}:{pDT + 1}]", "par")
    if p.opt.get("dt", 1):
        p(f"s_lshl_b32 s{sT0}, s{sN2}, 7\nv_mov_b32 v{vT2}, s{sT0}")
        p.vmem(f"global_load_dword v254, v{vT2}, s[{pD}:{pD + 1}]", "par")
    if p.opt.get("pt", 1) == 2:
        p(f"""
        s_mul_i32 s{sT0}, s{sCI}, 12
        s_lshr_b32 s{sT2}, s{sNT}, 2
        s_add_u32 s{sT0}, s{sT0}, s{sT2}
        s_add_u32 s{sT0}, s{sT0}, {WS_FLAGS // 128}
        s_add_u32 s{sT2}, s{sT2}, s{sT0}
        s_add_u32 s{sT2}, s{sT2}, 2
        s_lshl_b32 s{sT0}, s{sT0}, 7
        v_add_lshl_u32 v{vT2}, v{vL}, s{sT2}, 7
        s_mov_b64 exec, 2
        v_mov_b32 v{vT2}, s{sT0}
        s_mov_b64 exec, 1
        v_mov_b32 v{vT2}, s{sKB}
        s_mov_b64 exec, 15
        """)
        p.vmem(f"buffer_load_dword v254, v{vT2}, s[{S_WS}:{S_WS + 3}], 0 offen", "par")
        p("s_mov_b64 exec, -1")
    tw = p.opt.get("tw", 0)
    if tw:
        p(f"""
        s_mul_i32 s{sT0}, s{sCI}, {352 * 1024}
        s_add_u32 s{sT0}, s{sT0}, {WS_HID}
        s_cmp_eq_u32 s{sT1}, 0
        s_cselect_b32 s{sT0}, s{sT0}, s{sHID}
        v_mul_u32_u24 v{vT2}, {352 * 1024 // (tw & 15) - 128}, v{vL}
        s_mov_b64 exec, {(2 << (tw & 15)) - 1}
        """)
        p.vmem(f"buffer_load_dword v254, v{vT2}, s[{S_WS}:{S_WS + 3}], s{sT0} offen", "par")
        if tw & 16:
            p(f"""
            s_lshl2_add_u32 s{sT0}, s{sM2}, s{sV}
            s_lshl_b32 s{sT0}, s{sT0}, 15
            v_mov_b32 v{vT2}, s{sT0}
            s_mov_b64 exec, 1
            """)
            p.vmem(f"global_load_dword v254, v{vT2}, s[{pOUT}:{pOUT + 1}]", "par")
        p("s_mov_b64 exec, -1")
    rowfrag_addr(p, yAX)
    p(f"""
    s_lshl_b32 s{sT0}, s{sT1}, 11
    s_add_u32 s{sT0}, s{sT0}, {BR}
    v_add_u32 v{yAB}, s{sT0}, v{yAX}
    s_lshl_b32 s{sT0}, s{sMH}, 13
    s_add_u32 s{sT0}, s{sT0}, {XR}
    v_add_u32 v{yAX}, s{sT0}, v{yAX}
    v_xor_b32 v{yAX + 1}, 64, v{yAX}
    v_xor_b32 v{yAB + 1}, 64, v{yAB}
    """)
    for k in range(4):
        p(f"v_mov_b32 v{yONE + k}, 0x3f803f80")
    p(f"""
    v_and_b32 v{vT0}, 15, v{vL}
    v_lshrrev_b32 v{vT1}, 4, v{vL}
    v_lshlrev_b32 v{vT1}, 2, v{vT1}
    v_sub_u32 v{vT0}, v{vT0}, v{vT1}
    v_mov_b32 v{vT1}, 0x3f80
    v_mov_b32 v{vT2}, 0x3f800000
    """)
    for dw in range(2):
        p(f"""
        v_cmp_eq_u32 vcc, {2 * dw}, v{vT0}
        v_cmp_eq_u32 s[{sT0}:{sT1}], {2 * dw + 1}, v{vT0}
        s_nop 0
        v_cndmask_b32 v{ySEL + dw}, 0, v{vT1}, vcc
        v_cndmask_b32 v{ySEL + dw}, v{ySEL + dw}, v{vT2}, s[{sT0}:{sT1}]
        """)
    p(f"""
    v_lshrrev_b32 v{vT1}, 4, v{vL}
    s_lshl_b32 s{sT0}, s{sMH}, 8
    s_add_u32 s{sT0}, s{sT0}, {L_M}
    v_lshl_add_u32 v{yAS}, v{vT1}, 6, s{sT0}
    """)
    y_m_setup(p)
    if p.opt.get("pt", 1) == 1:
        p(f"""
        s_add_u32 s38, s{pWS}, s{sKB}
        s_addc_u32 s39, s{pWS + 1}, 0
        s_load_dword s58, s[38:39], 0 {'glc' if p.opt.get('ptg', 1) else ''}
        s_mul_i32 s{sT0}, s{sCI}, 12
        s_lshr_b32 s{sT1}, s{sNT}, 2
        s_add_u32 s{sT0}, s{sT0}, s{sT1}
        s_lshl_b32 s{sT0}, s{sT0}, 7
        s_add_u32 s{sT0}, s{sT0}, {WS_FLAGS}
        s_add_u32 s38, s{pWS}, s{sT0}
        s_addc_u32 s39, s{pWS + 1}, 0
        s_load_dword s58, s[38:39], 0 {'glc' if p.opt.get('ptg', 1) else ''}
        """)
    p.raw(3)
    if not p.opt.get("sd"):
        y_stats(p)


def y_stats(p):
    D = 208
    p.wait_vm("xr")
    p.raw(4)
    make_tag(p)
    F = D + 8
    for k in range(8):
        p(f"v_lshlrev_b32 v{F + 2 * k}, 16, v{D + k}\nv_and_b32 v{F + 2 * k + 1}, s{sMASK}, v{D + k}")
    A = D + 24
    p(f"v_pk_add_f32 {vr(A, 2)}, {vr(F, 2)}, {vr(F + 2, 2)}")
    for k in range(2, 8):
        p(f"v_pk_add_f32 {vr(A, 2)}, {vr(A, 2)}, {vr(F + 2 * k, 2)}")
    p(f"v_add_f32 v{A}, v{A}, v{A + 1}")
    half_reduce(p, A, A + 1)
    p(f"v_mul_f32 v{A}, 0x3b000000, v{A}")
    for k in range(8):
        p(f"v_pk_add_f32 {vr(F + 2 * k, 2)}, {vr(F + 2 * k, 2)}, {vr(A, 2)} op_sel_hi:[1,0] neg_lo:[0,1] neg_hi:[0,1]")
    p(f"v_pk_mul_f32 {vr(A + 2, 2)}, {vr(F, 2)}, {vr(F, 2)}")
    for k in range(1, 8):
        p(f"v_pk_fma_f32 {vr(A + 2, 2)}, {vr(F + 2 * k, 2)}, {vr(F + 2 * k, 2)}, {vr(A + 2, 2)}")
    p(f"v_add_f32 v{A + 2}, v{A + 2}, v{A + 3}")
    half_reduce(p, A + 2, A + 3)
    p(f"""
    v_mul_f32 v{A + 2}, 0x3b000000, v{A + 2}
    v_cvt_pk_bf16_f32 v{A + 2}, v{A + 2}, v{A + 2}
    v_and_b32 v{A + 2}, s{sMASK}, v{A + 2}
    v_add_f32 v{A + 2}, 0x3727c5ac, v{A + 2}
    v_cvt_pk_bf16_f32 v{A + 2}, v{A + 2}, v{A + 2}
    v_and_b32 v{A + 2}, s{sMASK}, v{A + 2}
    v_sqrt_f32 v{A + 2}, v{A + 2}
    v_lshrrev_b32 v{vT1}, 5, v{vL}
    v_cvt_pk_bf16_f32 v{A}, v{A}, v{A + 2}
    v_mov_b32 v{A + 1}, v{vTAG}
    v_lshlrev_b32 v{vT1}, 3, v{vT1}
    s_mov_b32 exec_lo, 1
    s_mov_b32 exec_hi, 1
    """)
    p.vmem(f"buffer_store_dwordx2 {vr(A, 2)}, v{vT1}, s[{S_WS}:{S_WS + 3}], s{sKB} offen sc1", "stst")
    p("s_mov_b64 exec, -1")
    p.stamp(1)


def y_consts(p):
    PR, t = 244, 208
    main, p.l = p.l, []
    p(f"v_mov_b32 v58, v{vTAG}\nv_mov_b32 v59, v{vTAG}")
    p(f"""
    v_lshlrev_b32 v{PR}, 16, v{PR}
    v_lshlrev_b32 v{PR + 1}, 16, v{PR + 1}
    v_lshlrev_b32 v{PR + 2}, 16, v{PR + 2}
    v_mul_f32 v{PR + 2}, {LOG2E}, v{PR + 2}
    v_exp_f32 v{PR + 2}, v{PR + 2}
    s_nop 0
    v_cvt_pk_bf16_f32 v{PR + 2}, v{PR + 2}, v{PR + 2}
    v_and_b32 v{PR + 2}, s{sMASK}, v{PR + 2}
    v_mul_f32 v{t}, v{PR + 2}, v{PR}
    v_mul_f32 v{t + 1}, v{PR + 2}, v{PR + 1}
    v_mul_f32 v{t}, {LOG2E}, v{t}
    v_mul_f32 v{t + 1}, 0.15915494, v{t + 1}
    v_exp_f32 v{t}, v{t}
    v_rndne_f32 v{t + 2}, v{t + 1}
    v_sub_f32 v{t + 1}, v{t + 1}, v{t + 2}
    v_cos_f32 v{t + 2}, v{t + 1}
    v_sin_f32 v{t + 3}, v{t + 1}
    v_mul_f32 v{t + 4}, v{PR}, v{PR}
    v_fmac_f32 v{t + 4}, v{PR + 1}, v{PR + 1}
    v_rcp_f32 v{t + 4}, v{t + 4}
    v_mul_f32 v{yL}, v{t}, v{t + 2}
    v_mul_f32 v{t + 3}, v{t}, v{t + 3}
    v_sub_f32 v{yL + 1}, 0, v{t + 3}
    v_add_f32 v{t + 2}, -1.0, v{yL}
    v_add_f32 v{t + 4}, v{t + 4}, v{t + 4}
    v_mul_f32 v{yC}, v{t + 2}, v{PR}
    v_fmac_f32 v{yC}, v{t + 3}, v{PR + 1}
    v_mul_f32 v{yC + 1}, v{t + 3}, v{PR}
    v_fma_f32 v{yC + 1}, -v{t + 2}, v{PR + 1}, v{yC + 1}
    v_mul_f32 v{yC}, v{yC}, v{t + 4}
    v_mul_f32 v{yC + 1}, v{yC + 1}, v{t + 4}
    v_and_b32 v{vT0}, 16, v{vL}
    v_cmp_ne_u32 s[42:43], 0, v{vT0}
    v_cmp_le_u32 s[44:45], 32, v{vL}
    """)
    a, b, c, d = t + 6, t + 8, t + 10, t + 12
    cmul(p, a, yL, yL)
    cmul(p, b, a, a)
    cmul(p, a, b, b)
    cmul(p, yL16, a, a)
    cmul(p, a, yL16, yL16)

    def qpow(dst, p1, p2):
        p(f"""
        v_cndmask_b32 v{c}, 1.0, v{p1}, s[42:43]
        v_cndmask_b32 v{c + 1}, 0, v{p1 + 1}, s[42:43]
        v_cndmask_b32 v{d}, 1.0, v{p2}, s[44:45]
        v_cndmask_b32 v{d + 1}, 0, v{p2 + 1}, s[44:45]
        """)
        cmul(p, dst, c, d)
    qpow(yQ16, yL16, a)
    cmul(p, yL64, a, a)
    p(f"""
    s_cmp_eq_u32 s{sMH}, 0
    s_cselect_b64 vcc, -1, 0
    s_cselect_b32 s59, 0, 1.0
    v_cndmask_b32_e64 v{c}, v{yL64}, 1.0, vcc
    v_cndmask_b32_e64 v{c + 1}, v{yL64 + 1}, 0, vcc
    """)
    cmul(p, yQM, c, yQ16)
    cmul(p, a, yL64, yL64)
    cmul(p, b, a, a)
    qpow(yQ64, a, b)
    cmul(p, yL256, b, b)
    p(f"""
    v_sub_f32 v{yNL}, 0, v{yL + 1}
    v_sub_f32 v{yNL + 1}, 0, v{yL256 + 1}
    """)
    L, p.l = p.l, main
    return L


def y_pass_s(p):
    def reads(c, s, st):
        b = yFR + 24 * st
        G = [[f"ds_read_b128 {vr(b + 16 + 4 * k, 4)}, v{yAB + s} offset:{(c % 3) * 8192 + k * 4096}" for k in range(2)]]
        G += [[f"ds_read_b128 {vr(b + 4 * tb, 4)}, v{yAX + s} offset:{(c & 3) * 16384 + tb * 2048}"] for tb in range(4)]
        return G
    p("s_waitcnt lgkmcnt(0)\ns_barrier")
    p.stamp(2)
    issued, mark = 0, {}
    for g, L in enumerate(reads(0, 0, 0)):
        for x in L:
            p(x)
            issued += 1
        mark[(0, g)] = issued
    K = y_consts(p)
    nk = -(-len(K) // p.opt.get("kn", 5))
    for n in range(16):
        c, s = divmod(n, 2)
        st = n & 1
        b = yFR + 24 * st
        M = [[mfma(yCS, yONE, b + 16, n == 0), mfma(yCS + 4, yONE, b + 20, n == 0)]]
        M += [[mfma(yRE + 4 * tb, b + 4 * tb, b + 16, n == 0), mfma(yIM + 4 * tb, b + 4 * tb, b + 20, n == 0)] for tb in range(4)]
        if n < 15:
            R = reads((n + 1) >> 1, (n + 1) & 1, st ^ 1)
        else:
            R = [[f"ds_read_b128 {vr(yM + 4 * tb, 4)}, v{yAS} offset:{16 * tb}", f"ds_read_b128 {vr(yR + 4 * tb, 4)}, v{yAS} offset:{512 + 16 * tb}"] for tb in range(4)] + [[]]
        for g in range(5):
            p(f"s_waitcnt lgkmcnt({issued - mark[(n, g)]})")
            p(M[g][0])
            if g == 0 and s == 1 and c < 7:
                p(M[g][1])
                if p.opt.get("sd") and c == 0:
                    y_stats(p)
                elif K and c >= p.opt.get("k0", 0):
                    p.wait_vm("par")
                    for x in K[:nk]:
                        p(x)
                    K = K[nk:]
                p("s_barrier")
            if g == 0 and n in (7, 8):
                p(f"v_add_u32 v{yAX + ((n + 1) & 1)}, 65536, v{yAX + ((n + 1) & 1)}")
            for i, x in enumerate(R[g]):
                p(x)
                issued += 1
                if i == 0 and not (g == 0 and s == 1 and c < 7):
                    p(M[g][1])
            if not R[g]:
                p(M[g][1])
            mark[(n + 1, g)] = issued
    assert not K
    p("s_waitcnt lgkmcnt(0)")
    p.stamp(3)


def yU(tau):
    tb, i = divmod(tau, 4)
    return (yRE if i % 2 == 0 else yIM) + 4 * tb + (i & ~1)


def y_window(p):
    g, gn = yG0, yG1
    p("s_nop 1")
    if p.opt.get("al", 1):
        p(".p2align 3")
    for tau in range(0, 16, 2):
        a, b = yRE + tau, yIM + tau
        p(f"""
        v_pk_fma_f32 {vr(yTA, 2)}, {vr(yM + tau, 2)}, {vr(yCS, 2)}, {vr(a, 2)} neg_lo:[1,0,0] neg_hi:[1,0,0]
        v_pk_fma_f32 {vr(yTB, 2)}, {vr(yM + tau, 2)}, {vr(yCS + 4, 2)}, {vr(b, 2)} neg_lo:[1,0,0] neg_hi:[1,0,0]
        v_pk_mul_f32 {vr(yTA, 2)}, {vr(yTA, 2)}, {vr(yR + tau, 2)}
        v_pk_mul_f32 {vr(yTB, 2)}, {vr(yTB, 2)}, {vr(yR + tau, 2)}
        v_pk_mul_f32 {vr(a, 2)}, {vr(yTA, 2)}, {vr(yC, 2)} op_sel_hi:[0,1] neg_hi:[0,1]
        v_pk_mul_f32 {vr(b, 2)}, {vr(yTA, 2)}, {vr(yC, 2)} op_sel:[1,0] op_sel_hi:[1,1] neg_hi:[0,1]
        v_pk_fma_f32 {vr(a, 2)}, {vr(yTB, 2)}, {vr(yC, 2)}, {vr(a, 2)} op_sel:[0,1,0] op_sel_hi:[0,0,1] neg_lo:[0,1,0] neg_hi:[0,1,0]
        v_pk_fma_f32 {vr(b, 2)}, {vr(yTB, 2)}, {vr(yC, 2)}, {vr(b, 2)} op_sel:[1,1,0] op_sel_hi:[1,0,1] neg_lo:[0,1,0] neg_hi:[0,1,0]
        """)
        if tau == 0:
            cmul(p, g, yU(0), yL, yU(1))
        else:
            cmul(p, gn, g, yL, yU(tau))
            cmul(p, g, gn, yL, yU(tau + 1))
    GR = 56
    p(f"""
    v_mov_b32 v{gn}, v{g}
    v_mov_b32 v{gn + 1}, v{g + 1}
    s_nop 1
    v_permlane16_swap_b32 v{g}, v{gn}
    v_permlane16_swap_b32 v{g + 1}, v{gn + 1}
    v_mov_b32 v{yTA}, v{g}
    v_mov_b32 v{yTA + 1}, v{g + 1}
    v_mov_b32 v{yTB}, v{gn}
    v_mov_b32 v{yTB + 1}, v{gn + 1}
    v_permlane32_swap_b32 v{g}, v{yTA}
    v_permlane32_swap_b32 v{g + 1}, v{yTA + 1}
    v_permlane32_swap_b32 v{gn}, v{yTB}
    v_permlane32_swap_b32 v{gn + 1}, v{yTB + 1}
    s_nop 0
    """)
    cmul(p, gn, g, yL16, gn)
    cmul(p, yTA, gn, yL16, yTA)
    cmul(p, GR, yTA, yL16, yTB)
    p(f"ds_write_b64 v{ySA}, {vr(GR, 2)}")
    for k in range(2):
        p(f"""
        v_cndmask_b32 v{g + k}, 0, v{g + k}, s[42:43]
        v_cndmask_b32 v{gn + k}, v{gn + k}, v{yTA + k}, s[42:43]
        v_cndmask_b32 v{yPQ + k}, v{g + k}, v{gn + k}, s[44:45]
        """)
    p("s_waitcnt lgkmcnt(0)\ns_barrier")
    p.stamp(4)
    p.stamp(1, 1)
    p.stamp(1, 2)
    p(f"ds_read_b64 {vr(yTA, 2)}, v{ySA + 1}")


def y_publish(p):
    GR = 56
    p(f"""
    s_waitcnt lgkmcnt(0)
    v_mul_f32 v{yTA}, s59, v{yTA}
    v_mul_f32 v{yTA + 1}, s59, v{yTA + 1}
    v_mul_f32 v{GR}, s59, v{GR}
    v_mul_f32 v{GR + 1}, s59, v{GR + 1}
    v_fmac_f32 v{GR}, v{yTA}, v{yL64}
    v_fmac_f32 v{GR + 1}, v{yTA}, v{yL64 + 1}
    v_fma_f32 v{GR}, -v{yTA + 1}, v{yL64 + 1}, v{GR}
    v_fmac_f32 v{GR + 1}, v{yTA + 1}, v{yL64}
    s_mov_b64 exec, 0xffff
    """)
    p.vmem(f"buffer_store_dwordx4 {vr(GR, 4)}, v{ySA + 2}, s[{S_WS}:{S_WS + 3}], s{sMB} offen sc1", "S")
    p(f"""
    s_mov_b64 exec, -1
    v_fmac_f32 v{yPQ}, v{yTA}, v{yQ16}
    v_fmac_f32 v{yPQ + 1}, v{yTA}, v{yQ16 + 1}
    v_fma_f32 v{yPQ}, -v{yTA + 1}, v{yQ16 + 1}, v{yPQ}
    v_fmac_f32 v{yPQ + 1}, v{yTA + 1}, v{yQ16}
    """)


class Rebase:
    def __init__(self, reg, base):
        self.reg, self.base = reg, base

    def at(self, q):
        d = 32768 * q - self.base
        if d in (0, 32768):
            return [], d
        self.base += d
        op, d = ("v_add_u32", d) if d > 0 else ("v_subrev_u32", -d)
        return [f"{op} v{self.reg + k}, {d}, v{self.reg + k}" for k in range(4)], 0


def with_pre(pre, L):
    if pre:
        L[0] = "\n".join(pre) + "\n" + L[0]
    return L


def w2_unit_head(p, slot):
    p(f"s_lshl_b32 s{sKB}, s{sUN + slot}, 16\ns_add_u32 s{sKB}, s{sKB}, s{sBB}")


yOC, yO2 = 10, 32


class Stage:
    ORDERS = {0: "C2 C3 C4 C2 W3 W4 W2 W0 W1",
              1: "C2 W3 W4 C2 W2 C0 C1 W0 W1",
              2: "W3 W4 W2 C0 C1 C0 C1 W0 W1",
              3: "C2 C4 W3 W4 W2 C0 C1 W0 W1",
              4: "C2 W3 C4 C2 W4 W2 C0 W0 W1",
              5: "C2 C4 W3 C2 W4 C2 W2 W0 W1",
              6: "C2 C4 W3 W4 C2 W2 C0 W0 W1"}

    def __init__(self, p):
        self.p = p
        self.todo, n, last, self.cq = [], {"C": 0, "W": 0}, {}, []
        for x in self.ORDERS[p.opt.get("seq", 0)].split():
            kind, q = x[0], int(x[1])
            self.todo.append((kind, n[kind], q, last.get(q, -1)))
            if kind == "C":
                last[q] = n[kind]
                self.cq.append(q)
            n[kind] += 1
        self.cur, self.k = None, 0
        self.read = 0
        self.full = set()
        self.late = False
        self.rb = Rebase(yR2, 65536)

    def pick(self):
        if self.cur is None:
            for u in self.todo:
                if (u[2] >= 2 or self.late) and self.read > u[3]:
                    self.cur, self.k = u, 0
                    self.todo.remove(u)
                    break
        return self.cur

    def left(self):
        return 8 * len(self.todo) + (8 - self.k if self.cur else 0)

    def done(self):
        return not self.todo and self.cur is None

    def dma(self, need_m0=True):
        p = self.p
        if self.pick() is None:
            return False
        kind, u, q, _ = self.cur
        k = self.k
        if need_m0 or k % 4 == 0:
            p(f"s_add_u32 m0, s{sBUF}, {32768 * q + 4096 * (k // 4)}")
            if k % 4:
                p("s_nop 0")
        if k == 0 and kind == "W":
            w2_unit_head(p, u)
        if k == 0 and kind == "C":
            ptr = pCIM if u & 1 else pCRE
            p(f"s_mov_b32 s{S_X}, s{ptr}\ns_mov_b32 s{S_X + 1}, s{ptr + 1}\ns_xor_b32 s{sKB}, s{sKX}, {128 * (u >> 1)}")
        if k == 4:
            p(f"s_add_u32 s{sKB}, s{sKB}, 32768")
        vo, sr = (yOC, S_X) if kind == "C" else (yO2, S_B)
        p.vmem(f"buffer_load_dwordx4 v{vo + k % 4}, s[{sr}:{sr + 3}], s{sKB} offen{off(1024 * (k % 4))} lds", (kind, u) if kind == "C" else "W")
        self.k += 1
        if self.k == 8:
            self.full.add((kind, u))
            self.cur = None
        return True

    def reads(self, u):
        pre, imm = self.rb.at(self.cq[u])
        if pre and self.late and self.p.opt.get("yp", 1):
            pre = ["s_setprio 3"] + pre + ["s_setprio 0"]
        return with_pre(pre, [f"ds_read_b64 {vr(vB2 + 64 * (u >> 1) + 16 * j + 4 * db + 2 * (u & 1), 2)}, v{yR2 + j} offset:{imm + 2048 * db}"
                              for j in range(4) for db in range(4)])

    def read_next(self):
        self.p.wait_vm(("C", self.read))
        for x in self.reads(self.read):
            self.p(x)
        self.p("s_waitcnt lgkmcnt(0)")
        self.read += 1


def w2_dma_setup(p, vo):
    p(f"""
    v_lshrrev_b32 v{vT0}, 4, v{vL}
    v_and_b32 v{vT1}, 7, v{vL}
    v_lshlrev_b32 v{vT0}, 1, v{vT0}
    v_xor_b32 v{vT0}, v{vT0}, v{vT1}
    v_lshlrev_b32 v{vT0}, 4, v{vT0}
    v_lshrrev_b32 v{vT1}, 3, v{vL}
    v_lshl_add_u32 v{vo}, v{vT1}, 10, v{vT0}
    v_add_u32 v{vo + 1}, 7168, v{vo}
    v_add_u32 v{vo + 2}, 14336, v{vo}
    v_add_u32 v{vo + 3}, 21504, v{vo}
    """)


def y_m_setup(p):
    p(f"""
    s_lshl_b32 s{sBUF}, s{sV}, 13
    s_add_u32 s{sT0}, s{sBUF}, 65536
    v_and_b32 v{vT0}, 15, v{vL}
    v_bfe_u32 v{vT1}, v{vL}, 1, 3
    v_lshrrev_b32 v{vT2}, 5, v{vL}
    v_xor_b32 v{vT1}, v{vT1}, v{vT2}
    v_lshlrev_b32 v{vT1}, 4, v{vT1}
    v_lshl_add_u32 v{vT0}, v{vT0}, 7, v{vT1}
    v_bfe_u32 v{vT1}, v{vL}, 4, 1
    v_lshl_add_u32 v{vT0}, v{vT1}, 3, v{vT0}
    v_add_u32 v{yR2}, s{sT0}, v{vT0}
    v_xor_b32 v{yR2 + 1}, 32, v{yR2}
    v_xor_b32 v{yR2 + 2}, 64, v{yR2}
    v_xor_b32 v{yR2 + 3}, 96, v{yR2}
    s_lshl_b32 s{sBB}, s{sN2}, 7
    """)
    w1_dma_setup(p, yOW)
    c_dma_setup(p, yOC)
    p(f"""
    s_and_b32 s{sT1}, s{sV}, 1
    s_lshl1_add_u32 s{sMX}, s{sNT}, s{sT1}
    s_lshl_b32 s{sMB}, s{sMX}, 14
    s_add_u32 s{sMB}, s{sMB}, {WS_CARRY}
    v_lshl_add_u32 v14, s{sT1}, 10, v{vL16}
    v_xor_b32 v15, 1024, v14
    v_and_b32 v{vT0}, 15, v{vL}
    s_lshl_b32 s{sT1}, s{sT1}, 8
    s_add_u32 s{sT1}, s{sT1}, {L_S}
    v_lshl_add_u32 v{ySA + 1}, v{vT0}, 3, s{sT1}
    s_lshl_b32 s{sT1}, s{sMH}, 7
    v_add_u32 v{ySA}, s{sT1}, v{ySA + 1}
    v_lshlrev_b32 v{vT0}, 4, v{vT0}
    s_add_u32 s{sT1}, s{sMT}, 1
    s_mul_i32 s{sT1}, s{sT1}, s{sMH}
    s_lshl_b32 s{sT1}, s{sT1}, 8
    v_add_u32 v{ySA + 2}, s{sT1}, v{vT0}
    v_lshrrev_b32 v{vT1}, 4, v{vL}
    v_sub_u32 v{vT1}, s{sMT}, v{vT1}
    v_lshl_add_u32 v{vT1}, v{vT1}, 8, v{vT0}
    """)
    for j in range(4):
        p(f"v_subrev_u32 v{yGA + j}, {1024 * j}, v{vT1}\nv_max_i32 v{yGA + j}, v{yGA + j}, v{vT0}")
    y_units(p)
    srd(p, S_W, pW1, 512 * 3584)
    srd(p, S_B, pW2, 1792 * 1024)
    p(f"""
    s_mov_b32 s{S_X + 2}, {512 * 1024}
    s_lshl1_add_u32 s{sKX}, s{sV}, s{sG0}
    s_lshl_b32 s{sKX}, s{sKX}, 7
    s_lshl_b32 s{sT1}, s{sN2}, 16
    s_add_u32 s{sKX}, s{sKX}, s{sT1}
    """)


def y_units(p, only0=None):
    r2 = p.opt.get("rot2", 1)
    p(f"""
    s_mul_i32 s{sT0}, s{sV}, 7
    s_and_b32 s{sKX}, s{sM2}, 1
    s_and_b32 s{sT1}, s{sN2}, {1 if r2 else 0}
    s_lshl1_add_u32 s{sT2}, s{sT1}, s{sFLG}
    """)
    for i in range(4):
        p(f"""
        s_add_u32 s{sT3}, s{sT2}, {i}
        s_and_b32 s{sT3}, s{sT3}, 3
        s_lshl1_add_u32 s{sT3}, s{sT3}, s{sKX}
        s_min_u32 s{sT3}, s{sT3}, 6
        s_add_u32 s{sUN + i if only0 is None else only0}, s{sT3}, s{sT0}
        """)
        if only0 is not None:
            return
    p(f"""
    s_add_u32 s{sT1}, s{sT1}, s{sFLG}
    s_mul_i32 s{sT2}, s{sT1}, 86
    s_lshr_b32 s{sT2}, s{sT2}, 8
    s_mul_i32 s{sT2}, s{sT2}, 3
    s_sub_u32 s{sT1}, s{sT1}, s{sT2}
    s_add_u32 s{sT0}, s{sT0}, 1
    s_sub_u32 s{sT0}, s{sT0}, s{sKX}
    """)
    for i in range(3):
        p(f"""
        s_lshl1_add_u32 s{sUN + 4 + i}, s{sT1}, s{sT0}
        s_add_u32 s{sT1}, s{sT1}, 1
        s_cmp_eq_u32 s{sT1}, 3
        s_cselect_b32 s{sT1}, 0, s{sT1}
        """)


def gather_list(p, track):
    L = []
    for j in range(3, -1, -1):
        def f(j=j):
            s = f"buffer_load_dwordx4 {vr(yGD2 + 4 * j, 4)}, v{yGA + j}, s[{S_WS}:{S_WS + 3}], s{sMB} offen sc1"
            p.vmem(s, "G") if track else p(s)
        L.append(f)
    return L


def cmac(d, a, b, nb):
    return [f"v_fmac_f32 v{d}, v{a}, v{b}", f"v_fmac_f32 v{d + 1}, v{a}, v{b + 1}",
            f"v_fmac_f32 v{d}, v{a + 1}, v{nb}", f"v_fmac_f32 v{d + 1}, v{a + 1}, v{b}"]


def h_work(p):
    W = []

    def check():
        p.wait_vm("G")

        def test():
            p(f"v_xor_b32 v{vT3}, v{yGD2 + 14}, v{vTAG}")
            for j in range(2, -1, -1):
                p(f"v_bitop3_b32 v{vT3}, v{yGD2 + 4 * j + 2}, v{vTAG}, v{vT3} bitop3:0xbe")
            p(f"v_cmp_ne_u32 vcc, 0, v{vT3}\ns_nop 4")

        def reload():
            for f in gather_list(p, False):
                f()
            p("s_waitcnt vmcnt(0)")
        retry(p, "s_cbranch_vccnz", test, reload)
        p.stamp(6)
    W.append(check)
    for j in range(2, -1, -1):
        W += cmac(yGD2 + 4 * j, yGD2 + 4 * (j + 1), yL256, yNL + 1)
    g = yGD2
    W += [f"v_mul_f32 v{yTA}, v{g}, v{yQ64}", f"v_mul_f32 v{yTA + 1}, v{g}, v{yQ64 + 1}",
          f"v_fma_f32 v{yTA}, -v{g + 1}, v{yQ64 + 1}, v{yTA}", f"v_fmac_f32 v{yTA + 1}, v{g + 1}, v{yQ64}"]
    for sw in ("v_permlane16_swap_b32", "v_permlane32_swap_b32"):
        W.append(f"""
        v_mov_b32 v{yTB}, v{yTA}
        v_mov_b32 v{yTB + 1}, v{yTA + 1}
        s_nop 1
        {sw} v{yTA}, v{yTB}
        {sw} v{yTA + 1}, v{yTB + 1}
        s_nop 1
        v_add_f32 v{yTA}, v{yTA}, v{yTB}
        v_add_f32 v{yTA + 1}, v{yTA + 1}, v{yTB + 1}
        """)
        W += [""] * 5
    W += [f"v_fmac_f32 v{yPQ}, v{yTA}, v{yQM}", f"v_fmac_f32 v{yPQ + 1}, v{yTA}, v{yQM + 1}",
          f"v_fma_f32 v{yPQ}, -v{yTA + 1}, v{yQM + 1}, v{yPQ}", f"v_fmac_f32 v{yPQ + 1}, v{yTA + 1}, v{yQM}"]
    prev = yPQ
    PA, TD = 112, 64
    for tau in range(16):
        u = yU(tau)
        W += cmac(u, prev, yL, yNL)
        prev = u
        if tau & 1:
            tb, i = divmod(tau, 4)
            for part in range(2):
                W.append(f"v_cvt_pk_bf16_f32 v{PA + 4 * tb + 2 * part + (i >> 1)}, v{yU(tau - 1) + part}, v{u + part}")

    def transpose():
        p(f"s_mul_i32 s{sT2}, s{sCI}, 88\ns_add_u32 s{sT2}, s{sT2}, s{sMX}")
        for tb in range(4):
            for part in range(2):
                p(mfma16(TD + 8 * tb + 4 * part, PA + 4 * tb + 2 * part, ySEL, True))
        p(f"""
        s_lshl_b32 s{sBX}, s{sT2}, 12
        s_add_u32 s{sBX}, s{sBX}, {WS_HID}
        s_mul_i32 s{sT2}, s{sCI}, 12
        s_lshr_b32 s{sT3}, s{sMX}, 3
        s_add_u32 s{sT2}, s{sT2}, s{sT3}
        s_lshl_b32 s{sT2}, s{sT2}, 7
        s_and_b32 s{sMX}, s{sMX}, 7
        s_lshl2_add_u32 s{sMX}, s{sMX}, s{sT2}
        """)
    W.append(transpose)
    W += [""] * 16
    for tb in range(4):
        for k in range(4):
            W.append(f"v_cvt_pk_bf16_f32 v{PA + 4 * tb + k}, v{TD + 8 * tb + 2 * k}, v{TD + 8 * tb + 2 * k + 1}")
        W.append(lambda tb=tb: p.vmem(f"buffer_store_dwordx4 {vr(PA + 4 * tb, 4)}, v{14 + (tb & 1)}, s[{S_WS}:{S_WS + 3}], s{sBX} offen{off(2048 * (tb >> 1))} sc1", "h"))
    W.append(lambda: p.stamp(7))
    return W


def emit(p, x):
    x() if callable(x) else p(x)


def capture(p, f):
    main, p.l = p.l, []
    f()
    L, p.l = p.l, main
    return L


def y_pass_m(p):
    o = p.opt
    st = Stage(p)
    y_publish(p)
    budget = [int(x, 16) for x in str(o.get("bud", "40525588")).zfill(8)]
    gi = o.get("gi", 3)
    W = h_work(p)
    nW = len(W)
    wd = [int(x, 16) for x in str(o.get("wd", "24440")).zfill(9)]
    full = {}
    for c in range(8):
        V = []
        if 1 <= c <= 5:
            V += w1_dma(p, c + 2, yOW)
        if c == gi:
            V += gather_list(p, True)
        for k in range(budget[c]):
            V.append(lambda k=k: st.dma(k == 0))
        A = []
        if c == 0:
            A = capture(p, lambda: w2_dma_setup(p, yO2))
            if st.todo[0][0] == "W":
                for x in A:
                    p(x)
                A = []
            assert budget[0] <= 8
        if c == 1:
            A = capture(p, lambda: poll_setup(p, f"s_add_u32 s{sT0}, s{sT0}, s{sV}"))
            A = ["\n".join(A)]
        u = st.read
        rd = u < 4 and full.get(u, 99) <= c - o.get("rdl", 2)
        L = []
        if rd:
            L = [lambda u=u: p.wait_vm(("C", u))] + st.reads(u)
        late = 0
        n = -(-nW * wd[c] // sum(wd))
        if n and len(W) == nW:
            late = len(V) * o.get("late", 2) // 4
        A, W = A + W[:n], W[n:]
        slots = len(V) + 1
        l0 = len(V) // 2 if rd and full[u] == c - 1 else 0
        for k in range(slots):
            if k < len(V):
                V[k]()
            if k >= l0:
                nl = -(-len(L) // max(1, slots - 1 - k))
                for x in L[:nl]:
                    emit(p, x)
                L = L[nl:]
            if k >= late:
                na = -(-len(A) // (slots - k))
                na += na & 1
                for x in A[:na]:
                    emit(p, x)
                A = A[na:]
        if rd:
            p("s_waitcnt lgkmcnt(0)")
            st.read += 1
        for kind, uu in st.full:
            if kind == "C":
                full.setdefault(uu, c)
        if 3 <= c + 1 <= 7:
            p.wait_vm(("w", c + 1))
        if c < 7:
            p.stamp(2 + 2 * c, 1)
        p("s_barrier")
        if c < 7:
            p.stamp(3 + 2 * c, 1)
    if o.get("hx"):
        assert not W
        p.wait_vm("h")
    p("s_barrier")
    p.stamp(5)
    p.stamp(1, 5)
    p.stamp(2, 5)
    for x in W:
        emit(p, x)
    return st


def y_ph2(p, st):
    o = p.opt
    st.late = True
    hf = o.get("hf", 0)
    n, first, pend, polled, nd = 0, True, [], False, 0
    lag = o.get("lag", 8)
    while not st.done() or st.read < 4:
        if n == hf:
            if not o.get("hx"):
                p.wait_vm("h")
                flag_store(p, sMX, WS_FLAGS)
            n += 1
        u = st.read
        if not pend and u < 4 and ("C", u) in st.full and len(p.vm) - 1 - p.last(("C", u)) >= lag:
            p.wait_vm(("C", u))
            pend = st.reads(u) + [None]
        if not polled and all(("C", k) in st.full for k in range(4)) and st.left() <= o.get("pl", 10):
            poll_issue(p, 0, 44)
            polled = True
        ok = st.dma(first)
        if ok and st.left() % 4 == 0 and st.left() <= 40:
            p.stamp(12 - st.left() // 4, 5)
        if ok:
            first = False
            n += n < hf
            nd += 1
            yt = o.get("yt", 0)
            if yt and nd > yt and nd <= o.get("ytn", 99):
                p(f"s_waitcnt vmcnt({yt})")
                p.done = max(p.done, len(p.vm) - 1 - yt)
        elif not pend:
            st.read_next()
        k = 4 if ok else len(pend)
        for x in pend[:k]:
            if x is None:
                p("s_waitcnt lgkmcnt(0)")
                st.read += 1
            else:
                p(x)
        pend = pend[k:]
    assert n > hf and polled
    p.stamp(11)
    for pair in range(2):
        p(f"""
        s_xor_b32 s{sT0}, s{sG0}, {pair}
        s_lshl1_add_u32 s{sT0}, s{sV}, s{sT0}
        s_lshl_b32 s{sT0}, s{sT0}, 14
        s_add_u32 s{sUN + 2 * pair}, s{sT0}, s{sHID}
        s_add_u32 s{sUN + 2 * pair + 1}, s{sUN + 2 * pair}, 8192
        """)
    p(f"s_add_u32 s{sBUF}, s{sBUF}, {3 * 32768}")
    poll_check(p, 0, 44)
    p.stamp(12)
    items = []
    for step, tb in order(p, 8):
        items.append((sUN + (step >> 1), step & 1, tb, vB2 + 16 * step, step == 0))

    def after_ramp():
        p.stamp(13, 5)
        p.wait_vm("W")
        p.stamp(14, 5)
        p("s_barrier")
        p.stamp(10)
        p.stamp(15, 5)
    post = {o.get("ys", 22): lambda: p("s_barrier")}
    side = {}
    spread(side, partial_addr(), 4, 3)
    if o.get("ef"):
        final_loads(p)
        ph2_loop(p, items, {}, post, side, min(9, o.get("yramp", 8)), after_ramp, 10, 9)
    else:
        ph2_loop(p, items, {}, post, side, o.get("yramp", 8), after_ramp, 13, o.get("yd", 10))
    p.stamp(13)
    if not o.get("ef"):
        final_loads(p)
    for tb in range(4):
        partial_write(p, tb)
    final(p)
    p("s_branch L_fin")


xTR = 8
xAX, xEA, xRL, xEX = 16, 18, 20, 22
xWF, NWF = 32, 6
xONE, xB1, xCS = 28, 26, 56
xOX, xOB, xOW, xSA, xST = 32, 36, 38, 40, 42
xACC, xXF = 64, 128


def x_pass_s(p):
    o = p.opt
    p("L_X:")
    if o.get("xp0"):
        p("s_setprio 2")
    p.raw(1)
    p(f"""
    v_lshrrev_b32 v{vT0}, 4, v{vL}
    v_and_b32 v{vT1}, 7, v{vL}
    v_xor_b32 v{vT1}, v{vT1}, v{vT0}
    v_lshlrev_b32 v{vT1}, 4, v{vT1}
    v_lshrrev_b32 v{vT2}, 3, v{vL}
    v_lshl_add_u32 v{xOB}, v{vT2}, 10, v{vT1}
    v_lshrrev_b32 v{vT2}, 5, v{vL}
    v_mul_u32_u24 v{vT2}, {12 * 1024}, v{vT2}
    v_add_u32 v{xOX}, v{vT2}, v{xOB}
    v_xor_b32 v{xOX + 1}, 64, v{xOX}
    v_xor_b32 v{xOB + 1}, 64, v{xOB}
    v_add_u32 v{xOX + 1}, {31 * 1024}, v{xOX + 1}
    v_add_u32 v{xOB + 1}, 7168, v{xOB + 1}
    v_add_u32 v{xOX + 2}, 2048, v{xOX}
    v_add_u32 v{xOX + 3}, 2048, v{xOX + 1}
    s_and_b32 s{sT1}, s{sV}, 1
    s_lshl1_add_u32 s{sBX}, s{sMT}, s{sMH}
    s_lshl3_add_u32 s{sBX}, s{sBX}, s{sT1}
    s_lshl_b32 s{sBX}, s{sBX}, 13
    s_lshl1_add_u32 s{sBB}, s{sNT}, s{sMH}
    s_lshl_b32 s{sBB}, s{sBB}, 14
    s_lshl_b32 s{sMX}, s{sV}, 12
    s_lshl1_add_u32 s{sMB}, s{sT1}, s{sMH}
    s_lshl_b32 s{sMB}, s{sMB}, 11
    s_cmp_eq_u32 s{sT1}, 0
    s_waitcnt lgkmcnt(0)
    s_cselect_b32 s{S_B}, s{pBRE}, s{pBIM}
    s_cselect_b32 s{S_B + 1}, s{pBRE + 1}, s{pBIM + 1}
    s_mov_b32 s{S_B + 2}, {512 * 1024}
    s_mov_b32 s{S_B + 3}, 0x00020000
    """)
    srd(p, S_X, pX, 2048 * 1024)
    p.raw(2)

    def dma_b(c):
        p(f"""
        s_add_u32 s{sT0}, s{sC0}, {c}
        s_and_b32 s{sT0}, s{sT0}, 7
        s_lshl_b32 s{sT1}, s{sT0}, 7
        s_add_u32 m0, s{sMB}, {BR + (c % 3) * 8192}
        s_add_u32 s{sKB}, s{sBB}, s{sT1}
        """)
        for i in range(2):
            p.vmem(f"buffer_load_dwordx4 v{xOB + i}, s[{S_B}:{S_B + 3}], s{sKB} offen{off(1024 * i)}{p.nt('ntb', c)} lds", ("c", c))

    def dma_x(c, same=False):
        if not same:
            p(f"s_add_u32 s{sT0}, s{sC0}, {c}\ns_and_b32 s{sT0}, s{sT0}, 7\ns_lshl_b32 s{sT1}, s{sT0}, 7")
        p(f"s_add_u32 m0, s{sMX}, {XR + c * 16384}\ns_add_u32 s{sKX}, s{sBX}, s{sT1}")
        for i in range(4):
            p.vmem(f"buffer_load_dwordx4 v{xOX + i}, s[{S_X}:{S_X + 3}], s{sKX} offen{off(1024 * i)}{p.nt('ntx', c)} lds", ("c", c))

    def dma(c):
        dma_b(c)
        dma_x(c, True)
    xa = o.get("xa", 0)
    pre = o.get("pre", 0)
    if pre:
        p(f"""
        s_lshl_b32 s{sT0}, s{sMT}, 10
        s_add_u32 s{sT0}, s{sT0}, s{sBB}
        v_lshlrev_b32 v{vT2}, 7, v{vL}
        s_mov_b64 exec, 0xff
        """)
        p.vmem(f"buffer_load_dword v19, v{vT2}, s[{S_B}:{S_B + 3}], s{sT0} offen", "pre")
        p("s_mov_b64 exec, -1")
    else:
        dma(0)
        p.stamp(1)
        p.raw(3)
    srd(p, S_WS, pWS, WS_BYTES)
    p.vmem(f"buffer_load_dword v{vTAG}, off, s[{S_WS}:{S_WS + 3}], 0 sc1", "epoch")
    xd = o.get("xd", 0)

    def bias():
        p(f"""
        v_and_b32 v{vT0}, 15, v{vL}
        s_lshr_b32 s{sT0}, s{sNT}, 2
        s_lshl_b32 s{sT1}, s{sNT}, 1
        s_sub_u32 s{sT0}, s{sT1}, s{sT0}
        s_lshl1_add_u32 s{sT0}, s{sT0}, s{sV}
        s_lshl_b32 s{sT0}, s{sT0}, 5
        v_add_u32 v{vT2}, s{sT0}, v{vT0}
        v_min_u32 v{vT2}, 1775, v{vT2}
        v_lshlrev_b32 v{vT2}, 1, v{vT2}
        """)
        p.vmem(f"global_load_ushort v{xB1}, v{vT2}, s[{pB1}:{pB1 + 1}]", "par")
        p.vmem(f"global_load_ushort v{xB1 + 1}, v{vT2}, s[{pB1}:{pB1 + 1}] offset:32", "par")

    def cap_addr():
        rowfrag_addr(p, xAX)
        p(f"""
        s_add_u32 s{sT0}, s{sMX}, {XR}
        v_add_u32 v{xAX}, s{sT0}, v{xAX}
        v_xor_b32 v{xAX + 1}, 64, v{xAX}
        """)
    if o.get("b0"):
        bias()
        cap_addr()
    if not pre:
        dma(1)
    if o.get("x3"):
        dma(2)
    if o.get("xp0"):
        p("s_setprio 0")
    p.l.append("@XCUT")

    def s1():
        w1_dma_setup(p, xOW)
        srd(p, S_W, pW1, 512 * 3584)

    def s2():
        for k in range(4):
            p(f"v_mov_b32 v{xONE + k}, 0x3f803f80")
        p(f"""
        v_and_b32 v{xSA}, 31, v{vL}
        v_lshlrev_b32 v{xSA}, 3, v{xSA}
        s_lshl2_add_u32 s{sUN}, s{sMT}, s{sV}
        s_lshl_b32 s{sUN}, s{sUN}, 8
        s_add_u32 s{sUN}, s{sUN}, {WS_STATS}
        """)

    def s3():
        w1_tr_addr0(p, xTR)
        p(f"s_lshl_b32 s{sT0}, s{sV}, 6\nv_xor_b32 v{xTR}, s{sT0}, v{xTR}")
        for fb in range(1, 8):
            p(f"v_xor_b32 v{xTR + fb}, {32 * fb}, v{xTR}")
    SET = [lambda: late_ids(p), s1, s2, s3]
    if not o.get("b0"):
        bias()
        cap_addr()
    for f in SET[:4 - xd]:
        f()
    SET = SET[4 - xd:]
    tp = o.get("tp", 0)
    tw1 = o.get("tw1", 0)

    def touch():
        p(f"""
        s_and_b32 s{sT0}, s{sV}, 1
        s_cmp_eq_u32 s{sT0}, 0
        s_cselect_b32 s{S_B}, s{pW1 if tw1 else pW2}, s{pW2}
        s_cselect_b32 s{S_B + 1}, s{(pW1 if tw1 else pW2) + 1}, s{pW2 + 1}
        s_cselect_b32 s{sT2}, s{pCRE}, s{pCIM}
        s_cselect_b32 s{sT3}, s{pCRE + 1}, s{pCIM + 1}
        s_mov_b32 s{S_B + 2}, {512 * 3584}
        s_lshl1_add_u32 s{sT0}, s2, s{sT0}
        s_cmp_lt_u32 s{sV}, 2
        s_cselect_b32 s{S_B}, s{S_B}, s{sT2}
        s_cselect_b32 s{S_B + 1}, s{S_B + 1}, s{sT3}
        s_cselect_b32 s{S_B + 2}, s{S_B + 2}, {512 * 1024}
        s_cselect_b32 s{sT0}, {'s2' if tw1 else 's%d' % sT0}, s2
        s_cselect_b32 s{sT2}, {(56 if tw1 else 28) if o.get('tm', 3) & 1 else 0}, {16 if o.get('tm', 3) & 2 else 0}
        s_mul_i32 s{sT1}, s{sT2}, s{sT0}
        v_cmp_gt_u32 vcc, s{sT2}, v{vL}
        v_add_lshl_u32 v44, v{vL}, s{sT1}, 7
        """)
        if o.get("to"):
            p(f"""
            s_lshr_b32 s{sT0}, s2, 1
            s_and_b32 s{sT1}, s2, 1
            s_and_b32 s{sT2}, s{sV}, 1
            s_lshl1_add_u32 s{sT2}, s{sT0}, s{sT2}
            s_mul_i32 s{sT2}, s{sT2}, 14
            s_add_u32 s{sT2}, s{sT2}, s{sT1}
            s_lshl_b32 s{sT2}, s{sT2}, 9
            s_lshl_b32 s{sT1}, s{sT1}, 7
            s_add_u32 s{sT0}, s{sT0}, s{sT1}
            s_lshl_b32 s{sT0}, s{sT0}, 11
            s_cmp_lt_u32 s{sV}, 2
            s_cselect_b32 s{sT0}, s{sT2}, s{sT0}
            s_cselect_b32 s{sT1}, 0x3c, 0
            v_and_b32 v45, s{sT1}, v{vL}
            v_add_u32 v45, v45, v{vL}
            v_lshl_add_u32 v44, v45, 7, s{sT0}
            """)
        p(f"""
        v_mov_b32 v45, 0x40000000
        v_cndmask_b32 v44, v45, v44, vcc
        """)
        if not o.get("tg"):
            p.vmem(f"buffer_load_dword v19, v44, s[{S_B}:{S_B + 3}], 0 offen", "touch")

    def touch_part(k):
        tg, n = o["tg"], len(str(o["tq"]))
        if tg == 1:
            p(f"""
            s_mul_i32 s{sT0}, s{sJ}, {n}
            s_lshr_b32 s{sT0}, s{sT0}, 5
            s_cmp_eq_u32 s{sT0}, {k}
            s_cselect_b32 s{sT0}, 0, 0x40000000
            v_or_b32 v45, s{sT0}, v44
            """)
        elif tg == 3:
            p(f"s_cmp_eq_u32 s{sMH}, {k}\ns_cselect_b32 s{sT0}, 0, 0x40000000\nv_or_b32 v45, s{sT0}, v44")
        else:
            p(f"v_and_b32 v45, 1, v{vL}\nv_xor_b32 v45, {k}, v45\nv_lshl_or_b32 v45, v45, 30, v44")
        p.vmem(f"buffer_load_dword v19, v45, s[{S_B}:{S_B + 3}], 0 offen", "touch")
    ld = f"buffer_load_dwordx2 {vr(xST, 2)}, v{xSA}, s[{S_WS}:{S_WS + 3}], s{sUN} offen sc1"
    if pre:
        if pre == 1:
            p.wait_vm("pre")
        elif pre == 3:
            p.wait_vm("pf")
        p.stamp(1)
        dma(0)
        dma(1)
    for c in range(8):
        if c < 7:
            p.wait_vm(("c", c))
        if c == 1:
            make_tag(p)
        if c == 7:
            p.wait_vm("st")
            retry(p, "s_cbranch_vccnz", lambda: p(f"v_cmp_ne_u32 vcc, v{xST + 1}, v{vTAG}\ns_nop 4"),
                  lambda: p(f"{ld}\ns_waitcnt vmcnt(0)"))
            p(f"""
            v_and_b32 v{vT0}, s{sMASK}, v{xST}
            v_rcp_f32 v{vT0}, v{vT0}
            v_lshrrev_b32 v{vT1}, 1, v{xSA}
            s_lshl_b32 s{sT0}, s{sV}, 7
            s_add_u32 s{sT0}, s{sT0}, {L_M}
            v_add_u32 v{vT1}, s{sT0}, v{vT1}
            v_lshlrev_b32 v{vT2}, 16, v{xST}
            ds_write_b32 v{vT1}, v{xST} offset:1024
            ds_write_b32 v{vT1}, v{vT0} offset:512
            ds_write_b32 v{vT1}, v{vT2}
            """)
            p.wait_vm(("c", c))
        if c in (o.get("lw", 6 - xa), 7):
            p("s_waitcnt lgkmcnt(0)")
        if c == 0:
            p.stamp(2)
            p.raw(4)
        if c > 0:
            p.stamp(2 * c, 3)
        p("s_barrier")
        p.stamp(2 * c + 1, 3)
        if c == 5:
            p.vmem(ld, "st")
        if not xa:
            if c + 2 < 8:
                dma(c + 2)
        else:
            xr = o.get("xr", 0)
            if c == 0 and o.get("x3"):
                pass
            elif c <= xr and c + 2 < 8:
                dma(c + 2)
            elif c + 2 < 8:
                dma_b(c + 2)
            if c >= xr and c + 3 < 8:
                dma_x(c + 3)
        if c == 4:
            p(f"v_add_u32 v{xAX}, 65536, v{xAX}\nv_add_u32 v{xAX + 1}, 65536, v{xAX + 1}")
        for s in range(2):
            for t in range(2):
                p(f"ds_read_b128 {vr(xXF + 16 * c + 8 * s + 4 * t, 4)}, v{xAX + s} offset:{(c & 3) * 16384 + t * 2048}")
        if c >= 6 - xa:
            for cc in ([c - 5] if xa else [0] if c == 6 else [1, 2]):
                for f in w1_dma(p, cc, xOW):
                    f()
                if (tp, cc) in ((2, 0), (4, 1), (3, 2)):
                    touch()
                if o.get("tg"):
                    if cc == 0:
                        touch()
                    for k, ch in enumerate(str(o["tq"])):
                        if int(ch) - 1 == cc:
                            touch_part(k)
        if SET and c >= o.get("xd0", 0):
            SET.pop(0)()
        if c == 5 and tp == 1:
            touch()
        if o.get("pt", 1) == 1 and c == 1:
            p(f"""
            s_mul_i32 s{sT0}, s{sCI}, 6
            s_lshr_b32 s{sT1}, s{sNT}, 2
            s_add_u32 s{sT0}, s{sT0}, s{sT1}
            s_lshl_b32 s{sT0}, s{sT0}, 8
            s_add_u32 s{sT0}, s{sT0}, {WS_FLAGS + 512}
            s_add_u32 s42, s{pWS}, s{sT0}
            s_addc_u32 s43, s{pWS + 1}, 0
            s_load_dword s84, s[42:43], 0 {'glc' if o.get('ptg', 1) else ''}
            s_load_dword s84, s[42:43], 128 {'glc' if o.get('ptg', 1) else ''}
            """)
    p.stamp(3)
    p(f"""
    v_bfe_u32 v{vT0}, v{vL}, 2, 2
    v_and_b32 v{vT1}, 3, v{vL}
    v_lshl_add_u32 v{vT0}, v{vT0}, 4, v{vT1}
    s_and_b32 s{sT1}, s{sV}, 1
    s_lshl3_add_u32 s{sT0}, s{sMH}, s{sT1}
    s_lshl_b32 s{sT0}, s{sT0}, 5
    s_add_u32 s{sT0}, s{sT0}, {L_M}
    v_lshl_add_u32 v{vT0}, v{vT0}, 2, s{sT0}
    ds_read_b32 v{xEX + 1}, v{vT0} offset:1024
    ds_read_b32 v{xEX + 3}, v{vT0} offset:{1024 + 16}
    ds_read_b32 v{xRL}, v{vT0} offset:512
    ds_read_b32 v{xRL + 1}, v{vT0} offset:{512 + 16}
    v_and_b32 v{xEA}, 15, v{vL}
    v_lshlrev_b32 v{xEA}, 3, v{xEA}
    s_lshl_b32 s{sT0}, s{sV}, 8
    s_add_u32 s{sT0}, s{sT0}, {L_EXT}
    v_add_u32 v{xEA}, s{sT0}, v{xEA}
    v_cmp_gt_u32 vcc, 16, v{vL}
    s_mov_b32 s{sT2}, 0x01000100
    s_waitcnt lgkmcnt(0)
    """)
    for t in range(2):
        e = xEX + 2 * t
        p(f"""
        v_perm_b32 v{e}, v{e + 1}, v{e + 1}, s{sT2}
        v_xor_b32 v{e}, 0x80008000, v{e}
        v_lshrrev_b32 v{e + 1}, 16, v{e + 1}
        v_cndmask_b32 v{e}, 0, v{e}, vcc
        v_cndmask_b32 v{e + 1}, 0, v{e + 1}, vcc
        v_mul_f32 v{xRL + t}, {LOG2E}, v{xRL + t}
        """)
    p.wait_vm(("w", 0))
    p("s_waitcnt lgkmcnt(0)\ns_barrier")
    p.stamp(4)


def x_pass_m(p):
    PD = 4
    WE = p.opt.get("we", 1)

    def reads(n):
        if n >= 128:
            return []
        c, s, fb = n >> 4, (n >> 3) & 1, n & 7
        slot = (2 * c + s) % 7
        return [f"ds_read_b64_tr_b16 {vr(xWF + 4 * (n % NWF) + 2 * e, 2)}, v{xTR + fb} offset:{8192 * slot + 1024 * e}" for e in range(2)]
    nissued = 0
    for n in range(PD):
        for x in reads(n):
            p(x)
            nissued += 1
    for n in range(128):
        c, s, fb = n >> 4, (n >> 3) & 1, n & 7
        if n % WE == 0 and n < 126:
            p(f"s_waitcnt lgkmcnt({nissued - 2 * (n + WE)})")
        R = reads(n + PD)
        bar = (n & 15) == 16 - PD and c < 7
        w = xWF + 4 * (n % NWF)
        if n == 126:
            p("s_waitcnt lgkmcnt(0)")
        for t in range(2):
            p(mfma(xACC + 8 * fb + 4 * t, w, xXF + 16 * c + 8 * s + 4 * t, n < 8))
            if bar and t == 0:
                if c < 2:
                    p.wait_vm(("w", c + 1))
                p("s_barrier")
            if n == 126 and t == 0:
                p("s_barrier")
            if n >= 126:
                k = 2 * (n - 126) + t
                for i in range(2):
                    p(f"ds_read_b64 {vr(xXF + 2 * (2 * k + i), 2)}, v{xTR + k} offset:{128 * i}")
            if R:
                p(R[t])
                nissued += 1
        if fb < 2:
            p(mfma(xCS + 4 * fb, xONE, w, n < 8))
        if n in (123, 124):
            k = n - 123
            a = xCS + 4 * k
            p(f"""
            v_and_b32 v{a + 1}, s{sMASK}, v{a}
            v_sub_f32 v{a}, v{a}, v{a + 1}
            v_cvt_pk_bf16_f32 v{a}, v{a + 1}, v{a}
            v_mov_b32 v{a + 1}, v{xB1 + k}
            ds_write_b64 v{xEA}, {vr(a, 2)} offset:{128 * k}
            """)
            nissued += 1
        if n == 125:
            p(f"v_mov_b32 v{xTR}, v{xEA}")
            for k in range(1, 4):
                p(f"v_xor_b32 v{xTR + k}, {256 * k}, v{xEA}")
    p("s_waitcnt lgkmcnt(0)\ns_barrier")
    p.stamp(1, 5)
    for fb in range(8):
        for t in range(2):
            p(mfma16(xACC + 8 * fb + 4 * t, xXF + 2 * fb, xEX + 2 * t))
    p.stamp(5)
    p.stamp(2, 5)


def mish4(p, a, t, pk, tmp):
    sel = "op_sel_hi:[1,0]" if t == 0 else "op_sel:[0,1] op_sel_hi:[1,1]"
    e, u = tmp, tmp + 4
    p(f"""
    v_pk_mul_f32 {vr(a, 2)}, {vr(a, 2)}, {vr(xRL, 2)} {sel}
    v_pk_mul_f32 {vr(a + 2, 2)}, {vr(a + 2, 2)}, {vr(xRL, 2)} {sel}
    v_exp_f32 v{e}, v{a}
    v_exp_f32 v{e + 1}, v{a + 1}
    v_exp_f32 v{e + 2}, v{a + 2}
    v_exp_f32 v{e + 3}, v{a + 3}
    v_pk_fma_f32 {vr(u, 2)}, {vr(e, 2)}, 0.5, 1.0 op_sel_hi:[1,0,0]
    v_pk_fma_f32 {vr(u + 2, 2)}, {vr(e + 2, 2)}, 0.5, 1.0 op_sel_hi:[1,0,0]
    v_pk_fma_f32 {vr(u, 2)}, {vr(e, 2)}, {vr(u, 2)}, 1.0 op_sel_hi:[1,1,0]
    v_pk_fma_f32 {vr(u + 2, 2)}, {vr(e + 2, 2)}, {vr(u + 2, 2)}, 1.0 op_sel_hi:[1,1,0]
    v_rcp_f32 v{u}, v{u}
    v_rcp_f32 v{u + 1}, v{u + 1}
    v_rcp_f32 v{u + 2}, v{u + 2}
    v_rcp_f32 v{u + 3}, v{u + 3}
    v_pk_fma_f32 {vr(a, 2)}, {vr(a, 2)}, {vr(u, 2)}, {vr(a, 2)} neg_lo:[1,0,0] neg_hi:[1,0,0]
    v_pk_fma_f32 {vr(a + 2, 2)}, {vr(a + 2, 2)}, {vr(u + 2, 2)}, {vr(a + 2, 2)} neg_lo:[1,0,0] neg_hi:[1,0,0]
    v_cvt_pk_bf16_f32 v{pk}, v{a}, v{a + 1}
    v_cvt_pk_bf16_f32 v{pk + 1}, v{a + 2}, v{a + 3}
    """)


def x_epilogue(p):
    PK, TMP, VO = 192, 228, 224
    p(f"""
    s_mul_i32 s{sT0}, s{sCI}, 44
    s_add_u32 s{sT0}, s{sT0}, s{sL0}
    s_add_u32 s{sT0}, s{sT0}, s{sMH}
    s_add_u32 s{sT0}, s{sT0}, 16
    s_and_b32 s{sT1}, s{sV}, 1
    s_lshl2_add_u32 s{sBX}, s{sT0}, s{sT1}
    s_lshl_b32 s{sBX}, s{sBX}, 11
    s_add_u32 s{sBX}, s{sBX}, {WS_HID}
    s_mul_i32 s{sT2}, s{sT1}, 5120
    v_add_u32 v{VO}, s{sT2}, v{vL16}
    v_xor_b32 v{VO + 1}, 1024, v{VO}
    v_xor_b32 v{VO + 2}, 5120, v{VO}
    v_xor_b32 v{VO + 3}, 4096, v{VO}
    s_mul_i32 s{sT2}, s{sCI}, 6
    s_lshr_b32 s{sT3}, s{sNT}, 2
    s_add_u32 s{sT2}, s{sT2}, s{sT3}
    s_add_u32 s{sT2}, s{sT2}, 2
    s_lshl_b32 s{sT2}, s{sT2}, 8
    s_and_b32 s{sT3}, s{sNT}, 3
    s_lshl1_add_u32 s{sKW}, s{sT3}, s{sMH}
    s_lshl1_add_u32 s{sT3}, s{sT3}, s{sT1}
    s_lshl2_add_u32 s{sMB}, s{sT3}, s{sT2}
    """)
    if p.opt.get("xprio"):
        p(f"s_setprio {p.opt['xprio']}")
    if p.opt.get("hx"):
        p(f"""
        s_mul_i32 s{sT2}, s{sCI}, 12
        s_lshr_b32 s{sT1}, s{sNT}, 2
        s_add_u32 s{sT2}, s{sT2}, s{sT1}
        s_lshl_b32 s{sT2}, s{sT2}, 7
        s_lshl2_add_u32 s{sT2}, s{sT3}, s{sT2}
        """)
        flag_store(p, sT2, WS_FLAGS)
    p(f"s_lshl_b32 s{sT0}, s{sMH}, 14\ns_add_u32 s{sMX}, s{sBX}, 8192\ns_sub_u32 s{sMX}, s{sMX}, s{sT0}")

    def store(u, s, t):
        p.vmem(f"buffer_store_dwordx4 {vr(PK + 4 * (4 * u + 2 * s + t), 4)}, v{VO + 2 * s + t}, s[{S_WS}:{S_WS + 3}], s{sMX if u else sBX} offen sc1", ("act", u))

    def guarded(u, body):
        join = p.label("join")
        p(f"s_cmp_eq_u32 s{sKW}, {7 - u}\ns_cbranch_scc1 {join}")
        body()
        p(f"{join}:")

    def frags(u, L):
        def body():
            for s, t in L:
                pk = PK + 4 * (4 * u + 2 * s + t)
                for e in range(2):
                    mish4(p, xACC + 8 * (4 * u + 2 * s + e) + 4 * t, t, pk + 2 * e, TMP)
                store(u, s, t)
                p.stamp(3 + 4 * u + 2 * s + t, 5)
        if L:
            if p.opt.get("al", 1):
                p(".p2align 3")
            guarded(u, body)
    ST = [(0, 0), (0, 1), (1, 0), (1, 1)]
    frags(0, ST)
    frags(1, ST)
    p.stamp(6)
    o = p.opt
    fa = o.get("fa", 1)

    def flag(u):
        p.wait_vm(("act", u))
        if u == 0:
            lt, hv = p.label("light"), p.label("heavy")
            p(f"s_cmp_ge_u32 s{sKW}, 6\ns_cbranch_scc1 {lt}\n{hv}:")
            p.ool += [f"{lt}:", f"    s_waitcnt vmcnt({len(p.vm) - 1 - p.last(('act', 1))})", f"    s_branch {hv}"]
        flag_store(p, sMB, WS_FLAGS + 128 * u)
        p.stamp(11 + u, 5)
        if u == 1:
            p.stamp(7)
    RA, CV = 60, (56 if o.get('wl', -1) >= 0 else 64)
    NR = 12 if o.get('wl', -1) >= 0 else 13
    p(f"""
    s_lshl_b32 s{sBUF}, s{sV}, 13
    s_add_u32 s{sT0}, s{sBUF}, {3 * 32768}
    v_lshrrev_b32 v{vT0}, 2, v{vL}
    v_bfe_u32 v{vT1}, v{vL}, 3, 2
    v_lshlrev_b32 v{vT0}, 7, v{vT0}
    v_lshl_add_u32 v{vT0}, v{vT1}, 5, v{vT0}
    v_and_b32 v{vT1}, 3, v{vL}
    v_lshl_add_u32 v{vT0}, v{vT1}, 3, v{vT0}
    v_add_u32 v{RA}, s{sT0}, v{vT0}
    v_xor_b32 v{RA + 1}, 32, v{RA}
    v_xor_b32 v{RA + 2}, 64, v{RA}
    v_xor_b32 v{RA + 3}, 96, v{RA}
    s_lshl_b32 s{sBB}, s{sN2}, 7
    """)
    w2_dma_setup(p, CV)
    y_units(p)
    srd(p, S_X, pW2, 1792 * 1024)
    poll_setup(p, f"s_lshl1_add_u32 s{sT0}, s{sV}, s{sT0}\ns_add_u32 s{sT0}, s{sT0}, 4")
    for u in range(fa):
        flag(u)
    p(f"s_setprio {o.get('xprio2', 0)}\ns_barrier")
    p.stamp(10)
    rb = Rebase(RA, 3 * 32768)
    QW = [3, 4, 2, 0, 1, 0, 2]

    def reads(u):
        pre, imm = rb.at(QW[u])
        dst = vB2 + 32 * (u % 4)
        return with_pre(pre, [f"ds_read_b64_tr_b16 {vr(dst + 16 * s + 4 * db + 2 * e, 2)}, v{RA + db} offset:{imm + 4096 * s + 2048 * e}"
                              for s in range(2) for db in range(4) for e in range(2)])
    for u in range(4):
        for x in reads(u):
            p(x)
    for u in range(fa, 2):
        flag(u)
    p("s_waitcnt lgkmcnt(0)")
    if o.get("xs", -2) == -3:
        p("s_barrier")
    poll_issue(p, 0)
    wl = o.get("wl", -1)
    WD = []
    for u in (5, 6):
        sr = sBX if u == 5 else sMX
        p(f"s_lshl_b32 s{sr}, s{sUN + u}, 16\ns_add_u32 s{sr}, s{sr}, s{sBB}")
        for h in range(2):
            for k in range(4):
                def f(u=u, h=h, k=k, sr=sr):
                    if k == 0:
                        p(f"s_add_u32 m0, s{sBUF}, {32768 * QW[u] + 4096 * h}\ns_add_u32 s{sr}, s{sr}, {32768 * h}")
                    p.vmem(f"buffer_load_dwordx4 v{CV + k}, s[{S_X}:{S_X + 3}], s{sr} offen{off(1024 * k)} lds", ("W", u))
                WD.append(f)
    nb = 16 if wl < 0 else o.get("wb", 0)
    for f in WD[:nb]:
        f()
    p(f"s_add_u32 s{sT1}, s{sHID}, {32 * 4096}")
    for i in range(7):
        p(f"s_lshl_b32 s{sUN + i}, s{sUN + i}, 13\ns_add_u32 s{sUN + i}, s{sUN + i}, s{sT1}")
    p.stamp(11)
    pb = o.get("pb", 0)
    xs = o.get("xs", -2)
    if pb == 0:
        poll_check(p, 0)
    if xs == -2:
        p("s_barrier")
    if pb == 1:
        poll_check(p, 0)
    p.stamp(12)
    items = []

    def b2(step):
        return vB2 + 32 * ((step >> 1) % 4) + 16 * (step & 1)
    ts = o.get("ts", 6)
    for step, tb in order(p, 14 - ts):
        items.append((sUN + (step >> 1), step & 1, tb, b2(step), step == 0))
    for tb in range(4):
        for step in range(14 - ts, 14):
            items.append((sUN + (step >> 1), step & 1, tb, b2(step), False))
    pre, post, side = {}, {}, {}
    iB = min(i for i, it in enumerate(items) if it[0] >= sUN + 4)
    use = {u: min(i for i, it in enumerate(items) if it[0] == sUN + u) for u in range(4, 7)}
    pre[iB - o.get('pi', 10)] = lambda: poll_issue(p, 128)
    pre[iB] = lambda: poll_check(p, 128)
    wr = o.get("wr", 1)
    spread(side, WD[nb:], max(wl, 0), wr)
    last_dma = {5: max(wl, 0) + max(0, 7 - nb) // wr if nb < 8 else -99, 6: max(wl, 0) + (15 - nb) // wr if nb < 16 else -99, 4: -99}
    prev_end, ends = 0, []
    for u in range(4, 7):
        R = reads(u)
        if u > 4:
            R = [lambda u=u: p.wait_vm(("W", u))] + R
        a = max(8 * (u - 4) + (8 if o.get('g2', 1) else 5), prev_end, last_dma[u] + o.get("wg", 10))
        lim = use[u] - 1
        per = o.get('rp', 2)
        while True:
            n1 = len(R) - 8
            b = max(8 * (u - 4) + 9, a + -(-n1 // per))
            end = b + -(-8 // per)
            if end <= lim - (6 - u) or per == 8:
                break
            per += 1
        assert end <= lim, (u, a, b, end, lim)
        spread(side, R[:n1], a, per)
        spread(side, R[n1:], b, per)
        ends.append((end, lim))
        prev_end = end
    covered = -1
    for end, lim in ends:
        if end > covered:
            side.setdefault(lim, []).append("s_waitcnt lgkmcnt(0)")
            covered = lim
    pa = max(prev_end, o.get("pa", 32))
    spread(side, partial_addr(), pa, 3)
    assert pa + 3 <= 56 - 3 * ts
    post[o.get("gy", 28)] = lambda: (p.stamp(14), p("s_barrier"))
    post[37] = lambda: p.stamp(15)
    if xs >= 0:
        post[xs] = lambda: p("s_barrier")
    ar = (lambda: p("s_barrier")) if xs == -1 else None
    wp = o.get("wp", 2)
    for tb in range(3):
        i0 = 56 - ts * (3 - tb)
        if o.get("g2", 1):
            side.setdefault(i0, []).extend(["", ""] + pw_list(tb))
            post[i0 + 3] = lambda: p("s_waitcnt lgkmcnt(0)\ns_barrier")
            continue
        if wp == 5:
            Wl = pw_list(tb)
            side.setdefault(i0, []).extend(["", "", Wl[0] + "\n" + Wl[1]])
            side.setdefault(i0 + 1, []).extend([Wl[2], Wl[3]])
            post[i0 + o.get("tb", 2)] = lambda: p("s_waitcnt lgkmcnt(0)\ns_barrier")
            continue
        spread(side, pw_list(tb), i0 + 1, wp)
        post[i0 + 4 // wp + o.get("tb", 1)] = lambda: p("s_waitcnt lgkmcnt(0)\ns_barrier")

    def last():
        p.stamp(13)
        p("s_nop 4")
        partial_write(p, 3)
        p("s_waitcnt lgkmcnt(0)\ns_barrier")
    post[55] = last
    if o.get("dbm"):
        g0 = 56 - ts
        W2 = pw_list(2)
        side[(g0, 0, 4)] = W2[0:1]
        side[(g0, 0, 5)] = W2[1:2]
        side[(g0, 1, 0)] = W2[2:3]
        side[(g0, 1, 1)] = W2[3:4]
        side[(g0, 1, 4)] = ["s_waitcnt lgkmcnt(0)", "s_barrier"]
        ph2_loop(p, items, pre, post, side, o.get('ramp', 5), ar, NR, tail=(g0, ts))
    else:
        ph2_loop(p, items, pre, post, side, o.get('ramp', 5), ar, NR)
    p(f"""
    s_lshl3_add_u32 s{sT0}, s{sN2}, s{sV}
    s_lshl_b32 s{sT0}, s{sT0}, 5
    s_add_u32 s{sT0}, s{sT0}, s{sM2}
    s_cmp_lg_u32 s{sT0}, 31
    s_cbranch_scc1 L_fin
    s_mov_b64 exec, 1
    buffer_store_dword v{vTAG}, off, s[{S_WS}:{S_WS + 3}], 0 sc1
    """)


fA = 142


def fin_regs(p):
    return (48, 56, vT2) if p.opt.get("ef") else (128, 136, 140)


def final_loads(p):
    fX, fS, fD = fin_regs(p)
    A = 64 if p.opt.get("ef") else 148
    srd(p, S_X, pX, 2048 * 1024)
    srd(p, S_W, pOUT, 2048 * 2048)
    p(f"""
    s_lshl2_add_u32 s{sT0}, s{sM2}, s{sV}
    s_lshl_b32 s{sKX}, s{sT0}, 14
    s_lshl_b32 s{sT1}, s{sN2}, 7
    s_add_u32 s{sKX}, s{sKX}, s{sT1}
    s_lshl_b32 s{sT0}, s{sT0}, 7
    s_add_u32 s{sT0}, s{sT0}, {WS_STATS}
    v_lshrrev_b32 v{A}, 4, v{vL}
    v_and_b32 v{A + 1}, 15, v{vL}
    v_lshlrev_b32 v{A + 2}, 3, v{A + 1}
    v_lshl_add_u32 v{A + 3}, v{A}, 10, v{A + 2}
    v_lshlrev_b32 v{A}, 3, v{A}
    v_add_u32 v{A + 2}, s{sT1}, v{A + 2}
    s_mov_b32 s{sKB}, s{sKX}
    """)
    for tb in range(4):
        p.vmem(f"buffer_load_dwordx2 {vr(fX + 2 * tb, 2)}, v{A + 3}, s[{S_X}:{S_X + 3}], s{sKB} offen", "fin")
        p.vmem(f"buffer_load_dword v{fS + tb}, v{A}, s[{S_WS}:{S_WS + 3}], s{sT0} offen{off(32 * tb)} sc1", "fin")
        if tb < 3:
            p(f"s_add_u32 s{sKB}, s{sKB}, 4096")
    p.vmem(f"global_load_dwordx2 {vr(fD, 2)}, v{A + 2}, s[{pD}:{pD + 1}]", "fin")


def final(p):
    XF, SS, DD = 160, 176, 148
    RY, RF = fA + 4, fA + 5
    fX, fS, fD = fin_regs(p)
    p.wait_vm("fin")
    p(f"""
    v_lshrrev_b32 v{fA}, 4, v{vL}
    v_and_b32 v{fA + 1}, 15, v{vL}
    v_lshlrev_b32 v{fA + 3}, 3, v{fA + 1}
    v_lshl_add_u32 v{fA + 3}, v{fA}, 10, v{fA + 3}
    s_lshl_b32 s{sT0}, s{sV}, 2
    v_add_u32 v{RF}, s{sT0}, v{fA}
    v_xor_b32 v{RF}, v{RF}, v{fA + 1}
    v_lshlrev_b32 v{RF}, 4, v{RF}
    v_lshl_add_u32 v{RF}, v{fA + 1}, 8, v{RF}
    v_add_u32 v{RY}, {3 * 32768}, v{RF}
    v_lshlrev_b32 v{fA + 3}, 1, v{fA + 3}
    s_lshl_b32 s{sKX}, s{sKX}, 1
    s_mov_b32 s{sT2}, {LN2}
    v_lshlrev_b32 v{DD}, 16, v{fD}
    v_and_b32 v{DD + 1}, s{sMASK}, v{fD}
    v_lshlrev_b32 v{DD + 2}, 16, v{fD + 1}
    v_and_b32 v{DD + 3}, s{sMASK}, v{fD + 1}
    """)
    for tb in range(4):
        x, s = XF + 4 * tb, SS + 4 * tb
        p(f"""
        v_and_b32 v153, s{sMASK}, v{fS + tb}
        v_rcp_f32 v153, v153
        v_lshlrev_b32 v152, 16, v{fS + tb}
        v_lshlrev_b32 v{x}, 16, v{fX + 2 * tb}
        v_and_b32 v{x + 1}, s{sMASK}, v{fX + 2 * tb}
        v_lshlrev_b32 v{x + 2}, 16, v{fX + 2 * tb + 1}
        v_and_b32 v{x + 3}, s{sMASK}, v{fX + 2 * tb + 1}
        """)
        for k in range(4):
            p(f"v_sub_f32 v{s + k}, v{x + k}, v152")
        for k in range(4):
            p(f"v_mul_f32 v{s + k}, v153, v{s + k}")
    p.stamp(10, 6)
    p("s_waitcnt lgkmcnt(0)\ns_barrier")
    p.stamp(14)
    p.stamp(11, 6)
    Y = 64
    for tb in range(4):
        for w in range(4):
            p(f"ds_read_b128 {vr(Y + 16 * tb + 4 * w, 4)}, v{RY} offset:{8192 * w + 32768 * (tb >> 1) + 4096 * (tb & 1)}")
    for tb in range(4):
        p(f"s_waitcnt lgkmcnt({12 - 4 * tb})")
        y, s = Y + 16 * tb, SS + 4 * tb
        for k in range(4):
            p(f"v_fma_f32 v{s + k}, v{s + k}, v{DD + k}, v{y + k}")
            p(f"v_add_f32 v{y + 4 + k}, v{y + 4 + k}, v{y + 8 + k}")
        for k in range(4):
            p(f"v_add_f32 v{s + k}, v{s + k}, v{y + 12 + k}")
        for k in range(4):
            p(f"v_add_f32 v{s + k}, v{s + k}, v{y + 4 + k}")
        for k in range(4):
            p(f"v_mul_f32 v{s + k}, s{sT2}, v{s + k}")
    fp = p.opt.get("fp", 0)
    deferred = []
    for tb in range(4):
        F = Y + 16 * tb
        x, s = XF + 4 * tb, SS + 4 * tb
        p.stamp(12 + tb, 6)
        p("s_barrier")
        if tb == 3:
            p.stamp(15)
        for w in range(4):
            p(f"ds_read_b128 {vr(F + 4 * w, 4)}, v{RF} offset:{8192 * w + 32768 * (tb >> 1) + 4096 * (tb & 1)}")
        p.l += deferred
        e = F + 4
        if tb < 3:
            p("s_waitcnt lgkmcnt(2)")
            for k in range(4):
                p(f"v_add_f32 v{F + k}, v{F + k}, v{F + 4 + k}")
            p("s_waitcnt lgkmcnt(0)")
            for k in range(4):
                p(f"v_add_f32 v{F + 8 + k}, v{F + 8 + k}, v{F + 12 + k}")
            for k in range(4):
                p(f"v_add_f32 v{F + k}, v{F + k}, v{F + 8 + k}")
            for k in range(4):
                p(f"v_exp_f32_e64 v{e + k}, -v{F + k}")
            for k in range(4):
                p(f"v_mul_f32 v{s + k}, v{s + k}, v{F + k}")
            for k in range(4):
                p(f"v_add_f32 v{e + k}, 1.0, v{e + k}")
            for k in range(4):
                p(f"v_rcp_f32 v{e + k}, v{e + k}")
            p("s_nop 0")
            for k in range(4):
                p(f"v_fmac_f32 v{x + k}, v{s + k}, v{e + k}")
        else:
            p("s_waitcnt lgkmcnt(2)")
            for h in (0, 2):
                p(f"v_pk_add_f32 {vr(F + h, 2)}, {vr(F + h, 2)}, {vr(F + 4 + h, 2)}")
            p("s_waitcnt lgkmcnt(0)")
            for h in (0, 2):
                p(f"v_pk_add_f32 {vr(F + 8 + h, 2)}, {vr(F + 8 + h, 2)}, {vr(F + 12 + h, 2)}")
            for h in (0, 2):
                p(f"v_pk_add_f32 {vr(F + h, 2)}, {vr(F + h, 2)}, {vr(F + 8 + h, 2)}")
            for k in range(4):
                p(f"v_exp_f32_e64 v{e + k}, -v{F + k}")
            for h in (0, 2):
                p(f"v_pk_mul_f32 {vr(s + h, 2)}, {vr(s + h, 2)}, {vr(F + h, 2)}")
            for h in (0, 2):
                p(f"v_pk_add_f32 {vr(e + h, 2)}, {vr(e + h, 2)}, 1.0 op_sel_hi:[1,0]")
            for k in range(4):
                p(f"v_rcp_f32 v{e + k}, v{e + k}")
            for h in (0, 2):
                p(f"v_pk_fma_f32 {vr(x + h, 2)}, {vr(s + h, 2)}, {vr(e + h, 2)}, {vr(x + h, 2)}")
        p(f"buffer_store_dwordx4 {vr(x, 4)}, v{fA + 3}, s[{S_W}:{S_W + 3}], s{sKX} offen {'sc1' if tb < 4 - p.opt.get('op', 0) else p.opt.get('of', '')}")
        if tb < 3:
            p(f"s_add_u32 s{sKX}, s{sKX}, 8192")
            if fp:
                deferred, p.l = p.l[-fp:], p.l[:-fp]


def finish(p):
    p("L_fin:")
    if p.opt.get("stamps"):
        p.stamp(8)
        p("s_waitcnt vmcnt(0)")
        p.stamp(9)
        p.stamp(9, 9)
        if "probe" in p.opt:
            p(f"""
            s_lshl_b32 s{sT0}, 1, s{sW}
            s_and_b32 s{sT0}, s{sT0}, {p.opt.get('pw', 255)}
            s_cmp_eq_u32 s{sT0}, 0
            s_cbranch_scc1 L_end
            s_add_u32 s{sT0}, s{STAMP_REGS[p.opt['probe']]}, 5000
            L_probe:
            s_memrealtime s[34:35]
            s_waitcnt lgkmcnt(0)
            s_sub_u32 s{sT1}, s34, s{sT0}
            s_cmp_lt_i32 s{sT1}, 0
            s_cbranch_scc1 L_probe
            s_branch L_end
            """)
        p(f"""
        s_mov_b64 exec, 1
        s_lshl3_add_u32 s{sT0}, s2, s{sW}
        s_lshl_b32 s{sT0}, s{sT0}, 6
        s_add_u32 s{sT0}, s{sT0}, {WS_STAMP}
        """)
        for i in range(16):
            p(f"v_mov_b32 v8, s{STAMP_REGS[i]}\nbuffer_store_dword v8, off, s[{S_WS}:{S_WS + 3}], s{sT0} offset:{4 * i}")
    p("s_endpgm")
    p.l += p.ool
    p("L_end:\ns_endpgm")


DOC = """;
;    8 rows and hands them to the others; column sums come from MFMAs with an all-ones operand.
;  * phase 1, tile 128 rows x (32 complex channels + 128 (or 64) MLP columns), operands staged by LDS-DMA:
;      pass S: waves 0-3 ("Y") multiply x by B_re/B_im, waves 4-7 ("X") issue the DMA and keep their x fragments;
;      pass M: X multiplies x by w1 while Y finishes the scan and stages the phase-2 weights; then Mish.
;  * phase 2, tile 64 x 64, K split over the waves (Y: h.C, X: act.w2), weights in registers, partial sums reduced
;    launch is never taken for this launch's; payloads, flags and polls use agent-coherent accesses (any placement).
;
"""


def build(opt):
    global WS_HID
    WS_HID = opt.get("hid", 2) << 20
    p = P(opt)
    entry(p)
    st0 = p.save()
    y_prologue(p)
    y_pass_s(p)
    y_window(p)
    st = y_pass_m(p)
    y_ph2(p, st)
    p.restore(st0)
    x_pass_s(p)
    x_pass_m(p)
    x_epilogue(p)
    finish(p)
    L = p.l
    iy, ix0, ix1 = L.index("@YCUT"), L.index("L_X:"), L.index("@XCUT")
    if opt.get("lay", 1):
        L = L[:iy] + ["    s_branch L_Y2"] + L[ix0:ix1] + ["    s_branch L_X2", "L_Y2:"] + L[iy + 1:ix0] + ["L_X2:"] + L[ix1 + 1:]
    else:
        L = [x for x in L if not x.startswith("@")]
    p.l = L
    t = HEAD + f"; @launch grid=(256,1,1) block=(512,1,1) lds={LDS_BYTES}\n" + '.amdgcn_target "amdgcn-amd-amdhsa--gfx950"\n' + DOC
    t += kernel_text(KN + "_kernel", p.text(), vgpr=256, sgpr=102, accum=256)
    return t


if __name__ == "__main__":
    out = sys.argv[1]
    opt = {}
    for a in sys.argv[2:]:
        k, v = a.split("=")
        opt[k] = int(v) if v.lstrip("-").isdigit() else v
    open(out, "w").write(build(opt))
```

```python
import sys
from gen import HEAD, KN, kernel_text

WS_STATS = 4096
WS_CARRY = 64 << 10
WS_FLAGS = 1 << 20
WS_HID = 2 << 20
WS_STAMP = 200 << 20
WS_BYTES = 0x10000000
MISC, XR, BR, WR, CR, PKR = 0, 8192, 139264, 8192, 0, 65536
L_M, L_R, L_MS, L_EXT, L_S = MISC, MISC + 512, MISC + 1024, MISC + 2048, MISC + 3072
LDS_BYTES = 163840
LOG2E = 0x3fb8aa3b
LN2 = 0x3f317218

S_X, S_B, S_W, S_WS = 4, 8, 12, 16
sT0, sT1, sT2, sT3 = 20, 21, 22, 23
sW, sXCD, sJ, sMT, sNT, sL0, sC0, sM2, sN2, sV = 24, 25, 26, 27, 28, 29, 30, 31, 32, 33
pX, pLRE, pLIM, pBRE, pBIM, pCRE, pCIM, pDT, pD, pW1, pB1, pW2, pOUT, pWS = 36, 38, 40, 42, 44, 46, 48, 50, 52, 56, 58, 60, 62, 66
sKX, sKB, sKW, sBX, sBB, sBW, sMX, sMB, sMASK, sSPIN = 68, 69, 70, 71, 72, 73, 74, 75, 76, 77
sUN = 78
sBUF, sHID, sFLG, sCI, sMH, sMW, sG0 = 85, 86, 87, 88, 89, 90, 91
STAMP_REGS = list(range(92, 102)) + [3, 54, 55, 64, 65, 0]
SPIN_MAX = 400000
NAMES_Y = ["-", "stpub", "G0", "Send", "G8", "G17", "gath", "hst", "fin", "end", "GC", "wiss", "flh", "ydone", "Gy", "T3"]
NAMES_X = ["-", "dma0", "c0", "w1iss", "G8", "Mend", "mish", "flB", "-", "end", "GC", "staged", "go", "lastmf", "gy", "i37"]
ORD = [0, 1, 2, 3, 4, 5, 6, 7, 10, 11, 12, 14, 15, 13, 8, 9]


class P:
    def __init__(self, opt):
        self.l = []
        self.vm = []
        self.done = -1
        self.opt = opt
        self.nlab = 0
        self.ool = []
        self.fs = opt.get("fs", 128)

    def __call__(self, s):
        for x in s.strip("\n").split("\n"):
            x = x.strip()
            if not x:
                continue
            self.l.append(x if x.endswith(":") else "    " + x)

    def vmem(self, s, tag=None):
        self(s)
        self.vm.append(tag)

    def last(self, tag):
        return max(i for i, t in enumerate(self.vm) if t == tag)

    def wait_vm(self, tag):
        idx = self.last(tag)
        if idx <= self.done:
            return
        n = len(self.vm) - 1 - idx
        assert n <= 63, n
        self(f"s_waitcnt vmcnt({n})")
        self.done = idx

    def save(self):
        return (list(self.vm), self.done)

    def restore(self, st):
        self.vm, self.done = list(st[0]), st[1]

    def label(self, base):
        self.nlab += 1
        return f"L_{base}_{self.nlab}"

    def stamp(self, i, group=0):
        if self.opt.get("stamps") and self.opt.get("sg", 0) == group:
            op = "s_memtime" if self.opt["stamps"] == 2 else "s_memrealtime"
            self(f"{op} s[34:35]\ns_waitcnt lgkmcnt(0)\ns_mov_b32 s{STAMP_REGS[i]}, s34")

    def nt(self, key, c=0):
        return " nt" if c < self.opt.get(key, 0) else ""

    def raw(self, i):
        if self.opt.get("stamps") and self.opt.get("sg", 0) == 4:
            self(f"s_memrealtime s[{92 + 2 * i}:{93 + 2 * i}]")

    def text(self):
        return "\n".join(self.l) + "\n"


def vr(a, n=1):
    return f"v{a}" if n == 1 else f"v[{a}:{a + n - 1}]"


def off(o):
    return f" offset:{o}" if o else ""


def srd(p, d, ptr, nbytes):
    p(f"""
    s_mov_b32 s{d}, s{ptr}
    s_mov_b32 s{d + 1}, s{ptr + 1}
    s_mov_b32 s{d + 2}, {nbytes}
    s_mov_b32 s{d + 3}, 0x00020000
    """)


def mfma(d, a, b, first=False):
    return f"v_mfma_f32_16x16x32_bf16 {vr(d, 4)}, {vr(a, 4)}, {vr(b, 4)}, {'0' if first else vr(d, 4)}"


def mfma16(d, a, b, first=False):
    return f"v_mfma_f32_16x16x16_bf16 {vr(d, 4)}, {vr(a, 2)}, {vr(b, 2)}, {'0' if first else vr(d, 4)}"


vL, vTAG, vT0, vT1, vT2, vT3, vL16, vL16B = 0, 1, 2, 3, 4, 5, 6, 7


def rowfrag_addr(p, dst):
    p(f"""
    v_and_b32 v{vT0}, 15, v{vL}
    v_bfe_u32 v{vT1}, v{vL}, 1, 3
    v_lshrrev_b32 v{vT2}, 4, v{vL}
    v_xor_b32 v{vT1}, v{vT1}, v{vT2}
    v_lshlrev_b32 v{vT1}, 4, v{vT1}
    v_lshl_add_u32 v{dst}, v{vT0}, 7, v{vT1}
    """)


def w1_tr_addr0(p, dst):
    p(f"""
    v_lshrrev_b32 v{vT0}, 4, v{vL}
    v_bfe_u32 v{vT1}, v{vL}, 2, 2
    v_lshl_add_u32 v{vT2}, v{vT0}, 3, v{vT1}
    v_lshlrev_b32 v{vT2}, 8, v{vT2}
    v_lshl_add_u32 v{vT2}, v{vT1}, 6, v{vT2}
    v_and_b32 v{vT0}, 1, v{vT0}
    v_lshl_add_u32 v{vT2}, v{vT0}, 5, v{vT2}
    v_and_b32 v{vT1}, 3, v{vL}
    v_lshl_add_u32 v{vT2}, v{vT1}, 3, v{vT2}
    v_add_u32 v{dst}, {WR}, v{vT2}
    """)


def w1_dma_setup(p, vow):
    p(f"""
    v_lshrrev_b32 v{vT0}, 4, v{vL}
    v_bfe_u32 v{vT1}, v{vL}, 1, 3
    s_and_b32 s{sT0}, s{sV}, 1
    v_lshl_or_b32 v{vT2}, v{vT0}, 1, s{sT0}
    v_xor_b32 v{vT1}, v{vT1}, v{vT2}
    v_mul_u32_u24 v{vow}, 3584, v{vT0}
    v_lshl_add_u32 v{vow}, v{vT1}, 5, v{vow}
    v_and_b32 v{vT2}, 1, v{vL}
    v_lshl_add_u32 v{vow}, v{vT2}, 4, v{vow}
    s_and_b32 s{sT1}, s{sNT}, 3
    s_cmp_eq_u32 s{sT1}, 3
    s_cselect_b32 s{sT1}, 0x40000000, 0
    v_lshrrev_b32 v{vT1}, 2, v{vT1}
    v_mul_lo_u32 v{vT1}, v{vT1}, s{sT1}
    v_add_u32 v{vow}, v{vow}, v{vT1}
    v_add_u32 v{vow + 1}, 13312, v{vow}
    s_lshl_b32 s{sBW}, s{sL0}, 7
    s_mul_i32 s{sT2}, s{sV}, {8 * 3584}
    s_add_u32 s{sBW}, s{sBW}, s{sT2}
    s_lshl_b32 s{sMW}, s{sV}, 11
    """)


def w1_dma(p, c, vow):
    L = []
    for s in range(2):
        slot = (2 * c + s) % 7

        def a(s=s, slot=slot):
            if s == 0:
                p(f"""
                s_add_u32 s{sT0}, s{sC0}, {c}
                s_and_b32 s{sT0}, s{sT0}, 7
                s_mul_i32 s{sT0}, s{sT0}, {64 * 3584}
                s_add_u32 m0, s{sMW}, {WR + slot * 8192}
                s_add_u32 s{sKW}, s{sBW}, s{sT0}
                """)
            else:
                p(f"s_add_u32 m0, s{sMW}, {WR + slot * 8192}\ns_add_u32 s{sKW}, s{sKW}, {32 * 3584}")
            p.vmem(f"buffer_load_dwordx4 v{vow}, s[{S_W}:{S_W + 3}], s{sKW} offen{p.nt('ntw', c)} lds", ("w", c))
        L.append(a)
        L.append(lambda: p.vmem(f"buffer_load_dwordx4 v{vow + 1}, s[{S_W}:{S_W + 3}], s{sKW} offen offset:1024{p.nt('ntw', c)} lds", ("w", c)))
    return L


def c_dma_setup(p, vo):
    p(f"""
    v_lshrrev_b32 v{vT0}, 4, v{vL}
    v_and_b32 v{vT1}, 7, v{vL}
    v_xor_b32 v{vT0}, v{vT0}, v{vT1}
    v_lshlrev_b32 v{vT0}, 4, v{vT0}
    v_lshrrev_b32 v{vT1}, 3, v{vL}
    v_lshl_add_u32 v{vo}, v{vT1}, 10, v{vT0}
    v_xor_b32 v{vo + 1}, 64, v{vo}
    v_add_u32 v{vo + 1}, 7168, v{vo + 1}
    v_add_u32 v{vo + 2}, 14336, v{vo}
    v_add_u32 v{vo + 3}, 14336, v{vo + 1}
    """)


def make_tag(p):
    p(f"""
    s_mov_b32 s{sT0}, 0x9E3779B1
    v_mul_lo_u32 v{vTAG}, v{vTAG}, s{sT0}
    v_add_u32 v{vTAG}, 0x7F4A7C15, v{vTAG}
    """)


def retry(p, cond, test, reload):
    chk, ok, rt = p.label("chk"), p.label("ok"), p.label("retry")
    p(f"{chk}:")
    test()
    p(f"{cond} {rt}\n{ok}:")
    main, p.l = p.l, []
    p(f"""
    {rt}:
    s_sub_u32 s{sSPIN}, s{sSPIN}, 1
    s_cmp_gt_i32 s{sSPIN}, 0
    s_cbranch_scc0 {ok}
    """)
    reload()
    p(f"s_branch {chk}")
    p.ool += p.l
    p.l = main


sPF = 8


def poll_setup(p, grp_expr):
    p(f"""
    s_mul_i32 s{sT0}, s{sM2}, 12
    {grp_expr}
    s_lshl_b32 s{sT0}, s{sT0}, 7
    s_add_u32 s{sT0}, s{sT0}, {WS_FLAGS}
    s_add_u32 s42, s{pWS}, s{sT0}
    s_addc_u32 s43, s{pWS + 1}, 0
    v_readfirstlane_b32 s40, v{vTAG}
    v_readfirstlane_b32 s41, v{vTAG}
    """)


def poll_issue(p, o_, sPF=sPF):
    p(f"s_load_dwordx8 s[{sPF}:{sPF + 7}], s[42:43], {o_} glc")


def poll_check(p, o_, sPF=sPF):
    def test():
        p("s_waitcnt lgkmcnt(0)")
        for k in range(0, 8, 2):
            p(f"s_xor_b64 s[{sPF + k}:{sPF + k + 1}], s[{sPF + k}:{sPF + k + 1}], s[40:41]")
        p(f"""
        s_or_b64 s[{sPF}:{sPF + 1}], s[{sPF}:{sPF + 1}], s[{sPF + 2}:{sPF + 3}]
        s_or_b64 s[{sPF + 4}:{sPF + 5}], s[{sPF + 4}:{sPF + 5}], s[{sPF + 6}:{sPF + 7}]
        s_or_b64 s[{sPF}:{sPF + 1}], s[{sPF}:{sPF + 1}], s[{sPF + 4}:{sPF + 5}]
        """)
    retry(p, "s_cbranch_scc1", test, lambda: poll_issue(p, o_, sPF))


def delay_until(p, us):
    assert p.opt.get("stamps")
    lab = p.label("dly")
    p(f"""
    s_waitcnt vmcnt(0)
    s_add_u32 s{sT0}, s100, {int(us * 100)}
    {lab}:
    s_memrealtime s[34:35]
    s_waitcnt lgkmcnt(0)
    s_sub_u32 s{sT1}, s34, s{sT0}
    s_cmp_lt_i32 s{sT1}, 0
    s_cbranch_scc1 {lab}
    """)


def flag_store(p, sreg, add):
    p(f"s_add_u32 s{sT0}, s{sreg}, {add}\ns_mov_b64 exec, 1")
    p.vmem(f"buffer_store_dword v{vTAG}, off, s[{S_WS}:{S_WS + 3}], s{sT0} sc1", "flag")
    p("s_mov_b64 exec, -1")


def cmul(p, d, a, b, add=None):
    if add is None:
        p(f"v_pk_mul_f32 {vr(d, 2)}, {vr(a, 2)}, {vr(b, 2)} op_sel_hi:[0,1]")
    else:
        p(f"v_pk_fma_f32 {vr(d, 2)}, {vr(a, 2)}, {vr(b, 2)}, {vr(add, 2)} op_sel_hi:[0,1,1]")
    p(f"v_pk_fma_f32 {vr(d, 2)}, {vr(a, 2)}, {vr(b, 2)}, {vr(d, 2)} op_sel:[1,1,0] op_sel_hi:[1,0,1] neg_lo:[0,1,0]")


def entry(p):
    o = p.opt
    p(f"""
    s_load_dwordx16 s[36:51], s[0:1], 0
    s_load_dwordx16 s[52:67], s[0:1], 64
    s_getpc_b64 s[34:35]
    L_pc:
    s_cmp_ge_u32 s2, 256
    s_cbranch_scc1 L_end
    v_lshrrev_b32 v{vT0}, 6, v0
    s_lshr_b32 s{sJ}, s2, 3
    v_and_b32 v{vL}, 63, v0
    v_readfirstlane_b32 s{sW}, v{vT0}
    v_lshl_add_u32 v{vT0}, s{sJ}, 3, v{vT0}
    v_lshlrev_b32 v{vT0}, 7, v{vT0}
    v_min_u32 v{vT0}, L_end-L_pc, v{vT0}
    """)
    p.vmem(f"global_load_dword v255, v{vT0}, s[34:35]", "pf")
    if o.get("stamps"):
        p(("s_memtime" if o["stamps"] == 2 else "s_memrealtime") + " s[92:93]")
        if o.get("sg", 0) != 4:
            p("s_memrealtime s[100:101]")
    p(f"s_and_b32 s{sXCD}, s2, 7")
    if o.get("part", 24) == 24:
        p(f"""
        s_and_b32 s{sT0}, s{sJ}, 7
        s_lshr_b32 s{sT1}, s{sJ}, 3
        s_lshr_b32 s{sMT}, s{sXCD}, 2
        s_lshl3_add_u32 s{sMT}, s{sMT}, s{sT0}
        s_and_b32 s{sT2}, s{sXCD}, 3
        s_lshl2_add_u32 s{sNT}, s{sT2}, s{sT1}
        """)
    else:
        p(f"""
        s_and_b32 s{sT0}, s{sJ}, 3
        s_lshr_b32 s{sT1}, s{sJ}, 2
        s_lshr_b32 s{sMT}, s{sXCD}, 1
        s_lshl2_add_u32 s{sMT}, s{sMT}, s{sT0}
        s_and_b32 s{sT2}, s{sXCD}, 1
        s_lshl3_add_u32 s{sNT}, s{sT2}, s{sT1}
        """)
    rm, rn, rx, ry = o.get("rm", 1), o.get("rn", 2), o.get("rx", 1), o.get("ry", 0)
    p(f"""
    s_mul_i32 s{sC0}, s{sT0}, {rm}
    s_mul_i32 s{sT1}, s{sT1}, {rn}
    s_add_u32 s{sC0}, s{sC0}, s{sT1}
    s_mul_i32 s{sT1}, s{sXCD}, {rx}
    s_add_u32 s{sC0}, s{sC0}, s{sT1}
    """)
    if ry:
        p(f"s_lshr_b32 s{sT1}, s{sXCD}, 2\ns_mul_i32 s{sT1}, s{sT1}, {ry}\ns_add_u32 s{sC0}, s{sC0}, s{sT1}")
    p(f"""
    s_and_b32 s{sV}, s{sW}, 3
    s_lshr_b32 s{sMH}, s{sV}, 1
    s_cmp_ge_u32 s{sW}, 4
    s_cbranch_scc1 L_X
    """)


def late_ids(p):
    p(f"""
    s_lshr_b32 s{sT0}, s{sNT}, 2
    s_lshl_b32 s{sL0}, s{sNT}, 1
    s_sub_u32 s{sL0}, s{sL0}, s{sT0}
    """)
    if p.opt.get("part2", 81) == 81:
        p(f"""
        s_and_b32 s{sFLG}, s{sJ}, 3
        s_lshl2_add_u32 s{sM2}, s{sXCD}, s{sFLG}
        s_lshr_b32 s{sN2}, s{sJ}, 2
        s_xor_b32 s{sN2}, s{sN2}, {p.opt.get('nx', 5)}
        """)
    else:
        p(f"""
        s_and_b32 s{sFLG}, s{sJ}, 7
        s_lshr_b32 s{sT0}, s{sXCD}, 1
        s_lshl3_add_u32 s{sM2}, s{sT0}, s{sFLG}
        s_and_b32 s{sT0}, s{sXCD}, 1
        s_lshr_b32 s{sN2}, s{sJ}, 3
        s_lshl2_add_u32 s{sN2}, s{sT0}, s{sN2}
        """)
    p(f"""
    s_mov_b32 s{sSPIN}, {SPIN_MAX}
    s_lshl1_add_u32 s{sCI}, s{sMT}, s{sMH}
    s_mov_b32 s{sMASK}, 0xffff0000
    s_mul_i32 s{sFLG}, s{sFLG}, {p.opt.get('rs2', 0)}
    s_mul_i32 s{sT0}, s{sXCD}, {p.opt.get('rx2', 1)}
    s_add_u32 s{sFLG}, s{sFLG}, s{sT0}
    s_add_u32 s{sG0}, s{sFLG}, {('s%d' % sN2) if p.opt.get('rot2', 1) else 0}
    s_and_b32 s{sG0}, s{sG0}, 1
    s_mul_i32 s{sHID}, s{sM2}, {352 * 1024}
    s_add_u32 s{sHID}, s{sHID}, {WS_HID}
    v_lshlrev_b32 v{vL16}, 4, v{vL}
    v_add_u32 v{vL16B}, 4096, v{vL16}
    """)


vRING, NRING, vACC2, vB2 = 8, 12, 64, 128
vPW = 60


def ph2_loop(p, items, hooks_pre, hooks_post, side, ramp, after_ramp=None, NRING=NRING, depth=None, tail=None):
    n = len(items)

    def load(g):
        if g in hooks_pre:
            hooks_pre[g]()
        sreg, second, tb, _, _ = items[g]
        r = vRING + 4 * (g % NRING)
        p.vmem(f"buffer_load_dwordx4 {vr(r, 4)}, v{vL16B if second else vL16}, s[{S_WS}:{S_WS + 3}], s{sreg} offen{off(1024 * (tb ^ second))} sc1", ("a", g))
    depth = depth or p.opt.get("depth", 10)
    assert depth < NRING
    issued = 0
    for g in range(ramp):
        load(g)
        issued += 1
    if after_ramp:
        after_ramp()
    p.stamp(1, 6)
    nreg = n if tail is None else tail[0]
    if p.opt.get("g2", 1):
        for g in range(0, nreg, 2):
            tb = items[g][2]
            assert items[g + 1][2] == tb
            sd = side.get(g, []) + side.get(g + 1, [])
            for i in range(8):
                db, k = divmod(i, 2)
                if i == 0:
                    p.wait_vm(("a", g + 1))
                p(mfma(vACC2 + 16 * tb + 4 * db, items[g + k][3] + 4 * db, vRING + 4 * ((g + k) % NRING), items[g + k][4]))
                if k == 1 and issued < n and issued <= g + depth + (db >= p.opt.get("g2l", 1)):
                    assert issued - NRING < g
                    load(issued)
                    issued += 1
                if k == 1 and db >= 1:
                    m = -(-len(sd) // (4 - db))
                    for x in sd[:m]:
                        x() if callable(x) else p(x)
                    sd = sd[m:]
            for x in sd:
                x() if callable(x) else p(x)
            for k in range(2):
                if g + k in hooks_post:
                    hooks_post[g + k]()
            if g % 4 == 2:
                p.stamp(2 + g // 4, 6)
    for g in range(0 if p.opt.get("g2", 1) else nreg):
        _, _, tb, b2, first = items[g]
        p.wait_vm(("a", g))
        r = vRING + 4 * (g % NRING)
        sd = side.get(g, [])
        for db in range(4):
            p(mfma(vACC2 + 16 * tb + 4 * db, b2 + 4 * db, r, first))
            if db in (0, 2) and issued < n and issued <= g + depth:
                load(issued)
                issued += 1
            if db >= 1:
                k = -(-len(sd) // (4 - db))
                for x in sd[:k]:
                    x() if callable(x) else p(x)
                sd = sd[k:]
        if g in hooks_post:
            hooks_post[g]()
        if g % 4 == 3:
            p.stamp(2 + g // 4, 6)
    if tail is None:
        return
    _, ts = tail
    pend = None
    for g0 in range(nreg, n, ts):
        tb = items[g0][2]
        W = pw_list(tb)
        for db in range(4):
            for k in range(ts):
                g = g0 + k
                if db == 0:
                    p.wait_vm(("a", g))
                p(mfma(vACC2 + 16 * tb + 4 * db, items[g][3] + 4 * db, vRING + 4 * (g % NRING), False))
                free = g if db == 3 else g0 - 1
                if (k & 1 or db == 3) and issued < n and issued - NRING < free:
                    load(issued)
                    issued += 1
                if k == ts - 1 and pend is not None:
                    p("s_nop 1" if db else "s_nop 0")
                    p(pend)
                    pend = None
                if db == 1 and k == 2 and g0 > nreg:
                    p("s_waitcnt lgkmcnt(0)\ns_barrier")
                for x in side.get((g0, db, k), []):
                    p(x)
            pend = W[db]
    p.stamp(13)
    p("s_nop 7")
    p(pend)
    p("s_waitcnt lgkmcnt(0)\ns_barrier")


def order(p, nsteps):
    if p.opt.get("g2", 1):
        return [(2 * u + s, tb) for u in range(nsteps // 2) for tb in range(4) for s in range(2)]
    return [(step, tb) for step in range(nsteps) for tb in range(4)]


def spread(side, L, start, per):
    for i in range(0, len(L), per):
        side.setdefault(start + i // per, []).extend(L[i:i + per])


def partial_addr():
    return f"""v_lshrrev_b32 v{vT0}, 4, v{vL}
    v_and_b32 v{vT1}, 15, v{vL}
    v_xor_b32 v{vT1}, v{vT1}, v{vT0}
    v_lshlrev_b32 v{vT1}, 4, v{vT1}
    v_lshl_add_u32 v{vT1}, v{vT0}, 8, v{vT1}
    v_add_u32 v{vPW}, s{sBUF}, v{vT1}
    v_xor_b32 v{vPW + 1}, 64, v{vPW}
    v_xor_b32 v{vPW + 2}, 128, v{vPW}
    v_xor_b32 v{vPW + 3}, 192, v{vPW}""".split("\n")


def pw_list(tb):
    o_ = 32768 * (tb >> 1) + 4096 * (tb & 1)
    return [f"ds_write_b128 v{vPW + db}, {vr(vACC2 + 16 * tb + 4 * db, 4)} offset:{o_ + 1024 * db}" for db in range(4)]


def partial_write(p, tb):
    for x in pw_list(tb):
        p(x)


yAX, yAB, yAS = 248, 250, 252
yOW = 8
yCW, yR2 = 14, 60
yC, yL, yL16, yQ16, yQ64, yL256, yPQ = 16, 18, 20, 22, 24, 26, 28
yONE, yB1, ySEL = 32, 30, 36
yCS = 40
yCF = 96
yRE, yIM = 64, 80
yFR = 128
yM, yR = 176, 192
yGD = 96
yTA, yTB, yG0, yG1 = 48, 50, 52, 54
yL64, yQM, yGD2, yGA, yNL, ySA = 30, 126, 96, 118, 38, 122


def half_reduce(p, a, t):
    for r in (8, 4, 2, 1):
        p(f"s_nop 1\nv_add_f32_dpp v{a}, v{a}, v{a} row_ror:{r} row_mask:0xf bank_mask:0xf")
    p(f"""
    v_mov_b32 v{t}, v{a}
    s_nop 1
    v_permlane16_swap_b32 v{a}, v{t}
    s_nop 1
    v_add_f32 v{a}, v{a}, v{t}
    """)


def y_prologue(p):
    D = 208
    PR = 244
    p.raw(1)
    p(f"""
    v_and_b32 v{vT0}, 31, v{vL}
    v_lshrrev_b32 v{vT1}, 5, v{vL}
    v_lshlrev_b32 v{vT2}, 4, v{vT0}
    v_lshl_add_u32 v{vT2}, v{vT1}, 10, v{vT2}
    s_lshl4_add_u32 s{sT0}, s{sMT}, s{sNT}
    s_lshl2_add_u32 s{sT0}, s{sT0}, s{sW}
    s_lshl_b32 s{sKX}, s{sT0}, 11
    s_lshl_b32 s{sKB}, s{sT0}, 4
    s_waitcnt lgkmcnt(0)
    """)
    srd(p, S_X, pX, 2048 * 1024)
    p.vmem(f"buffer_load_dwordx4 {vr(D, 4)}, v{vT2}, s[{S_X}:{S_X + 3}], s{sKX} offen{p.nt('ntr')}", "xr")
    p.vmem(f"buffer_load_dwordx4 {vr(D + 4, 4)}, v{vT2}, s[{S_X}:{S_X + 3}], s{sKX} offen offset:512{p.nt('ntr')}", "xr")
    p.raw(2)
    srd(p, S_WS, pWS, WS_BYTES)
    p.vmem(f"buffer_load_dword v{vTAG}, off, s[{S_WS}:{S_WS + 3}], 0 sc1", "xr")
    p.l.append("@YCUT")
    late_ids(p)
    p(f"""
    s_add_u32 s{sKB}, s{sKB}, {WS_STATS}
    v_and_b32 v{vT0}, 15, v{vL}
    s_and_b32 s{sT1}, s{sV}, 1
    s_lshl1_add_u32 s{sT0}, s{sNT}, s{sT1}
    s_lshl_b32 s{sT0}, s{sT0}, 4
    v_add_lshl_u32 v{vT2}, v{vT0}, s{sT0}, 1
    """)
    p.vmem(f"global_load_ushort v{PR}, v{vT2}, s[{pLRE}:{pLRE + 1}]", "par")
    p.vmem(f"global_load_ushort v{PR + 1}, v{vT2}, s[{pLIM}:{pLIM + 1}]", "par")
    p.vmem(f"global_load_ushort v{PR + 2}, v{vT2}, s[{pDT}:{pDT + 1}]", "par")
    if p.opt.get("dt", 1):
        p(f"s_lshl_b32 s{sT0}, s{sN2}, 7\nv_mov_b32 v{vT2}, s{sT0}")
        p.vmem(f"global_load_dword v254, v{vT2}, s[{pD}:{pD + 1}]", "par")
    if p.opt.get("pt", 1) == 2:
        p(f"""
        s_mul_i32 s{sT0}, s{sCI}, 12
        s_lshr_b32 s{sT2}, s{sNT}, 2
        s_add_u32 s{sT0}, s{sT0}, s{sT2}
        s_add_u32 s{sT0}, s{sT0}, {WS_FLAGS // 128}
        s_add_u32 s{sT2}, s{sT2}, s{sT0}
        s_add_u32 s{sT2}, s{sT2}, 2
        s_lshl_b32 s{sT0}, s{sT0}, 7
        v_add_lshl_u32 v{vT2}, v{vL}, s{sT2}, 7
        s_mov_b64 exec, 2
        v_mov_b32 v{vT2}, s{sT0}
        s_mov_b64 exec, 1
        v_mov_b32 v{vT2}, s{sKB}
        s_mov_b64 exec, 15
        """)
        p.vmem(f"buffer_load_dword v254, v{vT2}, s[{S_WS}:{S_WS + 3}], 0 offen", "par")
        p("s_mov_b64 exec, -1")
    tw = p.opt.get("tw", 0)
    if tw:
        p(f"""
        s_mul_i32 s{sT0}, s{sCI}, {352 * 1024}
        s_add_u32 s{sT0}, s{sT0}, {WS_HID}
        s_cmp_eq_u32 s{sT1}, 0
        s_cselect_b32 s{sT0}, s{sT0}, s{sHID}
        v_mul_u32_u24 v{vT2}, {352 * 1024 // (tw & 15) - 128}, v{vL}
        s_mov_b64 exec, {(2 << (tw & 15)) - 1}
        """)
        p.vmem(f"buffer_load_dword v254, v{vT2}, s[{S_WS}:{S_WS + 3}], s{sT0} offen", "par")
        if tw & 16:
            p(f"""
            s_lshl2_add_u32 s{sT0}, s{sM2}, s{sV}
            s_lshl_b32 s{sT0}, s{sT0}, 15
            v_mov_b32 v{vT2}, s{sT0}
            s_mov_b64 exec, 1
            """)
            p.vmem(f"global_load_dword v254, v{vT2}, s[{pOUT}:{pOUT + 1}]", "par")
        p("s_mov_b64 exec, -1")
    rowfrag_addr(p, yAX)
    p(f"""
    s_lshl_b32 s{sT0}, s{sT1}, 11
    s_add_u32 s{sT0}, s{sT0}, {BR}
    v_add_u32 v{yAB}, s{sT0}, v{yAX}
    s_lshl_b32 s{sT0}, s{sMH}, 13
    s_add_u32 s{sT0}, s{sT0}, {XR}
    v_add_u32 v{yAX}, s{sT0}, v{yAX}
    v_xor_b32 v{yAX + 1}, 64, v{yAX}
    v_xor_b32 v{yAB + 1}, 64, v{yAB}
    """)
    for k in range(4):
        p(f"v_mov_b32 v{yONE + k}, 0x3f803f80")
    p(f"""
    v_and_b32 v{vT0}, 15, v{vL}
    v_lshrrev_b32 v{vT1}, 4, v{vL}
    v_lshlrev_b32 v{vT1}, 2, v{vT1}
    v_sub_u32 v{vT0}, v{vT0}, v{vT1}
    v_mov_b32 v{vT1}, 0x3f80
    v_mov_b32 v{vT2}, 0x3f800000
    """)
    for dw in range(2):
        p(f"""
        v_cmp_eq_u32 vcc, {2 * dw}, v{vT0}
        v_cmp_eq_u32 s[{sT0}:{sT1}], {2 * dw + 1}, v{vT0}
        s_nop 0
        v_cndmask_b32 v{ySEL + dw}, 0, v{vT1}, vcc
        v_cndmask_b32 v{ySEL + dw}, v{ySEL + dw}, v{vT2}, s[{sT0}:{sT1}]
        """)
    p(f"""
    v_lshrrev_b32 v{vT1}, 4, v{vL}
    s_lshl_b32 s{sT0}, s{sMH}, 8
    s_add_u32 s{sT0}, s{sT0}, {L_M}
    v_lshl_add_u32 v{yAS}, v{vT1}, 6, s{sT0}
    """)
    y_m_setup(p)
    if p.opt.get("pt", 1) == 1:
        p(f"""
        s_add_u32 s38, s{pWS}, s{sKB}
        s_addc_u32 s39, s{pWS + 1}, 0
        s_load_dword s58, s[38:39], 0 {'glc' if p.opt.get('ptg', 1) else ''}
        s_mul_i32 s{sT0}, s{sCI}, 12
        s_lshr_b32 s{sT1}, s{sNT}, 2
        s_add_u32 s{sT0}, s{sT0}, s{sT1}
        s_lshl_b32 s{sT0}, s{sT0}, 7
        s_add_u32 s{sT0}, s{sT0}, {WS_FLAGS}
        s_add_u32 s38, s{pWS}, s{sT0}
        s_addc_u32 s39, s{pWS + 1}, 0
        s_load_dword s58, s[38:39], 0 {'glc' if p.opt.get('ptg', 1) else ''}
        """)
    p.raw(3)
    if not p.opt.get("sd"):
        y_stats(p)


def y_stats(p):
    D = 208
    p.wait_vm("xr")
    p.raw(4)
    make_tag(p)
    F = D + 8
    for k in range(8):
        p(f"v_lshlrev_b32 v{F + 2 * k}, 16, v{D + k}\nv_and_b32 v{F + 2 * k + 1}, s{sMASK}, v{D + k}")
    A = D + 24
    p(f"v_pk_add_f32 {vr(A, 2)}, {vr(F, 2)}, {vr(F + 2, 2)}")
    for k in range(2, 8):
        p(f"v_pk_add_f32 {vr(A, 2)}, {vr(A, 2)}, {vr(F + 2 * k, 2)}")
    p(f"v_add_f32 v{A}, v{A}, v{A + 1}")
    half_reduce(p, A, A + 1)
    p(f"v_mul_f32 v{A}, 0x3b000000, v{A}")
    for k in range(8):
        p(f"v_pk_add_f32 {vr(F + 2 * k, 2)}, {vr(F + 2 * k, 2)}, {vr(A, 2)} op_sel_hi:[1,0] neg_lo:[0,1] neg_hi:[0,1]")
    p(f"v_pk_mul_f32 {vr(A + 2, 2)}, {vr(F, 2)}, {vr(F, 2)}")
    for k in range(1, 8):
        p(f"v_pk_fma_f32 {vr(A + 2, 2)}, {vr(F + 2 * k, 2)}, {vr(F + 2 * k, 2)}, {vr(A + 2, 2)}")
    p(f"v_add_f32 v{A + 2}, v{A + 2}, v{A + 3}")
    half_reduce(p, A + 2, A + 3)
    p(f"""
    v_mul_f32 v{A + 2}, 0x3b000000, v{A + 2}
    v_cvt_pk_bf16_f32 v{A + 2}, v{A + 2}, v{A + 2}
    v_and_b32 v{A + 2}, s{sMASK}, v{A + 2}
    v_add_f32 v{A + 2}, 0x3727c5ac, v{A + 2}
    v_cvt_pk_bf16_f32 v{A + 2}, v{A + 2}, v{A + 2}
    v_and_b32 v{A + 2}, s{sMASK}, v{A + 2}
    v_sqrt_f32 v{A + 2}, v{A + 2}
    v_lshrrev_b32 v{vT1}, 5, v{vL}
    v_cvt_pk_bf16_f32 v{A}, v{A}, v{A + 2}
    v_mov_b32 v{A + 1}, v{vTAG}
    v_lshlrev_b32 v{vT1}, 3, v{vT1}
    s_mov_b32 exec_lo, 1
    s_mov_b32 exec_hi, 1
    """)
    p.vmem(f"buffer_store_dwordx2 {vr(A, 2)}, v{vT1}, s[{S_WS}:{S_WS + 3}], s{sKB} offen sc1", "stst")
    p("s_mov_b64 exec, -1")
    p.stamp(1)


def y_consts(p):
    PR, t = 244, 208
    main, p.l = p.l, []
    p(f"v_mov_b32 v58, v{vTAG}\nv_mov_b32 v59, v{vTAG}")
    p(f"""
    v_lshlrev_b32 v{PR}, 16, v{PR}
    v_lshlrev_b32 v{PR + 1}, 16, v{PR + 1}
    v_lshlrev_b32 v{PR + 2}, 16, v{PR + 2}
    v_mul_f32 v{PR + 2}, {LOG2E}, v{PR + 2}
    v_exp_f32 v{PR + 2}, v{PR + 2}
    s_nop 0
    v_cvt_pk_bf16_f32 v{PR + 2}, v{PR + 2}, v{PR + 2}
    v_and_b32 v{PR + 2}, s{sMASK}, v{PR + 2}
    v_mul_f32 v{t}, v{PR + 2}, v{PR}
    v_mul_f32 v{t + 1}, v{PR + 2}, v{PR + 1}
    v_mul_f32 v{t}, {LOG2E}, v{t}
    v_mul_f32 v{t + 1}, 0.15915494, v{t + 1}
    v_exp_f32 v{t}, v{t}
    v_rndne_f32 v{t + 2}, v{t + 1}
    v_sub_f32 v{t + 1}, v{t + 1}, v{t + 2}
    v_cos_f32 v{t + 2}, v{t + 1}
    v_sin_f32 v{t + 3}, v{t + 1}
    v_mul_f32 v{t + 4}, v{PR}, v{PR}
    v_fmac_f32 v{t + 4}, v{PR + 1}, v{PR + 1}
    v_rcp_f32 v{t + 4}, v{t + 4}
    v_mul_f32 v{yL}, v{t}, v{t + 2}
    v_mul_f32 v{t + 3}, v{t}, v{t + 3}
    v_sub_f32 v{yL + 1}, 0, v{t + 3}
    v_add_f32 v{t + 2}, -1.0, v{yL}
    v_add_f32 v{t + 4}, v{t + 4}, v{t + 4}
    v_mul_f32 v{yC}, v{t + 2}, v{PR}
    v_fmac_f32 v{yC}, v{t + 3}, v{PR + 1}
    v_mul_f32 v{yC + 1}, v{t + 3}, v{PR}
    v_fma_f32 v{yC + 1}, -v{t + 2}, v{PR + 1}, v{yC + 1}
    v_mul_f32 v{yC}, v{yC}, v{t + 4}
    v_mul_f32 v{yC + 1}, v{yC + 1}, v{t + 4}
    v_and_b32 v{vT0}, 16, v{vL}
    v_cmp_ne_u32 s[42:43], 0, v{vT0}
    v_cmp_le_u32 s[44:45], 32, v{vL}
    """)
    a, b, c, d = t + 6, t + 8, t + 10, t + 12
    cmul(p, a, yL, yL)
    cmul(p, b, a, a)
    cmul(p, a, b, b)
    cmul(p, yL16, a, a)
    cmul(p, a, yL16, yL16)

    def qpow(dst, p1, p2):
        p(f"""
        v_cndmask_b32 v{c}, 1.0, v{p1}, s[42:43]
        v_cndmask_b32 v{c + 1}, 0, v{p1 + 1}, s[42:43]
        v_cndmask_b32 v{d}, 1.0, v{p2}, s[44:45]
        v_cndmask_b32 v{d + 1}, 0, v{p2 + 1}, s[44:45]
        """)
        cmul(p, dst, c, d)
    qpow(yQ16, yL16, a)
    cmul(p, yL64, a, a)
    p(f"""
    s_cmp_eq_u32 s{sMH}, 0
    s_cselect_b64 vcc, -1, 0
    s_cselect_b32 s59, 0, 1.0
    v_cndmask_b32_e64 v{c}, v{yL64}, 1.0, vcc
    v_cndmask_b32_e64 v{c + 1}, v{yL64 + 1}, 0, vcc
    """)
    cmul(p, yQM, c, yQ16)
    cmul(p, a, yL64, yL64)
    cmul(p, b, a, a)
    qpow(yQ64, a, b)
    cmul(p, yL256, b, b)
    p(f"""
    v_sub_f32 v{yNL}, 0, v{yL + 1}
    v_sub_f32 v{yNL + 1}, 0, v{yL256 + 1}
    """)
    L, p.l = p.l, main
    return L


def y_pass_s(p):
    def reads(c, s, st):
        b = yFR + 24 * st
        G = [[f"ds_read_b128 {vr(b + 16 + 4 * k, 4)}, v{yAB + s} offset:{(c % 3) * 8192 + k * 4096}" for k in range(2)]]
        G += [[f"ds_read_b128 {vr(b + 4 * tb, 4)}, v{yAX + s} offset:{(c & 3) * 16384 + tb * 2048}"] for tb in range(4)]
        return G
    p("s_waitcnt lgkmcnt(0)\ns_barrier")
    p.stamp(2)
    issued, mark = 0, {}
    for g, L in enumerate(reads(0, 0, 0)):
        for x in L:
            p(x)
            issued += 1
        mark[(0, g)] = issued
    K = y_consts(p)
    nk = -(-len(K) // p.opt.get("kn", 5))
    for n in range(16):
        c, s = divmod(n, 2)
        st = n & 1
        b = yFR + 24 * st
        M = [[mfma(yCS, yONE, b + 16, n == 0), mfma(yCS + 4, yONE, b + 20, n == 0)]]
        M += [[mfma(yRE + 4 * tb, b + 4 * tb, b + 16, n == 0), mfma(yIM + 4 * tb, b + 4 * tb, b + 20, n == 0)] for tb in range(4)]
        if n < 15:
            R = reads((n + 1) >> 1, (n + 1) & 1, st ^ 1)
        else:
            R = [[f"ds_read_b128 {vr(yM + 4 * tb, 4)}, v{yAS} offset:{16 * tb}", f"ds_read_b128 {vr(yR + 4 * tb, 4)}, v{yAS} offset:{512 + 16 * tb}"] for tb in range(4)] + [[]]
        for g in range(5):
            p(f"s_waitcnt lgkmcnt({issued - mark[(n, g)]})")
            p(M[g][0])
            if g == 0 and s == 1 and c < 7:
                p(M[g][1])
                if p.opt.get("sd") and c == 0:
                    y_stats(p)
                elif K and c >= p.opt.get("k0", 0):
                    p.wait_vm("par")
                    for x in K[:nk]:
                        p(x)
                    K = K[nk:]
                p("s_barrier")
            if g == 0 and n in (7, 8):
                p(f"v_add_u32 v{yAX + ((n + 1) & 1)}, 65536, v{yAX + ((n + 1) & 1)}")
            for i, x in enumerate(R[g]):
                p(x)
                issued += 1
                if i == 0 and not (g == 0 and s == 1 and c < 7):
                    p(M[g][1])
            if not R[g]:
                p(M[g][1])
            mark[(n + 1, g)] = issued
    assert not K
    p("s_waitcnt lgkmcnt(0)")
    p.stamp(3)


def yU(tau):
    tb, i = divmod(tau, 4)
    return (yRE if i % 2 == 0 else yIM) + 4 * tb + (i & ~1)


def y_window(p):
    g, gn = yG0, yG1
    p("s_nop 1")
    if p.opt.get("al", 1):
        p(".p2align 3")
    for tau in range(0, 16, 2):
        a, b = yRE + tau, yIM + tau
        p(f"""
        v_pk_fma_f32 {vr(yTA, 2)}, {vr(yM + tau, 2)}, {vr(yCS, 2)}, {vr(a, 2)} neg_lo:[1,0,0] neg_hi:[1,0,0]
        v_pk_fma_f32 {vr(yTB, 2)}, {vr(yM + tau, 2)}, {vr(yCS + 4, 2)}, {vr(b, 2)} neg_lo:[1,0,0] neg_hi:[1,0,0]
        v_pk_mul_f32 {vr(yTA, 2)}, {vr(yTA, 2)}, {vr(yR + tau, 2)}
        v_pk_mul_f32 {vr(yTB, 2)}, {vr(yTB, 2)}, {vr(yR + tau, 2)}
        v_pk_mul_f32 {vr(a, 2)}, {vr(yTA, 2)}, {vr(yC, 2)} op_sel_hi:[0,1] neg_hi:[0,1]
        v_pk_mul_f32 {vr(b, 2)}, {vr(yTA, 2)}, {vr(yC, 2)} op_sel:[1,0] op_sel_hi:[1,1] neg_hi:[0,1]
        v_pk_fma_f32 {vr(a, 2)}, {vr(yTB, 2)}, {vr(yC, 2)}, {vr(a, 2)} op_sel:[0,1,0] op_sel_hi:[0,0,1] neg_lo:[0,1,0] neg_hi:[0,1,0]
        v_pk_fma_f32 {vr(b, 2)}, {vr(yTB, 2)}, {vr(yC, 2)}, {vr(b, 2)} op_sel:[1,1,0] op_sel_hi:[1,0,1] neg_lo:[0,1,0] neg_hi:[0,1,0]
        """)
        if tau == 0:
            cmul(p, g, yU(0), yL, yU(1))
        else:
            cmul(p, gn, g, yL, yU(tau))
            cmul(p, g, gn, yL, yU(tau + 1))
    GR = 56
    p(f"""
    v_mov_b32 v{gn}, v{g}
    v_mov_b32 v{gn + 1}, v{g + 1}
    s_nop 1
    v_permlane16_swap_b32 v{g}, v{gn}
    v_permlane16_swap_b32 v{g + 1}, v{gn + 1}
    v_mov_b32 v{yTA}, v{g}
    v_mov_b32 v{yTA + 1}, v{g + 1}
    v_mov_b32 v{yTB}, v{gn}
    v_mov_b32 v{yTB + 1}, v{gn + 1}
    v_permlane32_swap_b32 v{g}, v{yTA}
    v_permlane32_swap_b32 v{g + 1}, v{yTA + 1}
    v_permlane32_swap_b32 v{gn}, v{yTB}
    v_permlane32_swap_b32 v{gn + 1}, v{yTB + 1}
    s_nop 0
    """)
    cmul(p, gn, g, yL16, gn)
    cmul(p, yTA, gn, yL16, yTA)
    cmul(p, GR, yTA, yL16, yTB)
    p(f"ds_write_b64 v{ySA}, {vr(GR, 2)}")
    for k in range(2):
        p(f"""
        v_cndmask_b32 v{g + k}, 0, v{g + k}, s[42:43]
        v_cndmask_b32 v{gn + k}, v{gn + k}, v{yTA + k}, s[42:43]
        v_cndmask_b32 v{yPQ + k}, v{g + k}, v{gn + k}, s[44:45]
        """)
    p("s_waitcnt lgkmcnt(0)\ns_barrier")
    p.stamp(4)
    p.stamp(1, 1)
    p.stamp(1, 2)
    p(f"ds_read_b64 {vr(yTA, 2)}, v{ySA + 1}")


def y_publish(p):
    GR = 56
    p(f"""
    s_waitcnt lgkmcnt(0)
    v_mul_f32 v{yTA}, s59, v{yTA}
    v_mul_f32 v{yTA + 1}, s59, v{yTA + 1}
    v_mul_f32 v{GR}, s59, v{GR}
    v_mul_f32 v{GR + 1}, s59, v{GR + 1}
    v_fmac_f32 v{GR}, v{yTA}, v{yL64}
    v_fmac_f32 v{GR + 1}, v{yTA}, v{yL64 + 1}
    v_fma_f32 v{GR}, -v{yTA + 1}, v{yL64 + 1}, v{GR}
    v_fmac_f32 v{GR + 1}, v{yTA + 1}, v{yL64}
    s_mov_b64 exec, 0xffff
    """)
    p.vmem(f"buffer_store_dwordx4 {vr(GR, 4)}, v{ySA + 2}, s[{S_WS}:{S_WS + 3}], s{sMB} offen sc1", "S")
    p(f"""
    s_mov_b64 exec, -1
    v_fmac_f32 v{yPQ}, v{yTA}, v{yQ16}
    v_fmac_f32 v{yPQ + 1}, v{yTA}, v{yQ16 + 1}
    v_fma_f32 v{yPQ}, -v{yTA + 1}, v{yQ16 + 1}, v{yPQ}
    v_fmac_f32 v{yPQ + 1}, v{yTA + 1}, v{yQ16}
    """)


class Rebase:
    def __init__(self, reg, base):
        self.reg, self.base = reg, base

    def at(self, q):
        d = 32768 * q - self.base
        if d in (0, 32768):
            return [], d
        self.base += d
        op, d = ("v_add_u32", d) if d > 0 else ("v_subrev_u32", -d)
        return [f"{op} v{self.reg + k}, {d}, v{self.reg + k}" for k in range(4)], 0


def with_pre(pre, L):
    if pre:
        L[0] = "\n".join(pre) + "\n" + L[0]
    return L


def w2_unit_head(p, slot):
    p(f"s_lshl_b32 s{sKB}, s{sUN + slot}, 16\ns_add_u32 s{sKB}, s{sKB}, s{sBB}")


yOC, yO2 = 10, 32


class Stage:
    ORDERS = {0: "C2 C3 C4 C2 W3 W4 W2 W0 W1",
              1: "C2 W3 W4 C2 W2 C0 C1 W0 W1",
              2: "W3 W4 W2 C0 C1 C0 C1 W0 W1",
              3: "C2 C4 W3 W4 W2 C0 C1 W0 W1",
              4: "C2 W3 C4 C2 W4 W2 C0 W0 W1",
              5: "C2 C4 W3 C2 W4 C2 W2 W0 W1",
              6: "C2 C4 W3 W4 C2 W2 C0 W0 W1"}

    def __init__(self, p):
        self.p = p
        self.todo, n, last, self.cq = [], {"C": 0, "W": 0}, {}, []
        for x in self.ORDERS[p.opt.get("seq", 0)].split():
            kind, q = x[0], int(x[1])
            self.todo.append((kind, n[kind], q, last.get(q, -1)))
            if kind == "C":
                last[q] = n[kind]
                self.cq.append(q)
            n[kind] += 1
        self.cur, self.k = None, 0
        self.read = 0
        self.full = set()
        self.late = False
        self.rb = Rebase(yR2, 65536)

    def pick(self):
        if self.cur is None:
            for u in self.todo:
                if (u[2] >= 2 or self.late) and self.read > u[3]:
                    self.cur, self.k = u, 0
                    self.todo.remove(u)
                    break
        return self.cur

    def left(self):
        return 8 * len(self.todo) + (8 - self.k if self.cur else 0)

    def done(self):
        return not self.todo and self.cur is None

    def dma(self, need_m0=True):
        p = self.p
        if self.pick() is None:
            return False
        kind, u, q, _ = self.cur
        k = self.k
        if need_m0 or k % 4 == 0:
            p(f"s_add_u32 m0, s{sBUF}, {32768 * q + 4096 * (k // 4)}")
            if k % 4:
                p("s_nop 0")
        if k == 0 and kind == "W":
            w2_unit_head(p, u)
        if k == 0 and kind == "C":
            ptr = pCIM if u & 1 else pCRE
            p(f"s_mov_b32 s{S_X}, s{ptr}\ns_mov_b32 s{S_X + 1}, s{ptr + 1}\ns_xor_b32 s{sKB}, s{sKX}, {128 * (u >> 1)}")
        if k == 4:
            p(f"s_add_u32 s{sKB}, s{sKB}, 32768")
        vo, sr = (yOC, S_X) if kind == "C" else (yO2, S_B)
        p.vmem(f"buffer_load_dwordx4 v{vo + k % 4}, s[{sr}:{sr + 3}], s{sKB} offen{off(1024 * (k % 4))} lds", (kind, u) if kind == "C" else "W")
        self.k += 1
        if self.k == 8:
            self.full.add((kind, u))
            self.cur = None
        return True

    def reads(self, u):
        pre, imm = self.rb.at(self.cq[u])
        if pre and self.late and self.p.opt.get("yp", 1):
            pre = ["s_setprio 3"] + pre + ["s_setprio 0"]
        return with_pre(pre, [f"ds_read_b64 {vr(vB2 + 64 * (u >> 1) + 16 * j + 4 * db + 2 * (u & 1), 2)}, v{yR2 + j} offset:{imm + 2048 * db}"
                              for j in range(4) for db in range(4)])

    def read_next(self):
        self.p.wait_vm(("C", self.read))
        for x in self.reads(self.read):
            self.p(x)
        self.p("s_waitcnt lgkmcnt(0)")
        self.read += 1


def w2_dma_setup(p, vo):
    p(f"""
    v_lshrrev_b32 v{vT0}, 4, v{vL}
    v_and_b32 v{vT1}, 7, v{vL}
    v_lshlrev_b32 v{vT0}, 1, v{vT0}
    v_xor_b32 v{vT0}, v{vT0}, v{vT1}
    v_lshlrev_b32 v{vT0}, 4, v{vT0}
    v_lshrrev_b32 v{vT1}, 3, v{vL}
    v_lshl_add_u32 v{vo}, v{vT1}, 10, v{vT0}
    v_add_u32 v{vo + 1}, 7168, v{vo}
    v_add_u32 v{vo + 2}, 14336, v{vo}
    v_add_u32 v{vo + 3}, 21504, v{vo}
    """)


def y_m_setup(p):
    p(f"""
    s_lshl_b32 s{sBUF}, s{sV}, 13
    s_add_u32 s{sT0}, s{sBUF}, 65536
    v_and_b32 v{vT0}, 15, v{vL}
    v_bfe_u32 v{vT1}, v{vL}, 1, 3
    v_lshrrev_b32 v{vT2}, 5, v{vL}
    v_xor_b32 v{vT1}, v{vT1}, v{vT2}
    v_lshlrev_b32 v{vT1}, 4, v{vT1}
    v_lshl_add_u32 v{vT0}, v{vT0}, 7, v{vT1}
    v_bfe_u32 v{vT1}, v{vL}, 4, 1
    v_lshl_add_u32 v{vT0}, v{vT1}, 3, v{vT0}
    v_add_u32 v{yR2}, s{sT0}, v{vT0}
    v_xor_b32 v{yR2 + 1}, 32, v{yR2}
    v_xor_b32 v{yR2 + 2}, 64, v{yR2}
    v_xor_b32 v{yR2 + 3}, 96, v{yR2}
    s_lshl_b32 s{sBB}, s{sN2}, 7
    """)
    w1_dma_setup(p, yOW)
    c_dma_setup(p, yOC)
    p(f"""
    s_and_b32 s{sT1}, s{sV}, 1
    s_lshl1_add_u32 s{sMX}, s{sNT}, s{sT1}
    s_lshl_b32 s{sMB}, s{sMX}, 14
    s_add_u32 s{sMB}, s{sMB}, {WS_CARRY}
    v_lshl_add_u32 v14, s{sT1}, 10, v{vL16}
    v_xor_b32 v15, 1024, v14
    v_and_b32 v{vT0}, 15, v{vL}
    s_lshl_b32 s{sT1}, s{sT1}, 8
    s_add_u32 s{sT1}, s{sT1}, {L_S}
    v_lshl_add_u32 v{ySA + 1}, v{vT0}, 3, s{sT1}
    s_lshl_b32 s{sT1}, s{sMH}, 7
    v_add_u32 v{ySA}, s{sT1}, v{ySA + 1}
    v_lshlrev_b32 v{vT0}, 4, v{vT0}
    s_add_u32 s{sT1}, s{sMT}, 1
    s_mul_i32 s{sT1}, s{sT1}, s{sMH}
    s_lshl_b32 s{sT1}, s{sT1}, 8
    v_add_u32 v{ySA + 2}, s{sT1}, v{vT0}
    v_lshrrev_b32 v{vT1}, 4, v{vL}
    v_sub_u32 v{vT1}, s{sMT}, v{vT1}
    v_lshl_add_u32 v{vT1}, v{vT1}, 8, v{vT0}
    """)
    for j in range(4):
        p(f"v_subrev_u32 v{yGA + j}, {1024 * j}, v{vT1}\nv_max_i32 v{yGA + j}, v{yGA + j}, v{vT0}")
    y_units(p)
    srd(p, S_W, pW1, 512 * 3584)
    srd(p, S_B, pW2, 1792 * 1024)
    p(f"""
    s_mov_b32 s{S_X + 2}, {512 * 1024}
    s_lshl1_add_u32 s{sKX}, s{sV}, s{sG0}
    s_lshl_b32 s{sKX}, s{sKX}, 7
    s_lshl_b32 s{sT1}, s{sN2}, 16
    s_add_u32 s{sKX}, s{sKX}, s{sT1}
    """)


def y_units(p, only0=None):
    r2 = p.opt.get("rot2", 1)
    p(f"""
    s_mul_i32 s{sT0}, s{sV}, 7
    s_and_b32 s{sKX}, s{sM2}, 1
    s_and_b32 s{sT1}, s{sN2}, {1 if r2 else 0}
    s_lshl1_add_u32 s{sT2}, s{sT1}, s{sFLG}
    """)
    for i in range(4):
        p(f"""
        s_add_u32 s{sT3}, s{sT2}, {i}
        s_and_b32 s{sT3}, s{sT3}, 3
        s_lshl1_add_u32 s{sT3}, s{sT3}, s{sKX}
        s_min_u32 s{sT3}, s{sT3}, 6
        s_add_u32 s{sUN + i if only0 is None else only0}, s{sT3}, s{sT0}
        """)
        if only0 is not None:
            return
    p(f"""
    s_add_u32 s{sT1}, s{sT1}, s{sFLG}
    s_mul_i32 s{sT2}, s{sT1}, 86
    s_lshr_b32 s{sT2}, s{sT2}, 8
    s_mul_i32 s{sT2}, s{sT2}, 3
    s_sub_u32 s{sT1}, s{sT1}, s{sT2}
    s_add_u32 s{sT0}, s{sT0}, 1
    s_sub_u32 s{sT0}, s{sT0}, s{sKX}
    """)
    for i in range(3):
        p(f"""
        s_lshl1_add_u32 s{sUN + 4 + i}, s{sT1}, s{sT0}
        s_add_u32 s{sT1}, s{sT1}, 1
        s_cmp_eq_u32 s{sT1}, 3
        s_cselect_b32 s{sT1}, 0, s{sT1}
        """)


def gather_list(p, track):
    L = []
    for j in range(3, -1, -1):
        def f(j=j):
            s = f"buffer_load_dwordx4 {vr(yGD2 + 4 * j, 4)}, v{yGA + j}, s[{S_WS}:{S_WS + 3}], s{sMB} offen sc1"
            p.vmem(s, "G") if track else p(s)
        L.append(f)
    return L


def cmac(d, a, b, nb):
    return [f"v_fmac_f32 v{d}, v{a}, v{b}", f"v_fmac_f32 v{d + 1}, v{a}, v{b + 1}",
            f"v_fmac_f32 v{d}, v{a + 1}, v{nb}", f"v_fmac_f32 v{d + 1}, v{a + 1}, v{b}"]


def h_work(p):
    W = []

    def check():
        p.wait_vm("G")

        def test():
            p(f"v_xor_b32 v{vT3}, v{yGD2 + 14}, v{vTAG}")
            for j in range(2, -1, -1):
                p(f"v_bitop3_b32 v{vT3}, v{yGD2 + 4 * j + 2}, v{vTAG}, v{vT3} bitop3:0xbe")
            p(f"v_cmp_ne_u32 vcc, 0, v{vT3}\ns_nop 4")

        def reload():
            for f in gather_list(p, False):
                f()
            p("s_waitcnt vmcnt(0)")
        retry(p, "s_cbranch_vccnz", test, reload)
        p.stamp(6)
    W.append(check)
    for j in range(2, -1, -1):
        W += cmac(yGD2 + 4 * j, yGD2 + 4 * (j + 1), yL256, yNL + 1)
    g = yGD2
    W += [f"v_mul_f32 v{yTA}, v{g}, v{yQ64}", f"v_mul_f32 v{yTA + 1}, v{g}, v{yQ64 + 1}",
          f"v_fma_f32 v{yTA}, -v{g + 1}, v{yQ64 + 1}, v{yTA}", f"v_fmac_f32 v{yTA + 1}, v{g + 1}, v{yQ64}"]
    for sw in ("v_permlane16_swap_b32", "v_permlane32_swap_b32"):
        W.append(f"""
        v_mov_b32 v{yTB}, v{yTA}
        v_mov_b32 v{yTB + 1}, v{yTA + 1}
        s_nop 1
        {sw} v{yTA}, v{yTB}
        {sw} v{yTA + 1}, v{yTB + 1}
        s_nop 1
        v_add_f32 v{yTA}, v{yTA}, v{yTB}
        v_add_f32 v{yTA + 1}, v{yTA + 1}, v{yTB + 1}
        """)
        W += [""] * 5
    W += [f"v_fmac_f32 v{yPQ}, v{yTA}, v{yQM}", f"v_fmac_f32 v{yPQ + 1}, v{yTA}, v{yQM + 1}",
          f"v_fma_f32 v{yPQ}, -v{yTA + 1}, v{yQM + 1}, v{yPQ}", f"v_fmac_f32 v{yPQ + 1}, v{yTA + 1}, v{yQM}"]
    prev = yPQ
    PA, TD = 112, 64
    for tau in range(16):
        u = yU(tau)
        W += cmac(u, prev, yL, yNL)
        prev = u
        if tau & 1:
            tb, i = divmod(tau, 4)
            for part in range(2):
                W.append(f"v_cvt_pk_bf16_f32 v{PA + 4 * tb + 2 * part + (i >> 1)}, v{yU(tau - 1) + part}, v{u + part}")

    def transpose():
        p(f"s_mul_i32 s{sT2}, s{sCI}, 88\ns_add_u32 s{sT2}, s{sT2}, s{sMX}")
        for tb in range(4):
            for part in range(2):
                p(mfma16(TD + 8 * tb + 4 * part, PA + 4 * tb + 2 * part, ySEL, True))
        p(f"""
        s_lshl_b32 s{sBX}, s{sT2}, 12
        s_add_u32 s{sBX}, s{sBX}, {WS_HID}
        s_mul_i32 s{sT2}, s{sCI}, 12
        s_lshr_b32 s{sT3}, s{sMX}, 3
        s_add_u32 s{sT2}, s{sT2}, s{sT3}
        s_lshl_b32 s{sT2}, s{sT2}, 7
        s_and_b32 s{sMX}, s{sMX}, 7
        s_lshl2_add_u32 s{sMX}, s{sMX}, s{sT2}
        """)
    W.append(transpose)
    W += [""] * 16
    for tb in range(4):
        for k in range(4):
            W.append(f"v_cvt_pk_bf16_f32 v{PA + 4 * tb + k}, v{TD + 8 * tb + 2 * k}, v{TD + 8 * tb + 2 * k + 1}")
        W.append(lambda tb=tb: p.vmem(f"buffer_store_dwordx4 {vr(PA + 4 * tb, 4)}, v{14 + (tb & 1)}, s[{S_WS}:{S_WS + 3}], s{sBX} offen{off(2048 * (tb >> 1))} sc1", "h"))
    W.append(lambda: p.stamp(7))
    return W


def emit(p, x):
    x() if callable(x) else p(x)


def capture(p, f):
    main, p.l = p.l, []
    f()
    L, p.l = p.l, main
    return L


def y_pass_m(p):
    o = p.opt
    st = Stage(p)
    y_publish(p)
    budget = [int(x, 16) for x in str(o.get("bud", "40525588")).zfill(8)]
    gi = o.get("gi", 3)
    W = h_work(p)
    nW = len(W)
    wd = [int(x, 16) for x in str(o.get("wd", "24440")).zfill(9)]
    full = {}
    for c in range(8):
        V = []
        if 1 <= c <= 5:
            V += w1_dma(p, c + 2, yOW)
        if c == gi:
            V += gather_list(p, True)
        for k in range(budget[c]):
            V.append(lambda k=k: st.dma(k == 0))
        A = []
        if c == 0:
            A = capture(p, lambda: w2_dma_setup(p, yO2))
            if st.todo[0][0] == "W":
                for x in A:
                    p(x)
                A = []
            assert budget[0] <= 8
        if c == 1:
            A = capture(p, lambda: poll_setup(p, f"s_add_u32 s{sT0}, s{sT0}, s{sV}"))
            A = ["\n".join(A)]
        u = st.read
        rd = u < 4 and full.get(u, 99) <= c - o.get("rdl", 2)
        L = []
        if rd:
            L = [lambda u=u: p.wait_vm(("C", u))] + st.reads(u)
        late = 0
        n = -(-nW * wd[c] // sum(wd))
        if n and len(W) == nW:
            late = len(V) * o.get("late", 2) // 4
        A, W = A + W[:n], W[n:]
        slots = len(V) + 1
        l0 = len(V) // 2 if rd and full[u] == c - 1 else 0
        for k in range(slots):
            if k < len(V):
                V[k]()
            if k >= l0:
                nl = -(-len(L) // max(1, slots - 1 - k))
                for x in L[:nl]:
                    emit(p, x)
                L = L[nl:]
            if k >= late:
                na = -(-len(A) // (slots - k))
                na += na & 1
                for x in A[:na]:
                    emit(p, x)
                A = A[na:]
        if rd:
            p("s_waitcnt lgkmcnt(0)")
            st.read += 1
        for kind, uu in st.full:
            if kind == "C":
                full.setdefault(uu, c)
        if 3 <= c + 1 <= 7:
            p.wait_vm(("w", c + 1))
        if c < 7:
            p.stamp(2 + 2 * c, 1)
        p("s_barrier")
        if c < 7:
            p.stamp(3 + 2 * c, 1)
    if o.get("hx"):
        assert not W
        p.wait_vm("h")
    p("s_barrier")
    p.stamp(5)
    p.stamp(1, 5)
    p.stamp(2, 5)
    for x in W:
        emit(p, x)
    return st


def y_ph2(p, st):
    o = p.opt
    st.late = True
    hf = o.get("hf", 0)
    n, first, pend, polled, nd = 0, True, [], False, 0
    lag = o.get("lag", 8)
    while not st.done() or st.read < 4:
        if n == hf:
            if not o.get("hx"):
                p.wait_vm("h")
                flag_store(p, sMX, WS_FLAGS)
            n += 1
        u = st.read
        if not pend and u < 4 and ("C", u) in st.full and len(p.vm) - 1 - p.last(("C", u)) >= lag:
            p.wait_vm(("C", u))
            pend = st.reads(u) + [None]
        if not polled and all(("C", k) in st.full for k in range(4)) and st.left() <= o.get("pl", 10):
            poll_issue(p, 0, 44)
            polled = True
        ok = st.dma(first)
        if ok and st.left() % 4 == 0 and st.left() <= 40:
            p.stamp(12 - st.left() // 4, 5)
        if ok:
            first = False
            n += n < hf
            nd += 1
            yt = o.get("yt", 0)
            if yt and nd > yt and nd <= o.get("ytn", 99):
                p(f"s_waitcnt vmcnt({yt})")
                p.done = max(p.done, len(p.vm) - 1 - yt)
        elif not pend:
            st.read_next()
        k = 4 if ok else len(pend)
        for x in pend[:k]:
            if x is None:
                p("s_waitcnt lgkmcnt(0)")
                st.read += 1
            else:
                p(x)
        pend = pend[k:]
    assert n > hf and polled
    p.stamp(11)
    for pair in range(2):
        p(f"""
        s_xor_b32 s{sT0}, s{sG0}, {pair}
        s_lshl1_add_u32 s{sT0}, s{sV}, s{sT0}
        s_lshl_b32 s{sT0}, s{sT0}, 14
        s_add_u32 s{sUN + 2 * pair}, s{sT0}, s{sHID}
        s_add_u32 s{sUN + 2 * pair + 1}, s{sUN + 2 * pair}, 8192
        """)
    p(f"s_add_u32 s{sBUF}, s{sBUF}, {3 * 32768}")
    poll_check(p, 0, 44)
    p.stamp(12)
    items = []
    for step, tb in order(p, 8):
        items.append((sUN + (step >> 1), step & 1, tb, vB2 + 16 * step, step == 0))

    def after_ramp():
        p.stamp(13, 5)
        p.wait_vm("W")
        p.stamp(14, 5)
        p("s_barrier")
        p.stamp(10)
        p.stamp(15, 5)
    post = {o.get("ys", 22): lambda: p("s_barrier")}
    side = {}
    spread(side, partial_addr(), 4, 3)
    if o.get("ef"):
        final_loads(p)
        ph2_loop(p, items, {}, post, side, min(9, o.get("yramp", 8)), after_ramp, 10, 9)
    else:
        ph2_loop(p, items, {}, post, side, o.get("yramp", 8), after_ramp, 13, o.get("yd", 10))
    p.stamp(13)
    if not o.get("ef"):
        final_loads(p)
    for tb in range(4):
        partial_write(p, tb)
    final(p)
    p("s_branch L_fin")


xTR = 8
xAX, xEA, xRL, xEX = 16, 18, 20, 22
xWF, NWF = 32, 6
xONE, xB1, xCS = 28, 26, 56
xOX, xOB, xOW, xSA, xST = 32, 36, 38, 40, 42
xACC, xXF = 64, 128


def x_pass_s(p):
    o = p.opt
    p("L_X:")
    if o.get("xp0"):
        p("s_setprio 2")
    p.raw(1)
    p(f"""
    v_lshrrev_b32 v{vT0}, 4, v{vL}
    v_and_b32 v{vT1}, 7, v{vL}
    v_xor_b32 v{vT1}, v{vT1}, v{vT0}
    v_lshlrev_b32 v{vT1}, 4, v{vT1}
    v_lshrrev_b32 v{vT2}, 3, v{vL}
    v_lshl_add_u32 v{xOB}, v{vT2}, 10, v{vT1}
    v_lshrrev_b32 v{vT2}, 5, v{vL}
    v_mul_u32_u24 v{vT2}, {12 * 1024}, v{vT2}
    v_add_u32 v{xOX}, v{vT2}, v{xOB}
    v_xor_b32 v{xOX + 1}, 64, v{xOX}
    v_xor_b32 v{xOB + 1}, 64, v{xOB}
    v_add_u32 v{xOX + 1}, {31 * 1024}, v{xOX + 1}
    v_add_u32 v{xOB + 1}, 7168, v{xOB + 1}
    v_add_u32 v{xOX + 2}, 2048, v{xOX}
    v_add_u32 v{xOX + 3}, 2048, v{xOX + 1}
    s_and_b32 s{sT1}, s{sV}, 1
    s_lshl1_add_u32 s{sBX}, s{sMT}, s{sMH}
    s_lshl3_add_u32 s{sBX}, s{sBX}, s{sT1}
    s_lshl_b32 s{sBX}, s{sBX}, 13
    s_lshl1_add_u32 s{sBB}, s{sNT}, s{sMH}
    s_lshl_b32 s{sBB}, s{sBB}, 14
    s_lshl_b32 s{sMX}, s{sV}, 12
    s_lshl1_add_u32 s{sMB}, s{sT1}, s{sMH}
    s_lshl_b32 s{sMB}, s{sMB}, 11
    s_cmp_eq_u32 s{sT1}, 0
    s_waitcnt lgkmcnt(0)
    s_cselect_b32 s{S_B}, s{pBRE}, s{pBIM}
    s_cselect_b32 s{S_B + 1}, s{pBRE + 1}, s{pBIM + 1}
    s_mov_b32 s{S_B + 2}, {512 * 1024}
    s_mov_b32 s{S_B + 3}, 0x00020000
    """)
    srd(p, S_X, pX, 2048 * 1024)
    p.raw(2)

    def dma_b(c):
        p(f"""
        s_add_u32 s{sT0}, s{sC0}, {c}
        s_and_b32 s{sT0}, s{sT0}, 7
        s_lshl_b32 s{sT1}, s{sT0}, 7
        s_add_u32 m0, s{sMB}, {BR + (c % 3) * 8192}
        s_add_u32 s{sKB}, s{sBB}, s{sT1}
        """)
        for i in range(2):
            p.vmem(f"buffer_load_dwordx4 v{xOB + i}, s[{S_B}:{S_B + 3}], s{sKB} offen{off(1024 * i)}{p.nt('ntb', c)} lds", ("c", c))

    def dma_x(c, same=False):
        if not same:
            p(f"s_add_u32 s{sT0}, s{sC0}, {c}\ns_and_b32 s{sT0}, s{sT0}, 7\ns_lshl_b32 s{sT1}, s{sT0}, 7")
        p(f"s_add_u32 m0, s{sMX}, {XR + c * 16384}\ns_add_u32 s{sKX}, s{sBX}, s{sT1}")
        for i in range(4):
            p.vmem(f"buffer_load_dwordx4 v{xOX + i}, s[{S_X}:{S_X + 3}], s{sKX} offen{off(1024 * i)}{p.nt('ntx', c)} lds", ("c", c))

    def dma(c):
        dma_b(c)
        dma_x(c, True)
    xa = o.get("xa", 0)
    pre = o.get("pre", 0)
    if pre:
        p(f"""
        s_lshl_b32 s{sT0}, s{sMT}, 10
        s_add_u32 s{sT0}, s{sT0}, s{sBB}
        v_lshlrev_b32 v{vT2}, 7, v{vL}
        s_mov_b64 exec, 0xff
        """)
        p.vmem(f"buffer_load_dword v19, v{vT2}, s[{S_B}:{S_B + 3}], s{sT0} offen", "pre")
        p("s_mov_b64 exec, -1")
    else:
        dma(0)
        p.stamp(1)
        p.raw(3)
    srd(p, S_WS, pWS, WS_BYTES)
    p.vmem(f"buffer_load_dword v{vTAG}, off, s[{S_WS}:{S_WS + 3}], 0 sc1", "epoch")
    xd = o.get("xd", 0)

    def bias():
        p(f"""
        v_and_b32 v{vT0}, 15, v{vL}
        s_lshr_b32 s{sT0}, s{sNT}, 2
        s_lshl_b32 s{sT1}, s{sNT}, 1
        s_sub_u32 s{sT0}, s{sT1}, s{sT0}
        s_lshl1_add_u32 s{sT0}, s{sT0}, s{sV}
        s_lshl_b32 s{sT0}, s{sT0}, 5
        v_add_u32 v{vT2}, s{sT0}, v{vT0}
        v_min_u32 v{vT2}, 1775, v{vT2}
        v_lshlrev_b32 v{vT2}, 1, v{vT2}
        """)
        p.vmem(f"global_load_ushort v{xB1}, v{vT2}, s[{pB1}:{pB1 + 1}]", "par")
        p.vmem(f"global_load_ushort v{xB1 + 1}, v{vT2}, s[{pB1}:{pB1 + 1}] offset:32", "par")

    def cap_addr():
        rowfrag_addr(p, xAX)
        p(f"""
        s_add_u32 s{sT0}, s{sMX}, {XR}
        v_add_u32 v{xAX}, s{sT0}, v{xAX}
        v_xor_b32 v{xAX + 1}, 64, v{xAX}
        """)
    if o.get("b0"):
        bias()
        cap_addr()
    if not pre:
        dma(1)
    if o.get("x3"):
        dma(2)
    if o.get("xp0"):
        p("s_setprio 0")
    p.l.append("@XCUT")

    def s1():
        w1_dma_setup(p, xOW)
        srd(p, S_W, pW1, 512 * 3584)

    def s2():
        for k in range(4):
            p(f"v_mov_b32 v{xONE + k}, 0x3f803f80")
        p(f"""
        v_and_b32 v{xSA}, 31, v{vL}
        v_lshlrev_b32 v{xSA}, 3, v{xSA}
        s_lshl2_add_u32 s{sUN}, s{sMT}, s{sV}
        s_lshl_b32 s{sUN}, s{sUN}, 8
        s_add_u32 s{sUN}, s{sUN}, {WS_STATS}
        """)

    def s3():
        w1_tr_addr0(p, xTR)
        p(f"s_lshl_b32 s{sT0}, s{sV}, 6\nv_xor_b32 v{xTR}, s{sT0}, v{xTR}")
        for fb in range(1, 8):
            p(f"v_xor_b32 v{xTR + fb}, {32 * fb}, v{xTR}")
    SET = [lambda: late_ids(p), s1, s2, s3]
    if not o.get("b0"):
        bias()
        cap_addr()
    for f in SET[:4 - xd]:
        f()
    SET = SET[4 - xd:]
    tp = o.get("tp", 0)
    tw1 = o.get("tw1", 0)

    def touch():
        p(f"""
        s_and_b32 s{sT0}, s{sV}, 1
        s_cmp_eq_u32 s{sT0}, 0
        s_cselect_b32 s{S_B}, s{pW1 if tw1 else pW2}, s{pW2}
        s_cselect_b32 s{S_B + 1}, s{(pW1 if tw1 else pW2) + 1}, s{pW2 + 1}
        s_cselect_b32 s{sT2}, s{pCRE}, s{pCIM}
        s_cselect_b32 s{sT3}, s{pCRE + 1}, s{pCIM + 1}
        s_mov_b32 s{S_B + 2}, {512 * 3584}
        s_lshl1_add_u32 s{sT0}, s2, s{sT0}
        s_cmp_lt_u32 s{sV}, 2
        s_cselect_b32 s{S_B}, s{S_B}, s{sT2}
        s_cselect_b32 s{S_B + 1}, s{S_B + 1}, s{sT3}
        s_cselect_b32 s{S_B + 2}, s{S_B + 2}, {512 * 1024}
        s_cselect_b32 s{sT0}, {'s2' if tw1 else 's%d' % sT0}, s2
        s_cselect_b32 s{sT2}, {(56 if tw1 else 28) if o.get('tm', 3) & 1 else 0}, {16 if o.get('tm', 3) & 2 else 0}
        s_mul_i32 s{sT1}, s{sT2}, s{sT0}
        v_cmp_gt_u32 vcc, s{sT2}, v{vL}
        v_add_lshl_u32 v44, v{vL}, s{sT1}, 7
        """)
        if o.get("to"):
            p(f"""
            s_lshr_b32 s{sT0}, s2, 1
            s_and_b32 s{sT1}, s2, 1
            s_and_b32 s{sT2}, s{sV}, 1
            s_lshl1_add_u32 s{sT2}, s{sT0}, s{sT2}
            s_mul_i32 s{sT2}, s{sT2}, 14
            s_add_u32 s{sT2}, s{sT2}, s{sT1}
            s_lshl_b32 s{sT2}, s{sT2}, 9
            s_lshl_b32 s{sT1}, s{sT1}, 7
            s_add_u32 s{sT0}, s{sT0}, s{sT1}
            s_lshl_b32 s{sT0}, s{sT0}, 11
            s_cmp_lt_u32 s{sV}, 2
            s_cselect_b32 s{sT0}, s{sT2}, s{sT0}
            s_cselect_b32 s{sT1}, 0x3c, 0
            v_and_b32 v45, s{sT1}, v{vL}
            v_add_u32 v45, v45, v{vL}
            v_lshl_add_u32 v44, v45, 7, s{sT0}
            """)
        p(f"""
        v_mov_b32 v45, 0x40000000
        v_cndmask_b32 v44, v45, v44, vcc
        """)
        if not o.get("tg"):
            p.vmem(f"buffer_load_dword v19, v44, s[{S_B}:{S_B + 3}], 0 offen", "touch")

    def touch_part(k):
        tg, n = o["tg"], len(str(o["tq"]))
        if tg == 1:
            p(f"""
            s_mul_i32 s{sT0}, s{sJ}, {n}
            s_lshr_b32 s{sT0}, s{sT0}, 5
            s_cmp_eq_u32 s{sT0}, {k}
            s_cselect_b32 s{sT0}, 0, 0x40000000
            v_or_b32 v45, s{sT0}, v44
            """)
        elif tg == 3:
            p(f"s_cmp_eq_u32 s{sMH}, {k}\ns_cselect_b32 s{sT0}, 0, 0x40000000\nv_or_b32 v45, s{sT0}, v44")
        else:
            p(f"v_and_b32 v45, 1, v{vL}\nv_xor_b32 v45, {k}, v45\nv_lshl_or_b32 v45, v45, 30, v44")
        p.vmem(f"buffer_load_dword v19, v45, s[{S_B}:{S_B + 3}], 0 offen", "touch")
    ld = f"buffer_load_dwordx2 {vr(xST, 2)}, v{xSA}, s[{S_WS}:{S_WS + 3}], s{sUN} offen sc1"
    if pre:
        if pre == 1:
            p.wait_vm("pre")
        elif pre == 3:
            p.wait_vm("pf")
        p.stamp(1)
        dma(0)
        dma(1)
    for c in range(8):
        if c < 7:
            p.wait_vm(("c", c))
        if c == 1:
            make_tag(p)
        if c == 7:
            p.wait_vm("st")
            retry(p, "s_cbranch_vccnz", lambda: p(f"v_cmp_ne_u32 vcc, v{xST + 1}, v{vTAG}\ns_nop 4"),
                  lambda: p(f"{ld}\ns_waitcnt vmcnt(0)"))
            p(f"""
            v_and_b32 v{vT0}, s{sMASK}, v{xST}
            v_rcp_f32 v{vT0}, v{vT0}
            v_lshrrev_b32 v{vT1}, 1, v{xSA}
            s_lshl_b32 s{sT0}, s{sV}, 7
            s_add_u32 s{sT0}, s{sT0}, {L_M}
            v_add_u32 v{vT1}, s{sT0}, v{vT1}
            v_lshlrev_b32 v{vT2}, 16, v{xST}
            ds_write_b32 v{vT1}, v{xST} offset:1024
            ds_write_b32 v{vT1}, v{vT0} offset:512
            ds_write_b32 v{vT1}, v{vT2}
            """)
            p.wait_vm(("c", c))
        if c in (o.get("lw", 6 - xa), 7):
            p("s_waitcnt lgkmcnt(0)")
        if c == 0:
            p.stamp(2)
            p.raw(4)
        if c > 0:
            p.stamp(2 * c, 3)
        p("s_barrier")
        p.stamp(2 * c + 1, 3)
        if c == 5:
            p.vmem(ld, "st")
        if not xa:
            if c + 2 < 8:
                dma(c + 2)
        else:
            xr = o.get("xr", 0)
            if c == 0 and o.get("x3"):
                pass
            elif c <= xr and c + 2 < 8:
                dma(c + 2)
            elif c + 2 < 8:
                dma_b(c + 2)
            if c >= xr and c + 3 < 8:
                dma_x(c + 3)
        if c == 4:
            p(f"v_add_u32 v{xAX}, 65536, v{xAX}\nv_add_u32 v{xAX + 1}, 65536, v{xAX + 1}")
        for s in range(2):
            for t in range(2):
                p(f"ds_read_b128 {vr(xXF + 16 * c + 8 * s + 4 * t, 4)}, v{xAX + s} offset:{(c & 3) * 16384 + t * 2048}")
        if c >= 6 - xa:
            for cc in ([c - 5] if xa else [0] if c == 6 else [1, 2]):
                for f in w1_dma(p, cc, xOW):
                    f()
                if (tp, cc) in ((2, 0), (4, 1), (3, 2)):
                    touch()
                if o.get("tg"):
                    if cc == 0:
                        touch()
                    for k, ch in enumerate(str(o["tq"])):
                        if int(ch) - 1 == cc:
                            touch_part(k)
        if SET and c >= o.get("xd0", 0):
            SET.pop(0)()
        if c == 5 and tp == 1:
            touch()
        if o.get("pt", 1) == 1 and c == 1:
            p(f"""
            s_mul_i32 s{sT0}, s{sCI}, 6
            s_lshr_b32 s{sT1}, s{sNT}, 2
            s_add_u32 s{sT0}, s{sT0}, s{sT1}
            s_lshl_b32 s{sT0}, s{sT0}, 8
            s_add_u32 s{sT0}, s{sT0}, {WS_FLAGS + 512}
            s_add_u32 s42, s{pWS}, s{sT0}
            s_addc_u32 s43, s{pWS + 1}, 0
            s_load_dword s84, s[42:43], 0 {'glc' if o.get('ptg', 1) else ''}
            s_load_dword s84, s[42:43], 128 {'glc' if o.get('ptg', 1) else ''}
            """)
    p.stamp(3)
    p(f"""
    v_bfe_u32 v{vT0}, v{vL}, 2, 2
    v_and_b32 v{vT1}, 3, v{vL}
    v_lshl_add_u32 v{vT0}, v{vT0}, 4, v{vT1}
    s_and_b32 s{sT1}, s{sV}, 1
    s_lshl3_add_u32 s{sT0}, s{sMH}, s{sT1}
    s_lshl_b32 s{sT0}, s{sT0}, 5
    s_add_u32 s{sT0}, s{sT0}, {L_M}
    v_lshl_add_u32 v{vT0}, v{vT0}, 2, s{sT0}
    ds_read_b32 v{xEX + 1}, v{vT0} offset:1024
    ds_read_b32 v{xEX + 3}, v{vT0} offset:{1024 + 16}
    ds_read_b32 v{xRL}, v{vT0} offset:512
    ds_read_b32 v{xRL + 1}, v{vT0} offset:{512 + 16}
    v_and_b32 v{xEA}, 15, v{vL}
    v_lshlrev_b32 v{xEA}, 3, v{xEA}
    s_lshl_b32 s{sT0}, s{sV}, 8
    s_add_u32 s{sT0}, s{sT0}, {L_EXT}
    v_add_u32 v{xEA}, s{sT0}, v{xEA}
    v_cmp_gt_u32 vcc, 16, v{vL}
    s_mov_b32 s{sT2}, 0x01000100
    s_waitcnt lgkmcnt(0)
    """)
    for t in range(2):
        e = xEX + 2 * t
        p(f"""
        v_perm_b32 v{e}, v{e + 1}, v{e + 1}, s{sT2}
        v_xor_b32 v{e}, 0x80008000, v{e}
        v_lshrrev_b32 v{e + 1}, 16, v{e + 1}
        v_cndmask_b32 v{e}, 0, v{e}, vcc
        v_cndmask_b32 v{e + 1}, 0, v{e + 1}, vcc
        v_mul_f32 v{xRL + t}, {LOG2E}, v{xRL + t}
        """)
    p.wait_vm(("w", 0))
    p("s_waitcnt lgkmcnt(0)\ns_barrier")
    p.stamp(4)


def x_pass_m(p):
    PD = 4
    WE = p.opt.get("we", 1)

    def reads(n):
        if n >= 128:
            return []
        c, s, fb = n >> 4, (n >> 3) & 1, n & 7
        slot = (2 * c + s) % 7
        return [f"ds_read_b64_tr_b16 {vr(xWF + 4 * (n % NWF) + 2 * e, 2)}, v{xTR + fb} offset:{8192 * slot + 1024 * e}" for e in range(2)]
    nissued = 0
    for n in range(PD):
        for x in reads(n):
            p(x)
            nissued += 1
    for n in range(128):
        c, s, fb = n >> 4, (n >> 3) & 1, n & 7
        if n % WE == 0 and n < 126:
            p(f"s_waitcnt lgkmcnt({nissued - 2 * (n + WE)})")
        R = reads(n + PD)
        bar = (n & 15) == 16 - PD and c < 7
        w = xWF + 4 * (n % NWF)
        if n == 126:
            p("s_waitcnt lgkmcnt(0)")
        for t in range(2):
            p(mfma(xACC + 8 * fb + 4 * t, w, xXF + 16 * c + 8 * s + 4 * t, n < 8))
            if bar and t == 0:
                if c < 2:
                    p.wait_vm(("w", c + 1))
                p("s_barrier")
            if n == 126 and t == 0:
                p("s_barrier")
            if n >= 126:
                k = 2 * (n - 126) + t
                for i in range(2):
                    p(f"ds_read_b64 {vr(xXF + 2 * (2 * k + i), 2)}, v{xTR + k} offset:{128 * i}")
            if R:
                p(R[t])
                nissued += 1
        if fb < 2:
            p(mfma(xCS + 4 * fb, xONE, w, n < 8))
        if n in (123, 124):
            k = n - 123
            a = xCS + 4 * k
            p(f"""
            v_and_b32 v{a + 1}, s{sMASK}, v{a}
            v_sub_f32 v{a}, v{a}, v{a + 1}
            v_cvt_pk_bf16_f32 v{a}, v{a + 1}, v{a}
            v_mov_b32 v{a + 1}, v{xB1 + k}
            ds_write_b64 v{xEA}, {vr(a, 2)} offset:{128 * k}
            """)
            nissued += 1
        if n == 125:
            p(f"v_mov_b32 v{xTR}, v{xEA}")
            for k in range(1, 4):
                p(f"v_xor_b32 v{xTR + k}, {256 * k}, v{xEA}")
    p("s_waitcnt lgkmcnt(0)\ns_barrier")
    p.stamp(1, 5)
    for fb in range(8):
        for t in range(2):
            p(mfma16(xACC + 8 * fb + 4 * t, xXF + 2 * fb, xEX + 2 * t))
    p.stamp(5)
    p.stamp(2, 5)


def mish4(p, a, t, pk, tmp):
    sel = "op_sel_hi:[1,0]" if t == 0 else "op_sel:[0,1] op_sel_hi:[1,1]"
    e, u = tmp, tmp + 4
    p(f"""
    v_pk_mul_f32 {vr(a, 2)}, {vr(a, 2)}, {vr(xRL, 2)} {sel}
    v_pk_mul_f32 {vr(a + 2, 2)}, {vr(a + 2, 2)}, {vr(xRL, 2)} {sel}
    v_exp_f32 v{e}, v{a}
    v_exp_f32 v{e + 1}, v{a + 1}
    v_exp_f32 v{e + 2}, v{a + 2}
    v_exp_f32 v{e + 3}, v{a + 3}
    v_pk_fma_f32 {vr(u, 2)}, {vr(e, 2)}, 0.5, 1.0 op_sel_hi:[1,0,0]
    v_pk_fma_f32 {vr(u + 2, 2)}, {vr(e + 2, 2)}, 0.5, 1.0 op_sel_hi:[1,0,0]
    v_pk_fma_f32 {vr(u, 2)}, {vr(e, 2)}, {vr(u, 2)}, 1.0 op_sel_hi:[1,1,0]
    v_pk_fma_f32 {vr(u + 2, 2)}, {vr(e + 2, 2)}, {vr(u + 2, 2)}, 1.0 op_sel_hi:[1,1,0]
    v_rcp_f32 v{u}, v{u}
    v_rcp_f32 v{u + 1}, v{u + 1}
    v_rcp_f32 v{u + 2}, v{u + 2}
    v_rcp_f32 v{u + 3}, v{u + 3}
    v_pk_fma_f32 {vr(a, 2)}, {vr(a, 2)}, {vr(u, 2)}, {vr(a, 2)} neg_lo:[1,0,0] neg_hi:[1,0,0]
    v_pk_fma_f32 {vr(a + 2, 2)}, {vr(a + 2, 2)}, {vr(u + 2, 2)}, {vr(a + 2, 2)} neg_lo:[1,0,0] neg_hi:[1,0,0]
    v_cvt_pk_bf16_f32 v{pk}, v{a}, v{a + 1}
    v_cvt_pk_bf16_f32 v{pk + 1}, v{a + 2}, v{a + 3}
    """)


def x_epilogue(p):
    PK, TMP, VO = 192, 228, 224
    p(f"""
    s_mul_i32 s{sT0}, s{sCI}, 44
    s_add_u32 s{sT0}, s{sT0}, s{sL0}
    s_add_u32 s{sT0}, s{sT0}, s{sMH}
    s_add_u32 s{sT0}, s{sT0}, 16
    s_and_b32 s{sT1}, s{sV}, 1
    s_lshl2_add_u32 s{sBX}, s{sT0}, s{sT1}
    s_lshl_b32 s{sBX}, s{sBX}, 11
    s_add_u32 s{sBX}, s{sBX}, {WS_HID}
    s_mul_i32 s{sT2}, s{sT1}, 5120
    v_add_u32 v{VO}, s{sT2}, v{vL16}
    v_xor_b32 v{VO + 1}, 1024, v{VO}
    v_xor_b32 v{VO + 2}, 5120, v{VO}
    v_xor_b32 v{VO + 3}, 4096, v{VO}
    s_mul_i32 s{sT2}, s{sCI}, 6
    s_lshr_b32 s{sT3}, s{sNT}, 2
    s_add_u32 s{sT2}, s{sT2}, s{sT3}
    s_add_u32 s{sT2}, s{sT2}, 2
    s_lshl_b32 s{sT2}, s{sT2}, 8
    s_and_b32 s{sT3}, s{sNT}, 3
    s_lshl1_add_u32 s{sKW}, s{sT3}, s{sMH}
    s_lshl1_add_u32 s{sT3}, s{sT3}, s{sT1}
    s_lshl2_add_u32 s{sMB}, s{sT3}, s{sT2}
    """)
    if p.opt.get("xprio"):
        p(f"s_setprio {p.opt['xprio']}")
    if p.opt.get("hx"):
        p(f"""
        s_mul_i32 s{sT2}, s{sCI}, 12
        s_lshr_b32 s{sT1}, s{sNT}, 2
        s_add_u32 s{sT2}, s{sT2}, s{sT1}
        s_lshl_b32 s{sT2}, s{sT2}, 7
        s_lshl2_add_u32 s{sT2}, s{sT3}, s{sT2}
        """)
        flag_store(p, sT2, WS_FLAGS)
    p(f"s_lshl_b32 s{sT0}, s{sMH}, 14\ns_add_u32 s{sMX}, s{sBX}, 8192\ns_sub_u32 s{sMX}, s{sMX}, s{sT0}")

    def store(u, s, t):
        p.vmem(f"buffer_store_dwordx4 {vr(PK + 4 * (4 * u + 2 * s + t), 4)}, v{VO + 2 * s + t}, s[{S_WS}:{S_WS + 3}], s{sMX if u else sBX} offen sc1", ("act", u))

    def guarded(u, body):
        join = p.label("join")
        p(f"s_cmp_eq_u32 s{sKW}, {7 - u}\ns_cbranch_scc1 {join}")
        body()
        p(f"{join}:")

    def frags(u, L):
        def body():
            for s, t in L:
                pk = PK + 4 * (4 * u + 2 * s + t)
                for e in range(2):
                    mish4(p, xACC + 8 * (4 * u + 2 * s + e) + 4 * t, t, pk + 2 * e, TMP)
                store(u, s, t)
                p.stamp(3 + 4 * u + 2 * s + t, 5)
        if L:
            if p.opt.get("al", 1):
                p(".p2align 3")
            guarded(u, body)
    ST = [(0, 0), (0, 1), (1, 0), (1, 1)]
    frags(0, ST)
    frags(1, ST)
    p.stamp(6)
    o = p.opt
    fa = o.get("fa", 1)

    def flag(u):
        p.wait_vm(("act", u))
        if u == 0:
            lt, hv = p.label("light"), p.label("heavy")
            p(f"s_cmp_ge_u32 s{sKW}, 6\ns_cbranch_scc1 {lt}\n{hv}:")
            p.ool += [f"{lt}:", f"    s_waitcnt vmcnt({len(p.vm) - 1 - p.last(('act', 1))})", f"    s_branch {hv}"]
        flag_store(p, sMB, WS_FLAGS + 128 * u)
        p.stamp(11 + u, 5)
        if u == 1:
            p.stamp(7)
    RA, CV = 60, (56 if o.get('wl', -1) >= 0 else 64)
    NR = 12 if o.get('wl', -1) >= 0 else 13
    p(f"""
    s_lshl_b32 s{sBUF}, s{sV}, 13
    s_add_u32 s{sT0}, s{sBUF}, {3 * 32768}
    v_lshrrev_b32 v{vT0}, 2, v{vL}
    v_bfe_u32 v{vT1}, v{vL}, 3, 2
    v_lshlrev_b32 v{vT0}, 7, v{vT0}
    v_lshl_add_u32 v{vT0}, v{vT1}, 5, v{vT0}
    v_and_b32 v{vT1}, 3, v{vL}
    v_lshl_add_u32 v{vT0}, v{vT1}, 3, v{vT0}
    v_add_u32 v{RA}, s{sT0}, v{vT0}
    v_xor_b32 v{RA + 1}, 32, v{RA}
    v_xor_b32 v{RA + 2}, 64, v{RA}
    v_xor_b32 v{RA + 3}, 96, v{RA}
    s_lshl_b32 s{sBB}, s{sN2}, 7
    """)
    w2_dma_setup(p, CV)
    y_units(p)
    srd(p, S_X, pW2, 1792 * 1024)
    poll_setup(p, f"s_lshl1_add_u32 s{sT0}, s{sV}, s{sT0}\ns_add_u32 s{sT0}, s{sT0}, 4")
    for u in range(fa):
        flag(u)
    p(f"s_setprio {o.get('xprio2', 0)}\ns_barrier")
    p.stamp(10)
    rb = Rebase(RA, 3 * 32768)
    QW = [3, 4, 2, 0, 1, 0, 2]

    def reads(u):
        pre, imm = rb.at(QW[u])
        dst = vB2 + 32 * (u % 4)
        return with_pre(pre, [f"ds_read_b64_tr_b16 {vr(dst + 16 * s + 4 * db + 2 * e, 2)}, v{RA + db} offset:{imm + 4096 * s + 2048 * e}"
                              for s in range(2) for db in range(4) for e in range(2)])
    for u in range(4):
        for x in reads(u):
            p(x)
    for u in range(fa, 2):
        flag(u)
    p("s_waitcnt lgkmcnt(0)")
    if o.get("xs", -2) == -3:
        p("s_barrier")
    poll_issue(p, 0)
    wl = o.get("wl", -1)
    WD = []
    for u in (5, 6):
        sr = sBX if u == 5 else sMX
        p(f"s_lshl_b32 s{sr}, s{sUN + u}, 16\ns_add_u32 s{sr}, s{sr}, s{sBB}")
        for h in range(2):
            for k in range(4):
                def f(u=u, h=h, k=k, sr=sr):
                    if k == 0:
                        p(f"s_add_u32 m0, s{sBUF}, {32768 * QW[u] + 4096 * h}\ns_add_u32 s{sr}, s{sr}, {32768 * h}")
                    p.vmem(f"buffer_load_dwordx4 v{CV + k}, s[{S_X}:{S_X + 3}], s{sr} offen{off(1024 * k)} lds", ("W", u))
                WD.append(f)
    nb = 16 if wl < 0 else o.get("wb", 0)
    for f in WD[:nb]:
        f()
    p(f"s_add_u32 s{sT1}, s{sHID}, {32 * 4096}")
    for i in range(7):
        p(f"s_lshl_b32 s{sUN + i}, s{sUN + i}, 13\ns_add_u32 s{sUN + i}, s{sUN + i}, s{sT1}")
    p.stamp(11)
    pb = o.get("pb", 0)
    xs = o.get("xs", -2)
    if pb == 0:
        poll_check(p, 0)
    if xs == -2:
        p("s_barrier")
    if pb == 1:
        poll_check(p, 0)
    p.stamp(12)
    items = []

    def b2(step):
        return vB2 + 32 * ((step >> 1) % 4) + 16 * (step & 1)
    ts = o.get("ts", 6)
    for step, tb in order(p, 14 - ts):
        items.append((sUN + (step >> 1), step & 1, tb, b2(step), step == 0))
    for tb in range(4):
        for step in range(14 - ts, 14):
            items.append((sUN + (step >> 1), step & 1, tb, b2(step), False))
    pre, post, side = {}, {}, {}
    iB = min(i for i, it in enumerate(items) if it[0] >= sUN + 4)
    use = {u: min(i for i, it in enumerate(items) if it[0] == sUN + u) for u in range(4, 7)}
    pre[iB - o.get('pi', 10)] = lambda: poll_issue(p, 128)
    pre[iB] = lambda: poll_check(p, 128)
    wr = o.get("wr", 1)
    spread(side, WD[nb:], max(wl, 0), wr)
    last_dma = {5: max(wl, 0) + max(0, 7 - nb) // wr if nb < 8 else -99, 6: max(wl, 0) + (15 - nb) // wr if nb < 16 else -99, 4: -99}
    prev_end, ends = 0, []
    for u in range(4, 7):
        R = reads(u)
        if u > 4:
            R = [lambda u=u: p.wait_vm(("W", u))] + R
        a = max(8 * (u - 4) + (8 if o.get('g2', 1) else 5), prev_end, last_dma[u] + o.get("wg", 10))
        lim = use[u] - 1
        per = o.get('rp', 2)
        while True:
            n1 = len(R) - 8
            b = max(8 * (u - 4) + 9, a + -(-n1 // per))
            end = b + -(-8 // per)
            if end <= lim - (6 - u) or per == 8:
                break
            per += 1
        assert end <= lim, (u, a, b, end, lim)
        spread(side, R[:n1], a, per)
        spread(side, R[n1:], b, per)
        ends.append((end, lim))
        prev_end = end
    covered = -1
    for end, lim in ends:
        if end > covered:
            side.setdefault(lim, []).append("s_waitcnt lgkmcnt(0)")
            covered = lim
    pa = max(prev_end, o.get("pa", 32))
    spread(side, partial_addr(), pa, 3)
    assert pa + 3 <= 56 - 3 * ts
    post[o.get("gy", 28)] = lambda: (p.stamp(14), p("s_barrier"))
    post[37] = lambda: p.stamp(15)
    if xs >= 0:
        post[xs] = lambda: p("s_barrier")
    ar = (lambda: p("s_barrier")) if xs == -1 else None
    wp = o.get("wp", 2)
    for tb in range(3):
        i0 = 56 - ts * (3 - tb)
        if o.get("g2", 1):
            side.setdefault(i0, []).extend(["", ""] + pw_list(tb))
            post[i0 + 3] = lambda: p("s_waitcnt lgkmcnt(0)\ns_barrier")
            continue
        if wp == 5:
            Wl = pw_list(tb)
            side.setdefault(i0, []).extend(["", "", Wl[0] + "\n" + Wl[1]])
            side.setdefault(i0 + 1, []).extend([Wl[2], Wl[3]])
            post[i0 + o.get("tb", 2)] = lambda: p("s_waitcnt lgkmcnt(0)\ns_barrier")
            continue
        spread(side, pw_list(tb), i0 + 1, wp)
        post[i0 + 4 // wp + o.get("tb", 1)] = lambda: p("s_waitcnt lgkmcnt(0)\ns_barrier")

    def last():
        p.stamp(13)
        p("s_nop 4")
        partial_write(p, 3)
        p("s_waitcnt lgkmcnt(0)\ns_barrier")
    post[55] = last
    if o.get("dbm"):
        g0 = 56 - ts
        W2 = pw_list(2)
        side[(g0, 0, 4)] = W2[0:1]
        side[(g0, 0, 5)] = W2[1:2]
        side[(g0, 1, 0)] = W2[2:3]
        side[(g0, 1, 1)] = W2[3:4]
        side[(g0, 1, 4)] = ["s_waitcnt lgkmcnt(0)", "s_barrier"]
        ph2_loop(p, items, pre, post, side, o.get('ramp', 5), ar, NR, tail=(g0, ts))
    else:
        ph2_loop(p, items, pre, post, side, o.get('ramp', 5), ar, NR)
    p(f"""
    s_lshl3_add_u32 s{sT0}, s{sN2}, s{sV}
    s_lshl_b32 s{sT0}, s{sT0}, 5
    s_add_u32 s{sT0}, s{sT0}, s{sM2}
    s_cmp_lg_u32 s{sT0}, 31
    s_cbranch_scc1 L_fin
    s_mov_b64 exec, 1
    buffer_store_dword v{vTAG}, off, s[{S_WS}:{S_WS + 3}], 0 sc1
    """)


fA = 142


def fin_regs(p):
    return (48, 56, vT2) if p.opt.get("ef") else (128, 136, 140)


def final_loads(p):
    fX, fS, fD = fin_regs(p)
    A = 64 if p.opt.get("ef") else 148
    srd(p, S_X, pX, 2048 * 1024)
    srd(p, S_W, pOUT, 2048 * 2048)
    p(f"""
    s_lshl2_add_u32 s{sT0}, s{sM2}, s{sV}
    s_lshl_b32 s{sKX}, s{sT0}, 14
    s_lshl_b32 s{sT1}, s{sN2}, 7
    s_add_u32 s{sKX}, s{sKX}, s{sT1}
    s_lshl_b32 s{sT0}, s{sT0}, 7
    s_add_u32 s{sT0}, s{sT0}, {WS_STATS}
    v_lshrrev_b32 v{A}, 4, v{vL}
    v_and_b32 v{A + 1}, 15, v{vL}
    v_lshlrev_b32 v{A + 2}, 3, v{A + 1}
    v_lshl_add_u32 v{A + 3}, v{A}, 10, v{A + 2}
    v_lshlrev_b32 v{A}, 3, v{A}
    v_add_u32 v{A + 2}, s{sT1}, v{A + 2}
    s_mov_b32 s{sKB}, s{sKX}
    """)
    for tb in range(4):
        p.vmem(f"buffer_load_dwordx2 {vr(fX + 2 * tb, 2)}, v{A + 3}, s[{S_X}:{S_X + 3}], s{sKB} offen", "fin")
        p.vmem(f"buffer_load_dword v{fS + tb}, v{A}, s[{S_WS}:{S_WS + 3}], s{sT0} offen{off(32 * tb)} sc1", "fin")
        if tb < 3:
            p(f"s_add_u32 s{sKB}, s{sKB}, 4096")
    p.vmem(f"global_load_dwordx2 {vr(fD, 2)}, v{A + 2}, s[{pD}:{pD + 1}]", "fin")


def final(p):
    XF, SS, DD = 160, 176, 148
    RY, RF = fA + 4, fA + 5
    fX, fS, fD = fin_regs(p)
    p.wait_vm("fin")
    p(f"""
    v_lshrrev_b32 v{fA}, 4, v{vL}
    v_and_b32 v{fA + 1}, 15, v{vL}
    v_lshlrev_b32 v{fA + 3}, 3, v{fA + 1}
    v_lshl_add_u32 v{fA + 3}, v{fA}, 10, v{fA + 3}
    s_lshl_b32 s{sT0}, s{sV}, 2
    v_add_u32 v{RF}, s{sT0}, v{fA}
    v_xor_b32 v{RF}, v{RF}, v{fA + 1}
    v_lshlrev_b32 v{RF}, 4, v{RF}
    v_lshl_add_u32 v{RF}, v{fA + 1}, 8, v{RF}
    v_add_u32 v{RY}, {3 * 32768}, v{RF}
    v_lshlrev_b32 v{fA + 3}, 1, v{fA + 3}
    s_lshl_b32 s{sKX}, s{sKX}, 1
    s_mov_b32 s{sT2}, {LN2}
    v_lshlrev_b32 v{DD}, 16, v{fD}
    v_and_b32 v{DD + 1}, s{sMASK}, v{fD}
    v_lshlrev_b32 v{DD + 2}, 16, v{fD + 1}
    v_and_b32 v{DD + 3}, s{sMASK}, v{fD + 1}
    """)
    for tb in range(4):
        x, s = XF + 4 * tb, SS + 4 * tb
        p(f"""
        v_and_b32 v153, s{sMASK}, v{fS + tb}
        v_rcp_f32 v153, v153
        v_lshlrev_b32 v152, 16, v{fS + tb}
        v_lshlrev_b32 v{x}, 16, v{fX + 2 * tb}
        v_and_b32 v{x + 1}, s{sMASK}, v{fX + 2 * tb}
        v_lshlrev_b32 v{x + 2}, 16, v{fX + 2 * tb + 1}
        v_and_b32 v{x + 3}, s{sMASK}, v{fX + 2 * tb + 1}
        """)
        for k in range(4):
            p(f"v_sub_f32 v{s + k}, v{x + k}, v152")
        for k in range(4):
            p(f"v_mul_f32 v{s + k}, v153, v{s + k}")
    p.stamp(10, 6)
    p("s_waitcnt lgkmcnt(0)\ns_barrier")
    p.stamp(14)
    p.stamp(11, 6)
    Y = 64
    for tb in range(4):
        for w in range(4):
            p(f"ds_read_b128 {vr(Y + 16 * tb + 4 * w, 4)}, v{RY} offset:{8192 * w + 32768 * (tb >> 1) + 4096 * (tb & 1)}")
    for tb in range(4):
        p(f"s_waitcnt lgkmcnt({12 - 4 * tb})")
        y, s = Y + 16 * tb, SS + 4 * tb
        for k in range(4):
            p(f"v_fma_f32 v{s + k}, v{s + k}, v{DD + k}, v{y + k}")
            p(f"v_add_f32 v{y + 4 + k}, v{y + 4 + k}, v{y + 8 + k}")
        for k in range(4):
            p(f"v_add_f32 v{s + k}, v{s + k}, v{y + 12 + k}")
        for k in range(4):
            p(f"v_add_f32 v{s + k}, v{s + k}, v{y + 4 + k}")
        for k in range(4):
            p(f"v_mul_f32 v{s + k}, s{sT2}, v{s + k}")
    fp = p.opt.get("fp", 0)
    deferred = []
    for tb in range(4):
        F = Y + 16 * tb
        x, s = XF + 4 * tb, SS + 4 * tb
        p.stamp(12 + tb, 6)
        p("s_barrier")
        if tb == 3:
            p.stamp(15)
        for w in range(4):
            p(f"ds_read_b128 {vr(F + 4 * w, 4)}, v{RF} offset:{8192 * w + 32768 * (tb >> 1) + 4096 * (tb & 1)}")
        p.l += deferred
        e = F + 4
        if tb < 3:
            p("s_waitcnt lgkmcnt(2)")
            for k in range(4):
                p(f"v_add_f32 v{F + k}, v{F + k}, v{F + 4 + k}")
            p("s_waitcnt lgkmcnt(0)")
            for k in range(4):
                p(f"v_add_f32 v{F + 8 + k}, v{F + 8 + k}, v{F + 12 + k}")
            for k in range(4):
                p(f"v_add_f32 v{F + k}, v{F + k}, v{F + 8 + k}")
            for k in range(4):
                p(f"v_exp_f32_e64 v{e + k}, -v{F + k}")
            for k in range(4):
                p(f"v_mul_f32 v{s + k}, v{s + k}, v{F + k}")
            for k in range(4):
                p(f"v_add_f32 v{e + k}, 1.0, v{e + k}")
            for k in range(4):
                p(f"v_rcp_f32 v{e + k}, v{e + k}")
            p("s_nop 0")
            for k in range(4):
                p(f"v_fmac_f32 v{x + k}, v{s + k}, v{e + k}")
        else:
            p("s_waitcnt lgkmcnt(2)")
            for h in (0, 2):
                p(f"v_pk_add_f32 {vr(F + h, 2)}, {vr(F + h, 2)}, {vr(F + 4 + h, 2)}")
            p("s_waitcnt lgkmcnt(0)")
            for h in (0, 2):
                p(f"v_pk_add_f32 {vr(F + 8 + h, 2)}, {vr(F + 8 + h, 2)}, {vr(F + 12 + h, 2)}")
            for h in (0, 2):
                p(f"v_pk_add_f32 {vr(F + h, 2)}, {vr(F + h, 2)}, {vr(F + 8 + h, 2)}")
            for k in range(4):
                p(f"v_exp_f32_e64 v{e + k}, -v{F + k}")
            for h in (0, 2):
                p(f"v_pk_mul_f32 {vr(s + h, 2)}, {vr(s + h, 2)}, {vr(F + h, 2)}")
            for h in (0, 2):
                p(f"v_pk_add_f32 {vr(e + h, 2)}, {vr(e + h, 2)}, 1.0 op_sel_hi:[1,0]")
            for k in range(4):
                p(f"v_rcp_f32 v{e + k}, v{e + k}")
            for h in (0, 2):
                p(f"v_pk_fma_f32 {vr(x + h, 2)}, {vr(s + h, 2)}, {vr(e + h, 2)}, {vr(x + h, 2)}")
        p(f"buffer_store_dwordx4 {vr(x, 4)}, v{fA + 3}, s[{S_W}:{S_W + 3}], s{sKX} offen {'sc1' if tb < 4 - p.opt.get('op', 0) else p.opt.get('of', '')}")
        if tb < 3:
            p(f"s_add_u32 s{sKX}, s{sKX}, 8192")
            if fp:
                deferred, p.l = p.l[-fp:], p.l[:-fp]


def finish(p):
    p("L_fin:")
    if p.opt.get("stamps"):
        p.stamp(8)
        p("s_waitcnt vmcnt(0)")
        p.stamp(9)
        p.stamp(9, 9)
        if "probe" in p.opt:
            p(f"""
            s_lshl_b32 s{sT0}, 1, s{sW}
            s_and_b32 s{sT0}, s{sT0}, {p.opt.get('pw', 255)}
            s_cmp_eq_u32 s{sT0}, 0
            s_cbranch_scc1 L_end
            s_add_u32 s{sT0}, s{STAMP_REGS[p.opt['probe']]}, 5000
            L_probe:
            s_memrealtime s[34:35]
            s_waitcnt lgkmcnt(0)
            s_sub_u32 s{sT1}, s34, s{sT0}
            s_cmp_lt_i32 s{sT1}, 0
            s_cbranch_scc1 L_probe
            s_branch L_end
            """)
        p(f"""
        s_mov_b64 exec, 1
        s_lshl3_add_u32 s{sT0}, s2, s{sW}
        s_lshl_b32 s{sT0}, s{sT0}, 6
        s_add_u32 s{sT0}, s{sT0}, {WS_STAMP}
        """)
        for i in range(16):
            p(f"v_mov_b32 v8, s{STAMP_REGS[i]}\nbuffer_store_dword v8, off, s[{S_WS}:{S_WS + 3}], s{sT0} offset:{4 * i}")
    p("s_endpgm")
    p.l += p.ool
    p("L_end:\ns_endpgm")


DOC = """;
;    8 rows and hands them to the others; column sums come from MFMAs with an all-ones operand.
;  * phase 1, tile 128 rows x (32 complex channels + 128 (or 64) MLP columns), operands staged by LDS-DMA:
;      pass S: waves 0-3 ("Y") multiply x by B_re/B_im, waves 4-7 ("X") issue the DMA and keep their x fragments;
;      pass M: X multiplies x by w1 while Y finishes the scan and stages the phase-2 weights; then Mish.
;  * phase 2, tile 64 x 64, K split over the waves (Y: h.C, X: act.w2), weights in registers, partial sums reduced
;    launch is never taken for this launch's; payloads, flags and polls use agent-coherent accesses (any placement).
;
"""


def build(opt):
    global WS_HID
    WS_HID = opt.get("hid", 2) << 20
    p = P(opt)
    entry(p)
    st0 = p.save()
    y_prologue(p)
    y_pass_s(p)
    y_window(p)
    st = y_pass_m(p)
    y_ph2(p, st)
    p.restore(st0)
    x_pass_s(p)
    x_pass_m(p)
    x_epilogue(p)
    finish(p)
    L = p.l
    iy, ix0, ix1 = L.index("@YCUT"), L.index("L_X:"), L.index("@XCUT")
    if opt.get("lay", 1):
        L = L[:iy] + ["    s_branch L_Y2"] + L[ix0:ix1] + ["    s_branch L_X2", "L_Y2:"] + L[iy + 1:ix0] + ["L_X2:"] + L[ix1 + 1:]
    else:
        L = [x for x in L if not x.startswith("@")]
    p.l = L
    t = HEAD + f"; @launch grid=(256,1,1) block=(512,1,1) lds={LDS_BYTES}\n" + '.amdgcn_target "amdgcn-amd-amdhsa--gfx950"\n' + DOC
    t += kernel_text(KN + "_kernel", p.text(), vgpr=256, sgpr=102, accum=256)
    return t


if __name__ == "__main__":
    out = sys.argv[1]
    opt = {}
    for a in sys.argv[2:]:
        k, v = a.split("=")
        opt[k] = int(v) if v.lstrip("-").isdigit() else v
    open(out, "w").write(build(opt))
```

```python
import sys
from gen import HEAD, KN, kernel_text

WS_STATS = 4096
WS_CARRY = 64 << 10
WS_FLAGS = 1 << 20
WS_HID = 2 << 20
WS_STAMP = 200 << 20
WS_BYTES = 0x10000000
MISC, XR, BR, WR, CR, PKR = 0, 8192, 139264, 8192, 0, 65536
L_M, L_R, L_MS, L_EXT, L_S = MISC, MISC + 512, MISC + 1024, MISC + 2048, MISC + 3072
LDS_BYTES = 163840
LOG2E = 0x3fb8aa3b
LN2 = 0x3f317218

S_X, S_B, S_W, S_WS = 4, 8, 12, 16
sT0, sT1, sT2, sT3 = 20, 21, 22, 23
sW, sXCD, sJ, sMT, sNT, sL0, sC0, sM2, sN2, sV = 24, 25, 26, 27, 28, 29, 30, 31, 32, 33
pX, pLRE, pLIM, pBRE, pBIM, pCRE, pCIM, pDT, pD, pW1, pB1, pW2, pOUT, pWS = 36, 38, 40, 42, 44, 46, 48, 50, 52, 56, 58, 60, 62, 66
sKX, sKB, sKW, sBX, sBB, sBW, sMX, sMB, sMASK, sSPIN = 68, 69, 70, 71, 72, 73, 74, 75, 76, 77
sUN = 78
sBUF, sHID, sFLG, sCI, sMH, sMW, sG0 = 85, 86, 87, 88, 89, 90, 91
STAMP_REGS = list(range(92, 102)) + [3, 54, 55, 64, 65, 0]
SPIN_MAX = 400000
NAMES_Y = ["-", "stpub", "G0", "Send", "G8", "G17", "gath", "hst", "fin", "end", "GC", "wiss", "flh", "ydone", "Gy", "T3"]
NAMES_X = ["-", "dma0", "c0", "w1iss", "G8", "Mend", "mish", "flB", "-", "end", "GC", "staged", "go", "lastmf", "gy", "i37"]
ORD = [0, 1, 2, 3, 4, 5, 6, 7, 10, 11, 12, 14, 15, 13, 8, 9]


class P:
    def __init__(self, opt):
        self.l = []
        self.vm = []
        self.done = -1
        self.opt = opt
        self.nlab = 0
        self.ool = []
        self.fs = opt.get("fs", 128)

    def __call__(self, s):
        for x in s.strip("\n").split("\n"):
            x = x.strip()
            if not x:
                continue
            self.l.append(x if x.endswith(":") else "    " + x)

    def vmem(self, s, tag=None):
        self(s)
        self.vm.append(tag)

    def last(self, tag):
        return max(i for i, t in enumerate(self.vm) if t == tag)

    def wait_vm(self, tag):
        idx = self.last(tag)
        if idx <= self.done:
            return
        n = len(self.vm) - 1 - idx
        assert n <= 63, n
        self(f"s_waitcnt vmcnt({n})")
        self.done = idx

    def save(self):
        return (list(self.vm), self.done)

    def restore(self, st):
        self.vm, self.done = list(st[0]), st[1]

    def label(self, base):
        self.nlab += 1
        return f"L_{base}_{self.nlab}"

    def stamp(self, i, group=0):
        if self.opt.get("stamps") and self.opt.get("sg", 0) == group:
            op = "s_memtime" if self.opt["stamps"] == 2 else "s_memrealtime"
            self(f"{op} s[34:35]\ns_waitcnt lgkmcnt(0)\ns_mov_b32 s{STAMP_REGS[i]}, s34")

    def nt(self, key, c=0):
        return " nt" if c < self.opt.get(key, 0) else ""

    def raw(self, i):
        if self.opt.get("stamps") and self.opt.get("sg", 0) == 4:
            self(f"s_memrealtime s[{92 + 2 * i}:{93 + 2 * i}]")

    def text(self):
        return "\n".join(self.l) + "\n"


def vr(a, n=1):
    return f"v{a}" if n == 1 else f"v[{a}:{a + n - 1}]"


def off(o):
    return f" offset:{o}" if o else ""


def srd(p, d, ptr, nbytes):
    p(f"""
    s_mov_b32 s{d}, s{ptr}
    s_mov_b32 s{d + 1}, s{ptr + 1}
    s_mov_b32 s{d + 2}, {nbytes}
    s_mov_b32 s{d + 3}, 0x00020000
    """)


def mfma(d, a, b, first=False):
    return f"v_mfma_f32_16x16x32_bf16 {vr(d, 4)}, {vr(a, 4)}, {vr(b, 4)}, {'0' if first else vr(d, 4)}"


def mfma16(d, a, b, first=False):
    return f"v_mfma_f32_16x16x16_bf16 {vr(d, 4)}, {vr(a, 2)}, {vr(b, 2)}, {'0' if first else vr(d, 4)}"


vL, vTAG, vT0, vT1, vT2, vT3, vL16, vL16B = 0, 1, 2, 3, 4, 5, 6, 7


def rowfrag_addr(p, dst):
    p(f"""
    v_and_b32 v{vT0}, 15, v{vL}
    v_bfe_u32 v{vT1}, v{vL}, 1, 3
    v_lshrrev_b32 v{vT2}, 4, v{vL}
    v_xor_b32 v{vT1}, v{vT1}, v{vT2}
    v_lshlrev_b32 v{vT1}, 4, v{vT1}
    v_lshl_add_u32 v{dst}, v{vT0}, 7, v{vT1}
    """)


def w1_tr_addr0(p, dst):
    p(f"""
    v_lshrrev_b32 v{vT0}, 4, v{vL}
    v_bfe_u32 v{vT1}, v{vL}, 2, 2
    v_lshl_add_u32 v{vT2}, v{vT0}, 3, v{vT1}
    v_lshlrev_b32 v{vT2}, 8, v{vT2}
    v_lshl_add_u32 v{vT2}, v{vT1}, 6, v{vT2}
    v_and_b32 v{vT0}, 1, v{vT0}
    v_lshl_add_u32 v{vT2}, v{vT0}, 5, v{vT2}
    v_and_b32 v{vT1}, 3, v{vL}
    v_lshl_add_u32 v{vT2}, v{vT1}, 3, v{vT2}
    v_add_u32 v{dst}, {WR}, v{vT2}
    """)


def w1_dma_setup(p, vow):
    p(f"""
    v_lshrrev_b32 v{vT0}, 4, v{vL}
    v_bfe_u32 v{vT1}, v{vL}, 1, 3
    s_and_b32 s{sT0}, s{sV}, 1
    v_lshl_or_b32 v{vT2}, v{vT0}, 1, s{sT0}
    v_xor_b32 v{vT1}, v{vT1}, v{vT2}
    v_mul_u32_u24 v{vow}, 3584, v{vT0}
    v_lshl_add_u32 v{vow}, v{vT1}, 5, v{vow}
    v_and_b32 v{vT2}, 1, v{vL}
    v_lshl_add_u32 v{vow}, v{vT2}, 4, v{vow}
    s_and_b32 s{sT1}, s{sNT}, 3
    s_cmp_eq_u32 s{sT1}, 3
    s_cselect_b32 s{sT1}, 0x40000000, 0
    v_lshrrev_b32 v{vT1}, 2, v{vT1}
    v_mul_lo_u32 v{vT1}, v{vT1}, s{sT1}
    v_add_u32 v{vow}, v{vow}, v{vT1}
    v_add_u32 v{vow + 1}, 13312, v{vow}
    s_lshl_b32 s{sBW}, s{sL0}, 7
    s_mul_i32 s{sT2}, s{sV}, {8 * 3584}
    s_add_u32 s{sBW}, s{sBW}, s{sT2}
    s_lshl_b32 s{sMW}, s{sV}, 11
    """)


def w1_dma(p, c, vow):
    L = []
    for s in range(2):
        slot = (2 * c + s) % 7

        def a(s=s, slot=slot):
            if s == 0:
                p(f"""
                s_add_u32 s{sT0}, s{sC0}, {c}
                s_and_b32 s{sT0}, s{sT0}, 7
                s_mul_i32 s{sT0}, s{sT0}, {64 * 3584}
                s_add_u32 m0, s{sMW}, {WR + slot * 8192}
                s_add_u32 s{sKW}, s{sBW}, s{sT0}
                """)
            else:
                p(f"s_add_u32 m0, s{sMW}, {WR + slot * 8192}\ns_add_u32 s{sKW}, s{sKW}, {32 * 3584}")
            p.vmem(f"buffer_load_dwordx4 v{vow}, s[{S_W}:{S_W + 3}], s{sKW} offen{p.nt('ntw', c)} lds", ("w", c))
        L.append(a)
        L.append(lambda: p.vmem(f"buffer_load_dwordx4 v{vow + 1}, s[{S_W}:{S_W + 3}], s{sKW} offen offset:1024{p.nt('ntw', c)} lds", ("w", c)))
    return L


def c_dma_setup(p, vo):
    p(f"""
    v_lshrrev_b32 v{vT0}, 4, v{vL}
    v_and_b32 v{vT1}, 7, v{vL}
    v_xor_b32 v{vT0}, v{vT0}, v{vT1}
    v_lshlrev_b32 v{vT0}, 4, v{vT0}
    v_lshrrev_b32 v{vT1}, 3, v{vL}
    v_lshl_add_u32 v{vo}, v{vT1}, 10, v{vT0}
    v_xor_b32 v{vo + 1}, 64, v{vo}
    v_add_u32 v{vo + 1}, 7168, v{vo + 1}
    v_add_u32 v{vo + 2}, 14336, v{vo}
    v_add_u32 v{vo + 3}, 14336, v{vo + 1}
    """)


def make_tag(p):
    p(f"""
    s_mov_b32 s{sT0}, 0x9E3779B1
    v_mul_lo_u32 v{vTAG}, v{vTAG}, s{sT0}
    v_add_u32 v{vTAG}, 0x7F4A7C15, v{vTAG}
    """)


def retry(p, cond, test, reload):
    chk, ok, rt = p.label("chk"), p.label("ok"), p.label("retry")
    p(f"{chk}:")
    test()
    p(f"{cond} {rt}\n{ok}:")
    main, p.l = p.l, []
    p(f"""
    {rt}:
    s_sub_u32 s{sSPIN}, s{sSPIN}, 1
    s_cmp_gt_i32 s{sSPIN}, 0
    s_cbranch_scc0 {ok}
    """)
    reload()
    p(f"s_branch {chk}")
    p.ool += p.l
    p.l = main


sPF = 8


def poll_setup(p, grp_expr):
    p(f"""
    s_mul_i32 s{sT0}, s{sM2}, 12
    {grp_expr}
    s_lshl_b32 s{sT0}, s{sT0}, 7
    s_add_u32 s{sT0}, s{sT0}, {WS_FLAGS}
    s_add_u32 s42, s{pWS}, s{sT0}
    s_addc_u32 s43, s{pWS + 1}, 0
    v_readfirstlane_b32 s40, v{vTAG}
    v_readfirstlane_b32 s41, v{vTAG}
    """)


def poll_issue(p, o_, sPF=sPF):
    p(f"s_load_dwordx8 s[{sPF}:{sPF + 7}], s[42:43], {o_} glc")


def poll_check(p, o_, sPF=sPF):
    def test():
        p("s_waitcnt lgkmcnt(0)")
        for k in range(0, 8, 2):
            p(f"s_xor_b64 s[{sPF + k}:{sPF + k + 1}], s[{sPF + k}:{sPF + k + 1}], s[40:41]")
        p(f"""
        s_or_b64 s[{sPF}:{sPF + 1}], s[{sPF}:{sPF + 1}], s[{sPF + 2}:{sPF + 3}]
        s_or_b64 s[{sPF + 4}:{sPF + 5}], s[{sPF + 4}:{sPF + 5}], s[{sPF + 6}:{sPF + 7}]
        s_or_b64 s[{sPF}:{sPF + 1}], s[{sPF}:{sPF + 1}], s[{sPF + 4}:{sPF + 5}]
        """)
    retry(p, "s_cbranch_scc1", test, lambda: poll_issue(p, o_, sPF))


def delay_until(p, us):
    assert p.opt.get("stamps")
    lab = p.label("dly")
    p(f"""
    s_waitcnt vmcnt(0)
    s_add_u32 s{sT0}, s100, {int(us * 100)}
    {lab}:
    s_memrealtime s[34:35]
    s_waitcnt lgkmcnt(0)
    s_sub_u32 s{sT1}, s34, s{sT0}
    s_cmp_lt_i32 s{sT1}, 0
    s_cbranch_scc1 {lab}
    """)


def flag_store(p, sreg, add):
    p(f"s_add_u32 s{sT0}, s{sreg}, {add}\ns_mov_b64 exec, 1")
    p.vmem(f"buffer_store_dword v{vTAG}, off, s[{S_WS}:{S_WS + 3}], s{sT0} sc1", "flag")
    p("s_mov_b64 exec, -1")


def cmul(p, d, a, b, add=None):
    if add is None:
        p(f"v_pk_mul_f32 {vr(d, 2)}, {vr(a, 2)}, {vr(b, 2)} op_sel_hi:[0,1]")
    else:
        p(f"v_pk_fma_f32 {vr(d, 2)}, {vr(a, 2)}, {vr(b, 2)}, {vr(add, 2)} op_sel_hi:[0,1,1]")
    p(f"v_pk_fma_f32 {vr(d, 2)}, {vr(a, 2)}, {vr(b, 2)}, {vr(d, 2)} op_sel:[1,1,0] op_sel_hi:[1,0,1] neg_lo:[0,1,0]")


def entry(p):
    o = p.opt
    p(f"""
    s_load_dwordx16 s[36:51], s[0:1], 0
    s_load_dwordx16 s[52:67], s[0:1], 64
    s_getpc_b64 s[34:35]
    L_pc:
    s_cmp_ge_u32 s2, 256
    s_cbranch_scc1 L_end
    v_lshrrev_b32 v{vT0}, 6, v0
    s_lshr_b32 s{sJ}, s2, 3
    v_and_b32 v{vL}, 63, v0
    v_readfirstlane_b32 s{sW}, v{vT0}
    v_lshl_add_u32 v{vT0}, s{sJ}, 3, v{vT0}
    v_lshlrev_b32 v{vT0}, 7, v{vT0}
    v_min_u32 v{vT0}, L_end-L_pc, v{vT0}
    """)
    if o.get("cpx"):
        p("s_mov_b64 exec, 1")
    if not o.get("npf"):
        p.vmem(f"global_load_dword v255, v{vT0}, s[34:35]", "pf")
    if o.get("cpx"):
        p("s_mov_b64 exec, -1")
    if o.get("stamps"):
        p(("s_memtime" if o["stamps"] == 2 else "s_memrealtime") + " s[92:93]")
        if o.get("sg", 0) != 4:
            p("s_memrealtime s[100:101]")
    p(f"s_and_b32 s{sXCD}, s2, 7")
    if o.get("part", 24) == 24:
        p(f"""
        s_and_b32 s{sT0}, s{sJ}, 7
        s_lshr_b32 s{sT1}, s{sJ}, 3
        s_lshr_b32 s{sMT}, s{sXCD}, 2
        s_lshl3_add_u32 s{sMT}, s{sMT}, s{sT0}
        s_and_b32 s{sT2}, s{sXCD}, 3
        s_lshl2_add_u32 s{sNT}, s{sT2}, s{sT1}
        """)
    else:
        p(f"""
        s_and_b32 s{sT0}, s{sJ}, 3
        s_lshr_b32 s{sT1}, s{sJ}, 2
        s_lshr_b32 s{sMT}, s{sXCD}, 1
        s_lshl2_add_u32 s{sMT}, s{sMT}, s{sT0}
        s_and_b32 s{sT2}, s{sXCD}, 1
        s_lshl3_add_u32 s{sNT}, s{sT2}, s{sT1}
        """)
    rm, rn, rx, ry = o.get("rm", 1), o.get("rn", 2), o.get("rx", 1), o.get("ry", 0)
    p(f"""
    s_mul_i32 s{sC0}, s{sT0}, {rm}
    s_mul_i32 s{sT1}, s{sT1}, {rn}
    s_add_u32 s{sC0}, s{sC0}, s{sT1}
    s_mul_i32 s{sT1}, s{sXCD}, {rx}
    s_add_u32 s{sC0}, s{sC0}, s{sT1}
    """)
    if ry:
        p(f"s_lshr_b32 s{sT1}, s{sXCD}, 2\ns_mul_i32 s{sT1}, s{sT1}, {ry}\ns_add_u32 s{sC0}, s{sC0}, s{sT1}")
    p(f"""
    s_and_b32 s{sV}, s{sW}, 3
    s_lshr_b32 s{sMH}, s{sV}, 1
    s_cmp_ge_u32 s{sW}, 4
    s_cbranch_scc1 L_X
    """)


def late_ids(p):
    p(f"""
    s_lshr_b32 s{sT0}, s{sNT}, 2
    s_lshl_b32 s{sL0}, s{sNT}, 1
    s_sub_u32 s{sL0}, s{sL0}, s{sT0}
    """)
    if p.opt.get("part2", 81) == 81:
        p(f"""
        s_and_b32 s{sFLG}, s{sJ}, 3
        s_lshl2_add_u32 s{sM2}, s{sXCD}, s{sFLG}
        s_lshr_b32 s{sN2}, s{sJ}, 2
        s_xor_b32 s{sN2}, s{sN2}, {p.opt.get('nx', 5)}
        """)
    else:
        p(f"""
        s_and_b32 s{sFLG}, s{sJ}, 7
        s_lshr_b32 s{sT0}, s{sXCD}, 1
        s_lshl3_add_u32 s{sM2}, s{sT0}, s{sFLG}
        s_and_b32 s{sT0}, s{sXCD}, 1
        s_lshr_b32 s{sN2}, s{sJ}, 3
        s_lshl2_add_u32 s{sN2}, s{sT0}, s{sN2}
        """)
    p(f"""
    s_mov_b32 s{sSPIN}, {SPIN_MAX}
    s_lshl1_add_u32 s{sCI}, s{sMT}, s{sMH}
    s_mov_b32 s{sMASK}, 0xffff0000
    s_mul_i32 s{sFLG}, s{sFLG}, {p.opt.get('rs2', 0)}
    s_mul_i32 s{sT0}, s{sXCD}, {p.opt.get('rx2', 1)}
    s_add_u32 s{sFLG}, s{sFLG}, s{sT0}
    s_add_u32 s{sG0}, s{sFLG}, {('s%d' % sN2) if p.opt.get('rot2', 1) else 0}
    s_and_b32 s{sG0}, s{sG0}, 1
    s_mul_i32 s{sHID}, s{sM2}, {352 * 1024}
    s_add_u32 s{sHID}, s{sHID}, {WS_HID}
    v_lshlrev_b32 v{vL16}, 4, v{vL}
    v_add_u32 v{vL16B}, 4096, v{vL16}
    """)


vRING, NRING, vACC2, vB2 = 8, 12, 64, 128
vPW = 60


def ph2_loop(p, items, hooks_pre, hooks_post, side, ramp, after_ramp=None, NRING=NRING, depth=None, tail=None):
    n = len(items)

    def load(g):
        if g in hooks_pre:
            hooks_pre[g]()
        sreg, second, tb, _, _ = items[g]
        r = vRING + 4 * (g % NRING)
        p.vmem(f"buffer_load_dwordx4 {vr(r, 4)}, v{vL16B if second else vL16}, s[{S_WS}:{S_WS + 3}], s{sreg} offen{off(1024 * (tb ^ second))} sc1", ("a", g))
    depth = depth or p.opt.get("depth", 10)
    assert depth < NRING
    issued = 0
    for g in range(ramp):
        load(g)
        issued += 1
    if after_ramp:
        after_ramp()
    p.stamp(1, 6)
    nreg = n if tail is None else tail[0]
    if p.opt.get("g2", 1):
        for g in range(0, nreg, 2):
            tb = items[g][2]
            assert items[g + 1][2] == tb
            sd = side.get(g, []) + side.get(g + 1, [])
            for i in range(8):
                db, k = divmod(i, 2)
                if i == 0:
                    p.wait_vm(("a", g + 1))
                p(mfma(vACC2 + 16 * tb + 4 * db, items[g + k][3] + 4 * db, vRING + 4 * ((g + k) % NRING), items[g + k][4]))
                if k == 1 and issued < n and issued <= g + depth + (db >= p.opt.get("g2l", 1)):
                    assert issued - NRING < g
                    load(issued)
                    issued += 1
                if k == 1 and db >= 1:
                    m = -(-len(sd) // (4 - db))
                    for x in sd[:m]:
                        x() if callable(x) else p(x)
                    sd = sd[m:]
            for x in sd:
                x() if callable(x) else p(x)
            for k in range(2):
                if g + k in hooks_post:
                    hooks_post[g + k]()
            if g % 4 == 2:
                p.stamp(2 + g // 4, 6)
    for g in range(0 if p.opt.get("g2", 1) else nreg):
        _, _, tb, b2, first = items[g]
        p.wait_vm(("a", g))
        r = vRING + 4 * (g % NRING)
        sd = side.get(g, [])
        for db in range(4):
            p(mfma(vACC2 + 16 * tb + 4 * db, b2 + 4 * db, r, first))
            if db in (0, 2) and issued < n and issued <= g + depth:
                load(issued)
                issued += 1
            if db >= 1:
                k = -(-len(sd) // (4 - db))
                for x in sd[:k]:
                    x() if callable(x) else p(x)
                sd = sd[k:]
        if g in hooks_post:
            hooks_post[g]()
        if g % 4 == 3:
            p.stamp(2 + g // 4, 6)
    if tail is None:
        return
    _, ts = tail
    pend = None
    for g0 in range(nreg, n, ts):
        tb = items[g0][2]
        W = pw_list(tb)
        for db in range(4):
            for k in range(ts):
                g = g0 + k
                if db == 0:
                    p.wait_vm(("a", g))
                p(mfma(vACC2 + 16 * tb + 4 * db, items[g][3] + 4 * db, vRING + 4 * (g % NRING), False))
                free = g if db == 3 else g0 - 1
                if (k & 1 or db == 3) and issued < n and issued - NRING < free:
                    load(issued)
                    issued += 1
                if k == ts - 1 and pend is not None:
                    p("s_nop 1" if db else "s_nop 0")
                    p(pend)
                    pend = None
                if db == 1 and k == 2 and g0 > nreg:
                    p("s_waitcnt lgkmcnt(0)\ns_barrier")
                for x in side.get((g0, db, k), []):
                    p(x)
            pend = W[db]
    p.stamp(13)
    p("s_nop 7")
    p(pend)
    p("s_waitcnt lgkmcnt(0)\ns_barrier")


def order(p, nsteps):
    if p.opt.get("g2", 1):
        return [(2 * u + s, tb) for u in range(nsteps // 2) for tb in range(4) for s in range(2)]
    return [(step, tb) for step in range(nsteps) for tb in range(4)]


def spread(side, L, start, per):
    for i in range(0, len(L), per):
        side.setdefault(start + i // per, []).extend(L[i:i + per])


def partial_addr():
    return f"""v_lshrrev_b32 v{vT0}, 4, v{vL}
    v_and_b32 v{vT1}, 15, v{vL}
    v_xor_b32 v{vT1}, v{vT1}, v{vT0}
    v_lshlrev_b32 v{vT1}, 4, v{vT1}
    v_lshl_add_u32 v{vT1}, v{vT0}, 8, v{vT1}
    v_add_u32 v{vPW}, s{sBUF}, v{vT1}
    v_xor_b32 v{vPW + 1}, 64, v{vPW}
    v_xor_b32 v{vPW + 2}, 128, v{vPW}
    v_xor_b32 v{vPW + 3}, 192, v{vPW}""".split("\n")


def pw_list(tb):
    o_ = 32768 * (tb >> 1) + 4096 * (tb & 1)
    return [f"ds_write_b128 v{vPW + db}, {vr(vACC2 + 16 * tb + 4 * db, 4)} offset:{o_ + 1024 * db}" for db in range(4)]


def partial_write(p, tb):
    for x in pw_list(tb):
        p(x)


yAX, yAB, yAS = 248, 250, 252
yOW = 8
yCW, yR2 = 14, 60
yC, yL, yL16, yQ16, yQ64, yL256, yPQ = 16, 18, 20, 22, 24, 26, 28
yONE, yB1, ySEL = 32, 30, 36
yCS = 40
yCF = 96
yRE, yIM = 64, 80
yFR = 128
yM, yR = 176, 192
yGD = 96
yTA, yTB, yG0, yG1 = 48, 50, 52, 54
yL64, yQM, yGD2, yGA, yNL, ySA = 30, 126, 96, 118, 38, 122


def half_reduce(p, a, t):
    for r in (8, 4, 2, 1):
        p(f"s_nop 1\nv_add_f32_dpp v{a}, v{a}, v{a} row_ror:{r} row_mask:0xf bank_mask:0xf")
    p(f"""
    v_mov_b32 v{t}, v{a}
    s_nop 1
    v_permlane16_swap_b32 v{a}, v{t}
    s_nop 1
    v_add_f32 v{a}, v{a}, v{t}
    """)


def y_prologue(p):
    D = 208
    PR = 244
    p.raw(1)
    p(f"""
    v_and_b32 v{vT0}, 31, v{vL}
    v_lshrrev_b32 v{vT1}, 5, v{vL}
    v_lshlrev_b32 v{vT2}, 4, v{vT0}
    v_lshl_add_u32 v{vT2}, v{vT1}, 10, v{vT2}
    s_lshl4_add_u32 s{sT0}, s{sMT}, s{sNT}
    s_lshl2_add_u32 s{sT0}, s{sT0}, s{sW}
    s_lshl_b32 s{sKX}, s{sT0}, 11
    s_lshl_b32 s{sKB}, s{sT0}, 4
    s_waitcnt lgkmcnt(0)
    """)
    srd(p, S_X, pX, 2048 * 1024)
    p.vmem(f"buffer_load_dwordx4 {vr(D, 4)}, v{vT2}, s[{S_X}:{S_X + 3}], s{sKX} offen{p.nt('ntr')}", "xr")
    p.vmem(f"buffer_load_dwordx4 {vr(D + 4, 4)}, v{vT2}, s[{S_X}:{S_X + 3}], s{sKX} offen offset:512{p.nt('ntr')}", "xr")
    p.raw(2)
    srd(p, S_WS, pWS, WS_BYTES)
    p.vmem(f"buffer_load_dword v{vTAG}, off, s[{S_WS}:{S_WS + 3}], 0 sc1", "xr")
    p.l.append("@YCUT")
    late_ids(p)
    p(f"""
    s_add_u32 s{sKB}, s{sKB}, {WS_STATS}
    v_and_b32 v{vT0}, 15, v{vL}
    s_and_b32 s{sT1}, s{sV}, 1
    s_lshl1_add_u32 s{sT0}, s{sNT}, s{sT1}
    s_lshl_b32 s{sT0}, s{sT0}, 4
    v_add_lshl_u32 v{vT2}, v{vT0}, s{sT0}, 1
    """)
    p.vmem(f"global_load_ushort v{PR}, v{vT2}, s[{pLRE}:{pLRE + 1}]", "par")
    p.vmem(f"global_load_ushort v{PR + 1}, v{vT2}, s[{pLIM}:{pLIM + 1}]", "par")
    p.vmem(f"global_load_ushort v{PR + 2}, v{vT2}, s[{pDT}:{pDT + 1}]", "par")
    if p.opt.get("dt", 1):
        p(f"s_lshl_b32 s{sT0}, s{sN2}, 7\nv_mov_b32 v{vT2}, s{sT0}")
        p.vmem(f"global_load_dword v254, v{vT2}, s[{pD}:{pD + 1}]", "par")
    if p.opt.get("pt", 1) == 2:
        p(f"""
        s_mul_i32 s{sT0}, s{sCI}, 12
        s_lshr_b32 s{sT2}, s{sNT}, 2
        s_add_u32 s{sT0}, s{sT0}, s{sT2}
        s_add_u32 s{sT0}, s{sT0}, {WS_FLAGS // 128}
        s_add_u32 s{sT2}, s{sT2}, s{sT0}
        s_add_u32 s{sT2}, s{sT2}, 2
        s_lshl_b32 s{sT0}, s{sT0}, 7
        v_add_lshl_u32 v{vT2}, v{vL}, s{sT2}, 7
        s_mov_b64 exec, 2
        v_mov_b32 v{vT2}, s{sT0}
        s_mov_b64 exec, 1
        v_mov_b32 v{vT2}, s{sKB}
        s_mov_b64 exec, 15
        """)
        p.vmem(f"buffer_load_dword v254, v{vT2}, s[{S_WS}:{S_WS + 3}], 0 offen", "par")
        p("s_mov_b64 exec, -1")
    tw = p.opt.get("tw", 0)
    if tw:
        p(f"""
        s_mul_i32 s{sT0}, s{sCI}, {352 * 1024}
        s_add_u32 s{sT0}, s{sT0}, {WS_HID}
        s_cmp_eq_u32 s{sT1}, 0
        s_cselect_b32 s{sT0}, s{sT0}, s{sHID}
        v_mul_u32_u24 v{vT2}, {352 * 1024 // (tw & 15) - 128}, v{vL}
        s_mov_b64 exec, {(2 << (tw & 15)) - 1}
        """)
        p.vmem(f"buffer_load_dword v254, v{vT2}, s[{S_WS}:{S_WS + 3}], s{sT0} offen", "par")
        if tw & 16:
            p(f"""
            s_lshl2_add_u32 s{sT0}, s{sM2}, s{sV}
            s_lshl_b32 s{sT0}, s{sT0}, 15
            v_mov_b32 v{vT2}, s{sT0}
            s_mov_b64 exec, 1
            """)
            p.vmem(f"global_load_dword v254, v{vT2}, s[{pOUT}:{pOUT + 1}]", "par")
        p("s_mov_b64 exec, -1")
    rowfrag_addr(p, yAX)
    p(f"""
    s_lshl_b32 s{sT0}, s{sT1}, 11
    s_add_u32 s{sT0}, s{sT0}, {BR}
    v_add_u32 v{yAB}, s{sT0}, v{yAX}
    s_lshl_b32 s{sT0}, s{sMH}, 13
    s_add_u32 s{sT0}, s{sT0}, {XR}
    v_add_u32 v{yAX}, s{sT0}, v{yAX}
    v_xor_b32 v{yAX + 1}, 64, v{yAX}
    v_xor_b32 v{yAB + 1}, 64, v{yAB}
    """)
    for k in range(4):
        p(f"v_mov_b32 v{yONE + k}, 0x3f803f80")
    p(f"""
    v_and_b32 v{vT0}, 15, v{vL}
    v_lshrrev_b32 v{vT1}, 4, v{vL}
    v_lshlrev_b32 v{vT1}, 2, v{vT1}
    v_sub_u32 v{vT0}, v{vT0}, v{vT1}
    v_mov_b32 v{vT1}, 0x3f80
    v_mov_b32 v{vT2}, 0x3f800000
    """)
    for dw in range(2):
        p(f"""
        v_cmp_eq_u32 vcc, {2 * dw}, v{vT0}
        v_cmp_eq_u32 s[{sT0}:{sT1}], {2 * dw + 1}, v{vT0}
        s_nop 0
        v_cndmask_b32 v{ySEL + dw}, 0, v{vT1}, vcc
        v_cndmask_b32 v{ySEL + dw}, v{ySEL + dw}, v{vT2}, s[{sT0}:{sT1}]
        """)
    p(f"""
    v_lshrrev_b32 v{vT1}, 4, v{vL}
    s_lshl_b32 s{sT0}, s{sMH}, 8
    s_add_u32 s{sT0}, s{sT0}, {L_M}
    v_lshl_add_u32 v{yAS}, v{vT1}, 6, s{sT0}
    """)
    y_m_setup(p)
    if p.opt.get("pt", 1) == 1:
        p(f"""
        s_add_u32 s38, s{pWS}, s{sKB}
        s_addc_u32 s39, s{pWS + 1}, 0
        s_load_dword s58, s[38:39], 0 {'glc' if p.opt.get('ptg', 1) else ''}
        s_mul_i32 s{sT0}, s{sCI}, 12
        s_lshr_b32 s{sT1}, s{sNT}, 2
        s_add_u32 s{sT0}, s{sT0}, s{sT1}
        s_lshl_b32 s{sT0}, s{sT0}, 7
        s_add_u32 s{sT0}, s{sT0}, {WS_FLAGS}
        s_add_u32 s38, s{pWS}, s{sT0}
        s_addc_u32 s39, s{pWS + 1}, 0
        s_load_dword s58, s[38:39], 0 {'glc' if p.opt.get('ptg', 1) else ''}
        """)
    p.raw(3)
    if not p.opt.get("sd"):
        y_stats(p)


def y_stats(p):
    D = 208
    p.wait_vm("xr")
    p.raw(4)
    make_tag(p)
    F = D + 8
    for k in range(8):
        p(f"v_lshlrev_b32 v{F + 2 * k}, 16, v{D + k}\nv_and_b32 v{F + 2 * k + 1}, s{sMASK}, v{D + k}")
    A = D + 24
    p(f"v_pk_add_f32 {vr(A, 2)}, {vr(F, 2)}, {vr(F + 2, 2)}")
    for k in range(2, 8):
        p(f"v_pk_add_f32 {vr(A, 2)}, {vr(A, 2)}, {vr(F + 2 * k, 2)}")
    p(f"v_add_f32 v{A}, v{A}, v{A + 1}")
    half_reduce(p, A, A + 1)
    p(f"v_mul_f32 v{A}, 0x3b000000, v{A}")
    for k in range(8):
        p(f"v_pk_add_f32 {vr(F + 2 * k, 2)}, {vr(F + 2 * k, 2)}, {vr(A, 2)} op_sel_hi:[1,0] neg_lo:[0,1] neg_hi:[0,1]")
    p(f"v_pk_mul_f32 {vr(A + 2, 2)}, {vr(F, 2)}, {vr(F, 2)}")
    for k in range(1, 8):
        p(f"v_pk_fma_f32 {vr(A + 2, 2)}, {vr(F + 2 * k, 2)}, {vr(F + 2 * k, 2)}, {vr(A + 2, 2)}")
    p(f"v_add_f32 v{A + 2}, v{A + 2}, v{A + 3}")
    half_reduce(p, A + 2, A + 3)
    p(f"""
    v_mul_f32 v{A + 2}, 0x3b000000, v{A + 2}
    v_cvt_pk_bf16_f32 v{A + 2}, v{A + 2}, v{A + 2}
    v_and_b32 v{A + 2}, s{sMASK}, v{A + 2}
    v_add_f32 v{A + 2}, 0x3727c5ac, v{A + 2}
    v_cvt_pk_bf16_f32 v{A + 2}, v{A + 2}, v{A + 2}
    v_and_b32 v{A + 2}, s{sMASK}, v{A + 2}
    v_sqrt_f32 v{A + 2}, v{A + 2}
    v_lshrrev_b32 v{vT1}, 5, v{vL}
    v_cvt_pk_bf16_f32 v{A}, v{A}, v{A + 2}
    v_mov_b32 v{A + 1}, v{vTAG}
    v_lshlrev_b32 v{vT1}, 3, v{vT1}
    s_mov_b32 exec_lo, 1
    s_mov_b32 exec_hi, 1
    """)
    p.vmem(f"buffer_store_dwordx2 {vr(A, 2)}, v{vT1}, s[{S_WS}:{S_WS + 3}], s{sKB} offen sc1", "stst")
    p("s_mov_b64 exec, -1")
    p.stamp(1)


def y_consts(p):
    PR, t = 244, 208
    main, p.l = p.l, []
    p(f"v_mov_b32 v58, v{vTAG}\nv_mov_b32 v59, v{vTAG}")
    p(f"""
    v_lshlrev_b32 v{PR}, 16, v{PR}
    v_lshlrev_b32 v{PR + 1}, 16, v{PR + 1}
    v_lshlrev_b32 v{PR + 2}, 16, v{PR + 2}
    v_mul_f32 v{PR + 2}, {LOG2E}, v{PR + 2}
    v_exp_f32 v{PR + 2}, v{PR + 2}
    s_nop 0
    v_cvt_pk_bf16_f32 v{PR + 2}, v{PR + 2}, v{PR + 2}
    v_and_b32 v{PR + 2}, s{sMASK}, v{PR + 2}
    v_mul_f32 v{t}, v{PR + 2}, v{PR}
    v_mul_f32 v{t + 1}, v{PR + 2}, v{PR + 1}
    v_mul_f32 v{t}, {LOG2E}, v{t}
    v_mul_f32 v{t + 1}, 0.15915494, v{t + 1}
    v_exp_f32 v{t}, v{t}
    v_rndne_f32 v{t + 2}, v{t + 1}
    v_sub_f32 v{t + 1}, v{t + 1}, v{t + 2}
    v_cos_f32 v{t + 2}, v{t + 1}
    v_sin_f32 v{t + 3}, v{t + 1}
    v_mul_f32 v{t + 4}, v{PR}, v{PR}
    v_fmac_f32 v{t + 4}, v{PR + 1}, v{PR + 1}
    v_rcp_f32 v{t + 4}, v{t + 4}
    v_mul_f32 v{yL}, v{t}, v{t + 2}
    v_mul_f32 v{t + 3}, v{t}, v{t + 3}
    v_sub_f32 v{yL + 1}, 0, v{t + 3}
    v_add_f32 v{t + 2}, -1.0, v{yL}
    v_add_f32 v{t + 4}, v{t + 4}, v{t + 4}
    v_mul_f32 v{yC}, v{t + 2}, v{PR}
    v_fmac_f32 v{yC}, v{t + 3}, v{PR + 1}
    v_mul_f32 v{yC + 1}, v{t + 3}, v{PR}
    v_fma_f32 v{yC + 1}, -v{t + 2}, v{PR + 1}, v{yC + 1}
    v_mul_f32 v{yC}, v{yC}, v{t + 4}
    v_mul_f32 v{yC + 1}, v{yC + 1}, v{t + 4}
    v_and_b32 v{vT0}, 16, v{vL}
    v_cmp_ne_u32 s[42:43], 0, v{vT0}
    v_cmp_le_u32 s[44:45], 32, v{vL}
    """)
    a, b, c, d = t + 6, t + 8, t + 10, t + 12
    cmul(p, a, yL, yL)
    cmul(p, b, a, a)
    cmul(p, a, b, b)
    cmul(p, yL16, a, a)
    cmul(p, a, yL16, yL16)

    def qpow(dst, p1, p2):
        p(f"""
        v_cndmask_b32 v{c}, 1.0, v{p1}, s[42:43]
        v_cndmask_b32 v{c + 1}, 0, v{p1 + 1}, s[42:43]
        v_cndmask_b32 v{d}, 1.0, v{p2}, s[44:45]
        v_cndmask_b32 v{d + 1}, 0, v{p2 + 1}, s[44:45]
        """)
        cmul(p, dst, c, d)
    qpow(yQ16, yL16, a)
    cmul(p, yL64, a, a)
    p(f"""
    s_cmp_eq_u32 s{sMH}, 0
    s_cselect_b64 vcc, -1, 0
    s_cselect_b32 s59, 0, 1.0
    v_cndmask_b32_e64 v{c}, v{yL64}, 1.0, vcc
    v_cndmask_b32_e64 v{c + 1}, v{yL64 + 1}, 0, vcc
    """)
    cmul(p, yQM, c, yQ16)
    cmul(p, a, yL64, yL64)
    cmul(p, b, a, a)
    qpow(yQ64, a, b)
    cmul(p, yL256, b, b)
    p(f"""
    v_sub_f32 v{yNL}, 0, v{yL + 1}
    v_sub_f32 v{yNL + 1}, 0, v{yL256 + 1}
    """)
    L, p.l = p.l, main
    return L


def y_pass_s(p):
    def reads(c, s, st):
        b = yFR + 24 * st
        G = [[f"ds_read_b128 {vr(b + 16 + 4 * k, 4)}, v{yAB + s} offset:{(c % 3) * 8192 + k * 4096}" for k in range(2)]]
        G += [[f"ds_read_b128 {vr(b + 4 * tb, 4)}, v{yAX + s} offset:{(c & 3) * 16384 + tb * 2048}"] for tb in range(4)]
        return G
    p("s_waitcnt lgkmcnt(0)\ns_barrier")
    p.stamp(2)
    issued, mark = 0, {}
    for g, L in enumerate(reads(0, 0, 0)):
        for x in L:
            p(x)
            issued += 1
        mark[(0, g)] = issued
    K = y_consts(p)
    nk = -(-len(K) // p.opt.get("kn", 5))
    for n in range(16):
        c, s = divmod(n, 2)
        st = n & 1
        b = yFR + 24 * st
        M = [[mfma(yCS, yONE, b + 16, n == 0), mfma(yCS + 4, yONE, b + 20, n == 0)]]
        M += [[mfma(yRE + 4 * tb, b + 4 * tb, b + 16, n == 0), mfma(yIM + 4 * tb, b + 4 * tb, b + 20, n == 0)] for tb in range(4)]
        if n < 15:
            R = reads((n + 1) >> 1, (n + 1) & 1, st ^ 1)
        else:
            R = [[f"ds_read_b128 {vr(yM + 4 * tb, 4)}, v{yAS} offset:{16 * tb}", f"ds_read_b128 {vr(yR + 4 * tb, 4)}, v{yAS} offset:{512 + 16 * tb}"] for tb in range(4)] + [[]]
        for g in range(5):
            p(f"s_waitcnt lgkmcnt({issued - mark[(n, g)]})")
            p(M[g][0])
            if g == 0 and s == 1 and c < 7:
                p(M[g][1])
                if p.opt.get("sd") and c == 0:
                    y_stats(p)
                elif K and c >= p.opt.get("k0", 0):
                    p.wait_vm("par")
                    for x in K[:nk]:
                        p(x)
                    K = K[nk:]
                p("s_barrier")
            if g == p.opt.get("g8", 0) and n == 15 and p.opt.get("nw"):
                p("s_waitcnt lgkmcnt(0)\ns_barrier")
                p.stamp(4)
                p.stamp(1, 1)
            if g == 0 and n in (7, 8):
                p(f"v_add_u32 v{yAX + ((n + 1) & 1)}, 65536, v{yAX + ((n + 1) & 1)}")
            for i, x in enumerate(R[g]):
                p(x)
                issued += 1
                if i == 0 and not (g == 0 and s == 1 and c < 7):
                    p(M[g][1])
            if not R[g]:
                p(M[g][1])
            mark[(n + 1, g)] = issued
    assert not K
    p("s_waitcnt lgkmcnt(0)")
    p.stamp(3)


def yU(tau):
    tb, i = divmod(tau, 4)
    return (yRE if i % 2 == 0 else yIM) + 4 * tb + (i & ~1)


def y_window(p):
    g, gn = yG0, yG1
    p("s_nop 1")
    if p.opt.get("al", 1):
        p(".p2align 3")
    for tau in range(0, 16, 2):
        a, b = yRE + tau, yIM + tau
        p(f"""
        v_pk_fma_f32 {vr(yTA, 2)}, {vr(yM + tau, 2)}, {vr(yCS, 2)}, {vr(a, 2)} neg_lo:[1,0,0] neg_hi:[1,0,0]
        v_pk_fma_f32 {vr(yTB, 2)}, {vr(yM + tau, 2)}, {vr(yCS + 4, 2)}, {vr(b, 2)} neg_lo:[1,0,0] neg_hi:[1,0,0]
        v_pk_mul_f32 {vr(yTA, 2)}, {vr(yTA, 2)}, {vr(yR + tau, 2)}
        v_pk_mul_f32 {vr(yTB, 2)}, {vr(yTB, 2)}, {vr(yR + tau, 2)}
        v_pk_mul_f32 {vr(a, 2)}, {vr(yTA, 2)}, {vr(yC, 2)} op_sel_hi:[0,1] neg_hi:[0,1]
        v_pk_mul_f32 {vr(b, 2)}, {vr(yTA, 2)}, {vr(yC, 2)} op_sel:[1,0] op_sel_hi:[1,1] neg_hi:[0,1]
        v_pk_fma_f32 {vr(a, 2)}, {vr(yTB, 2)}, {vr(yC, 2)}, {vr(a, 2)} op_sel:[0,1,0] op_sel_hi:[0,0,1] neg_lo:[0,1,0] neg_hi:[0,1,0]
        v_pk_fma_f32 {vr(b, 2)}, {vr(yTB, 2)}, {vr(yC, 2)}, {vr(b, 2)} op_sel:[1,1,0] op_sel_hi:[1,0,1] neg_lo:[0,1,0] neg_hi:[0,1,0]
        """)
        if tau == 0:
            cmul(p, g, yU(0), yL, yU(1))
        else:
            cmul(p, gn, g, yL, yU(tau))
            cmul(p, g, gn, yL, yU(tau + 1))
    GR = 56
    p(f"""
    v_mov_b32 v{gn}, v{g}
    v_mov_b32 v{gn + 1}, v{g + 1}
    s_nop 1
    v_permlane16_swap_b32 v{g}, v{gn}
    v_permlane16_swap_b32 v{g + 1}, v{gn + 1}
    v_mov_b32 v{yTA}, v{g}
    v_mov_b32 v{yTA + 1}, v{g + 1}
    v_mov_b32 v{yTB}, v{gn}
    v_mov_b32 v{yTB + 1}, v{gn + 1}
    v_permlane32_swap_b32 v{g}, v{yTA}
    v_permlane32_swap_b32 v{g + 1}, v{yTA + 1}
    v_permlane32_swap_b32 v{gn}, v{yTB}
    v_permlane32_swap_b32 v{gn + 1}, v{yTB + 1}
    s_nop 0
    """)
    cmul(p, gn, g, yL16, gn)
    cmul(p, yTA, gn, yL16, yTA)
    cmul(p, GR, yTA, yL16, yTB)
    p(f"ds_write_b64 v{ySA}, {vr(GR, 2)}")
    for k in range(2):
        p(f"""
        v_cndmask_b32 v{g + k}, 0, v{g + k}, s[42:43]
        v_cndmask_b32 v{gn + k}, v{gn + k}, v{yTA + k}, s[42:43]
        v_cndmask_b32 v{yPQ + k}, v{g + k}, v{gn + k}, s[44:45]
        """)
    p("s_waitcnt lgkmcnt(0)\ns_barrier")
    p.stamp(4)
    p.stamp(1, 1)
    p.stamp(1, 2)
    p(f"ds_read_b64 {vr(yTA, 2)}, v{ySA + 1}")


def cmacn(d, a, b):
    return [f"v_fmac_f32 v{d}, v{a}, v{b}", f"v_fmac_f32 v{d + 1}, v{a}, v{b + 1}",
            f"v_fma_f32 v{d}, -v{a + 1}, v{b + 1}, v{d}", f"v_fmac_f32 v{d + 1}, v{a + 1}, v{b}"]


def window_plain():
    W = []
    GR = 56
    gr, gi = yRE, yIM
    nx = yG0
    for tau in range(16):
        a, b = yRE + tau, yIM + tau
        W += [f"v_fma_f32 v{a}, -v{yM + tau}, v{yCS}, v{a}", f"v_fma_f32 v{b}, -v{yM + tau}, v{yCS + 4}, v{b}",
              f"v_mul_f32 v{a}, v{yR + tau}, v{a}", f"v_mul_f32 v{b}, v{yR + tau}, v{b}"]
        if tau:
            W += [f"v_fma_f32 v{nx}, v{gr}, v{yL}, v{a}", f"v_fma_f32 v{nx + 1}, v{gr}, v{yNL}, v{b}",
                  f"v_fmac_f32 v{nx}, v{gi}, v{yL + 1}", f"v_fmac_f32 v{nx + 1}, v{gi}, v{yL}"]
            gr, gi = nx, nx + 1
            nx = yG1 if nx == yG0 else yG0
    g, gn = nx, gr
    W += [f"v_mul_f32 v{g}, v{gr}, v{yC}", f"v_mul_f32_e64 v{g + 1}, -v{gr}, v{yC + 1}",
          f"v_fma_f32 v{g}, -v{gi}, v{yC + 1}, v{g}", f"v_fma_f32 v{g + 1}, -v{gi}, v{yC}, v{g + 1}"]
    W += [f"""v_mov_b32 v{gn}, v{g}
    v_mov_b32 v{gn + 1}, v{g + 1}
    s_nop 1
    v_permlane16_swap_b32 v{g}, v{gn}
    v_permlane16_swap_b32 v{g + 1}, v{gn + 1}
    v_mov_b32 v{yTA}, v{g}
    v_mov_b32 v{yTA + 1}, v{g + 1}
    v_mov_b32 v{GR}, v{gn}
    v_mov_b32 v{GR + 1}, v{gn + 1}
    v_permlane32_swap_b32 v{g}, v{yTA}
    v_permlane32_swap_b32 v{g + 1}, v{yTA + 1}
    v_permlane32_swap_b32 v{gn}, v{GR}
    v_permlane32_swap_b32 v{gn + 1}, v{GR + 1}
    s_nop 0"""] + [""] * 11
    W += cmacn(gn, g, yL16) + cmacn(yTA, gn, yL16) + cmacn(GR, yTA, yL16)
    W.append(f"ds_write_b64 v{ySA}, {vr(GR, 2)}")
    for k in range(2):
        W += [f"v_cndmask_b32 v{g + k}, 0, v{g + k}, s[42:43]", f"v_cndmask_b32 v{gn + k}, v{gn + k}, v{yTA + k}, s[42:43]",
              f"v_cndmask_b32 v{yPQ + k}, v{g + k}, v{gn + k}, s[44:45]"]
    return W


def coef_plain():
    W = []
    P_, Q_ = yG0, yG0 + 1
    cr, ci = yC, yC + 1
    for tau in range(0, 16, 2):
        a0, a1, b0, b1 = yRE + tau, yRE + tau + 1, yIM + tau, yIM + tau + 1
        W += [f"v_mul_f32_e64 v{P_}, -v{a0}, v{ci}", f"v_mul_f32_e64 v{Q_}, -v{b1}, v{ci}",
              f"v_mul_f32 v{a0}, v{a0}, v{cr}", f"v_mul_f32_e64 v{b1}, -v{b1}, v{cr}",
              f"v_fma_f32 v{a0}, -v{b0}, v{ci}, v{a0}", f"v_fma_f32 v{b1}, -v{a1}, v{ci}, v{b1}",
              f"v_fmac_f32 v{Q_}, v{a1}, v{cr}", f"v_fma_f32 v{a1}, -v{b0}, v{cr}, v{P_}", f"v_mov_b32 v{b0}, v{Q_}"]
    return W


def y_publish(p):
    GR = 56
    p(f"""
    s_waitcnt lgkmcnt(0)
    v_mul_f32 v{yTA}, s59, v{yTA}
    v_mul_f32 v{yTA + 1}, s59, v{yTA + 1}
    v_mul_f32 v{GR}, s59, v{GR}
    v_mul_f32 v{GR + 1}, s59, v{GR + 1}
    v_fmac_f32 v{GR}, v{yTA}, v{yL64}
    v_fmac_f32 v{GR + 1}, v{yTA}, v{yL64 + 1}
    v_fma_f32 v{GR}, -v{yTA + 1}, v{yL64 + 1}, v{GR}
    v_fmac_f32 v{GR + 1}, v{yTA + 1}, v{yL64}
    s_mov_b64 exec, 0xffff
    """)
    p.vmem(f"buffer_store_dwordx4 {vr(GR, 4)}, v{ySA + 2}, s[{S_WS}:{S_WS + 3}], s{sMB} offen sc1", "S")
    p(f"""
    s_mov_b64 exec, -1
    v_fmac_f32 v{yPQ}, v{yTA}, v{yQ16}
    v_fmac_f32 v{yPQ + 1}, v{yTA}, v{yQ16 + 1}
    v_fma_f32 v{yPQ}, -v{yTA + 1}, v{yQ16 + 1}, v{yPQ}
    v_fmac_f32 v{yPQ + 1}, v{yTA + 1}, v{yQ16}
    """)


class Rebase:
    def __init__(self, reg, base):
        self.reg, self.base = reg, base

    def at(self, q):
        d = 32768 * q - self.base
        if d in (0, 32768):
            return [], d
        self.base += d
        op, d = ("v_add_u32", d) if d > 0 else ("v_subrev_u32", -d)
        return [f"{op} v{self.reg + k}, {d}, v{self.reg + k}" for k in range(4)], 0


def with_pre(pre, L):
    if pre:
        L[0] = "\n".join(pre) + "\n" + L[0]
    return L


def w2_unit_head(p, slot):
    p(f"s_lshl_b32 s{sKB}, s{sUN + slot}, 16\ns_add_u32 s{sKB}, s{sKB}, s{sBB}")


yOC, yO2 = 10, 32


class Stage:
    ORDERS = {0: "C2 C3 C4 C2 W3 W4 W2 W0 W1",
              1: "C2 W3 W4 C2 W2 C0 C1 W0 W1",
              2: "W3 W4 W2 C0 C1 C0 C1 W0 W1",
              3: "C2 C4 W3 W4 W2 C0 C1 W0 W1",
              4: "C2 W3 C4 C2 W4 W2 C0 W0 W1",
              5: "C2 C4 W3 C2 W4 C2 W2 W0 W1",
              6: "C2 C4 W3 W4 C2 W2 C0 W0 W1"}

    def __init__(self, p):
        self.p = p
        self.todo, n, last, self.cq = [], {"C": 0, "W": 0}, {}, []
        for x in self.ORDERS[p.opt.get("seq", 0)].split():
            kind, q = x[0], int(x[1])
            self.todo.append((kind, n[kind], q, last.get(q, -1)))
            if kind == "C":
                last[q] = n[kind]
                self.cq.append(q)
            n[kind] += 1
        self.cur, self.k = None, 0
        self.read = 0
        self.full = set()
        self.late = False
        self.rb = Rebase(yR2, 65536)

    def pick(self):
        if self.cur is None:
            for u in self.todo:
                if (u[2] >= 2 or self.late) and self.read > u[3]:
                    self.cur, self.k = u, 0
                    self.todo.remove(u)
                    break
        return self.cur

    def left(self):
        return 8 * len(self.todo) + (8 - self.k if self.cur else 0)

    def done(self):
        return not self.todo and self.cur is None

    def dma(self, need_m0=True):
        p = self.p
        if self.pick() is None:
            return False
        kind, u, q, _ = self.cur
        k = self.k
        if need_m0 or k % 4 == 0:
            p(f"s_add_u32 m0, s{sBUF}, {32768 * q + 4096 * (k // 4)}")
            if k % 4:
                p("s_nop 0")
        if k == 0 and kind == "W":
            w2_unit_head(p, u)
        if k == 0 and kind == "C":
            ptr = pCIM if u & 1 else pCRE
            p(f"s_mov_b32 s{S_X}, s{ptr}\ns_mov_b32 s{S_X + 1}, s{ptr + 1}\ns_xor_b32 s{sKB}, s{sKX}, {128 * (u >> 1)}")
        if k == 4:
            p(f"s_add_u32 s{sKB}, s{sKB}, 32768")
        vo, sr = (yOC, S_X) if kind == "C" else (yO2, S_B)
        p.vmem(f"buffer_load_dwordx4 v{vo + k % 4}, s[{sr}:{sr + 3}], s{sKB} offen{off(1024 * (k % 4))} lds", (kind, u) if kind == "C" else "W")
        self.k += 1
        if self.k == 8:
            self.full.add((kind, u))
            self.cur = None
        return True

    def reads(self, u):
        pre, imm = self.rb.at(self.cq[u])
        if pre and self.late and self.p.opt.get("yp", 1):
            pre = ["s_setprio 3"] + pre + ["s_setprio 0"]
        return with_pre(pre, [f"ds_read_b64 {vr(vB2 + 64 * (u >> 1) + 16 * j + 4 * db + 2 * (u & 1), 2)}, v{yR2 + j} offset:{imm + 2048 * db}"
                              for j in range(4) for db in range(4)])

    def read_next(self):
        self.p.wait_vm(("C", self.read))
        for x in self.reads(self.read):
            self.p(x)
        self.p("s_waitcnt lgkmcnt(0)")
        self.read += 1


def w2_dma_setup(p, vo):
    p(f"""
    v_lshrrev_b32 v{vT0}, 4, v{vL}
    v_and_b32 v{vT1}, 7, v{vL}
    v_lshlrev_b32 v{vT0}, 1, v{vT0}
    v_xor_b32 v{vT0}, v{vT0}, v{vT1}
    v_lshlrev_b32 v{vT0}, 4, v{vT0}
    v_lshrrev_b32 v{vT1}, 3, v{vL}
    v_lshl_add_u32 v{vo}, v{vT1}, 10, v{vT0}
    v_add_u32 v{vo + 1}, 7168, v{vo}
    v_add_u32 v{vo + 2}, 14336, v{vo}
    v_add_u32 v{vo + 3}, 21504, v{vo}
    """)


def y_m_setup(p):
    p(f"""
    s_lshl_b32 s{sBUF}, s{sV}, 13
    s_add_u32 s{sT0}, s{sBUF}, 65536
    v_and_b32 v{vT0}, 15, v{vL}
    v_bfe_u32 v{vT1}, v{vL}, 1, 3
    v_lshrrev_b32 v{vT2}, 5, v{vL}
    v_xor_b32 v{vT1}, v{vT1}, v{vT2}
    v_lshlrev_b32 v{vT1}, 4, v{vT1}
    v_lshl_add_u32 v{vT0}, v{vT0}, 7, v{vT1}
    v_bfe_u32 v{vT1}, v{vL}, 4, 1
    v_lshl_add_u32 v{vT0}, v{vT1}, 3, v{vT0}
    v_add_u32 v{yR2}, s{sT0}, v{vT0}
    v_xor_b32 v{yR2 + 1}, 32, v{yR2}
    v_xor_b32 v{yR2 + 2}, 64, v{yR2}
    v_xor_b32 v{yR2 + 3}, 96, v{yR2}
    s_lshl_b32 s{sBB}, s{sN2}, 7
    """)
    w1_dma_setup(p, yOW)
    c_dma_setup(p, yOC)
    p(f"""
    s_and_b32 s{sT1}, s{sV}, 1
    s_lshl1_add_u32 s{sMX}, s{sNT}, s{sT1}
    s_lshl_b32 s{sMB}, s{sMX}, 14
    s_add_u32 s{sMB}, s{sMB}, {WS_CARRY}
    v_lshl_add_u32 v14, s{sT1}, 10, v{vL16}
    v_xor_b32 v15, 1024, v14
    v_and_b32 v{vT0}, 15, v{vL}
    s_lshl_b32 s{sT1}, s{sT1}, 8
    s_add_u32 s{sT1}, s{sT1}, {L_S}
    v_lshl_add_u32 v{ySA + 1}, v{vT0}, 3, s{sT1}
    s_lshl_b32 s{sT1}, s{sMH}, 7
    v_add_u32 v{ySA}, s{sT1}, v{ySA + 1}
    v_lshlrev_b32 v{vT0}, 4, v{vT0}
    s_add_u32 s{sT1}, s{sMT}, 1
    s_mul_i32 s{sT1}, s{sT1}, s{sMH}
    s_lshl_b32 s{sT1}, s{sT1}, 8
    v_add_u32 v{ySA + 2}, s{sT1}, v{vT0}
    v_lshrrev_b32 v{vT1}, 4, v{vL}
    v_sub_u32 v{vT1}, s{sMT}, v{vT1}
    v_lshl_add_u32 v{vT1}, v{vT1}, 8, v{vT0}
    """)
    for j in range(4):
        p(f"v_subrev_u32 v{yGA + j}, {1024 * j}, v{vT1}\nv_max_i32 v{yGA + j}, v{yGA + j}, v{vT0}")
    y_units(p)
    srd(p, S_W, pW1, 512 * 3584)
    srd(p, S_B, pW2, 1792 * 1024)
    p(f"""
    s_mov_b32 s{S_X + 2}, {512 * 1024}
    s_lshl1_add_u32 s{sKX}, s{sV}, s{sG0}
    s_lshl_b32 s{sKX}, s{sKX}, 7
    s_lshl_b32 s{sT1}, s{sN2}, 16
    s_add_u32 s{sKX}, s{sKX}, s{sT1}
    """)


def y_units(p, only0=None):
    r2 = p.opt.get("rot2", 1)
    p(f"""
    s_mul_i32 s{sT0}, s{sV}, 7
    s_and_b32 s{sKX}, s{sM2}, 1
    s_and_b32 s{sT1}, s{sN2}, {1 if r2 else 0}
    s_lshl1_add_u32 s{sT2}, s{sT1}, s{sFLG}
    """)
    for i in range(4):
        p(f"""
        s_add_u32 s{sT3}, s{sT2}, {i}
        s_and_b32 s{sT3}, s{sT3}, 3
        s_lshl1_add_u32 s{sT3}, s{sT3}, s{sKX}
        s_min_u32 s{sT3}, s{sT3}, 6
        s_add_u32 s{sUN + i if only0 is None else only0}, s{sT3}, s{sT0}
        """)
        if only0 is not None:
            return
    p(f"""
    s_add_u32 s{sT1}, s{sT1}, s{sFLG}
    s_mul_i32 s{sT2}, s{sT1}, 86
    s_lshr_b32 s{sT2}, s{sT2}, 8
    s_mul_i32 s{sT2}, s{sT2}, 3
    s_sub_u32 s{sT1}, s{sT1}, s{sT2}
    s_add_u32 s{sT0}, s{sT0}, 1
    s_sub_u32 s{sT0}, s{sT0}, s{sKX}
    """)
    for i in range(3):
        p(f"""
        s_lshl1_add_u32 s{sUN + 4 + i}, s{sT1}, s{sT0}
        s_add_u32 s{sT1}, s{sT1}, 1
        s_cmp_eq_u32 s{sT1}, 3
        s_cselect_b32 s{sT1}, 0, s{sT1}
        """)


def gather_list(p, track):
    L = []
    for j in range(3, -1, -1):
        def f(j=j):
            s = f"buffer_load_dwordx4 {vr(yGD2 + 4 * j, 4)}, v{yGA + j}, s[{S_WS}:{S_WS + 3}], s{sMB} offen sc1"
            p.vmem(s, "G") if track else p(s)
        L.append(f)
    return L


def cmac(d, a, b, nb):
    return [f"v_fmac_f32 v{d}, v{a}, v{b}", f"v_fmac_f32 v{d + 1}, v{a}, v{b + 1}",
            f"v_fmac_f32 v{d}, v{a + 1}, v{nb}", f"v_fmac_f32 v{d + 1}, v{a + 1}, v{b}"]


def h_work(p):
    W = []

    def check():
        p.wait_vm("G")

        def test():
            p(f"v_xor_b32 v{vT3}, v{yGD2 + 14}, v{vTAG}")
            for j in range(2, -1, -1):
                p(f"v_bitop3_b32 v{vT3}, v{yGD2 + 4 * j + 2}, v{vTAG}, v{vT3} bitop3:0xbe")
            p(f"v_cmp_ne_u32 vcc, 0, v{vT3}\ns_nop 4")

        def reload():
            for f in gather_list(p, False):
                f()
            p("s_waitcnt vmcnt(0)")
        retry(p, "s_cbranch_vccnz", test, reload)
        p.stamp(6)
    W.append(check)
    for j in range(2, -1, -1):
        W += cmac(yGD2 + 4 * j, yGD2 + 4 * (j + 1), yL256, yNL + 1)
    g = yGD2
    W += [f"v_mul_f32 v{yTA}, v{g}, v{yQ64}", f"v_mul_f32 v{yTA + 1}, v{g}, v{yQ64 + 1}",
          f"v_fma_f32 v{yTA}, -v{g + 1}, v{yQ64 + 1}, v{yTA}", f"v_fmac_f32 v{yTA + 1}, v{g + 1}, v{yQ64}"]
    for sw in ("v_permlane16_swap_b32", "v_permlane32_swap_b32"):
        W.append(f"""
        v_mov_b32 v{yTB}, v{yTA}
        v_mov_b32 v{yTB + 1}, v{yTA + 1}
        s_nop 1
        {sw} v{yTA}, v{yTB}
        {sw} v{yTA + 1}, v{yTB + 1}
        s_nop 1
        v_add_f32 v{yTA}, v{yTA}, v{yTB}
        v_add_f32 v{yTA + 1}, v{yTA + 1}, v{yTB + 1}
        """)
        W += [""] * 5
    W += [f"v_fmac_f32 v{yPQ}, v{yTA}, v{yQM}", f"v_fmac_f32 v{yPQ + 1}, v{yTA}, v{yQM + 1}",
          f"v_fma_f32 v{yPQ}, -v{yTA + 1}, v{yQM + 1}, v{yPQ}", f"v_fmac_f32 v{yPQ + 1}, v{yTA + 1}, v{yQM}"]
    prev = yPQ
    PA, TD = 112, 64
    for tau in range(16):
        u = yU(tau)
        W += cmac(u, prev, yL, yNL) if tau < p.opt.get("hp", 16) else capture(p, lambda: cmul(p, u, prev, yL, u))
        prev = u
        if tau & 1:
            tb, i = divmod(tau, 4)
            for part in range(2):
                W.append(f"v_cvt_pk_bf16_f32 v{PA + 4 * tb + 2 * part + (i >> 1)}, v{yU(tau - 1) + part}, v{u + part}")

    def transpose():
        p(f"s_mul_i32 s{sT2}, s{sCI}, 88\ns_add_u32 s{sT2}, s{sT2}, s{sMX}")
        for tb in range(4):
            for part in range(2):
                p(mfma16(TD + 8 * tb + 4 * part, PA + 4 * tb + 2 * part, ySEL, True))
        p(f"""
        s_lshl_b32 s{sBX}, s{sT2}, 12
        s_add_u32 s{sBX}, s{sBX}, {WS_HID}
        s_mul_i32 s{sT2}, s{sCI}, 12
        s_lshr_b32 s{sT3}, s{sMX}, 3
        s_add_u32 s{sT2}, s{sT2}, s{sT3}
        s_lshl_b32 s{sT2}, s{sT2}, 7
        s_and_b32 s{sMX}, s{sMX}, 7
        s_lshl2_add_u32 s{sMX}, s{sMX}, s{sT2}
        """)
    W.append(transpose)
    W += [""] * 16
    for tb in range(4):
        for k in range(4):
            W.append(f"v_cvt_pk_bf16_f32 v{PA + 4 * tb + k}, v{TD + 8 * tb + 2 * k}, v{TD + 8 * tb + 2 * k + 1}")
        W.append(lambda tb=tb: p.vmem(f"buffer_store_dwordx4 {vr(PA + 4 * tb, 4)}, v{14 + (tb & 1)}, s[{S_WS}:{S_WS + 3}], s{sBX} offen{off(2048 * (tb >> 1))} sc1", "h"))
    W.append(lambda: p.stamp(7))
    return W


def emit(p, x):
    x() if callable(x) else p(x)


def capture(p, f):
    main, p.l = p.l, []
    f()
    L, p.l = p.l, main
    return L


def y_pass_m(p):
    o = p.opt
    st = Stage(p)
    nw = o.get("nw", 0)
    W1, W2 = [], []
    if nw:
        W1, W2 = window_plain(), coef_plain()
        w1d = [int(x) for x in str(o.get("w1d", "2333"[:nw]))]
        n1, n2 = len(W1), -(-len(W2) // o.get("nc", 3))
    else:
        y_publish(p)
    budget = [int(x, 16) for x in str(o.get("bud", "40525588")).zfill(8)]
    gi = o.get("gi", 3)
    W = h_work(p)
    nW = len(W)
    wd = [int(x, 16) for x in str(o.get("wd", "24440")).zfill(9)]
    full = {}
    for c in range(8):
        V = []
        if 1 <= c <= 5:
            V += w1_dma(p, c + 2, yOW)
        if c == gi:
            V += gather_list(p, True)
        for k in range(budget[c]):
            V.append(lambda k=k: st.dma(k == 0))
        A = []
        if nw and c == nw:
            p(f"ds_read_b64 {vr(yTA, 2)}, v{ySA + 1}")
            for f in V[:2]:
                f()
            V = V[2:]
            y_publish(p)
        if c == 0:
            A = capture(p, lambda: w2_dma_setup(p, yO2))
            if st.todo[0][0] == "W":
                for x in A:
                    p(x)
                A = []
            assert budget[0] <= 8
        if c == (nw + 1 if nw else 1):
            A = capture(p, lambda: poll_setup(p, f"s_add_u32 s{sT0}, s{sT0}, s{sV}"))
            A = ["\n".join(A)]
        if c < nw:
            k = -(-n1 * w1d[c] // sum(w1d))
            A, W1 = W1[:k] + A, W1[k:]
        elif nw:
            A, W2 = A + W2[:n2], W2[n2:]
        u = st.read
        rd = u < 4 and full.get(u, 99) <= c - o.get("rdl", 2) and c >= nw
        L = []
        if rd:
            L = [lambda u=u: p.wait_vm(("C", u))] + st.reads(u)
        late = 0
        n = -(-nW * wd[c] // sum(wd))
        if n and len(W) == nW:
            assert not W1 and c > gi
            late = len(V) * o.get("late", 2) // 4
        A, W = A + W[:n], W[n:]
        slots = len(V) + 1
        l0 = len(V) // 2 if rd and full[u] == c - 1 else 0
        for k in range(slots):
            if k < len(V):
                V[k]()
            if k >= l0:
                nl = -(-len(L) // max(1, slots - 1 - k))
                for x in L[:nl]:
                    emit(p, x)
                L = L[nl:]
            if k >= late:
                na = -(-len(A) // (slots - k))
                na += na & 1
                for x in A[:na]:
                    emit(p, x)
                A = A[na:]
        if rd or c == nw - 1:
            p("s_waitcnt lgkmcnt(0)")
        if rd:
            st.read += 1
        for kind, uu in st.full:
            if kind == "C":
                full.setdefault(uu, c)
        if 3 <= c + 1 <= 7:
            p.wait_vm(("w", c + 1))
        if c < 7:
            p.stamp(2 + 2 * c, 1)
        p("s_barrier")
        if c < 7:
            p.stamp(3 + 2 * c, 1)
    if o.get("hx"):
        assert not W
        p.wait_vm("h")
    p("s_barrier")
    p.stamp(5)
    p.stamp(1, 5)
    p.stamp(2, 5)
    assert not W1 and not W2
    st.work = [x for x in W if x != ""]
    return st


def y_ph2(p, st):
    o = p.opt
    st.late = True
    hf = o.get("hf", 0)
    n, first, pend, polled, nd = 0, True, [], False, 0
    lag = o.get("lag", 8)
    if st.work:
        for _ in range(o.get("hd0", 4)):
            st.dma(first)
            first = False
        p(f"s_setprio {o.get('hpr', 3)}")
        hk = o.get("hk", 12)
        for i, x in enumerate(st.work):
            emit(p, x)
            if i % hk == hk - 1:
                st.dma(first)
        p("s_setprio 0")
    while not st.done() or st.read < 4:
        if n == hf:
            if not o.get("hx"):
                p.wait_vm("h")
                flag_store(p, sMX, WS_FLAGS)
            n += 1
        u = st.read
        if not pend and u < 4 and ("C", u) in st.full and len(p.vm) - 1 - p.last(("C", u)) >= lag:
            p.wait_vm(("C", u))
            pend = st.reads(u) + [None]
        if not polled and all(("C", k) in st.full for k in range(4)) and st.left() <= o.get("pl", 10):
            poll_issue(p, 0, 44)
            polled = True
        ok = st.dma(first)
        if ok and st.left() % 4 == 0 and st.left() <= 40:
            p.stamp(12 - st.left() // 4, 5)
        if ok:
            first = False
            n += n < hf
            nd += 1
            yt = o.get("yt", 0)
            if yt and nd > yt and nd <= o.get("ytn", 99):
                p(f"s_waitcnt vmcnt({yt})")
                p.done = max(p.done, len(p.vm) - 1 - yt)
        elif not pend:
            st.read_next()
        k = 4 if ok else len(pend)
        for x in pend[:k]:
            if x is None:
                p("s_waitcnt lgkmcnt(0)")
                st.read += 1
            else:
                p(x)
        pend = pend[k:]
    assert n > hf and polled
    p.stamp(11)
    for pair in range(2):
        p(f"""
        s_xor_b32 s{sT0}, s{sG0}, {pair}
        s_lshl1_add_u32 s{sT0}, s{sV}, s{sT0}
        s_lshl_b32 s{sT0}, s{sT0}, 14
        s_add_u32 s{sUN + 2 * pair}, s{sT0}, s{sHID}
        s_add_u32 s{sUN + 2 * pair + 1}, s{sUN + 2 * pair}, 8192
        """)
    p(f"s_add_u32 s{sBUF}, s{sBUF}, {3 * 32768}")
    poll_check(p, 0, 44)
    p.stamp(12)
    items = []
    for step, tb in order(p, 8):
        items.append((sUN + (step >> 1), step & 1, tb, vB2 + 16 * step, step == 0))

    def after_ramp():
        p.stamp(13, 5)
        p.wait_vm("W")
        p.stamp(14, 5)
        p("s_barrier")
        p.stamp(10)
        p.stamp(15, 5)
    post = {o.get("ys", 22): lambda: p("s_barrier")}
    side = {}
    spread(side, partial_addr(), 4, 3)
    if o.get("ef"):
        final_loads(p)
        ph2_loop(p, items, {}, post, side, min(9, o.get("yramp", 8)), after_ramp, 10, 9)
    else:
        ph2_loop(p, items, {}, post, side, o.get("yramp", 8), after_ramp, 13, o.get("yd", 10))
    p.stamp(13)
    if not o.get("ef"):
        final_loads(p)
    for tb in range(4):
        partial_write(p, tb)
    final(p)
    p("s_branch L_fin")


xTR = 8
xAX, xEA, xRL, xEX = 16, 18, 20, 22
xWF, NWF = 32, 6
xONE, xB1, xCS = 28, 26, 56
xOX, xOB, xOW, xSA, xST = 32, 36, 38, 40, 42
xACC, xXF = 64, 128


def x_pass_s(p):
    o = p.opt
    p("L_X:")
    if o.get("xp0"):
        p("s_setprio 2")
    p.raw(1)
    p(f"""
    v_lshrrev_b32 v{vT0}, 4, v{vL}
    v_and_b32 v{vT1}, 7, v{vL}
    v_xor_b32 v{vT1}, v{vT1}, v{vT0}
    v_lshlrev_b32 v{vT1}, 4, v{vT1}
    v_lshrrev_b32 v{vT2}, 3, v{vL}
    v_lshl_add_u32 v{xOB}, v{vT2}, 10, v{vT1}
    v_lshrrev_b32 v{vT2}, 5, v{vL}
    v_mul_u32_u24 v{vT2}, {12 * 1024}, v{vT2}
    v_add_u32 v{xOX}, v{vT2}, v{xOB}
    v_xor_b32 v{xOX + 1}, 64, v{xOX}
    v_xor_b32 v{xOB + 1}, 64, v{xOB}
    v_add_u32 v{xOX + 1}, {31 * 1024}, v{xOX + 1}
    v_add_u32 v{xOB + 1}, 7168, v{xOB + 1}
    v_add_u32 v{xOX + 2}, 2048, v{xOX}
    v_add_u32 v{xOX + 3}, 2048, v{xOX + 1}
    s_and_b32 s{sT1}, s{sV}, 1
    s_lshl1_add_u32 s{sBX}, s{sMT}, s{sMH}
    s_lshl3_add_u32 s{sBX}, s{sBX}, s{sT1}
    s_lshl_b32 s{sBX}, s{sBX}, 13
    s_lshl1_add_u32 s{sBB}, s{sNT}, s{sMH}
    s_lshl_b32 s{sBB}, s{sBB}, 14
    s_lshl_b32 s{sMX}, s{sV}, 12
    s_lshl1_add_u32 s{sMB}, s{sT1}, s{sMH}
    s_lshl_b32 s{sMB}, s{sMB}, 11
    s_cmp_eq_u32 s{sT1}, 0
    s_waitcnt lgkmcnt(0)
    s_cselect_b32 s{S_B}, s{pBRE}, s{pBIM}
    s_cselect_b32 s{S_B + 1}, s{pBRE + 1}, s{pBIM + 1}
    s_mov_b32 s{S_B + 2}, {512 * 1024}
    s_mov_b32 s{S_B + 3}, 0x00020000
    """)
    srd(p, S_X, pX, 2048 * 1024)
    p.raw(2)

    def dma_b(c):
        p(f"""
        s_add_u32 s{sT0}, s{sC0}, {c}
        s_and_b32 s{sT0}, s{sT0}, 7
        s_lshl_b32 s{sT1}, s{sT0}, 7
        s_add_u32 m0, s{sMB}, {BR + (c % 3) * 8192}
        s_add_u32 s{sKB}, s{sBB}, s{sT1}
        """)
        for i in range(2):
            p.vmem(f"buffer_load_dwordx4 v{xOB + i}, s[{S_B}:{S_B + 3}], s{sKB} offen{off(1024 * i)}{p.nt('ntb', c)} lds", ("c", c))

    def dma_x(c, same=False):
        if not same:
            p(f"s_add_u32 s{sT0}, s{sC0}, {c}\ns_and_b32 s{sT0}, s{sT0}, 7\ns_lshl_b32 s{sT1}, s{sT0}, 7")
        p(f"s_add_u32 m0, s{sMX}, {XR + c * 16384}\ns_add_u32 s{sKX}, s{sBX}, s{sT1}")
        for i in range(4):
            p.vmem(f"buffer_load_dwordx4 v{xOX + i}, s[{S_X}:{S_X + 3}], s{sKX} offen{off(1024 * i)}{p.nt('ntx', c)} lds", ("c", c))

    def dma(c):
        dma_b(c)
        dma_x(c, True)
    xa = o.get("xa", 0)
    pre = o.get("pre", 0)
    if pre:
        p(f"""
        s_lshl_b32 s{sT0}, s{sMT}, 10
        s_add_u32 s{sT0}, s{sT0}, s{sBB}
        v_lshlrev_b32 v{vT2}, 7, v{vL}
        s_mov_b64 exec, 0xff
        """)
        p.vmem(f"buffer_load_dword v19, v{vT2}, s[{S_B}:{S_B + 3}], s{sT0} offen", "pre")
        p("s_mov_b64 exec, -1")
    else:
        dma(0)
        p.stamp(1)
        p.raw(3)
    srd(p, S_WS, pWS, WS_BYTES)
    p.vmem(f"buffer_load_dword v{vTAG}, off, s[{S_WS}:{S_WS + 3}], 0 sc1", "epoch")
    xd = o.get("xd", 0)

    def bias():
        p(f"""
        v_and_b32 v{vT0}, 15, v{vL}
        s_lshr_b32 s{sT0}, s{sNT}, 2
        s_lshl_b32 s{sT1}, s{sNT}, 1
        s_sub_u32 s{sT0}, s{sT1}, s{sT0}
        s_lshl1_add_u32 s{sT0}, s{sT0}, s{sV}
        s_lshl_b32 s{sT0}, s{sT0}, 5
        v_add_u32 v{vT2}, s{sT0}, v{vT0}
        v_min_u32 v{vT2}, 1775, v{vT2}
        v_lshlrev_b32 v{vT2}, 1, v{vT2}
        """)
        p.vmem(f"global_load_ushort v{xB1}, v{vT2}, s[{pB1}:{pB1 + 1}]", "par")
        p.vmem(f"global_load_ushort v{xB1 + 1}, v{vT2}, s[{pB1}:{pB1 + 1}] offset:32", "par")

    def cap_addr():
        rowfrag_addr(p, xAX)
        p(f"""
        s_add_u32 s{sT0}, s{sMX}, {XR}
        v_add_u32 v{xAX}, s{sT0}, v{xAX}
        v_xor_b32 v{xAX + 1}, 64, v{xAX}
        """)
    if o.get("b0"):
        bias()
        cap_addr()
    if not pre:
        dma(1)
    if o.get("x3"):
        dma(2)
    if o.get("xp0"):
        p("s_setprio 0")
    p.l.append("@XCUT")

    def s1():
        w1_dma_setup(p, xOW)
        srd(p, S_W, pW1, 512 * 3584)

    def s2():
        for k in range(4):
            p(f"v_mov_b32 v{xONE + k}, 0x3f803f80")
        p(f"""
        v_and_b32 v{xSA}, 31, v{vL}
        v_lshlrev_b32 v{xSA}, 3, v{xSA}
        s_lshl2_add_u32 s{sUN}, s{sMT}, s{sV}
        s_lshl_b32 s{sUN}, s{sUN}, 8
        s_add_u32 s{sUN}, s{sUN}, {WS_STATS}
        """)

    def s3():
        w1_tr_addr0(p, xTR)
        p(f"s_lshl_b32 s{sT0}, s{sV}, 6\nv_xor_b32 v{xTR}, s{sT0}, v{xTR}")
        for fb in range(1, 8):
            p(f"v_xor_b32 v{xTR + fb}, {32 * fb}, v{xTR}")
    SET = [lambda: late_ids(p), s1, s2, s3]
    if not o.get("b0"):
        bias()
        cap_addr()
    for f in SET[:4 - xd]:
        f()
    SET = SET[4 - xd:]
    tp = o.get("tp", 0)
    tw1 = o.get("tw1", 0)

    def touch():
        p(f"""
        s_and_b32 s{sT0}, s{sV}, 1
        s_cmp_eq_u32 s{sT0}, 0
        s_cselect_b32 s{S_B}, s{pW1 if tw1 else pW2}, s{pW2}
        s_cselect_b32 s{S_B + 1}, s{(pW1 if tw1 else pW2) + 1}, s{pW2 + 1}
        s_cselect_b32 s{sT2}, s{pCRE}, s{pCIM}
        s_cselect_b32 s{sT3}, s{pCRE + 1}, s{pCIM + 1}
        s_mov_b32 s{S_B + 2}, {512 * 3584}
        s_lshl1_add_u32 s{sT0}, s2, s{sT0}
        s_cmp_lt_u32 s{sV}, 2
        s_cselect_b32 s{S_B}, s{S_B}, s{sT2}
        s_cselect_b32 s{S_B + 1}, s{S_B + 1}, s{sT3}
        s_cselect_b32 s{S_B + 2}, s{S_B + 2}, {512 * 1024}
        s_cselect_b32 s{sT0}, {'s2' if tw1 else 's%d' % sT0}, s2
        s_cselect_b32 s{sT2}, {(56 if tw1 else 28) if o.get('tm', 3) & 1 else 0}, {16 if o.get('tm', 3) & 2 else 0}
        s_mul_i32 s{sT1}, s{sT2}, s{sT0}
        v_cmp_gt_u32 vcc, s{sT2}, v{vL}
        v_add_lshl_u32 v44, v{vL}, s{sT1}, 7
        """)
        if o.get("to"):
            p(f"""
            s_lshr_b32 s{sT0}, s2, 1
            s_and_b32 s{sT1}, s2, 1
            s_and_b32 s{sT2}, s{sV}, 1
            s_lshl1_add_u32 s{sT2}, s{sT0}, s{sT2}
            s_mul_i32 s{sT2}, s{sT2}, 14
            s_add_u32 s{sT2}, s{sT2}, s{sT1}
            s_lshl_b32 s{sT2}, s{sT2}, 9
            s_lshl_b32 s{sT1}, s{sT1}, 7
            s_add_u32 s{sT0}, s{sT0}, s{sT1}
            s_lshl_b32 s{sT0}, s{sT0}, 11
            s_cmp_lt_u32 s{sV}, 2
            s_cselect_b32 s{sT0}, s{sT2}, s{sT0}
            s_cselect_b32 s{sT1}, 0x3c, 0
            v_and_b32 v45, s{sT1}, v{vL}
            v_add_u32 v45, v45, v{vL}
            v_lshl_add_u32 v44, v45, 7, s{sT0}
            """)
        p(f"""
        v_mov_b32 v45, 0x40000000
        v_cndmask_b32 v44, v45, v44, vcc
        """)
        if not o.get("tg"):
            p.vmem(f"buffer_load_dword v19, v44, s[{S_B}:{S_B + 3}], 0 offen", "touch")

    def touch_part(k):
        tg, n = o["tg"], len(str(o["tq"]))
        if tg == 1:
            p(f"""
            s_mul_i32 s{sT0}, s{sJ}, {n}
            s_lshr_b32 s{sT0}, s{sT0}, 5
            s_cmp_eq_u32 s{sT0}, {k}
            s_cselect_b32 s{sT0}, 0, 0x40000000
            v_or_b32 v45, s{sT0}, v44
            """)
        elif tg == 3:
            p(f"s_cmp_eq_u32 s{sMH}, {k}\ns_cselect_b32 s{sT0}, 0, 0x40000000\nv_or_b32 v45, s{sT0}, v44")
        else:
            p(f"v_and_b32 v45, 1, v{vL}\nv_xor_b32 v45, {k}, v45\nv_lshl_or_b32 v45, v45, 30, v44")
        p.vmem(f"buffer_load_dword v19, v45, s[{S_B}:{S_B + 3}], 0 offen", "touch")
    ld = f"buffer_load_dwordx2 {vr(xST, 2)}, v{xSA}, s[{S_WS}:{S_WS + 3}], s{sUN} offen sc1"
    if pre:
        if pre == 1:
            p.wait_vm("pre")
        elif pre == 3:
            p.wait_vm("pf")
        p.stamp(1)
        dma(0)
        dma(1)
    for c in range(8):
        if c < 7:
            p.wait_vm(("c", c))
        if c == 1:
            make_tag(p)
        if c == 7:
            p.wait_vm("st")
            retry(p, "s_cbranch_vccnz", lambda: p(f"v_cmp_ne_u32 vcc, v{xST + 1}, v{vTAG}\ns_nop 4"),
                  lambda: p(f"{ld}\ns_waitcnt vmcnt(0)"))
            p(f"""
            v_and_b32 v{vT0}, s{sMASK}, v{xST}
            v_rcp_f32 v{vT0}, v{vT0}
            v_lshrrev_b32 v{vT1}, 1, v{xSA}
            s_lshl_b32 s{sT0}, s{sV}, 7
            s_add_u32 s{sT0}, s{sT0}, {L_M}
            v_add_u32 v{vT1}, s{sT0}, v{vT1}
            v_lshlrev_b32 v{vT2}, 16, v{xST}
            ds_write_b32 v{vT1}, v{xST} offset:1024
            ds_write_b32 v{vT1}, v{vT0} offset:512
            ds_write_b32 v{vT1}, v{vT2}
            """)
            p.wait_vm(("c", c))
        if c in (o.get("lw", 6 - xa), 7):
            p("s_waitcnt lgkmcnt(0)")
        if c == 0:
            p.stamp(2)
            p.raw(4)
        if c > 0:
            p.stamp(2 * c, 3)
        p("s_barrier")
        p.stamp(2 * c + 1, 3)
        if c == 0 and o.get("xps"):
            p("s_setprio 1")
        if c == o.get("sti", 5):
            p.vmem(ld, "st")
        if not xa:
            if c + 2 < 8:
                dma(c + 2)
        else:
            xr = o.get("xr", 0)
            if c == 0 and o.get("x3"):
                pass
            elif c <= xr and c + 2 < 8:
                dma(c + 2)
            elif c + 2 < 8:
                dma_b(c + 2)
            if c >= xr and c + 3 < 8:
                dma_x(c + 3)
        if c == 4:
            p(f"v_add_u32 v{xAX}, 65536, v{xAX}\nv_add_u32 v{xAX + 1}, 65536, v{xAX + 1}")
        for s in range(2):
            for t in range(2):
                p(f"ds_read_b128 {vr(xXF + 16 * c + 8 * s + 4 * t, 4)}, v{xAX + s} offset:{(c & 3) * 16384 + t * 2048}")
        if c >= 6 - xa:
            for cc in ([c - 5] if xa else [0] if c == 6 else [1, 2]):
                for f in w1_dma(p, cc, xOW):
                    f()
                if (tp, cc) in ((2, 0), (4, 1), (3, 2)):
                    touch()
                if o.get("tg"):
                    if cc == 0:
                        touch()
                    for k, ch in enumerate(str(o["tq"])):
                        if int(ch) - 1 == cc:
                            touch_part(k)
        if SET and c >= o.get("xd0", 0):
            SET.pop(0)()
        if c == 5 and tp == 1:
            touch()
        if o.get("pt", 1) == 1 and c == 1:
            p(f"""
            s_mul_i32 s{sT0}, s{sCI}, 6
            s_lshr_b32 s{sT1}, s{sNT}, 2
            s_add_u32 s{sT0}, s{sT0}, s{sT1}
            s_lshl_b32 s{sT0}, s{sT0}, 8
            s_add_u32 s{sT0}, s{sT0}, {WS_FLAGS + 512}
            s_add_u32 s42, s{pWS}, s{sT0}
            s_addc_u32 s43, s{pWS + 1}, 0
            s_load_dword s84, s[42:43], 0 {'glc' if o.get('ptg', 1) else ''}
            s_load_dword s84, s[42:43], 128 {'glc' if o.get('ptg', 1) else ''}
            """)
    p.stamp(3)
    p(f"""
    v_bfe_u32 v{vT0}, v{vL}, 2, 2
    v_and_b32 v{vT1}, 3, v{vL}
    v_lshl_add_u32 v{vT0}, v{vT0}, 4, v{vT1}
    s_and_b32 s{sT1}, s{sV}, 1
    s_lshl3_add_u32 s{sT0}, s{sMH}, s{sT1}
    s_lshl_b32 s{sT0}, s{sT0}, 5
    s_add_u32 s{sT0}, s{sT0}, {L_M}
    v_lshl_add_u32 v{vT0}, v{vT0}, 2, s{sT0}
    ds_read_b32 v{xEX + 1}, v{vT0} offset:1024
    ds_read_b32 v{xEX + 3}, v{vT0} offset:{1024 + 16}
    ds_read_b32 v{xRL}, v{vT0} offset:512
    ds_read_b32 v{xRL + 1}, v{vT0} offset:{512 + 16}
    v_and_b32 v{xEA}, 15, v{vL}
    v_lshlrev_b32 v{xEA}, 3, v{xEA}
    s_lshl_b32 s{sT0}, s{sV}, 8
    s_add_u32 s{sT0}, s{sT0}, {L_EXT}
    v_add_u32 v{xEA}, s{sT0}, v{xEA}
    v_cmp_gt_u32 vcc, 16, v{vL}
    s_mov_b32 s{sT2}, 0x01000100
    s_waitcnt lgkmcnt(0)
    """)
    for t in range(2):
        e = xEX + 2 * t
        p(f"""
        v_perm_b32 v{e}, v{e + 1}, v{e + 1}, s{sT2}
        v_xor_b32 v{e}, 0x80008000, v{e}
        v_lshrrev_b32 v{e + 1}, 16, v{e + 1}
        v_cndmask_b32 v{e}, 0, v{e}, vcc
        v_cndmask_b32 v{e + 1}, 0, v{e + 1}, vcc
        v_mul_f32 v{xRL + t}, {LOG2E}, v{xRL + t}
        """)
    p.wait_vm(("w", 0))
    p("s_waitcnt lgkmcnt(0)\ns_barrier")
    p.stamp(4)


def x_pass_m(p):
    if p.opt.get("xps") or p.opt.get("xpm"):
        p(f"s_setprio {p.opt.get('xpm', 0)}")
    PD = 4
    WE = p.opt.get("we", 1)

    def reads(n):
        if n >= 128:
            return []
        c, s, fb = n >> 4, (n >> 3) & 1, n & 7
        slot = (2 * c + s) % 7
        return [f"ds_read_b64_tr_b16 {vr(xWF + 4 * (n % NWF) + 2 * e, 2)}, v{xTR + fb} offset:{8192 * slot + 1024 * e}" for e in range(2)]
    nissued = 0
    for n in range(PD):
        for x in reads(n):
            p(x)
            nissued += 1
    for n in range(128):
        c, s, fb = n >> 4, (n >> 3) & 1, n & 7
        if n % WE == 0 and n < 126:
            p(f"s_waitcnt lgkmcnt({nissued - 2 * (n + WE)})")
        R = reads(n + PD)
        bar = (n & 15) == 16 - PD and c < 7
        w = xWF + 4 * (n % NWF)
        if n == 126:
            p("s_waitcnt lgkmcnt(0)")
        for t in range(2):
            p(mfma(xACC + 8 * fb + 4 * t, w, xXF + 16 * c + 8 * s + 4 * t, n < 8))
            if bar and t == 0:
                if c < 2:
                    p.wait_vm(("w", c + 1))
                p("s_barrier")
            if n == 126 and t == 0:
                p("s_barrier")
            if n >= 126:
                k = 2 * (n - 126) + t
                for i in range(2):
                    p(f"ds_read_b64 {vr(xXF + 2 * (2 * k + i), 2)}, v{xTR + k} offset:{128 * i}")
            if R:
                p(R[t])
                nissued += 1
        if fb < 2:
            p(mfma(xCS + 4 * fb, xONE, w, n < 8))
        if n in (123, 124):
            k = n - 123
            a = xCS + 4 * k
            p(f"""
            v_and_b32 v{a + 1}, s{sMASK}, v{a}
            v_sub_f32 v{a}, v{a}, v{a + 1}
            v_cvt_pk_bf16_f32 v{a}, v{a + 1}, v{a}
            v_mov_b32 v{a + 1}, v{xB1 + k}
            ds_write_b64 v{xEA}, {vr(a, 2)} offset:{128 * k}
            """)
            nissued += 1
        if n == 125:
            p(f"v_mov_b32 v{xTR}, v{xEA}")
            for k in range(1, 4):
                p(f"v_xor_b32 v{xTR + k}, {256 * k}, v{xEA}")
    p("s_waitcnt lgkmcnt(0)\ns_barrier")
    p.stamp(1, 5)
    for fb in range(8):
        for t in range(2):
            p(mfma16(xACC + 8 * fb + 4 * t, xXF + 2 * fb, xEX + 2 * t))
    p.stamp(5)
    p.stamp(2, 5)


def mish4(p, a, t, pk, tmp):
    sel = "op_sel_hi:[1,0]" if t == 0 else "op_sel:[0,1] op_sel_hi:[1,1]"
    e, u = tmp, tmp + 4
    p(f"""
    v_pk_mul_f32 {vr(a, 2)}, {vr(a, 2)}, {vr(xRL, 2)} {sel}
    v_pk_mul_f32 {vr(a + 2, 2)}, {vr(a + 2, 2)}, {vr(xRL, 2)} {sel}
    v_exp_f32 v{e}, v{a}
    v_exp_f32 v{e + 1}, v{a + 1}
    v_exp_f32 v{e + 2}, v{a + 2}
    v_exp_f32 v{e + 3}, v{a + 3}
    v_pk_fma_f32 {vr(u, 2)}, {vr(e, 2)}, 0.5, 1.0 op_sel_hi:[1,0,0]
    v_pk_fma_f32 {vr(u + 2, 2)}, {vr(e + 2, 2)}, 0.5, 1.0 op_sel_hi:[1,0,0]
    v_pk_fma_f32 {vr(u, 2)}, {vr(e, 2)}, {vr(u, 2)}, 1.0 op_sel_hi:[1,1,0]
    v_pk_fma_f32 {vr(u + 2, 2)}, {vr(e + 2, 2)}, {vr(u + 2, 2)}, 1.0 op_sel_hi:[1,1,0]
    v_rcp_f32 v{u}, v{u}
    v_rcp_f32 v{u + 1}, v{u + 1}
    v_rcp_f32 v{u + 2}, v{u + 2}
    v_rcp_f32 v{u + 3}, v{u + 3}
    v_pk_fma_f32 {vr(a, 2)}, {vr(a, 2)}, {vr(u, 2)}, {vr(a, 2)} neg_lo:[1,0,0] neg_hi:[1,0,0]
    v_pk_fma_f32 {vr(a + 2, 2)}, {vr(a + 2, 2)}, {vr(u + 2, 2)}, {vr(a + 2, 2)} neg_lo:[1,0,0] neg_hi:[1,0,0]
    v_cvt_pk_bf16_f32 v{pk}, v{a}, v{a + 1}
    v_cvt_pk_bf16_f32 v{pk + 1}, v{a + 2}, v{a + 3}
    """)


def x_epilogue(p):
    PK, TMP, VO = 192, 228, 224
    p(f"""
    s_mul_i32 s{sT0}, s{sCI}, 44
    s_add_u32 s{sT0}, s{sT0}, s{sL0}
    s_add_u32 s{sT0}, s{sT0}, s{sMH}
    s_add_u32 s{sT0}, s{sT0}, 16
    s_and_b32 s{sT1}, s{sV}, 1
    s_lshl2_add_u32 s{sBX}, s{sT0}, s{sT1}
    s_lshl_b32 s{sBX}, s{sBX}, 11
    s_add_u32 s{sBX}, s{sBX}, {WS_HID}
    s_mul_i32 s{sT2}, s{sT1}, 5120
    v_add_u32 v{VO}, s{sT2}, v{vL16}
    v_xor_b32 v{VO + 1}, 1024, v{VO}
    v_xor_b32 v{VO + 2}, 5120, v{VO}
    v_xor_b32 v{VO + 3}, 4096, v{VO}
    s_mul_i32 s{sT2}, s{sCI}, 6
    s_lshr_b32 s{sT3}, s{sNT}, 2
    s_add_u32 s{sT2}, s{sT2}, s{sT3}
    s_add_u32 s{sT2}, s{sT2}, 2
    s_lshl_b32 s{sT2}, s{sT2}, 8
    s_and_b32 s{sT3}, s{sNT}, 3
    s_lshl1_add_u32 s{sKW}, s{sT3}, s{sMH}
    s_lshl1_add_u32 s{sT3}, s{sT3}, s{sT1}
    s_lshl2_add_u32 s{sMB}, s{sT3}, s{sT2}
    """)
    if p.opt.get("xprio"):
        p(f"s_setprio {p.opt['xprio']}")
    if p.opt.get("hx"):
        p(f"""
        s_mul_i32 s{sT2}, s{sCI}, 12
        s_lshr_b32 s{sT1}, s{sNT}, 2
        s_add_u32 s{sT2}, s{sT2}, s{sT1}
        s_lshl_b32 s{sT2}, s{sT2}, 7
        s_lshl2_add_u32 s{sT2}, s{sT3}, s{sT2}
        """)
        flag_store(p, sT2, WS_FLAGS)
    p(f"s_lshl_b32 s{sT0}, s{sMH}, 14\ns_add_u32 s{sMX}, s{sBX}, 8192\ns_sub_u32 s{sMX}, s{sMX}, s{sT0}")

    def store(u, s, t):
        p.vmem(f"buffer_store_dwordx4 {vr(PK + 4 * (4 * u + 2 * s + t), 4)}, v{VO + 2 * s + t}, s[{S_WS}:{S_WS + 3}], s{sMX if u else sBX} offen sc1", ("act", u))

    def guarded(u, body):
        join = p.label("join")
        p(f"s_cmp_eq_u32 s{sKW}, {7 - u}\ns_cbranch_scc1 {join}")
        body()
        p(f"{join}:")

    def frags(u, L):
        def body():
            for s, t in L:
                pk = PK + 4 * (4 * u + 2 * s + t)
                for e in range(2):
                    mish4(p, xACC + 8 * (4 * u + 2 * s + e) + 4 * t, t, pk + 2 * e, TMP)
                store(u, s, t)
                p.stamp(3 + 4 * u + 2 * s + t, 5)
        if L:
            if p.opt.get("al", 1):
                p(".p2align 3")
            guarded(u, body)
    ST = [(0, 0), (0, 1), (1, 0), (1, 1)]
    frags(0, ST)
    frags(1, ST)
    p.stamp(6)
    o = p.opt
    fa = o.get("fa", 1)

    def flag(u):
        p.wait_vm(("act", u))
        if u == 0:
            lt, hv = p.label("light"), p.label("heavy")
            p(f"s_cmp_ge_u32 s{sKW}, 6\ns_cbranch_scc1 {lt}\n{hv}:")
            p.ool += [f"{lt}:", f"    s_waitcnt vmcnt({len(p.vm) - 1 - p.last(('act', 1))})", f"    s_branch {hv}"]
        flag_store(p, sMB, WS_FLAGS + 128 * u)
        p.stamp(11 + u, 5)
        if u == 1:
            p.stamp(7)
    RA, CV = 60, (56 if o.get('wl', -1) >= 0 else 64)
    NR = 12 if o.get('wl', -1) >= 0 else 13
    p(f"""
    s_lshl_b32 s{sBUF}, s{sV}, 13
    s_add_u32 s{sT0}, s{sBUF}, {3 * 32768}
    v_lshrrev_b32 v{vT0}, 2, v{vL}
    v_bfe_u32 v{vT1}, v{vL}, 3, 2
    v_lshlrev_b32 v{vT0}, 7, v{vT0}
    v_lshl_add_u32 v{vT0}, v{vT1}, 5, v{vT0}
    v_and_b32 v{vT1}, 3, v{vL}
    v_lshl_add_u32 v{vT0}, v{vT1}, 3, v{vT0}
    v_add_u32 v{RA}, s{sT0}, v{vT0}
    v_xor_b32 v{RA + 1}, 32, v{RA}
    v_xor_b32 v{RA + 2}, 64, v{RA}
    v_xor_b32 v{RA + 3}, 96, v{RA}
    s_lshl_b32 s{sBB}, s{sN2}, 7
    """)
    w2_dma_setup(p, CV)
    y_units(p)
    srd(p, S_X, pW2, 1792 * 1024)
    poll_setup(p, f"s_lshl1_add_u32 s{sT0}, s{sV}, s{sT0}\ns_add_u32 s{sT0}, s{sT0}, 4")
    for u in range(fa):
        flag(u)
    p(f"s_setprio {o.get('xprio2', 0)}\ns_barrier")
    p.stamp(10)
    rb = Rebase(RA, 3 * 32768)
    QW = [3, 4, 2, 0, 1, 0, 2]

    def reads(u):
        pre, imm = rb.at(QW[u])
        dst = vB2 + 32 * (u % 4)
        return with_pre(pre, [f"ds_read_b64_tr_b16 {vr(dst + 16 * s + 4 * db + 2 * e, 2)}, v{RA + db} offset:{imm + 4096 * s + 2048 * e}"
                              for s in range(2) for db in range(4) for e in range(2)])
    for u in range(4):
        for x in reads(u):
            p(x)
    for u in range(fa, 2):
        flag(u)
    p("s_waitcnt lgkmcnt(0)")
    if o.get("xs", -2) == -3:
        p("s_barrier")
    poll_issue(p, 0)
    wl = o.get("wl", -1)
    WD = []
    for u in (5, 6):
        sr = sBX if u == 5 else sMX
        p(f"s_lshl_b32 s{sr}, s{sUN + u}, 16\ns_add_u32 s{sr}, s{sr}, s{sBB}")
        for h in range(2):
            for k in range(4):
                def f(u=u, h=h, k=k, sr=sr):
                    if k == 0:
                        p(f"s_add_u32 m0, s{sBUF}, {32768 * QW[u] + 4096 * h}\ns_add_u32 s{sr}, s{sr}, {32768 * h}")
                    p.vmem(f"buffer_load_dwordx4 v{CV + k}, s[{S_X}:{S_X + 3}], s{sr} offen{off(1024 * k)} lds", ("W", u))
                WD.append(f)
    nb = 16 if wl < 0 else o.get("wb", 0)
    for f in WD[:nb]:
        f()
    p(f"s_add_u32 s{sT1}, s{sHID}, {32 * 4096}")
    for i in range(7):
        p(f"s_lshl_b32 s{sUN + i}, s{sUN + i}, 13\ns_add_u32 s{sUN + i}, s{sUN + i}, s{sT1}")
    p.stamp(11)
    pb = o.get("pb", 0)
    xs = o.get("xs", -2)
    if pb == 0:
        poll_check(p, 0)
    if xs == -2:
        p("s_barrier")
    if pb == 1:
        poll_check(p, 0)
    p.stamp(12)
    items = []

    def b2(step):
        return vB2 + 32 * ((step >> 1) % 4) + 16 * (step & 1)
    ts = o.get("ts", 6)
    TS = [int(x) for x in str(o["tv"])] if o.get("tv") else [ts] * 4
    for step, tb in order(p, 14):
        if step < 14 - TS[tb]:
            items.append((sUN + (step >> 1), step & 1, tb, b2(step), step == 0))
    FIN = []
    for tb in range(4):
        for step in range(14 - TS[tb], 14):
            items.append((sUN + (step >> 1), step & 1, tb, b2(step), False))
        FIN.append(len(items))
    assert max(TS) <= 8
    pre, post, side = {}, {}, {}
    iB = min(i for i, it in enumerate(items) if it[0] >= sUN + 4)
    use = {u: min(i for i, it in enumerate(items) if it[0] == sUN + u) for u in range(4, 7)}
    pre[iB - o.get('pi', 10)] = lambda: poll_issue(p, 128)
    pre[iB] = lambda: poll_check(p, 128)
    wr = o.get("wr", 1)
    spread(side, WD[nb:], max(wl, 0), wr)
    last_dma = {5: max(wl, 0) + max(0, 7 - nb) // wr if nb < 8 else -99, 6: max(wl, 0) + (15 - nb) // wr if nb < 16 else -99, 4: -99}
    prev_end, ends = 0, []
    for u in range(4, 7):
        R = reads(u)
        if u > 4:
            R = [lambda u=u: p.wait_vm(("W", u))] + R
        a = max(8 * (u - 4) + (8 if o.get('g2', 1) else 5), prev_end, last_dma[u] + o.get("wg", 10))
        lim = use[u] - 1
        per = o.get('rp', 2)
        while True:
            n1 = len(R) - 8
            b = max(8 * (u - 4) + 9, a + -(-n1 // per))
            end = b + -(-8 // per)
            if end <= lim - (6 - u) or per == 8:
                break
            per += 1
        assert end <= lim, (u, a, b, end, lim)
        spread(side, R[:n1], a, per)
        spread(side, R[n1:], b, per)
        ends.append((end, lim))
        prev_end = end
    covered = -1
    for end, lim in ends:
        if end > covered:
            side.setdefault(lim, []).append("s_waitcnt lgkmcnt(0)")
            covered = lim
    pa = max(prev_end, min(o.get("pa", 32), FIN[0] - 3))
    spread(side, partial_addr(), pa, 3)
    assert pa + 3 <= FIN[0] and o.get('gy', 28) < FIN[0]
    post[o.get("gy", 28)] = lambda: (p.stamp(14), p("s_barrier"))
    post[37] = lambda: p.stamp(15)
    if o.get("xp3"):
        side.setdefault(o["xp3"], []).append("s_setprio 2")
        if o.get("xp4"):
            side.setdefault(o["xp4"], []).append("s_setprio 0")
    if xs >= 0:
        post[xs] = lambda: p("s_barrier")
    ar = (lambda: p("s_barrier")) if xs == -1 else None
    wp = o.get("wp", 2)
    for tb in range(3):
        i0 = FIN[tb]
        if o.get("g2", 1):
            side.setdefault(i0, []).extend(["", ""] + pw_list(tb))
            post[i0 + 3] = lambda: p("s_waitcnt lgkmcnt(0)\ns_barrier")
            continue
        if wp == 5:
            Wl = pw_list(tb)
            side.setdefault(i0, []).extend(["", "", Wl[0] + "\n" + Wl[1]])
            side.setdefault(i0 + 1, []).extend([Wl[2], Wl[3]])
            post[i0 + o.get("tb", 2)] = lambda: p("s_waitcnt lgkmcnt(0)\ns_barrier")
            continue
        spread(side, pw_list(tb), i0 + 1, wp)
        post[i0 + 4 // wp + o.get("tb", 1)] = lambda: p("s_waitcnt lgkmcnt(0)\ns_barrier")

    def last():
        p.stamp(13)
        p("s_nop 4")
        partial_write(p, 3)
        p("s_waitcnt lgkmcnt(0)\ns_barrier")
    post[55] = last
    if o.get("dbm"):
        g0 = 56 - ts
        W2 = pw_list(2)
        side[(g0, 0, 4)] = W2[0:1]
        side[(g0, 0, 5)] = W2[1:2]
        side[(g0, 1, 0)] = W2[2:3]
        side[(g0, 1, 1)] = W2[3:4]
        side[(g0, 1, 4)] = ["s_waitcnt lgkmcnt(0)", "s_barrier"]
        ph2_loop(p, items, pre, post, side, o.get('ramp', 5), ar, NR, tail=(g0, ts))
    else:
        ph2_loop(p, items, pre, post, side, o.get('ramp', 5), ar, NR)
    p(f"""
    s_lshl3_add_u32 s{sT0}, s{sN2}, s{sV}
    s_lshl_b32 s{sT0}, s{sT0}, 5
    s_add_u32 s{sT0}, s{sT0}, s{sM2}
    s_cmp_lg_u32 s{sT0}, 31
    s_cbranch_scc1 L_fin
    s_mov_b64 exec, 1
    buffer_store_dword v{vTAG}, off, s[{S_WS}:{S_WS + 3}], 0 sc1
    """)


fA = 142


def fin_regs(p):
    return (48, 56, vT2) if p.opt.get("ef") else (128, 136, 140)


def final_loads(p):
    fX, fS, fD = fin_regs(p)
    A = 64 if p.opt.get("ef") else 148
    srd(p, S_X, pX, 2048 * 1024)
    srd(p, S_W, pOUT, 2048 * 2048)
    p(f"""
    s_lshl2_add_u32 s{sT0}, s{sM2}, s{sV}
    s_lshl_b32 s{sKX}, s{sT0}, 14
    s_lshl_b32 s{sT1}, s{sN2}, 7
    s_add_u32 s{sKX}, s{sKX}, s{sT1}
    s_lshl_b32 s{sT0}, s{sT0}, 7
    s_add_u32 s{sT0}, s{sT0}, {WS_STATS}
    v_lshrrev_b32 v{A}, 4, v{vL}
    v_and_b32 v{A + 1}, 15, v{vL}
    v_lshlrev_b32 v{A + 2}, 3, v{A + 1}
    v_lshl_add_u32 v{A + 3}, v{A}, 10, v{A + 2}
    v_lshlrev_b32 v{A}, 3, v{A}
    v_add_u32 v{A + 2}, s{sT1}, v{A + 2}
    s_mov_b32 s{sKB}, s{sKX}
    """)
    for tb in range(4):
        p.vmem(f"buffer_load_dwordx2 {vr(fX + 2 * tb, 2)}, v{A + 3}, s[{S_X}:{S_X + 3}], s{sKB} offen", "fin")
        p.vmem(f"buffer_load_dword v{fS + tb}, v{A}, s[{S_WS}:{S_WS + 3}], s{sT0} offen{off(32 * tb)} sc1", "fin")
        if tb < 3:
            p(f"s_add_u32 s{sKB}, s{sKB}, 4096")
    p.vmem(f"global_load_dwordx2 {vr(fD, 2)}, v{A + 2}, s[{pD}:{pD + 1}]", "fin")


def final(p):
    XF, SS, DD = 160, 176, 148
    RY, RF = fA + 4, fA + 5
    fX, fS, fD = fin_regs(p)
    p.wait_vm("fin")
    p(f"""
    v_lshrrev_b32 v{fA}, 4, v{vL}
    v_and_b32 v{fA + 1}, 15, v{vL}
    v_lshlrev_b32 v{fA + 3}, 3, v{fA + 1}
    v_lshl_add_u32 v{fA + 3}, v{fA}, 10, v{fA + 3}
    s_lshl_b32 s{sT0}, s{sV}, 2
    v_add_u32 v{RF}, s{sT0}, v{fA}
    v_xor_b32 v{RF}, v{RF}, v{fA + 1}
    v_lshlrev_b32 v{RF}, 4, v{RF}
    v_lshl_add_u32 v{RF}, v{fA + 1}, 8, v{RF}
    v_add_u32 v{RY}, {3 * 32768}, v{RF}
    v_lshlrev_b32 v{fA + 3}, 1, v{fA + 3}
    s_lshl_b32 s{sKX}, s{sKX}, 1
    s_mov_b32 s{sT2}, {LN2}
    v_lshlrev_b32 v{DD}, 16, v{fD}
    v_and_b32 v{DD + 1}, s{sMASK}, v{fD}
    v_lshlrev_b32 v{DD + 2}, 16, v{fD + 1}
    v_and_b32 v{DD + 3}, s{sMASK}, v{fD + 1}
    """)
    for tb in range(4):
        x, s = XF + 4 * tb, SS + 4 * tb
        p(f"""
        v_and_b32 v153, s{sMASK}, v{fS + tb}
        v_rcp_f32 v153, v153
        v_lshlrev_b32 v152, 16, v{fS + tb}
        v_lshlrev_b32 v{x}, 16, v{fX + 2 * tb}
        v_and_b32 v{x + 1}, s{sMASK}, v{fX + 2 * tb}
        v_lshlrev_b32 v{x + 2}, 16, v{fX + 2 * tb + 1}
        v_and_b32 v{x + 3}, s{sMASK}, v{fX + 2 * tb + 1}
        """)
        for k in range(4):
            p(f"v_sub_f32 v{s + k}, v{x + k}, v152")
        for k in range(4):
            p(f"v_mul_f32 v{s + k}, v153, v{s + k}")
    p.stamp(10, 6)
    p("s_waitcnt lgkmcnt(0)\ns_barrier")
    p.stamp(14)
    p.stamp(11, 6)
    Y = 64
    for tb in range(4):
        for w in range(4):
            p(f"ds_read_b128 {vr(Y + 16 * tb + 4 * w, 4)}, v{RY} offset:{8192 * w + 32768 * (tb >> 1) + 4096 * (tb & 1)}")
    for tb in range(4):
        p(f"s_waitcnt lgkmcnt({12 - 4 * tb})")
        y, s = Y + 16 * tb, SS + 4 * tb
        for k in range(4):
            p(f"v_fma_f32 v{s + k}, v{s + k}, v{DD + k}, v{y + k}")
            p(f"v_add_f32 v{y + 4 + k}, v{y + 4 + k}, v{y + 8 + k}")
        for k in range(4):
            p(f"v_add_f32 v{s + k}, v{s + k}, v{y + 12 + k}")
        for k in range(4):
            p(f"v_add_f32 v{s + k}, v{s + k}, v{y + 4 + k}")
        for k in range(4):
            p(f"v_mul_f32 v{s + k}, s{sT2}, v{s + k}")
    fp = p.opt.get("fp", 0)
    deferred = []
    for tb in range(4):
        F = Y + 16 * tb
        x, s = XF + 4 * tb, SS + 4 * tb
        p.stamp(12 + tb, 6)
        p("s_barrier")
        if tb == 3:
            p.stamp(15)
        for w in range(4):
            p(f"ds_read_b128 {vr(F + 4 * w, 4)}, v{RF} offset:{8192 * w + 32768 * (tb >> 1) + 4096 * (tb & 1)}")
        p.l += deferred
        e = F + 4
        if tb < 3:
            p("s_waitcnt lgkmcnt(2)")
            for k in range(4):
                p(f"v_add_f32 v{F + k}, v{F + k}, v{F + 4 + k}")
            p("s_waitcnt lgkmcnt(0)")
            for k in range(4):
                p(f"v_add_f32 v{F + 8 + k}, v{F + 8 + k}, v{F + 12 + k}")
            for k in range(4):
                p(f"v_add_f32 v{F + k}, v{F + k}, v{F + 8 + k}")
            for k in range(4):
                p(f"v_exp_f32_e64 v{e + k}, -v{F + k}")
            for k in range(4):
                p(f"v_mul_f32 v{s + k}, v{s + k}, v{F + k}")
            for k in range(4):
                p(f"v_add_f32 v{e + k}, 1.0, v{e + k}")
            for k in range(4):
                p(f"v_rcp_f32 v{e + k}, v{e + k}")
            p("s_nop 0")
            for k in range(4):
                p(f"v_fmac_f32 v{x + k}, v{s + k}, v{e + k}")
        else:
            p("s_waitcnt lgkmcnt(2)")
            for h in (0, 2):
                p(f"v_pk_add_f32 {vr(F + h, 2)}, {vr(F + h, 2)}, {vr(F + 4 + h, 2)}")
            p("s_waitcnt lgkmcnt(0)")
            for h in (0, 2):
                p(f"v_pk_add_f32 {vr(F + 8 + h, 2)}, {vr(F + 8 + h, 2)}, {vr(F + 12 + h, 2)}")
            for h in (0, 2):
                p(f"v_pk_add_f32 {vr(F + h, 2)}, {vr(F + h, 2)}, {vr(F + 8 + h, 2)}")
            for k in range(4):
                p(f"v_exp_f32_e64 v{e + k}, -v{F + k}")
            for h in (0, 2):
                p(f"v_pk_mul_f32 {vr(s + h, 2)}, {vr(s + h, 2)}, {vr(F + h, 2)}")
            for h in (0, 2):
                p(f"v_pk_add_f32 {vr(e + h, 2)}, {vr(e + h, 2)}, 1.0 op_sel_hi:[1,0]")
            for k in range(4):
                p(f"v_rcp_f32 v{e + k}, v{e + k}")
            for h in (0, 2):
                p(f"v_pk_fma_f32 {vr(x + h, 2)}, {vr(s + h, 2)}, {vr(e + h, 2)}, {vr(x + h, 2)}")
        p(f"buffer_store_dwordx4 {vr(x, 4)}, v{fA + 3}, s[{S_W}:{S_W + 3}], s{sKX} offen {'sc1' if tb < 4 - p.opt.get('op', 0) else p.opt.get('of', '')}")
        if tb < 3:
            p(f"s_add_u32 s{sKX}, s{sKX}, 8192")
            if fp:
                deferred, p.l = p.l[-fp:], p.l[:-fp]


def finish(p):
    p("L_fin:")
    if p.opt.get("stamps"):
        p.stamp(8)
        p("s_waitcnt vmcnt(0)")
        p.stamp(9)
        p.stamp(9, 9)
        if "probe" in p.opt:
            p(f"""
            s_lshl_b32 s{sT0}, 1, s{sW}
            s_and_b32 s{sT0}, s{sT0}, {p.opt.get('pw', 255)}
            s_cmp_eq_u32 s{sT0}, 0
            s_cbranch_scc1 L_end
            s_add_u32 s{sT0}, s{STAMP_REGS[p.opt['probe']]}, 5000
            L_probe:
            s_memrealtime s[34:35]
            s_waitcnt lgkmcnt(0)
            s_sub_u32 s{sT1}, s34, s{sT0}
            s_cmp_lt_i32 s{sT1}, 0
            s_cbranch_scc1 L_probe
            s_branch L_end
            """)
        p(f"""
        s_mov_b64 exec, 1
        s_lshl3_add_u32 s{sT0}, s2, s{sW}
        s_lshl_b32 s{sT0}, s{sT0}, 6
        s_add_u32 s{sT0}, s{sT0}, {WS_STAMP}
        """)
        for i in range(16):
            p(f"v_mov_b32 v8, s{STAMP_REGS[i]}\nbuffer_store_dword v8, off, s[{S_WS}:{S_WS + 3}], s{sT0} offset:{4 * i}")
    p("s_endpgm")
    p.l += p.ool
    p("L_end:\ns_endpgm")


DOC = """;
;  * LayerNorm is folded into the GEMMs: xn.W = (x.W - m*colsum(W)) / s.  Every workgroup computes the statistics of
;    8 rows and hands them to the others; column sums come from MFMAs with an all-ones operand.
;  * phase 1, tile 128 rows x (32 complex channels + 128 (or 64) MLP columns), operands staged by LDS-DMA:
;      pass S: waves 0-3 ("Y") multiply x by B_re/B_im, waves 4-7 ("X") issue the DMA and keep their x fragments;
;      pass M: X multiplies x by w1 while Y finishes the scan and stages the phase-2 weights; then Mish.
;  * phase 2, tile 64 x 64, K split over the waves (Y: h.C, X: act.w2), weights in registers, partial sums reduced
;    launch is never taken for this launch's; payloads, flags and polls use agent-coherent accesses (any placement).
;
"""


def build(opt):
    global WS_HID
    WS_HID = opt.get("hid", 2) << 20
    p = P(opt)
    entry(p)
    st0 = p.save()
    y_prologue(p)
    y_pass_s(p)
    if not opt.get('nw'):
        y_window(p)
    st = y_pass_m(p)
    y_ph2(p, st)
    p.restore(st0)
    x_pass_s(p)
    x_pass_m(p)
    x_epilogue(p)
    finish(p)
    L = p.l
    iy, ix0, ix1 = L.index("@YCUT"), L.index("L_X:"), L.index("@XCUT")
    if opt.get("lay", 1):
        L = L[:iy] + ["    s_branch L_Y2"] + L[ix0:ix1] + ["    s_branch L_X2", "L_Y2:"] + L[iy + 1:ix0] + ["L_X2:"] + L[ix1 + 1:]
    else:
        L = [x for x in L if not x.startswith("@")]
    p.l = L
    t = HEAD + f"; @launch grid=(256,1,1) block=(512,1,1) lds={LDS_BYTES}\n" + '.amdgcn_target "amdgcn-amd-amdhsa--gfx950"\n' + DOC
    t += kernel_text(KN + "_kernel", p.text(), vgpr=256, sgpr=102, accum=256)
    return t


if __name__ == "__main__":
    out = sys.argv[1]
    opt = {}
    for a in sys.argv[2:]:
        k, v = a.split("=")
        opt[k] = int(v) if v.lstrip("-").isdigit() else v
    open(out, "w").write(build(opt))
```
